```python
import torch

def _softmax(x, axis=-1):
    return torch.softmax(x, dim=axis)
def _gelu(x):
    return torch.nn.functional.gelu(x, approximate="tanh")
def _silu(x):
    return torch.nn.functional.silu(x)
def _sigmoid(x):
    return torch.sigmoid(x)
def _layernorm(x, axis=-1, eps=1e-5):
    m = x.mean(dim=axis, keepdim=True)
    v = x.var(dim=axis, keepdim=True, unbiased=False)
    return (x - m) / torch.sqrt(v + eps)
def _scatter_add(tgt, idx, src, axis=0):
    return tgt.clone().index_add_(axis, idx, src)
def _segment_sum(src, seg, n):
    out = torch.zeros((n,) + src.shape[1:], dtype=src.dtype)
    return out.index_add_(0, seg, src)
def _pad(x, pw):
    flat = tuple(v for pair in reversed(pw) for v in pair)
    return torch.nn.functional.pad(x, flat)

kernel_name = 'standalone__fft_conv__vision'

def setup_inputs():

    _w = (lambda a: (lambda t: t.to(torch.bfloat16) if t.is_floating_point() else t)(torch.as_tensor(a)))
    H = W = 224
    C = 96
    K = 5
    return {
        "x": _w((lambda *s: torch.randn(*s, dtype=torch.bfloat16) * 0.05)(1, H, W, C)),
        "w": _w((lambda *s: torch.randn(*s, dtype=torch.bfloat16) * 0.05)(K, K, C, C)),
    }

def reference(x, w):
    B, H, W, C = x.shape
    K = w.shape[0]
    wp = _pad(w, ((0, H - K), (0, W - K), (0, 0), (0, 0)))
    Xf = (lambda x, axes=(-2,-1): torch.fft.rfft2(x.float(), dim=axes))(x, axes=(1, 2))
    Wf = (lambda x, axes=(-2,-1): torch.fft.rfft2(x.float(), dim=axes))(wp, axes=(0, 1))
    Yf = torch.einsum('bhwi,hwio->bhwo', Xf, Wf)
    y = (lambda x, s, axes=(-2,-1): torch.fft.irfft2(x, s=s, dim=axes).to(torch.bfloat16))(Yf, (H, W), axes=(1, 2))
    return y
```

```python
import sys, argparse

class Cfg:
    nrows = 19
    store_flags = ""
    xload_flags = ""
    wload_flags = ""
    stamps = False
    loop = True
    bar_pos = {1: 0, 2: 0, 3: 0, 4: 0}
    name = "standalone__fft_conv__vision.s"

H = W = 224
ROWB = W * 192
XBYTES = H * ROWB
WBYTES = 460800
NSLOT = 4
SLOTB = 4096
WSTAGE = 0
XRING = 76 * 1024
LDS_BYTES = XRING + 4 * NSLOT * SLOTB

S_X, S_Wt, S_O = 8, 12, 16
S_WS = 20
S_WAVE = 22
S_XB = 23
S_XROW = 24
S_OROW = 25
S_CNT = 26
S_T0, S_T1, S_T2, S_T3 = 27, 28, 29, 30
S_WM = 31
S_WM3 = 32
S_WM3S = 33
S_CG = 34
S_W0 = 35
S_STAMP = 40
V_TID = 0
V_XA = 2
V_XD = 8
V_WD = 12
V_TR = 13
V_OUT = 14
V_TR2 = 15
V_T = 16
V_O = 24
V_ST = 28
V_ACC = 32
V_B = 48
V_WT = 212

def wreg(kh, f, lo=None):
    i = kh * 15 + f
    if i < 64:
        base, t = 4 * i, "a"
    else:
        base, t = V_WT + 4 * (i - 64), "v"
    if lo is None:
        return f"{t}[{base}:{base+3}]"
    return f"{t}[{base+lo}:{base+lo+1}]"
def breg(row, f):
    b = V_B + (row % 2) * 60 + 4 * f
    return f"v[{b}:{b+3}]"
def acc(o):
    b = V_ACC + 4 * (o % 4)
    return b

class Em:
    def __init__(self, cfg):
        self.cfg = cfg
        self.L = []
        self.vm = []
        self.vm_done = 0
        self.lg = []
        self.lg_done = 0
        self.nstamp = 0
    def A(self, s): self.L.append("  " + s)
    def raw(self, s): self.L.append(s)
    def vmem(self, s, tag):
        self.A(s); self.vm.append(tag)
    def lds(self, s, tag):
        self.A(s); self.lg.append(tag)
    def wait_vm(self, tag):
        idx = max(i for i, t in enumerate(self.vm) if t == tag)
        if idx < self.vm_done: return
        n = len(self.vm) - 1 - idx
        assert n <= 63, n
        self.A(f"s_waitcnt vmcnt({n})")
        self.vm_done = idx + 1
    def wait_lg(self, tag):
        idx = max(i for i, t in enumerate(self.lg) if t == tag)
        if idx < self.lg_done: return
        n = len(self.lg) - 1 - idx
        n = min(n, 15)
        self.A(f"s_waitcnt lgkmcnt({n})")
        self.lg_done = len(self.lg) - n
    def stamp(self):
        if not self.cfg.stamps: return
        self.A(f"s_memtime s[{S_STAMP}:{S_STAMP+1}]")
        self.A("s_waitcnt lgkmcnt(0)")
        self.lg_done = len(self.lg)
        self.A(f"v_writelane_b32 v{V_ST}, s{S_STAMP}, {self.nstamp}")
        self.nstamp += 1

def x_dma(e, row, q):
    slot = row % NSLOT
    e.A(f"s_add_u32 m0, s{S_XB}, {slot*SLOTB + q*1024}")
    return f"buffer_load_dwordx4 v{V_XD+q}, s[{S_X}:{S_X+3}], s{S_XROW} offen {e.cfg.xload_flags} lds".replace("  ", " ")
def x_adv(e):
    e.A(f"s_add_u32 s{S_XROW}, s{S_XROW}, {ROWB}")
    e.A(f"s_cmp_eq_u32 s{S_XROW}, {XBYTES}")
    e.A(f"s_cselect_b32 s{S_XROW}, 0, s{S_XROW}")

def prologue(e):
    c = e.cfg
    A = e.A
    A("s_cmp_ge_u32 s2, 252")
    A("s_cbranch_scc1 L_end")
    A("s_load_dwordx4 s[4:7], s[0:1], 0")
    A(f"s_load_dwordx2 s[{S_O}:{S_O+1}], s[0:1], 16")
    if c.stamps:
        A(f"s_load_dwordx2 s[{S_WS}:{S_WS+1}], s[0:1], 32")
        A(f"v_mov_b32 v{V_ST}, 0")
    e.stamp() if False else None
    A(f"v_lshrrev_b32 v1, 6, v0")
    A(f"v_and_b32 v0, 63, v0")
    A(f"v_readfirstlane_b32 s{S_WAVE}, v1")
    A(f"s_lshr_b32 s{S_T0}, s2, 3")
    A(f"s_and_b32 s{S_T1}, s2, 7")
    A(f"s_mul_i32 s{S_T2}, s{S_T0}, 43")
    A(f"s_lshr_b32 s{S_T2}, s{S_T2}, 8")
    A(f"s_mul_i32 s{S_T3}, s{S_T2}, 6")
    A(f"s_sub_u32 s{S_CG}, s{S_T0}, s{S_T3}")
    A(f"s_mul_i32 s{S_T1}, s{S_T1}, 5")
    A(f"s_add_u32 s{S_T1}, s{S_T1}, s{S_T2}")
    A(f"s_cmp_lt_u32 s2, 240")
    A(f"s_cbranch_scc1 L_map_done")
    A(f"s_sub_u32 s{S_T0}, s2, 240")
    A(f"s_cmp_ge_u32 s{S_T0}, 6")
    A(f"s_cselect_b32 s{S_T1}, 41, 40")
    A(f"s_cselect_b32 s{S_T2}, 6, 0")
    A(f"s_sub_u32 s{S_CG}, s{S_T0}, s{S_T2}")
    e.raw("L_map_done:")
    A(f"s_lshl_b32 s{S_T1}, s{S_T1}, 2")
    A(f"s_add_u32 s{S_T1}, s{S_T1}, s{S_WAVE}")
    A(f"s_mul_i32 s{S_T2}, s{S_T1}, 4682")
    A(f"s_lshr_b32 s{S_T2}, s{S_T2}, 16")
    A(f"s_mul_i32 s{S_T3}, s{S_T2}, 14")
    A(f"s_sub_u32 s{S_T3}, s{S_T1}, s{S_T3}")
    A(f"s_lshl_b32 s{S_W0}, s{S_T3}, 4")
    A(f"s_mul_i32 s{S_T2}, s{S_T2}, {56*21846}")
    A(f"s_lshr_b32 s{S_T2}, s{S_T2}, 16")
    A(f"s_mul_i32 s{S_OROW}, s{S_T2}, {ROWB}")
    A(f"s_add_u32 s{S_T2}, s{S_T2}, {H-4}")
    A(f"s_cmp_ge_u32 s{S_T2}, {H}")
    A(f"s_cselect_b32 s{S_T3}, {H}, 0")
    A(f"s_sub_u32 s{S_T2}, s{S_T2}, s{S_T3}")
    A(f"s_mul_i32 s{S_XROW}, s{S_T2}, {ROWB}")
    A(f"s_mul_i32 s{S_XB}, s{S_WAVE}, {NSLOT*SLOTB}")
    A(f"s_add_u32 s{S_XB}, s{S_XB}, {XRING}")
    A(f"s_add_u32 s{S_T0}, s{S_W0}, {W-4}")
    for q in range(4):
        t0, t1, t2 = V_T, V_T+1, V_T+2
        A(f"v_add_u32 v{t0}, {64*q}, v0")
        A(f"v_mul_u32_u24 v{t1}, 5462, v{t0}")
        A(f"v_lshrrev_b32 v{t1}, 16, v{t1}")
        A(f"v_mul_u32_u24 v{t2}, 12, v{t1}")
        A(f"v_sub_u32 v{t2}, v{t0}, v{t2}")
        A(f"v_lshrrev_b32 v{V_T+3}, 1, v{t1}")
        A(f"v_and_b32 v{V_T+3}, 2, v{V_T+3}")
        A(f"v_xor_b32 v{t2}, v{t2}, v{V_T+3}")
        A(f"v_add_u32 v{t1}, s{S_T0}, v{t1}")
        A(f"v_subrev_u32 v{V_T+3}, {W}, v{t1}")
        A(f"v_min_u32 v{t1}, v{t1}, v{V_T+3}")
        A(f"v_mul_u32_u24 v{t1}, 192, v{t1}")
        A(f"v_lshl_add_u32 v{V_XD+q}, v{t2}, 4, v{t1}")
        if q == 3:
            A(f"v_cmp_gt_u32 vcc, 240, v{t0}")
            A(f"v_mov_b32 v{t1}, 0x40000000")
            A(f"s_nop 1")
            A(f"v_cndmask_b32 v{V_XD+q}, v{t1}, v{V_XD+q}, vcc")
    t0, t1, t2 = V_T, V_T+1, V_T+2
    A(f"v_lshrrev_b32 v{t0}, 1, v0")
    A(f"v_and_b32 v{t1}, 12, v{t0}")
    A(f"v_lshlrev_b32 v{t1}, 1, v{t1}")
    A(f"v_and_b32 v{t2}, 3, v{t0}")
    A(f"v_add_u32 v{t1}, v{t1}, v{t2}")
    A(f"v_lshrrev_b32 v{t2}, 4, v{t0}")
    A(f"v_lshl_add_u32 v{t1}, v{t2}, 2, v{t1}")
    A(f"v_mul_u32_u24 v{t1}, 192, v{t1}")
    A(f"v_and_b32 v{t2}, 1, v0")
    A(f"v_lshl_add_u32 v{t1}, v{t2}, 4, v{t1}")
    A(f"s_mul_i32 s{S_T0}, s{S_WAVE}, 6144")
    A(f"s_lshl_b32 s{S_T1}, s{S_CG}, 5")
    A(f"s_add_u32 s{S_T0}, s{S_T0}, s{S_T1}")
    A(f"v_add_u32 v{V_WD}, s{S_T0}, v{t1}")
    A(f"s_lshl_b32 s{S_WM}, s{S_WAVE}, 10")
    if WSTAGE: A(f"s_add_u32 s{S_WM}, s{S_WM}, {WSTAGE}")
    A(f"s_add_u32 s{S_WM3}, s{S_WM}, {12*1024}")
    A(f"s_cmp_eq_u32 s{S_WAVE}, 3")
    A(f"s_cselect_b32 s{S_WM3}, {WSTAGE + 75*1024}, s{S_WM3}")
    A(f"s_cselect_b32 s{S_WM3S}, 0, {15*1024}")
    A("s_waitcnt lgkmcnt(0)")
    A(f"s_mov_b32 s{S_X}, s4")
    A(f"s_mov_b32 s{S_X+1}, s5")
    A(f"s_mov_b32 s{S_X+2}, {XBYTES}")
    A(f"s_mov_b32 s{S_X+3}, 0x20000")
    A(f"s_mov_b32 s{S_Wt}, s6")
    A(f"s_mov_b32 s{S_Wt+1}, s7")
    A(f"s_mov_b32 s{S_Wt+2}, {WBYTES}")
    A(f"s_mov_b32 s{S_Wt+3}, 0x20000")
    A(f"s_mov_b32 s{S_O+2}, {XBYTES}")
    A(f"s_mov_b32 s{S_O+3}, 0x20000")
    e.stamp()
    def xrow(r):
        for q in range(4):
            s = x_dma(e, r, q)
            if q == 0: A("s_nop 0")
            else: A("s_nop 0")
            e.vmem(s, f"x{r}")
        x_adv(e)
    def wlev(Lv):
        kh = 4 - Lv
        for m in range(4):
            if m < 3:
                A(f"s_add_u32 m0, s{S_WM}, {(15*Lv + 4*m)*1024}")
            else:
                A(f"s_mov_b32 m0, s{S_WM3}")
            A(f"s_mov_b32 s{S_T0}, {(kh*15 + 4*m)*6144}")
            e.vmem(f"buffer_load_dwordx4 v{V_WD}, s[{S_Wt}:{S_Wt+3}], s{S_T0} offen {c.wload_flags} lds".replace("  ", " "), f"w{Lv}")
        A(f"s_add_u32 s{S_WM3}, s{S_WM3}, s{S_WM3S}")
    xrow(0); wlev(0); xrow(1); wlev(1); xrow(2); wlev(2); xrow(3); wlev(3); wlev(4)
    A(f"v_and_b32 v{V_T}, 15, v0")
    A(f"v_lshrrev_b32 v{V_T+1}, 4, v0")
    for kw in range(5):
        A(f"v_add_u32 v{V_T+2}, {4-kw}, v{V_T}")
        A(f"v_lshrrev_b32 v{V_T+3}, 1, v{V_T+2}")
        A(f"v_and_b32 v{V_T+3}, 2, v{V_T+3}")
        A(f"v_xor_b32 v{V_T+3}, v{V_T+3}, v{V_T+1}")
        A(f"v_mul_u32_u24 v{V_T+2}, 192, v{V_T+2}")
        A(f"v_lshl_add_u32 v{V_T+2}, v{V_T+3}, 4, v{V_T+2}")
        A(f"v_add_u32 v{V_XA+kw}, s{S_XB}, v{V_T+2}")
    A(f"v_lshlrev_b32 v{V_TR}, 3, v0")
    if WSTAGE: A(f"v_add_u32 v{V_TR}, {WSTAGE}, v{V_TR}")
    A(f"v_add_u32 v{V_TR2}, {45*1024}, v{V_TR}")
    A(f"v_add_u32 v{V_T+2}, s{S_W0}, v{V_T}")
    A(f"v_mul_u32_u24 v{V_T+2}, 192, v{V_T+2}")
    A(f"v_lshl_add_u32 v{V_T+2}, v{V_T+1}, 3, v{V_T+2}")
    A(f"s_lshl_b32 s{S_T1}, s{S_CG}, 5")
    A(f"v_add_u32 v{V_OUT}, s{S_T1}, v{V_T+2}")

def b_read(e, row, f):
    kw, cc = divmod(f, 3)
    e.lds(f"ds_read_b128 {breg(row, f)}, v{V_XA+kw} offset:{(row % NSLOT)*SLOTB + cc*64}", f"b{row}")
def tr_read(e, Lv, f, h):
    kh = 4 - Lv
    base, off = (V_TR, (15*Lv + f)*1024 + 512*h) if Lv < 3 else (V_TR2, (15*(Lv-3) + f)*1024 + 512*h)
    e.lds(f"ds_read_b64_tr_b16 {wreg(kh, f, 2*h)}, v{base} offset:{off}", f"t{Lv}")

def step(e, i, chains, last_row):
    c = e.cfg
    n = c.nrows
    mf = []
    for kh in chains:
        o = i - 4 + kh
        assert 0 <= o < n
        a = acc(o)
        for f in range(15):
            src = "0" if (kh == 4 and f == 0) else f"v[{a}:{a+3}]"
            mf.append((kh, f, f"v_mfma_f32_16x16x32_bf16 v[{a}:{a+3}], {wreg(kh, f)}, {breg(i, f)}, {src}"))
    M = len(mf)
    side = {}
    pre = {}
    def after(p, fn): side.setdefault(min(p, M-1), []).append(fn)
    def before(p, fn): pre.setdefault(p, []).append(fn)
    tr_slots = []
    if 1 <= i <= 4:
        Lv = i
        need = chains.index(4 - Lv) * 15
        bp = c.bar_pos[Lv]
        def bar():
            e.wait_vm(f"w{Lv}"); e.A("s_barrier")
        before(bp, bar)
        span = need - bp
        for t in range(30):
            p = bp + (t * max(span - 3, 1)) // 30
            after(p, (lambda f=t//2, h=t%2: tr_read(e, Lv, f, h)))
        before(need, lambda: e.wait_lg(f"t{Lv}"))
        tr_end = need
    else:
        tr_end = 0
    if i + 1 <= last_row:
        r = i + 1
        start = tr_end if tr_end < M - 8 else tr_end
        start = min(start, M - 1)
        span = max(M - 6 - start, 1)
        first = [True]
        def rd(f):
            if first[0]:
                e.wait_vm(f"x{r}"); first[0] = False
            b_read(e, r, f)
        for f in range(15):
            p = start + 1 + (f * span) // 15
            after(p, (lambda f=f: rd(f)))
    if i + 4 <= last_row:
        r4 = i + 4
        if M >= 45:
            ps = [17, 27, 37, 47] if M >= 60 else [3, 10, 17, 24]
        elif M >= 30: ps = [2, 8, 14, 20]
        else: ps = [1, 4, 7, 10]
        for q in range(4):
            def dm(q=q):
                s = x_dma(e, r4, q)
                dm.pending = s
            st = {}
            def d1(q=q, st=st): st['s'] = x_dma(e, r4, q)
            def d2(q=q, st=st):
                e.vmem(st['s'], f"x{r4}")
                if q == 3: x_adv(e)
            after(ps[q], d1); after(ps[q] + 1, d2)
    if 0 in chains:
        o = i - 4
        endp = chains.index(0) * 15 + 14
        a = acc(o)
        def cv0(): e.A(f"v_cvt_pk_bf16_f32 v{V_O}, v{a}, v{a+1}")
        def cv1(): e.A(f"v_cvt_pk_bf16_f32 v{V_O+1}, v{a+2}, v{a+3}")
        def sto():
            e.vmem(f"buffer_store_dwordx2 v[{V_O}:{V_O+1}], v{V_OUT}, s[{S_O}:{S_O+3}], s{S_OROW} offen {c.store_flags}".rstrip(), f"o{o}")
            e.A(f"s_add_u32 s{S_OROW}, s{S_OROW}, {ROWB}")
        if endp + 12 < M:
            after(endp + 9, cv0); after(endp + 10, cv1); after(endp + 12, sto)
            tail_out = None
        else:
            tail_out = (cv0, cv1, sto)
    else:
        tail_out = None
    for p, (kh, f, s) in enumerate(mf):
        for fn in pre.get(p, []): fn()
        e.A(s)
        for fn in side.get(p, []): fn()
    if tail_out:
        e.A("s_nop 7"); e.A("s_nop 1")
        tail_out[0](); tail_out[1](); e.A("s_nop 0"); tail_out[2]()
    if i + 1 <= last_row:
        e.wait_lg(f"b{i+1}")

def build(cfg):
    e = Em(cfg)
    n = cfg.nrows
    last_row = n + 3
    e.raw(f"; @launch grid=(252,1,1) block=(256,1,1) lds={LDS_BYTES}")
    e.raw('.amdgcn_target "amdgcn-amd-amdhsa--gfx950"')
    e.raw(".text")
    e.raw(".globl standalone__fft_conv__vision_kernel")
    e.raw(".p2align 8")
    e.raw(".type standalone__fft_conv__vision_kernel,@function")
    e.raw("standalone__fft_conv__vision_kernel:")
    prologue(e)
    e.wait_vm("w0")
    e.A("s_barrier")
    e.stamp()
    for f in range(15):
        tr_read(e, 0, f, 0); tr_read(e, 0, f, 1)
        b_read(e, 0, f)
    e.wait_lg("b0")
    e.stamp()
    def chains_for(i):
        if i < 4: return [kh for kh in range(4, 3 - i, -1)]
        if i == 4: return [3, 2, 0, 1, 4]
        return [kh for kh in range(0, 5) if 0 <= i - 4 + kh < n]
    texts = []
    i = 0
    while i <= 4:
        step(e, i, chains_for(i), last_row); e.stamp(); i += 1
    if not cfg.loop:
        while i <= last_row:
            step(e, i, chains_for(i), last_row); e.stamp(); i += 1
    else:
        steady = list(range(5, n))
        nst = len(steady)
        start = len(e.L)
        seg = []
        for ii in steady:
            s0 = len(e.L)
            step(e, ii, chains_for(ii), last_row)
            seg.append(e.L[s0:])
        e.L = e.L[:start]
        import re
        for k in range(4, nst):
            a, b = seg[k % 4], seg[k]
            assert len(a) == len(b), f"non periodic step {steady[k]}"
            for j in range(len(a)):
                if a[j] != b[j]:
                    ma = re.fullmatch(r"  s_waitcnt vmcnt\((\d+)\)", a[j]); mb = re.fullmatch(r"  s_waitcnt vmcnt\((\d+)\)", b[j])
                    assert ma and mb, (a[j], b[j])
                    a[j] = f"  s_waitcnt vmcnt({min(int(ma.group(1)), int(mb.group(1)))})"
        full, rem = divmod(nst, 4)
        assert rem != 0
        e.A(f"s_mov_b32 s{S_CNT}, {full}")
        e.raw(".p2align 3")
        e.raw("L_loop:")
        for k in range(4):
            if k == rem:
                e.A(f"s_cmp_eq_u32 s{S_CNT}, 0")
                e.A("s_cbranch_scc1 L_down")
                e.A(f"s_sub_u32 s{S_CNT}, s{S_CNT}, 1")
            e.L.extend(seg[k])
        e.A("s_branch L_loop")
        e.raw("L_down:")
        i = n
        e.stamp()
        while i <= last_row:
            step(e, i, chains_for(i), last_row); e.stamp(); i += 1
    if cfg.stamps:
        e.A("s_waitcnt vmcnt(0)")
        e.stamp()
        e.A(f"s_lshl_b32 s{S_T0}, s2, 2")
        e.A(f"s_add_u32 s{S_T0}, s{S_T0}, s{S_WAVE}")
        e.A(f"s_lshl_b32 s{S_T0}, s{S_T0}, 8")
        e.A(f"s_add_u32 s{S_WS}, s{S_WS}, s{S_T0}")
        e.A(f"s_addc_u32 s{S_WS+1}, s{S_WS+1}, 0")
        e.A(f"v_lshlrev_b32 v1, 2, v0")
        e.A(f"global_store_dword v1, v{V_ST}, s[{S_WS}:{S_WS+1}]")
    e.raw("L_end:")
    e.A("s_endpgm")
    e.raw('.section .rodata,"a"')
    e.raw(".p2align 6")
    e.raw(".amdhsa_kernel standalone__fft_conv__vision_kernel")
    e.raw("  .amdhsa_next_free_vgpr 512")
    e.raw("  .amdhsa_next_free_sgpr 48")
    e.raw("  .amdhsa_accum_offset 256")
    e.raw("  .amdhsa_group_segment_fixed_size 0")
    e.raw("  .amdhsa_kernarg_size 40")
    e.raw("  .amdhsa_user_sgpr_count 2")
    e.raw("  .amdhsa_user_sgpr_kernarg_segment_ptr 1")
    e.raw("  .amdhsa_system_sgpr_workgroup_id_x 1")
    e.raw(".end_amdhsa_kernel")
    open(cfg.name, "w").write("\n".join(e.L) + "\n")
    return e

if __name__ == "__main__":
    ap = argparse.ArgumentParser()
    ap.add_argument("-o", default=Cfg.name)
    ap.add_argument("--stamps", action="store_true")
    ap.add_argument("--noloop", action="store_true")
    ap.add_argument("--store", default="")
    ap.add_argument("--xload", default="")
    ap.add_argument("--wload", default="")
    a = ap.parse_args()
    cfg = Cfg()
    cfg.name = a.o; cfg.stamps = a.stamps; cfg.loop = not a.noloop
    cfg.store_flags = a.store; cfg.xload_flags = a.xload; cfg.wload_flags = a.wload
    e = build(cfg)
    print("lines", len(e.L), "stamps", e.nstamp, "LDS", LDS_BYTES)
```

```python
import sys, argparse

class Cfg:
    nrows = 19
    store_flags = ""
    xload_flags = ""
    wload_flags = ""
    stamps = False
    loop = True
    dbg = False
    bar_pos = {1: 0, 2: 0, 3: 0, 4: 0}
    name = "standalone__fft_conv__vision.s"

H = W = 224
ROWB = W * 192
XBYTES = H * ROWB
WBYTES = 460800
NSLOT = 4
SLOTB = 4096
WSTAGE = 0
XRING = 76 * 1024
LDS_BYTES = XRING + 4 * NSLOT * SLOTB

S_X, S_Wt, S_O = 8, 12, 16
S_WS = 20
S_WAVE = 22
S_XB = 23
S_XROW = 24
S_OROW = 25
S_CNT = 26
S_T0, S_T1, S_T2, S_T3 = 27, 28, 29, 30
S_WM = 31
S_WM3 = 32
S_WM3S = 33
S_CG = 34
S_W0 = 35
S_STAMP = 40
V_TID = 0
V_XA = 2
V_XD = 8
V_WD = 12
V_TR = 13
V_OUT = 14
V_TR2 = 15
V_T = 16
V_O = 24
V_ST = 28
V_ACC = 32
V_B = 48
V_WT = 212

def wreg(kh, f, lo=None):
    i = kh * 15 + f
    if i < 64:
        base, t = 4 * i, "a"
    else:
        base, t = V_WT + 4 * (i - 64), "v"
    if lo is None:
        return f"{t}[{base}:{base+3}]"
    return f"{t}[{base+lo}:{base+lo+1}]"
def breg(row, f):
    b = V_B + (row % 2) * 60 + 4 * f
    return f"v[{b}:{b+3}]"
def acc(o):
    b = V_ACC + 4 * (o % 4)
    return b

class Em:
    def __init__(self, cfg):
        self.cfg = cfg
        self.L = []
        self.vm = []
        self.vm_done = 0
        self.lg = []
        self.lg_done = 0
        self.nstamp = 0
    def A(self, s): self.L.append("  " + s)
    def raw(self, s): self.L.append(s)
    def vmem(self, s, tag):
        self.A(s); self.vm.append(tag)
    def lds(self, s, tag):
        self.A(s); self.lg.append(tag)
    def wait_vm(self, tag):
        idx = max(i for i, t in enumerate(self.vm) if t == tag)
        if idx < self.vm_done: return
        n = len(self.vm) - 1 - idx
        assert n <= 63, n
        self.A(f"s_waitcnt vmcnt({n})")
        self.vm_done = idx + 1
    def wait_lg(self, tag):
        idx = max(i for i, t in enumerate(self.lg) if t == tag)
        if idx < self.lg_done: return
        n = len(self.lg) - 1 - idx
        n = min(n, 15)
        self.A(f"s_waitcnt lgkmcnt({n})")
        self.lg_done = len(self.lg) - n
    def stamp(self):
        if not self.cfg.stamps: return
        self.A(f"s_memtime s[{S_STAMP}:{S_STAMP+1}]")
        self.A("s_waitcnt lgkmcnt(0)")
        self.lg_done = len(self.lg)
        self.A(f"v_writelane_b32 v{V_ST}, s{S_STAMP}, {self.nstamp}")
        self.nstamp += 1

def x_dma(e, row, q):
    slot = row % NSLOT
    e.A(f"s_add_u32 m0, s{S_XB}, {slot*SLOTB + q*1024}")
    return f"buffer_load_dwordx4 v{V_XD+q}, s[{S_X}:{S_X+3}], s{S_XROW} offen {e.cfg.xload_flags} lds".replace("  ", " ")
def x_adv(e):
    e.A(f"s_add_u32 s{S_XROW}, s{S_XROW}, {ROWB}")
    e.A(f"s_cmp_eq_u32 s{S_XROW}, {XBYTES}")
    e.A(f"s_cselect_b32 s{S_XROW}, 0, s{S_XROW}")

def prologue(e):
    c = e.cfg
    A = e.A
    A("s_cmp_ge_u32 s2, 252")
    A("s_cbranch_scc1 L_end")
    A("s_load_dwordx4 s[4:7], s[0:1], 0")
    A(f"s_load_dwordx2 s[{S_O}:{S_O+1}], s[0:1], 16")
    if c.dbg:
        A("s_memrealtime s[42:43]")
        A("s_memtime s[44:45]")
        A(f"s_load_dwordx2 s[{S_WS}:{S_WS+1}], s[0:1], 24")
    if c.stamps:
        A(f"s_load_dwordx2 s[{S_WS}:{S_WS+1}], s[0:1], 32")
        A(f"v_mov_b32 v{V_ST}, 0")
    e.stamp() if False else None
    A(f"v_lshrrev_b32 v1, 6, v0")
    A(f"v_and_b32 v0, 63, v0")
    A(f"v_readfirstlane_b32 s{S_WAVE}, v1")
    A(f"s_lshr_b32 s{S_T0}, s2, 3")
    A(f"s_and_b32 s{S_T1}, s2, 7")
    A(f"s_mul_i32 s{S_T2}, s{S_T0}, 43")
    A(f"s_lshr_b32 s{S_T2}, s{S_T2}, 8")
    A(f"s_mul_i32 s{S_T3}, s{S_T2}, 6")
    A(f"s_sub_u32 s{S_CG}, s{S_T0}, s{S_T3}")
    A(f"s_mul_i32 s{S_T1}, s{S_T1}, 5")
    A(f"s_add_u32 s{S_T1}, s{S_T1}, s{S_T2}")
    A(f"s_cmp_lt_u32 s2, 240")
    A(f"s_cbranch_scc1 L_map_done")
    A(f"s_sub_u32 s{S_T0}, s2, 240")
    A(f"s_cmp_ge_u32 s{S_T0}, 6")
    A(f"s_cselect_b32 s{S_T1}, 41, 40")
    A(f"s_cselect_b32 s{S_T2}, 6, 0")
    A(f"s_sub_u32 s{S_CG}, s{S_T0}, s{S_T2}")
    e.raw("L_map_done:")
    A(f"s_lshl_b32 s{S_T1}, s{S_T1}, 2")
    A(f"s_add_u32 s{S_T1}, s{S_T1}, s{S_WAVE}")
    A(f"s_mul_i32 s{S_T2}, s{S_T1}, 4682")
    A(f"s_lshr_b32 s{S_T2}, s{S_T2}, 16")
    A(f"s_mul_i32 s{S_T3}, s{S_T2}, 14")
    A(f"s_sub_u32 s{S_T3}, s{S_T1}, s{S_T3}")
    A(f"s_lshl_b32 s{S_W0}, s{S_T3}, 4")
    A(f"s_mul_i32 s{S_T2}, s{S_T2}, {56*21846}")
    A(f"s_lshr_b32 s{S_T2}, s{S_T2}, 16")
    A(f"s_mul_i32 s{S_OROW}, s{S_T2}, {ROWB}")
    A(f"s_add_u32 s{S_T2}, s{S_T2}, {H-4}")
    A(f"s_cmp_ge_u32 s{S_T2}, {H}")
    A(f"s_cselect_b32 s{S_T3}, {H}, 0")
    A(f"s_sub_u32 s{S_T2}, s{S_T2}, s{S_T3}")
    A(f"s_mul_i32 s{S_XROW}, s{S_T2}, {ROWB}")
    A(f"s_mul_i32 s{S_XB}, s{S_WAVE}, {NSLOT*SLOTB}")
    A(f"s_add_u32 s{S_XB}, s{S_XB}, {XRING}")
    A(f"s_add_u32 s{S_T0}, s{S_W0}, {W-4}")
    for q in range(4):
        t0, t1, t2 = V_T, V_T+1, V_T+2
        A(f"v_add_u32 v{t0}, {64*q}, v0")
        A(f"v_mul_u32_u24 v{t1}, 5462, v{t0}")
        A(f"v_lshrrev_b32 v{t1}, 16, v{t1}")
        A(f"v_mul_u32_u24 v{t2}, 12, v{t1}")
        A(f"v_sub_u32 v{t2}, v{t0}, v{t2}")
        A(f"v_lshrrev_b32 v{V_T+3}, 1, v{t1}")
        A(f"v_and_b32 v{V_T+3}, 2, v{V_T+3}")
        A(f"v_xor_b32 v{t2}, v{t2}, v{V_T+3}")
        A(f"v_add_u32 v{t1}, s{S_T0}, v{t1}")
        A(f"v_subrev_u32 v{V_T+3}, {W}, v{t1}")
        A(f"v_min_u32 v{t1}, v{t1}, v{V_T+3}")
        A(f"v_mul_u32_u24 v{t1}, 192, v{t1}")
        A(f"v_lshl_add_u32 v{V_XD+q}, v{t2}, 4, v{t1}")
        if q == 3:
            A(f"v_cmp_gt_u32 vcc, 240, v{t0}")
            A(f"v_mov_b32 v{t1}, 0x40000000")
            A(f"s_nop 1")
            A(f"v_cndmask_b32 v{V_XD+q}, v{t1}, v{V_XD+q}, vcc")
    t0, t1, t2 = V_T, V_T+1, V_T+2
    A(f"v_lshrrev_b32 v{t0}, 1, v0")
    A(f"v_and_b32 v{t1}, 12, v{t0}")
    A(f"v_lshlrev_b32 v{t1}, 1, v{t1}")
    A(f"v_and_b32 v{t2}, 3, v{t0}")
    A(f"v_add_u32 v{t1}, v{t1}, v{t2}")
    A(f"v_lshrrev_b32 v{t2}, 4, v{t0}")
    A(f"v_lshl_add_u32 v{t1}, v{t2}, 2, v{t1}")
    A(f"v_mul_u32_u24 v{t1}, 192, v{t1}")
    A(f"v_and_b32 v{t2}, 1, v0")
    A(f"v_lshl_add_u32 v{t1}, v{t2}, 4, v{t1}")
    A(f"s_mul_i32 s{S_T0}, s{S_WAVE}, 6144")
    A(f"s_lshl_b32 s{S_T1}, s{S_CG}, 5")
    A(f"s_add_u32 s{S_T0}, s{S_T0}, s{S_T1}")
    A(f"v_add_u32 v{V_WD}, s{S_T0}, v{t1}")
    A(f"s_lshl_b32 s{S_WM}, s{S_WAVE}, 10")
    if WSTAGE: A(f"s_add_u32 s{S_WM}, s{S_WM}, {WSTAGE}")
    A(f"s_add_u32 s{S_WM3}, s{S_WM}, {12*1024}")
    A(f"s_cmp_eq_u32 s{S_WAVE}, 3")
    A(f"s_cselect_b32 s{S_WM3}, {WSTAGE + 75*1024}, s{S_WM3}")
    A(f"s_cselect_b32 s{S_WM3S}, 0, {15*1024}")
    A("s_waitcnt lgkmcnt(0)")
    A(f"s_mov_b32 s{S_X}, s4")
    A(f"s_mov_b32 s{S_X+1}, s5")
    A(f"s_mov_b32 s{S_X+2}, {XBYTES}")
    A(f"s_mov_b32 s{S_X+3}, 0x20000")
    A(f"s_mov_b32 s{S_Wt}, s6")
    A(f"s_mov_b32 s{S_Wt+1}, s7")
    A(f"s_mov_b32 s{S_Wt+2}, {WBYTES}")
    A(f"s_mov_b32 s{S_Wt+3}, 0x20000")
    A(f"s_mov_b32 s{S_O+2}, {XBYTES}")
    A(f"s_mov_b32 s{S_O+3}, 0x20000")
    e.stamp()
    def xrow(r):
        for q in range(4):
            s = x_dma(e, r, q)
            if q == 0: A("s_nop 0")
            else: A("s_nop 0")
            e.vmem(s, f"x{r}")
        x_adv(e)
    def wlev(Lv):
        kh = 4 - Lv
        for m in range(4):
            if m < 3:
                A(f"s_add_u32 m0, s{S_WM}, {(15*Lv + 4*m)*1024}")
            else:
                A(f"s_mov_b32 m0, s{S_WM3}")
            A(f"s_mov_b32 s{S_T0}, {(kh*15 + 4*m)*6144}")
            e.vmem(f"buffer_load_dwordx4 v{V_WD}, s[{S_Wt}:{S_Wt+3}], s{S_T0} offen {c.wload_flags} lds".replace("  ", " "), f"w{Lv}")
        A(f"s_add_u32 s{S_WM3}, s{S_WM3}, s{S_WM3S}")
    xrow(0); wlev(0); xrow(1); wlev(1); xrow(2); wlev(2); xrow(3); wlev(3); wlev(4)
    A(f"v_and_b32 v{V_T}, 15, v0")
    A(f"v_lshrrev_b32 v{V_T+1}, 4, v0")
    for kw in range(5):
        A(f"v_add_u32 v{V_T+2}, {4-kw}, v{V_T}")
        A(f"v_lshrrev_b32 v{V_T+3}, 1, v{V_T+2}")
        A(f"v_and_b32 v{V_T+3}, 2, v{V_T+3}")
        A(f"v_xor_b32 v{V_T+3}, v{V_T+3}, v{V_T+1}")
        A(f"v_mul_u32_u24 v{V_T+2}, 192, v{V_T+2}")
        A(f"v_lshl_add_u32 v{V_T+2}, v{V_T+3}, 4, v{V_T+2}")
        A(f"v_add_u32 v{V_XA+kw}, s{S_XB}, v{V_T+2}")
    A(f"v_lshlrev_b32 v{V_TR}, 3, v0")
    if WSTAGE: A(f"v_add_u32 v{V_TR}, {WSTAGE}, v{V_TR}")
    A(f"v_add_u32 v{V_TR2}, {45*1024}, v{V_TR}")
    A(f"v_add_u32 v{V_T+2}, s{S_W0}, v{V_T}")
    A(f"v_mul_u32_u24 v{V_T+2}, 192, v{V_T+2}")
    A(f"v_lshl_add_u32 v{V_T+2}, v{V_T+1}, 3, v{V_T+2}")
    A(f"s_lshl_b32 s{S_T1}, s{S_CG}, 5")
    A(f"v_add_u32 v{V_OUT}, s{S_T1}, v{V_T+2}")

def b_read(e, row, f):
    kw, cc = divmod(f, 3)
    e.lds(f"ds_read_b128 {breg(row, f)}, v{V_XA+kw} offset:{(row % NSLOT)*SLOTB + cc*64}", f"b{row}")
def tr_read(e, Lv, f, h):
    kh = 4 - Lv
    base, off = (V_TR, (15*Lv + f)*1024 + 512*h) if Lv < 3 else (V_TR2, (15*(Lv-3) + f)*1024 + 512*h)
    e.lds(f"ds_read_b64_tr_b16 {wreg(kh, f, 2*h)}, v{base} offset:{off}", f"t{Lv}")

def step(e, i, chains, last_row):
    c = e.cfg
    n = c.nrows
    mf = []
    for kh in chains:
        o = i - 4 + kh
        assert 0 <= o < n
        a = acc(o)
        for f in range(15):
            src = "0" if (kh == 4 and f == 0) else f"v[{a}:{a+3}]"
            mf.append((kh, f, f"v_mfma_f32_16x16x32_bf16 v[{a}:{a+3}], {wreg(kh, f)}, {breg(i, f)}, {src}"))
    M = len(mf)
    side = {}
    pre = {}
    def after(p, fn): side.setdefault(min(p, M-1), []).append(fn)
    def before(p, fn): pre.setdefault(p, []).append(fn)
    tr_slots = []
    if 1 <= i <= 4:
        Lv = i
        need = chains.index(4 - Lv) * 15
        bp = c.bar_pos[Lv]
        def bar():
            e.wait_vm(f"w{Lv}"); e.A("s_barrier")
        before(bp, bar)
        span = need - bp
        for t in range(30):
            p = bp + (t * max(span - 3, 1)) // 30
            after(p, (lambda f=t//2, h=t%2: tr_read(e, Lv, f, h)))
        before(need, lambda: e.wait_lg(f"t{Lv}"))
        tr_end = need
    else:
        tr_end = 0
    if i + 1 <= last_row:
        r = i + 1
        start = tr_end if tr_end < M - 8 else tr_end
        start = min(start, M - 1)
        span = max(M - 6 - start, 1)
        first = [True]
        def rd(f):
            if first[0]:
                e.wait_vm(f"x{r}"); first[0] = False
            b_read(e, r, f)
        for f in range(15):
            p = start + 1 + (f * span) // 15
            after(p, (lambda f=f: rd(f)))
    if i + 4 <= last_row:
        r4 = i + 4
        if M >= 45:
            ps = [17, 27, 37, 47] if M >= 60 else [3, 10, 17, 24]
        elif M >= 30: ps = [2, 8, 14, 20]
        else: ps = [1, 4, 7, 10]
        for q in range(4):
            def dm(q=q):
                s = x_dma(e, r4, q)
                dm.pending = s
            st = {}
            def d1(q=q, st=st): st['s'] = x_dma(e, r4, q)
            def d2(q=q, st=st):
                e.vmem(st['s'], f"x{r4}")
                if q == 3: x_adv(e)
            after(ps[q], d1); after(ps[q] + 1, d2)
    if 0 in chains:
        o = i - 4
        endp = chains.index(0) * 15 + 14
        a = acc(o)
        def cv0(): e.A(f"v_cvt_pk_bf16_f32 v{V_O}, v{a}, v{a+1}")
        def cv1(): e.A(f"v_cvt_pk_bf16_f32 v{V_O+1}, v{a+2}, v{a+3}")
        def sto():
            e.vmem(f"buffer_store_dwordx2 v[{V_O}:{V_O+1}], v{V_OUT}, s[{S_O}:{S_O+3}], s{S_OROW} offen {c.store_flags}".rstrip(), f"o{o}")
            e.A(f"s_add_u32 s{S_OROW}, s{S_OROW}, {ROWB}")
        if endp + 12 < M:
            after(endp + 9, cv0); after(endp + 10, cv1); after(endp + 12, sto)
            tail_out = None
        else:
            tail_out = (cv0, cv1, sto)
    else:
        tail_out = None
    for p, (kh, f, s) in enumerate(mf):
        for fn in pre.get(p, []): fn()
        e.A(s)
        for fn in side.get(p, []): fn()
    if tail_out:
        e.A("s_nop 7"); e.A("s_nop 1")
        tail_out[0](); tail_out[1](); e.A("s_nop 0"); tail_out[2]()
    if i + 1 <= last_row:
        e.wait_lg(f"b{i+1}")

def build(cfg):
    e = Em(cfg)
    n = cfg.nrows
    last_row = n + 3
    e.raw(f"; @launch grid=(252,1,1) block=(256,1,1) lds={LDS_BYTES}")
    e.raw('.amdgcn_target "amdgcn-amd-amdhsa--gfx950"')
    e.raw(".text")
    e.raw(".globl standalone__fft_conv__vision_kernel")
    e.raw(".p2align 8")
    e.raw(".type standalone__fft_conv__vision_kernel,@function")
    e.raw("standalone__fft_conv__vision_kernel:")
    prologue(e)
    if cfg.dbg:
        e.A("s_memtime s[46:47]")
    e.wait_vm("w0")
    e.A("s_barrier")
    if cfg.dbg:
        e.A("s_memtime s[48:49]")
        e.A("s_memrealtime s[56:57]")
    e.stamp()
    for f in range(15):
        tr_read(e, 0, f, 0); tr_read(e, 0, f, 1)
        b_read(e, 0, f)
    e.wait_lg("b0")
    e.stamp()
    def chains_for(i):
        if i < 4: return [kh for kh in range(4, 3 - i, -1)]
        if i == 4: return [3, 2, 0, 1, 4]
        return [kh for kh in range(0, 5) if 0 <= i - 4 + kh < n]
    texts = []
    i = 0
    while i <= 4:
        step(e, i, chains_for(i), last_row); e.stamp(); i += 1
    if not cfg.loop:
        while i <= last_row:
            step(e, i, chains_for(i), last_row); e.stamp(); i += 1
    else:
        steady = list(range(5, n))
        nst = len(steady)
        start = len(e.L)
        seg = []
        for ii in steady:
            s0 = len(e.L)
            step(e, ii, chains_for(ii), last_row)
            seg.append(e.L[s0:])
        e.L = e.L[:start]
        import re
        for k in range(4, nst):
            a, b = seg[k % 4], seg[k]
            assert len(a) == len(b), f"non periodic step {steady[k]}"
            for j in range(len(a)):
                if a[j] != b[j]:
                    ma = re.fullmatch(r"  s_waitcnt vmcnt\((\d+)\)", a[j]); mb = re.fullmatch(r"  s_waitcnt vmcnt\((\d+)\)", b[j])
                    assert ma and mb, (a[j], b[j])
                    a[j] = f"  s_waitcnt vmcnt({min(int(ma.group(1)), int(mb.group(1)))})"
        full, rem = divmod(nst, 4)
        assert rem != 0
        e.A(f"s_mov_b32 s{S_CNT}, {full}")
        e.raw(".p2align 3")
        e.raw("L_loop:")
        for k in range(4):
            if k == rem:
                e.A(f"s_cmp_eq_u32 s{S_CNT}, 0")
                e.A("s_cbranch_scc1 L_down")
                e.A(f"s_sub_u32 s{S_CNT}, s{S_CNT}, 1")
            e.L.extend(seg[k])
        e.A("s_branch L_loop")
        e.raw("L_down:")
        i = n
        e.stamp()
        while i <= last_row:
            step(e, i, chains_for(i), last_row); e.stamp(); i += 1
    if cfg.dbg:
        e.A("s_memtime s[50:51]")
        e.A("s_memrealtime s[58:59]")
        e.A("s_waitcnt vmcnt(0) lgkmcnt(0)")
        e.A("s_memrealtime s[52:53]")
        e.A("s_memtime s[54:55]")
        e.A("s_waitcnt lgkmcnt(0)")
        def amax(idx, expr_lines):
            for l in expr_lines: e.A(l)
            e.A(f"v_mov_b32 v30, s60")
            e.A(f"v_mov_b32 v31, {idx*4}")
            e.A(f"global_atomic_umax v31, v30, s[{S_WS}:{S_WS+1}]")
        e.A("s_mov_b64 exec, 1")
        amax(0, ["s_not_b32 s60, s42"])
        amax(1, ["s_mov_b32 s60, s52"])
        amax(2, ["s_sub_u32 s60, s46, s44"])
        amax(3, ["s_sub_u32 s60, s48, s44"])
        amax(4, ["s_sub_u32 s60, s48, s44", "s_not_b32 s60, s60"])
        amax(5, ["s_sub_u32 s60, s50, s48"])
        amax(6, ["s_sub_u32 s60, s54, s50"])
        amax(7, ["s_sub_u32 s60, s54, s44"])
        amax(8, ["s_mov_b32 s60, s42"])
        amax(9, ["s_mov_b32 s60, s56"])
        amax(10, ["s_not_b32 s60, s56"])
        amax(11, ["s_mov_b32 s60, s58"])
        amax(12, ["s_not_b32 s60, s58"])
        amax(13, ["s_sub_u32 s60, s46, s44", "s_not_b32 s60, s60"])
    if cfg.stamps:
        e.A("s_waitcnt vmcnt(0)")
        e.stamp()
        e.A(f"s_lshl_b32 s{S_T0}, s2, 2")
        e.A(f"s_add_u32 s{S_T0}, s{S_T0}, s{S_WAVE}")
        e.A(f"s_lshl_b32 s{S_T0}, s{S_T0}, 8")
        e.A(f"s_add_u32 s{S_WS}, s{S_WS}, s{S_T0}")
        e.A(f"s_addc_u32 s{S_WS+1}, s{S_WS+1}, 0")
        e.A(f"v_lshlrev_b32 v1, 2, v0")
        e.A(f"global_store_dword v1, v{V_ST}, s[{S_WS}:{S_WS+1}]")
    e.raw("L_end:")
    e.A("s_endpgm")
    e.raw('.section .rodata,"a"')
    e.raw(".p2align 6")
    e.raw(".amdhsa_kernel standalone__fft_conv__vision_kernel")
    e.raw("  .amdhsa_next_free_vgpr 512")
    e.raw("  .amdhsa_next_free_sgpr 64")
    e.raw("  .amdhsa_accum_offset 256")
    e.raw("  .amdhsa_group_segment_fixed_size 0")
    e.raw("  .amdhsa_kernarg_size 40")
    e.raw("  .amdhsa_user_sgpr_count 2")
    e.raw("  .amdhsa_user_sgpr_kernarg_segment_ptr 1")
    e.raw("  .amdhsa_system_sgpr_workgroup_id_x 1")
    e.raw(".end_amdhsa_kernel")
    open(cfg.name, "w").write("\n".join(e.L) + "\n")
    return e

if __name__ == "__main__":
    ap = argparse.ArgumentParser()
    ap.add_argument("-o", default=Cfg.name)
    ap.add_argument("--stamps", action="store_true")
    ap.add_argument("--noloop", action="store_true")
    ap.add_argument("--dbg", action="store_true")
    ap.add_argument("--store", default="")
    ap.add_argument("--xload", default="")
    ap.add_argument("--wload", default="")
    a = ap.parse_args()
    cfg = Cfg()
    cfg.name = a.o; cfg.dbg = a.dbg; cfg.stamps = a.stamps; cfg.loop = not a.noloop
    cfg.store_flags = a.store; cfg.xload_flags = a.xload; cfg.wload_flags = a.wload
    e = build(cfg)
    print("lines", len(e.L), "stamps", e.nstamp, "LDS", LDS_BYTES)
```

```python
import sys, argparse

class Cfg:
    nrows = 19
    store_flags = ""
    xload_flags = ""
    wload_flags = ""
    stamps = False
    loop = True
    dbg = False
    passes = 1
    bar_pos = {1: 0, 2: 0, 3: 0, 4: 0}
    name = "standalone__fft_conv__vision.s"

H = W = 224
ROWB = W * 192
XBYTES = H * ROWB
WBYTES = 460800
NSLOT = 4
SLOTB = 4096
WSTAGE = 0
XRING = 76 * 1024
LDS_BYTES = XRING + 4 * NSLOT * SLOTB

S_X, S_Wt, S_O = 8, 12, 16
S_WS = 20
S_WAVE = 22
S_XB = 23
S_XROW = 24
S_OROW = 25
S_CNT = 26
S_T0, S_T1, S_T2, S_T3 = 27, 28, 29, 30
S_WM = 31
S_WM3 = 32
S_WM3S = 33
S_CG = 34
S_W0 = 35
S_STAMP = 40
V_TID = 0
V_XA = 2
V_XD = 8
V_WD = 12
V_TR = 13
V_OUT = 14
V_TR2 = 15
V_T = 16
V_O = 24
V_ST = 28
V_ACC = 32
V_B = 48
V_WT = 212

def wreg(kh, f, lo=None):
    i = kh * 15 + f
    if i < 64:
        base, t = 4 * i, "a"
    else:
        base, t = V_WT + 4 * (i - 64), "v"
    if lo is None:
        return f"{t}[{base}:{base+3}]"
    return f"{t}[{base+lo}:{base+lo+1}]"
def breg(row, f):
    b = V_B + (row % 2) * 60 + 4 * f
    return f"v[{b}:{b+3}]"
def acc(o):
    b = V_ACC + 4 * (o % 4)
    return b

class Em:
    def __init__(self, cfg):
        self.cfg = cfg
        self.L = []
        self.vm = []
        self.vm_done = 0
        self.lg = []
        self.lg_done = 0
        self.nstamp = 0
    def A(self, s): self.L.append("  " + s)
    def raw(self, s): self.L.append(s)
    def vmem(self, s, tag):
        self.A(s); self.vm.append(tag)
    def lds(self, s, tag):
        self.A(s); self.lg.append(tag)
    def wait_vm(self, tag):
        idx = max(i for i, t in enumerate(self.vm) if t == tag)
        if idx < self.vm_done: return
        n = len(self.vm) - 1 - idx
        assert n <= 63, n
        self.A(f"s_waitcnt vmcnt({n})")
        self.vm_done = idx + 1
    def wait_lg(self, tag):
        idx = max(i for i, t in enumerate(self.lg) if t == tag)
        if idx < self.lg_done: return
        n = len(self.lg) - 1 - idx
        n = min(n, 15)
        self.A(f"s_waitcnt lgkmcnt({n})")
        self.lg_done = len(self.lg) - n
    def stamp(self):
        if not self.cfg.stamps: return
        self.A(f"s_memtime s[{S_STAMP}:{S_STAMP+1}]")
        self.A("s_waitcnt lgkmcnt(0)")
        self.lg_done = len(self.lg)
        self.A(f"v_writelane_b32 v{V_ST}, s{S_STAMP}, {self.nstamp}")
        self.nstamp += 1

def x_dma(e, row, q):
    slot = row % NSLOT
    e.A(f"s_add_u32 m0, s{S_XB}, {slot*SLOTB + q*1024}")
    return f"buffer_load_dwordx4 v{V_XD+q}, s[{S_X}:{S_X+3}], s{S_XROW} offen {e.cfg.xload_flags} lds".replace("  ", " ")
def x_adv(e):
    e.A(f"s_add_u32 s{S_XROW}, s{S_XROW}, {ROWB}")
    e.A(f"s_cmp_eq_u32 s{S_XROW}, {XBYTES}")
    e.A(f"s_cselect_b32 s{S_XROW}, 0, s{S_XROW}")

def prologue(e):
    c = e.cfg
    A = e.A
    A("s_cmp_ge_u32 s2, 252")
    A("s_cbranch_scc1 L_end")
    A("s_load_dwordx4 s[4:7], s[0:1], 0")
    A(f"s_load_dwordx2 s[{S_O}:{S_O+1}], s[0:1], 16")
    if c.dbg:
        A("s_memrealtime s[42:43]")
        A("s_memtime s[44:45]")
        A(f"s_load_dwordx2 s[{S_WS}:{S_WS+1}], s[0:1], 24")
    if c.stamps:
        A(f"s_load_dwordx2 s[{S_WS}:{S_WS+1}], s[0:1], 32")
        A(f"v_mov_b32 v{V_ST}, 0")
    e.stamp() if False else None
    A(f"v_lshrrev_b32 v1, 6, v0")
    A(f"v_and_b32 v0, 63, v0")
    A(f"v_readfirstlane_b32 s{S_WAVE}, v1")
    if c.passes > 1:
        A(f"s_mov_b32 s36, {c.passes}")
        e.raw("L_again:")
    A(f"s_lshr_b32 s{S_T0}, s2, 3")
    A(f"s_and_b32 s{S_T1}, s2, 7")
    A(f"s_mul_i32 s{S_T2}, s{S_T0}, 43")
    A(f"s_lshr_b32 s{S_T2}, s{S_T2}, 8")
    A(f"s_mul_i32 s{S_T3}, s{S_T2}, 6")
    A(f"s_sub_u32 s{S_CG}, s{S_T0}, s{S_T3}")
    A(f"s_mul_i32 s{S_T1}, s{S_T1}, 5")
    A(f"s_add_u32 s{S_T1}, s{S_T1}, s{S_T2}")
    A(f"s_cmp_lt_u32 s2, 240")
    A(f"s_cbranch_scc1 L_map_done")
    A(f"s_sub_u32 s{S_T0}, s2, 240")
    A(f"s_cmp_ge_u32 s{S_T0}, 6")
    A(f"s_cselect_b32 s{S_T1}, 41, 40")
    A(f"s_cselect_b32 s{S_T2}, 6, 0")
    A(f"s_sub_u32 s{S_CG}, s{S_T0}, s{S_T2}")
    e.raw("L_map_done:")
    A(f"s_lshl_b32 s{S_T1}, s{S_T1}, 2")
    A(f"s_add_u32 s{S_T1}, s{S_T1}, s{S_WAVE}")
    A(f"s_mul_i32 s{S_T2}, s{S_T1}, 4682")
    A(f"s_lshr_b32 s{S_T2}, s{S_T2}, 16")
    A(f"s_mul_i32 s{S_T3}, s{S_T2}, 14")
    A(f"s_sub_u32 s{S_T3}, s{S_T1}, s{S_T3}")
    A(f"s_lshl_b32 s{S_W0}, s{S_T3}, 4")
    A(f"s_mul_i32 s{S_T2}, s{S_T2}, {56*21846}")
    A(f"s_lshr_b32 s{S_T2}, s{S_T2}, 16")
    A(f"s_mul_i32 s{S_OROW}, s{S_T2}, {ROWB}")
    A(f"s_add_u32 s{S_T2}, s{S_T2}, {H-4}")
    A(f"s_cmp_ge_u32 s{S_T2}, {H}")
    A(f"s_cselect_b32 s{S_T3}, {H}, 0")
    A(f"s_sub_u32 s{S_T2}, s{S_T2}, s{S_T3}")
    A(f"s_mul_i32 s{S_XROW}, s{S_T2}, {ROWB}")
    A(f"s_mul_i32 s{S_XB}, s{S_WAVE}, {NSLOT*SLOTB}")
    A(f"s_add_u32 s{S_XB}, s{S_XB}, {XRING}")
    A(f"s_add_u32 s{S_T0}, s{S_W0}, {W-4}")
    for q in range(4):
        t0, t1, t2 = V_T, V_T+1, V_T+2
        A(f"v_add_u32 v{t0}, {64*q}, v0")
        A(f"v_mul_u32_u24 v{t1}, 5462, v{t0}")
        A(f"v_lshrrev_b32 v{t1}, 16, v{t1}")
        A(f"v_mul_u32_u24 v{t2}, 12, v{t1}")
        A(f"v_sub_u32 v{t2}, v{t0}, v{t2}")
        A(f"v_lshrrev_b32 v{V_T+3}, 1, v{t1}")
        A(f"v_and_b32 v{V_T+3}, 2, v{V_T+3}")
        A(f"v_xor_b32 v{t2}, v{t2}, v{V_T+3}")
        A(f"v_add_u32 v{t1}, s{S_T0}, v{t1}")
        A(f"v_subrev_u32 v{V_T+3}, {W}, v{t1}")
        A(f"v_min_u32 v{t1}, v{t1}, v{V_T+3}")
        A(f"v_mul_u32_u24 v{t1}, 192, v{t1}")
        A(f"v_lshl_add_u32 v{V_XD+q}, v{t2}, 4, v{t1}")
        if q == 3:
            A(f"v_cmp_gt_u32 vcc, 240, v{t0}")
            A(f"v_mov_b32 v{t1}, 0x40000000")
            A(f"s_nop 1")
            A(f"v_cndmask_b32 v{V_XD+q}, v{t1}, v{V_XD+q}, vcc")
    t0, t1, t2 = V_T, V_T+1, V_T+2
    A(f"v_lshrrev_b32 v{t0}, 1, v0")
    A(f"v_and_b32 v{t1}, 12, v{t0}")
    A(f"v_lshlrev_b32 v{t1}, 1, v{t1}")
    A(f"v_and_b32 v{t2}, 3, v{t0}")
    A(f"v_add_u32 v{t1}, v{t1}, v{t2}")
    A(f"v_lshrrev_b32 v{t2}, 4, v{t0}")
    A(f"v_lshl_add_u32 v{t1}, v{t2}, 2, v{t1}")
    A(f"v_mul_u32_u24 v{t1}, 192, v{t1}")
    A(f"v_and_b32 v{t2}, 1, v0")
    A(f"v_lshl_add_u32 v{t1}, v{t2}, 4, v{t1}")
    A(f"s_mul_i32 s{S_T0}, s{S_WAVE}, 6144")
    A(f"s_lshl_b32 s{S_T1}, s{S_CG}, 5")
    A(f"s_add_u32 s{S_T0}, s{S_T0}, s{S_T1}")
    A(f"v_add_u32 v{V_WD}, s{S_T0}, v{t1}")
    A(f"s_lshl_b32 s{S_WM}, s{S_WAVE}, 10")
    if WSTAGE: A(f"s_add_u32 s{S_WM}, s{S_WM}, {WSTAGE}")
    A(f"s_add_u32 s{S_WM3}, s{S_WM}, {12*1024}")
    A(f"s_cmp_eq_u32 s{S_WAVE}, 3")
    A(f"s_cselect_b32 s{S_WM3}, {WSTAGE + 75*1024}, s{S_WM3}")
    A(f"s_cselect_b32 s{S_WM3S}, 0, {15*1024}")
    A("s_waitcnt lgkmcnt(0)")
    A(f"s_mov_b32 s{S_X}, s4")
    A(f"s_mov_b32 s{S_X+1}, s5")
    A(f"s_mov_b32 s{S_X+2}, {XBYTES}")
    A(f"s_mov_b32 s{S_X+3}, 0x20000")
    A(f"s_mov_b32 s{S_Wt}, s6")
    A(f"s_mov_b32 s{S_Wt+1}, s7")
    A(f"s_mov_b32 s{S_Wt+2}, {WBYTES}")
    A(f"s_mov_b32 s{S_Wt+3}, 0x20000")
    A(f"s_mov_b32 s{S_O+2}, {XBYTES}")
    A(f"s_mov_b32 s{S_O+3}, 0x20000")
    e.stamp()
    def xrow(r):
        for q in range(4):
            s = x_dma(e, r, q)
            if q == 0: A("s_nop 0")
            else: A("s_nop 0")
            e.vmem(s, f"x{r}")
        x_adv(e)
    def wlev(Lv):
        kh = 4 - Lv
        for m in range(4):
            if m < 3:
                A(f"s_add_u32 m0, s{S_WM}, {(15*Lv + 4*m)*1024}")
            else:
                A(f"s_mov_b32 m0, s{S_WM3}")
            A(f"s_mov_b32 s{S_T0}, {(kh*15 + 4*m)*6144}")
            e.vmem(f"buffer_load_dwordx4 v{V_WD}, s[{S_Wt}:{S_Wt+3}], s{S_T0} offen {c.wload_flags} lds".replace("  ", " "), f"w{Lv}")
        A(f"s_add_u32 s{S_WM3}, s{S_WM3}, s{S_WM3S}")
    xrow(0); wlev(0); xrow(1); wlev(1); xrow(2); wlev(2); xrow(3); wlev(3); wlev(4)
    A(f"v_and_b32 v{V_T}, 15, v0")
    A(f"v_lshrrev_b32 v{V_T+1}, 4, v0")
    for kw in range(5):
        A(f"v_add_u32 v{V_T+2}, {4-kw}, v{V_T}")
        A(f"v_lshrrev_b32 v{V_T+3}, 1, v{V_T+2}")
        A(f"v_and_b32 v{V_T+3}, 2, v{V_T+3}")
        A(f"v_xor_b32 v{V_T+3}, v{V_T+3}, v{V_T+1}")
        A(f"v_mul_u32_u24 v{V_T+2}, 192, v{V_T+2}")
        A(f"v_lshl_add_u32 v{V_T+2}, v{V_T+3}, 4, v{V_T+2}")
        A(f"v_add_u32 v{V_XA+kw}, s{S_XB}, v{V_T+2}")
    A(f"v_lshlrev_b32 v{V_TR}, 3, v0")
    if WSTAGE: A(f"v_add_u32 v{V_TR}, {WSTAGE}, v{V_TR}")
    A(f"v_add_u32 v{V_TR2}, {45*1024}, v{V_TR}")
    A(f"v_add_u32 v{V_T+2}, s{S_W0}, v{V_T}")
    A(f"v_mul_u32_u24 v{V_T+2}, 192, v{V_T+2}")
    A(f"v_lshl_add_u32 v{V_T+2}, v{V_T+1}, 3, v{V_T+2}")
    A(f"s_lshl_b32 s{S_T1}, s{S_CG}, 5")
    A(f"v_add_u32 v{V_OUT}, s{S_T1}, v{V_T+2}")

def b_read(e, row, f):
    kw, cc = divmod(f, 3)
    e.lds(f"ds_read_b128 {breg(row, f)}, v{V_XA+kw} offset:{(row % NSLOT)*SLOTB + cc*64}", f"b{row}")
def tr_read(e, Lv, f, h):
    kh = 4 - Lv
    base, off = (V_TR, (15*Lv + f)*1024 + 512*h) if Lv < 3 else (V_TR2, (15*(Lv-3) + f)*1024 + 512*h)
    e.lds(f"ds_read_b64_tr_b16 {wreg(kh, f, 2*h)}, v{base} offset:{off}", f"t{Lv}")

def step(e, i, chains, last_row):
    c = e.cfg
    n = c.nrows
    mf = []
    for kh in chains:
        o = i - 4 + kh
        assert 0 <= o < n
        a = acc(o)
        for f in range(15):
            src = "0" if (kh == 4 and f == 0) else f"v[{a}:{a+3}]"
            mf.append((kh, f, f"v_mfma_f32_16x16x32_bf16 v[{a}:{a+3}], {wreg(kh, f)}, {breg(i, f)}, {src}"))
    M = len(mf)
    side = {}
    pre = {}
    def after(p, fn): side.setdefault(min(p, M-1), []).append(fn)
    def before(p, fn): pre.setdefault(p, []).append(fn)
    tr_slots = []
    if 1 <= i <= 4:
        Lv = i
        need = chains.index(4 - Lv) * 15
        bp = c.bar_pos[Lv]
        def bar():
            e.wait_vm(f"w{Lv}"); e.A("s_barrier")
        before(bp, bar)
        span = need - bp
        for t in range(30):
            p = bp + (t * max(span - 3, 1)) // 30
            after(p, (lambda f=t//2, h=t%2: tr_read(e, Lv, f, h)))
        before(need, lambda: e.wait_lg(f"t{Lv}"))
        tr_end = need
    else:
        tr_end = 0
    if i + 1 <= last_row:
        r = i + 1
        start = tr_end if tr_end < M - 8 else tr_end
        start = min(start, M - 1)
        span = max(M - 6 - start, 1)
        first = [True]
        def rd(f):
            if first[0]:
                e.wait_vm(f"x{r}"); first[0] = False
            b_read(e, r, f)
        for f in range(15):
            p = start + 1 + (f * span) // 15
            after(p, (lambda f=f: rd(f)))
    if i + 4 <= last_row:
        r4 = i + 4
        if M >= 45:
            ps = [17, 27, 37, 47] if M >= 60 else [3, 10, 17, 24]
        elif M >= 30: ps = [2, 8, 14, 20]
        else: ps = [1, 4, 7, 10]
        for q in range(4):
            def dm(q=q):
                s = x_dma(e, r4, q)
                dm.pending = s
            st = {}
            def d1(q=q, st=st): st['s'] = x_dma(e, r4, q)
            def d2(q=q, st=st):
                e.vmem(st['s'], f"x{r4}")
                if q == 3: x_adv(e)
            after(ps[q], d1); after(ps[q] + 1, d2)
    if 0 in chains:
        o = i - 4
        endp = chains.index(0) * 15 + 14
        a = acc(o)
        def cv0(): e.A(f"v_cvt_pk_bf16_f32 v{V_O}, v{a}, v{a+1}")
        def cv1(): e.A(f"v_cvt_pk_bf16_f32 v{V_O+1}, v{a+2}, v{a+3}")
        def sto():
            e.vmem(f"buffer_store_dwordx2 v[{V_O}:{V_O+1}], v{V_OUT}, s[{S_O}:{S_O+3}], s{S_OROW} offen {c.store_flags}".rstrip(), f"o{o}")
            e.A(f"s_add_u32 s{S_OROW}, s{S_OROW}, {ROWB}")
        if endp + 12 < M:
            after(endp + 9, cv0); after(endp + 10, cv1); after(endp + 12, sto)
            tail_out = None
        else:
            tail_out = (cv0, cv1, sto)
    else:
        tail_out = None
    for p, (kh, f, s) in enumerate(mf):
        for fn in pre.get(p, []): fn()
        e.A(s)
        for fn in side.get(p, []): fn()
    if tail_out:
        e.A("s_nop 7"); e.A("s_nop 1")
        tail_out[0](); tail_out[1](); e.A("s_nop 0"); tail_out[2]()
    if i + 1 <= last_row:
        e.wait_lg(f"b{i+1}")

def build(cfg):
    e = Em(cfg)
    n = cfg.nrows
    last_row = n + 3
    e.raw(f"; @launch grid=(252,1,1) block=(256,1,1) lds={LDS_BYTES}")
    e.raw('.amdgcn_target "amdgcn-amd-amdhsa--gfx950"')
    e.raw(".text")
    e.raw(".globl standalone__fft_conv__vision_kernel")
    e.raw(".p2align 8")
    e.raw(".type standalone__fft_conv__vision_kernel,@function")
    e.raw("standalone__fft_conv__vision_kernel:")
    prologue(e)
    if cfg.dbg:
        e.A("s_memtime s[46:47]")
    e.wait_vm("w0")
    e.A("s_barrier")
    if cfg.dbg:
        e.A("s_memtime s[48:49]")
        e.A("s_memrealtime s[56:57]")
    e.stamp()
    for f in range(15):
        tr_read(e, 0, f, 0); tr_read(e, 0, f, 1)
        b_read(e, 0, f)
    e.wait_lg("b0")
    e.stamp()
    def chains_for(i):
        if i < 4: return [kh for kh in range(4, 3 - i, -1)]
        if i == 4: return [3, 2, 0, 1, 4]
        return [kh for kh in range(0, 5) if 0 <= i - 4 + kh < n]
    texts = []
    i = 0
    while i <= 4:
        step(e, i, chains_for(i), last_row); e.stamp(); i += 1
    if not cfg.loop:
        while i <= last_row:
            step(e, i, chains_for(i), last_row); e.stamp(); i += 1
    else:
        steady = list(range(5, n))
        nst = len(steady)
        start = len(e.L)
        seg = []
        for ii in steady:
            s0 = len(e.L)
            step(e, ii, chains_for(ii), last_row)
            seg.append(e.L[s0:])
        e.L = e.L[:start]
        import re
        for k in range(4, nst):
            a, b = seg[k % 4], seg[k]
            assert len(a) == len(b), f"non periodic step {steady[k]}"
            for j in range(len(a)):
                if a[j] != b[j]:
                    ma = re.fullmatch(r"  s_waitcnt vmcnt\((\d+)\)", a[j]); mb = re.fullmatch(r"  s_waitcnt vmcnt\((\d+)\)", b[j])
                    assert ma and mb, (a[j], b[j])
                    a[j] = f"  s_waitcnt vmcnt({min(int(ma.group(1)), int(mb.group(1)))})"
        full, rem = divmod(nst, 4)
        assert rem != 0
        e.A(f"s_mov_b32 s{S_CNT}, {full}")
        e.raw(".p2align 3")
        e.raw("L_loop:")
        for k in range(4):
            if k == rem:
                e.A(f"s_cmp_eq_u32 s{S_CNT}, 0")
                e.A("s_cbranch_scc1 L_down")
                e.A(f"s_sub_u32 s{S_CNT}, s{S_CNT}, 1")
            e.L.extend(seg[k])
        e.A("s_branch L_loop")
        e.raw("L_down:")
        i = n
        e.stamp()
        while i <= last_row:
            step(e, i, chains_for(i), last_row); e.stamp(); i += 1
    if cfg.passes > 1:
        e.A("s_sub_u32 s36, s36, 1")
        e.A("s_cmp_lg_u32 s36, 0")
        e.A("s_cbranch_scc1 L_again")
    if cfg.dbg:
        e.A("s_memtime s[50:51]")
        e.A("s_memrealtime s[58:59]")
        e.A("s_waitcnt vmcnt(0) lgkmcnt(0)")
        e.A("s_memrealtime s[52:53]")
        e.A("s_memtime s[54:55]")
        e.A("s_waitcnt lgkmcnt(0)")
        def amax(idx, expr_lines):
            for l in expr_lines: e.A(l)
            e.A(f"v_mov_b32 v30, s60")
            e.A(f"v_mov_b32 v31, {idx*4}")
            e.A(f"global_atomic_umax v31, v30, s[{S_WS}:{S_WS+1}]")
        e.A(f"s_cmp_lg_u32 s{S_WAVE}, 0")
        e.A("s_cbranch_scc1 L_end")
        e.A("s_mov_b64 exec, 1")
        amax(0, ["s_not_b32 s60, s42"])
        amax(1, ["s_mov_b32 s60, s52"])
        amax(2, ["s_sub_u32 s60, s46, s44"])
        amax(3, ["s_sub_u32 s60, s48, s44"])
        amax(4, ["s_sub_u32 s60, s48, s44", "s_not_b32 s60, s60"])
        amax(5, ["s_sub_u32 s60, s50, s48"])
        amax(6, ["s_sub_u32 s60, s54, s50"])
        amax(7, ["s_sub_u32 s60, s54, s44"])
        amax(8, ["s_mov_b32 s60, s42"])
        amax(9, ["s_mov_b32 s60, s56"])
        amax(10, ["s_not_b32 s60, s56"])
        amax(11, ["s_mov_b32 s60, s58"])
        amax(12, ["s_not_b32 s60, s58"])
        amax(13, ["s_sub_u32 s60, s46, s44", "s_not_b32 s60, s60"])
    if cfg.stamps:
        e.A("s_waitcnt vmcnt(0)")
        e.stamp()
        e.A(f"s_lshl_b32 s{S_T0}, s2, 2")
        e.A(f"s_add_u32 s{S_T0}, s{S_T0}, s{S_WAVE}")
        e.A(f"s_lshl_b32 s{S_T0}, s{S_T0}, 8")
        e.A(f"s_add_u32 s{S_WS}, s{S_WS}, s{S_T0}")
        e.A(f"s_addc_u32 s{S_WS+1}, s{S_WS+1}, 0")
        e.A(f"v_lshlrev_b32 v1, 2, v0")
        e.A(f"global_store_dword v1, v{V_ST}, s[{S_WS}:{S_WS+1}]")
    e.raw("L_end:")
    e.A("s_endpgm")
    e.raw('.section .rodata,"a"')
    e.raw(".p2align 6")
    e.raw(".amdhsa_kernel standalone__fft_conv__vision_kernel")
    e.raw("  .amdhsa_next_free_vgpr 512")
    e.raw("  .amdhsa_next_free_sgpr 64")
    e.raw("  .amdhsa_accum_offset 256")
    e.raw("  .amdhsa_group_segment_fixed_size 0")
    e.raw("  .amdhsa_kernarg_size 40")
    e.raw("  .amdhsa_user_sgpr_count 2")
    e.raw("  .amdhsa_user_sgpr_kernarg_segment_ptr 1")
    e.raw("  .amdhsa_system_sgpr_workgroup_id_x 1")
    e.raw(".end_amdhsa_kernel")
    open(cfg.name, "w").write("\n".join(e.L) + "\n")
    return e

if __name__ == "__main__":
    ap = argparse.ArgumentParser()
    ap.add_argument("-o", default=Cfg.name)
    ap.add_argument("--stamps", action="store_true")
    ap.add_argument("--noloop", action="store_true")
    ap.add_argument("--passes", type=int, default=1)
    ap.add_argument("--dbg", action="store_true")
    ap.add_argument("--store", default="")
    ap.add_argument("--xload", default="")
    ap.add_argument("--wload", default="")
    a = ap.parse_args()
    cfg = Cfg()
    cfg.name = a.o; cfg.passes = a.passes; cfg.dbg = a.dbg; cfg.stamps = a.stamps; cfg.loop = not a.noloop
    cfg.store_flags = a.store; cfg.xload_flags = a.xload; cfg.wload_flags = a.wload
    e = build(cfg)
    print("lines", len(e.L), "stamps", e.nstamp, "LDS", LDS_BYTES)
```

```python
import sys, argparse, re

class Cfg:
    nrows = 19
    RA = 6
    store_flags = ""
    stamps = False
    dbg = False
    loop = True
    cap = 2
    look = 12
    early = 8
    name = "standalone__fft_conv__vision.s"

H = W = 224
ROWB = W * 192
XBYTES = H * ROWB
WBYTES = 460800
SLOTB = 7168
XA = 0
NA = 10
XR = NA * SLOTB
WS = XR + 4 * SLOTB
WSLOT = 12288
NWS = 5
DUMMY = WS + 10 * 1024
LDS_BYTES = WS + NWS * WSLOT

S_X, S_Wt, S_O = 8, 12, 16
S_WS = 20
S_WAVE = 22
S_X0 = 23
S_X1 = 24
S_XM = 25
S_XBASE = 26
S_XROW = 27
S_OROW = 28
S_CNT = 29
S_T0, S_T1, S_T2, S_T3 = 30, 31, 32, 33
S_WM = 34
S_G = 35
S_W0 = 36
S_STAMP = 40
V_XAA = 2
V_XAR = 7
V_XD0, V_XD1 = 12, 13
V_WD = 14
V_TR = 15
V_OUT = 16
V_PF = 17
V_T = 18
V_O = 24
V_ST = 28
V_ACC = 32
V_B = 48
V_ACCA = 168
V_WT = 212

def wreg(kh, f, lo=None):
    i = kh * 15 + f
    if i < 64: base, t = 4 * i, "a"
    else: base, t = V_WT + 4 * (i - 64), "v"
    if lo is None: return f"{t}[{base}:{base+3}]"
    return f"{t}[{base+lo}:{base+lo+1}]"
def breg(row, f):
    b = V_B + (row % 2) * 60 + 4 * f
    return f"v[{b}:{b+3}]"
def acc(o): return V_ACC + 4 * (o % 4)
def xslot(row):
    if row < NA: return ("A", row * SLOTB)
    return ("R", ((row - NA) % 4) * SLOTB)

class Em:
    def __init__(self, cfg):
        self.cfg = cfg; self.L = []
        self.vm = []; self.vm_done = 0
        self.lg = []; self.lg_done = 0
        self.nstamp = 0
    def A(self, s): self.L.append("  " + s)
    def raw(self, s): self.L.append(s)
    def vmem(self, s, tag): self.A(s); self.vm.append(tag)
    def lds(self, s, tag): self.A(s); self.lg.append(tag)
    def wait_vm(self, *tags, force=False):
        idx = -1
        for tag in tags:
            assert tag in self.vm, (tag, self.vm)
            idx = max(idx, max(i for i, t in enumerate(self.vm) if t == tag))
        if idx < self.vm_done and not force: return
        n = min(len(self.vm) - 1 - idx, 63)
        self.A(f"s_waitcnt vmcnt({n})"); self.vm_done = max(self.vm_done, len(self.vm) - n)
    def wait_lg(self, tag):
        if tag not in self.lg: raise AssertionError(tag)
        idx = max(i for i, t in enumerate(self.lg) if t == tag)
        if idx < self.lg_done: return
        n = min(len(self.lg) - 1 - idx, 15)
        self.A(f"s_waitcnt lgkmcnt({n})"); self.lg_done = len(self.lg) - n
    def wait_lg_all(self):
        if self.lg_done < len(self.lg):
            self.A("s_waitcnt lgkmcnt(0)"); self.lg_done = len(self.lg)
    def stamp(self):
        if not self.cfg.stamps: return
        self.A(f"s_memtime s[{S_STAMP}:{S_STAMP+1}]")
        self.A("s_waitcnt lgkmcnt(0)"); self.lg_done = len(self.lg)
        self.A(f"v_writelane_b32 v{V_ST}, s{S_STAMP}, {self.nstamp}")
        self.nstamp += 1

def x_items(e, row, seq=False):
    kind, off = xslot(row)
    base = (XA if kind == "A" else XR) + off
    out = []
    def s0():
        if not seq:
            e.A(f"s_add_u32 s{S_T0}, s{S_XBASE}, {row*ROWB}")
            e.A(f"s_sub_u32 s{S_T1}, s{S_T0}, {XBYTES}")
            e.A(f"s_min_u32 s{S_XROW}, s{S_T0}, s{S_T1}")
        e.A(f"s_add_u32 m0, s{S_X0}, {base}")
    def i0():
        e.vmem(f"buffer_load_dwordx4 v{V_XD0}, s[{S_X}:{S_X+3}], s{S_XROW} offen lds", f"x{row}")
    def s1():
        e.A(f"s_and_b32 s{S_T2}, s{S_XM}, {base}" if base > 64 else f"s_mov_b32 s{S_T2}, 0")
        e.A(f"s_add_u32 m0, s{S_X1}, s{S_T2}")
    def i1():
        e.vmem(f"buffer_load_dwordx4 v{V_XD1}, s[{S_X}:{S_X+3}], s{S_XROW} offen lds", f"x{row}")
        if seq:
            e.A(f"s_add_u32 s{S_XROW}, s{S_XROW}, {ROWB}")
            e.A(f"s_sub_u32 s{S_T1}, s{S_XROW}, {XBYTES}")
            e.A(f"s_min_u32 s{S_XROW}, s{S_XROW}, s{S_T1}")
    return [(s0, i0), (s1, i1)]
def w_items(e, s):
    out = []
    for m in range(3):
        def su(m=m):
            e.A(f"s_add_u32 m0, s{S_WM}, {(s % NWS)*WSLOT + 4*m*1024}")
            e.A(f"s_mov_b32 s{S_T3}, {(32*s + 960*m)*192}")
        def iss(m=m):
            e.vmem(f"buffer_load_dwordx4 v{V_WD}, s[{S_Wt}:{S_Wt+3}], s{S_T3} offen lds", f"w{s}")
        out.append((su, iss))
    return out
def emit_now(e, items):
    for su, iss in items:
        n0 = len(e.L); su()
        last = e.L[-1]
        if "m0," in last.split()[1]:
            e.A("s_nop 0")
        iss()

def prologue(e):
    c = e.cfg; A = e.A
    A("s_cmp_ge_u32 s2, 252")
    A("s_cbranch_scc1 L_end")
    A("s_load_dwordx4 s[4:7], s[0:1], 0")
    A(f"s_load_dwordx2 s[{S_O}:{S_O+1}], s[0:1], 16")
    if c.dbg:
        A("s_memrealtime s[42:43]"); A("s_memtime s[44:45]")
        A(f"s_load_dwordx2 s[{S_WS}:{S_WS+1}], s[0:1], 24")
    if c.stamps:
        A(f"s_load_dwordx2 s[{S_WS}:{S_WS+1}], s[0:1], 32")
        A(f"v_mov_b32 v{V_ST}, 0")
    A("v_lshrrev_b32 v1, 6, v0")
    A("v_and_b32 v0, 63, v0")
    A(f"v_readfirstlane_b32 s{S_WAVE}, v1")
    A(f"s_lshr_b32 s{S_T0}, s2, 3")
    A(f"s_and_b32 s{S_T1}, s2, 7")
    A(f"s_mul_i32 s{S_T2}, s{S_T0}, 86")
    A(f"s_lshr_b32 s{S_T2}, s{S_T2}, 8")
    A(f"s_mul_i32 s{S_T3}, s{S_T2}, 3")
    A(f"s_sub_u32 s{S_G}, s{S_T0}, s{S_T3}")
    A(f"s_mul_i32 s{S_T1}, s{S_T1}, 10")
    A(f"s_add_u32 s{S_T1}, s{S_T1}, s{S_T2}")
    A("s_cmp_lt_u32 s2, 240")
    A("s_cbranch_scc1 L_map_done")
    A(f"s_sub_u32 s{S_T0}, s2, 240")
    A(f"s_mul_i32 s{S_T2}, s{S_T0}, 86")
    A(f"s_lshr_b32 s{S_T2}, s{S_T2}, 8")
    A(f"s_mul_i32 s{S_T3}, s{S_T2}, 3")
    A(f"s_sub_u32 s{S_G}, s{S_T0}, s{S_T3}")
    A(f"s_add_u32 s{S_T1}, s{S_T2}, 80")
    e.raw("L_map_done:")
    A(f"s_mul_i32 s{S_T2}, s{S_T1}, 9363")
    A(f"s_lshr_b32 s{S_T2}, s{S_T2}, 16")
    A(f"s_mul_i32 s{S_T3}, s{S_T2}, 7")
    A(f"s_sub_u32 s{S_T3}, s{S_T1}, s{S_T3}")
    A(f"s_lshl_b32 s{S_W0}, s{S_T3}, 5")
    A(f"s_mul_i32 s{S_T2}, s{S_T2}, {56*21846}")
    A(f"s_lshr_b32 s{S_T2}, s{S_T2}, 16")
    A(f"s_mul_i32 s{S_OROW}, s{S_T2}, {ROWB}")
    A(f"s_add_u32 s{S_XBASE}, s{S_OROW}, {(H-4)*ROWB}")
    A(f"s_lshl_b32 s{S_X0}, s{S_WAVE}, 10")
    A(f"s_add_u32 s{S_X1}, s{S_X0}, 4096")
    A(f"s_cmp_eq_u32 s{S_WAVE}, 3")
    A(f"s_cselect_b32 s{S_X1}, {DUMMY}, s{S_X1}")
    A(f"s_cselect_b32 s{S_XM}, 0, -1")
    A(f"s_add_u32 s{S_WM}, s{S_X0}, {WS}")
    A(f"s_add_u32 s{S_T0}, s{S_W0}, {W-4}")
    A(f"s_lshl_b32 s{S_T1}, s{S_WAVE}, 6")
    for pi in range(2):
        t0, t1, t2, t3 = V_T, V_T+1, V_T+2, V_T+3
        dst = V_XD0 if pi == 0 else V_XD1
        A(f"v_add_u32 v{t0}, s{S_T1}, v0")
        if pi: A(f"v_add_u32 v{t0}, 256, v{t0}")
        A(f"v_mul_u32_u24 v{t1}, 5462, v{t0}")
        A(f"v_lshrrev_b32 v{t1}, 16, v{t1}")
        A(f"v_mul_u32_u24 v{t2}, 12, v{t1}")
        A(f"v_sub_u32 v{t2}, v{t0}, v{t2}")
        A(f"v_lshrrev_b32 v{t3}, 1, v{t1}")
        A(f"v_and_b32 v{t3}, 2, v{t3}")
        A(f"v_xor_b32 v{t2}, v{t2}, v{t3}")
        A(f"v_add_u32 v{t1}, s{S_T0}, v{t1}")
        A(f"v_subrev_u32 v{t3}, {W}, v{t1}")
        A(f"v_min_u32 v{t1}, v{t1}, v{t3}")
        A(f"v_mul_u32_u24 v{t1}, 192, v{t1}")
        A(f"v_lshl_add_u32 v{dst}, v{t2}, 4, v{t1}")
        if pi:
            A(f"v_cmp_gt_u32 vcc, 432, v{t0}")
            A(f"v_mov_b32 v{t1}, 0x40000000")
            A("s_nop 1")
            A(f"v_cndmask_b32 v{dst}, v{t1}, v{dst}, vcc")
    t0, t1, t2 = V_T, V_T+1, V_T+2
    A(f"v_lshrrev_b32 v{t0}, 4, v0")
    A(f"v_bfe_u32 v{t1}, v0, 2, 2")
    A(f"v_lshl_add_u32 v{t1}, v{t0}, 3, v{t1}")
    A(f"v_mul_u32_u24 v{t1}, 192, v{t1}")
    A(f"v_and_b32 v{t0}, 1, v{t0}")
    A(f"v_lshlrev_b32 v{t0}, 1, v{t0}")
    A(f"v_and_b32 v{t2}, 3, v0")
    A(f"v_xor_b32 v{t2}, v{t2}, v{t0}")
    A(f"v_lshl_add_u32 v{t1}, v{t2}, 4, v{t1}")
    A(f"s_lshr_b32 s{S_T0}, s{S_WAVE}, 1")
    A(f"s_mul_i32 s{S_T0}, s{S_T0}, {480*192}")
    A(f"s_and_b32 s{S_T1}, s{S_WAVE}, 1")
    A(f"s_mul_i32 s{S_T1}, s{S_T1}, {4*192}")
    A(f"s_add_u32 s{S_T0}, s{S_T0}, s{S_T1}")
    A(f"s_lshl_b32 s{S_T1}, s{S_G}, 6")
    A(f"s_add_u32 s{S_T0}, s{S_T0}, s{S_T1}")
    A(f"v_add_u32 v{V_WD}, s{S_T0}, v{t1}")
    A(f"s_lshr_b32 s{S_T0}, s2, 3")
    A(f"s_lshl_b32 s{S_T0}, s{S_T0}, 2")
    A(f"s_add_u32 s{S_T0}, s{S_T0}, s{S_WAVE}")
    A(f"s_mul_i32 s{S_T0}, s{S_T0}, 29")
    A(f"v_add_u32 v{V_PF}, s{S_T0}, v0")
    A(f"v_lshlrev_b32 v{V_PF}, 7, v{V_PF}")
    A(f"v_cmp_gt_u32 vcc, 29, v0")
    A(f"v_mov_b32 v{t1}, 0x40000000")
    A("s_nop 1")
    A(f"v_cndmask_b32 v{V_PF}, v{t1}, v{V_PF}, vcc")
    A("s_waitcnt lgkmcnt(0)")
    for base, lo, hi, n in ((S_X, "s4", "s5", XBYTES), (S_Wt, "s6", "s7", WBYTES)):
        A(f"s_mov_b32 s{base}, {lo}"); A(f"s_mov_b32 s{base+1}, {hi}")
        A(f"s_mov_b32 s{base+2}, {n}"); A(f"s_mov_b32 s{base+3}, 0x20000")
    A(f"s_mov_b32 s{S_O+2}, {XBYTES}")
    A(f"s_mov_b32 s{S_O+3}, 0x20000")
    e.stamp()
    for it in (x_items(e, 4), x_items(e, 5), w_items(e, 0), x_items(e, 3), x_items(e, 6), w_items(e, 1)):
        emit_now(e, it)
    e.vmem(f"buffer_load_dword v{V_T+5}, v{V_PF}, s[{S_Wt}:{S_Wt+3}], 0 offen", "pf")
    A(f"v_and_b32 v{V_T}, 15, v0")
    A(f"v_lshrrev_b32 v{V_T+1}, 4, v0")
    A(f"s_lshr_b32 s{S_T0}, s{S_WAVE}, 1")
    A(f"s_lshl_b32 s{S_T0}, s{S_T0}, 4")
    A(f"v_add_u32 v{V_T+4}, s{S_T0}, v{V_T}")
    for kw in range(5):
        A(f"v_add_u32 v{V_T+2}, {4-kw}, v{V_T+4}")
        A(f"v_lshrrev_b32 v{V_T+3}, 1, v{V_T+2}")
        A(f"v_and_b32 v{V_T+3}, 2, v{V_T+3}")
        A(f"v_xor_b32 v{V_T+3}, v{V_T+3}, v{V_T+1}")
        A(f"v_mul_u32_u24 v{V_T+2}, 192, v{V_T+2}")
        A(f"v_lshl_add_u32 v{V_XAA+kw}, v{V_T+3}, 4, v{V_T+2}")
        if XA: A(f"v_add_u32 v{V_XAA+kw}, {XA}, v{V_XAA+kw}")
        A(f"v_add_u32 v{V_XAR+kw}, {XR-XA}, v{V_XAA+kw}")
    A(f"s_and_b32 s{S_T1}, s{S_WAVE}, 1")
    A(f"v_and_b32 v{V_T+2}, 1, v{V_T+1}")
    A(f"v_xor_b32 v{V_T+2}, s{S_T1}, v{V_T+2}")
    A(f"v_lshlrev_b32 v{V_T+2}, 5, v{V_T+2}")
    A(f"v_lshrrev_b32 v{V_T+3}, 2, v0")
    A(f"v_lshl_add_u32 v{V_T+2}, v{V_T+3}, 6, v{V_T+2}")
    A(f"v_and_b32 v{V_T+3}, 3, v0")
    A(f"v_lshl_add_u32 v{V_T+2}, v{V_T+3}, 3, v{V_T+2}")
    A(f"v_add_u32 v{V_TR}, {WS}, v{V_T+2}")
    A(f"v_add_u32 v{V_T+2}, s{S_W0}, v{V_T+4}")
    A(f"v_mul_u32_u24 v{V_T+2}, 192, v{V_T+2}")
    A(f"v_lshl_add_u32 v{V_T+2}, v{V_T+1}, 3, v{V_T+2}")
    A(f"s_lshl_b32 s{S_T0}, s{S_G}, 1")
    A(f"s_add_u32 s{S_T0}, s{S_T0}, s{S_T1}")
    A(f"s_lshl_b32 s{S_T0}, s{S_T0}, 5")
    A(f"v_add_u32 v{V_OUT}, s{S_T0}, v{V_T+2}")

def b_read_to(e, row, f, reg, tag):
    kw, cc = divmod(f, 3)
    kind, off = xslot(row)
    base = V_XAA if kind == "A" else V_XAR
    e.lds(f"ds_read_b128 {reg}, v{base+kw} offset:{off + cc*64}", tag)
def tr_read(e, s, kh, h):
    e.lds(f"ds_read_b64_tr_b16 {wreg(kh, s, 2*h)}, v{V_TR} offset:{(s % NWS)*WSLOT + (2*kh + h)*1024}", f"t{s}_{kh}")

def cvt_store(e, a, pair, o):
    vo = V_O + 2 * pair
    def c0(): e.A(f"v_cvt_pk_bf16_f32 v{vo}, v{a}, v{a+1}")
    def c1(): e.A(f"v_cvt_pk_bf16_f32 v{vo+1}, v{a+2}, v{a+3}")
    def st():
        e.vmem(f"buffer_store_dwordx2 v[{vo}:{vo+1}], v{V_OUT}, s[{S_O}:{S_O+3}], s{S_OROW} offen {e.cfg.store_flags}".rstrip(), f"o{o}")
        e.A(f"s_add_u32 s{S_OROW}, s{S_OROW}, {ROWB}")
    return c0, c1, st

def block_a(e):
    c = e.cfg
    RA = c.RA
    assert RA == 6
    def khs(i): return [kh for kh in range(5) if 0 <= i - 4 + kh < RA]
    order = []
    order += [("M", 0), (4, 0), (5, 0)]
    newrows = {1: (3, 6), 2: (2, 7), 3: (1, 8), 4: (0, 9)}
    have = [4, 5]
    for p in range(1, 5):
        order.append(("M", p))
        for s in range(p):
            for r in newrows[p]: order.append((r, s))
        have = sorted(have + list(newrows[p]))
        rows = sorted(have, key=lambda r: -len(khs(r)))
        for r in rows: order.append((r, p))
    for s in range(5, 15):
        order.append(("M", s))
        rows = sorted(range(10), key=lambda r: -len(khs(r)))
        for r in rows: order.append((r, s))
    mf = []; first = {}; mpos = {}
    for ent in order:
        if ent[0] == "M": mpos[ent[1]] = len(mf)
        else:
            first[ent] = len(mf)
            for kh in khs(ent[0]): mf.append((ent, kh))
    M = len(mf)
    assert M == RA * 75
    mark_at = {}
    prev = 0
    for p in sorted(mpos):
        q = mpos[p]
        if p >= 5:
            q = max(prev, mpos[p] - 28)
        elif p >= 1:
            q = max(prev, mpos[p] - c.early)
        mark_at[p] = q; prev = q
    row_marker = {4: 0, 5: 0, 3: 1, 6: 1, 2: 2, 7: 2, 1: 3, 8: 3, 0: 4, 9: 4}
    tasks = []
    pairs = [ent for ent in order if ent[0] != "M"]
    last_use = {}
    for q, (ent, kh) in enumerate(mf): last_use[ent] = q
    for ent in pairs:
        tasks.append(dict(kind="b", ent=ent, ready=mark_at[row_marker[ent[0]]], due=first[ent], done=False))
    for s in range(15):
        for kh in range(5):
            due = min(q for q, (ent, k2) in enumerate(mf) if ent[1] == s and k2 == kh)
            for h in range(2):
                tasks.append(dict(kind="t", s=s, kh=kh, h=h, ready=mark_at[s], due=due, done=False))
    tasks.sort(key=lambda t: (t["due"], 0 if t["kind"] == "t" else 1))
    bslots = [None] * 15
    bfree_at = [-1] * 15
    bassign = {}
    def issue(t, q):
        if t["kind"] == "t":
            tr_read(e, t["s"], t["kh"], t["h"])
        else:
            k = min(range(15), key=lambda j: bfree_at[j])
            if bfree_at[k] >= q and bslots[k] is not None: return False
            ent = t["ent"]
            bslots[k] = ent; bfree_at[k] = last_use[ent]; bassign[ent] = k
            reg = V_B + 60 + 4 * k
            b_read_to(e, ent[0], ent[1], f"v[{reg}:{reg+3}]", f"pb{ent[0]}_{ent[1]}")
        t["done"] = True
        return True
    dplan = {0: [("x", 2), ("x", 7), ("w", 2)], 1: [("x", 1), ("x", 8), ("w", 3)], 2: [("x", 0), ("x", 9), ("w", 4)],
             3: [("w", 5), ("w", 6)], 4: [("w", 7), ("w", 8)], 5: [("w", 9)], 6: [("w", 10)], 7: [("w", 11), ("x", 10)],
             8: [("w", 12), ("x", 11)], 9: [("w", 13), ("x", 12)], 10: [("w", 14), ("x", 13)]}
    dq = []
    marks_sorted = sorted(mark_at)
    for p in marks_sorted:
        items = []
        for kind, a in dplan.get(p, []):
            items += (x_items(e, a) if kind == "x" else w_items(e, a))
        if not items: continue
        lo = mark_at[p]
        hi = mark_at[p+1] if p + 1 in mark_at else M - 2
        span = max(hi - lo - 1, 1)
        for k, (su, iss) in enumerate(items):
            pos = lo + (k * span) // len(items)
            dq.append((pos, su, iss))
    dq.sort(key=lambda z: z[0])
    pend_iss = []
    inited = set()
    row6 = [dict(f=f, pos=M - 40 + 2 * f) for f in range(15)]
    for q in range(M):
        for p in marks_sorted:
            if mark_at[p] == q:
                tags = [f"w{p}"] + [f"x{r}" for r in row_marker if row_marker[r] == p]
                if p >= 1:
                    lastt = None
                    for t in tasks:
                        if t["kind"] == "t" and t["s"] == p-1 and not t["done"]: issue(t, q)
                    idxs = [i_ for i_, tg in enumerate(e.lg) if tg.startswith(f"t{p-1}_")]
                    e.wait_lg(e.lg[max(idxs)])
                e.wait_vm(*tags)
                e.A("s_barrier")
                e.stamp()
        ent, kh = mf[q]
        late = [t for t in tasks if not t["done"] and t["due"] <= q]
        if late:
            for t in late:
                assert t["ready"] <= q, (t, q)
                ok = issue(t, q); assert ok
            nb = 0
            for t in tasks:
                if t["done"] or t["ready"] > q: continue
                if len(e.lg) - e.lg_done >= 13: break
                if t["kind"] == "b" and t["due"] - q > c.look: continue
                if issue(t, q): nb += 1
        e.wait_lg(f"t{ent[1]}_{kh}")
        e.wait_lg(f"pb{ent[0]}_{ent[1]}")
        o = ent[0] - 4 + kh
        a = V_ACCA + 4 * o
        src = f"v[{a}:{a+3}]" if o in inited else "0"
        inited.add(o)
        reg = V_B + 60 + 4 * bassign[ent]
        e.A(f"v_mfma_f32_16x16x32_bf16 v[{a}:{a+3}], {wreg(kh, ent[1])}, v[{reg}:{reg+3}], {src}")
        for iss in pend_iss: iss()
        pend_iss = []
        while dq and dq[0][0] <= q:
            _, su, iss = dq.pop(0); su(); pend_iss.append(iss)
            break
        n = 0
        for t in tasks:
            if n >= c.cap: break
            if t["done"] or t["ready"] > q: continue
            if t["kind"] == "b" and t["due"] - q > c.look: continue
            if len(e.lg) - e.lg_done >= 14: break
            if issue(t, q + 1): n += 1
        for r6 in row6:
            if r6["pos"] == q:
                b_read_to(e, RA, r6["f"], breg(RA, r6["f"]), f"b{RA}")
    for iss in pend_iss: iss()
    assert not dq, dq
    e.wait_lg(f"b{RA}")

def step(e, i, chains, last_row, extra_out):
    c = e.cfg; RA = c.RA
    mf = []
    for kh in chains:
        o = i - 4 + kh
        a = acc(o)
        for f in range(15):
            src = "0" if (kh == 4 and f == 0) else f"v[{a}:{a+3}]"
            mf.append(f"v_mfma_f32_16x16x32_bf16 v[{a}:{a+3}], {wreg(kh, f)}, {breg(i, f)}, {src}")
    M = len(mf)
    side = {}
    def after(p, fn): side.setdefault(min(p, M-1), []).append(fn)
    nxt = i + 1
    if nxt <= last_row and nxt >= NA:
        e.wait_vm(f"x{nxt}", force=(i >= NA))
        e.A("s_barrier")
    if nxt <= last_row:
        span = max(M - 7, 1)
        for f in range(15):
            after((f * span) // 15, (lambda f=f: b_read_to(e, nxt, f, breg(nxt, f), f"b{nxt}")))
    r4 = i + 4
    if i >= NA and r4 <= last_row:
        its = x_items(e, r4, seq=True)
        for k, (su, iss) in enumerate(its):
            p = 20 + 20 * k
            after(p, su); after(p + 1, iss)
    outs = []
    tail = []
    if 0 in chains and i - 4 >= RA:
        o = i - 4; endp = chains.index(0) * 15 + 14
        fns = cvt_store(e, acc(o), 0, o)
        if endp + 12 < M:
            after(endp + 9, fns[0]); after(endp + 10, fns[1]); after(endp + 12, fns[2])
        else: tail = fns
    for k, (a, o) in enumerate(extra_out):
        fns = cvt_store(e, a, k % 2, o)
        p0 = (k * M) // max(len(extra_out), 1) + 1
        after(p0, fns[0]); after(p0 + 1, fns[1]); after(p0 + 3, fns[2])
    for p, s in enumerate(mf):
        e.A(s)
        for fn in side.get(p, []): fn()
    if tail:
        e.A("s_nop 7"); e.A("s_nop 1"); tail[0](); tail[1](); e.A("s_nop 0"); tail[2]()
    if nxt <= last_row: e.wait_lg(f"b{nxt}")

def build(cfg):
    e = Em(cfg)
    n = cfg.nrows; RA = cfg.RA
    last_row = n + 3
    e.raw(f"; @launch grid=(252,1,1) block=(256,1,1) lds={LDS_BYTES}")
    e.raw('.amdgcn_target "amdgcn-amd-amdhsa--gfx950"')
    e.raw(".text")
    e.raw(".globl standalone__fft_conv__vision_kernel")
    e.raw(".p2align 8")
    e.raw(".type standalone__fft_conv__vision_kernel,@function")
    e.raw("standalone__fft_conv__vision_kernel:")
    prologue(e)
    if cfg.dbg: e.A("s_memtime s[46:47]")
    block_a(e)
    e.stamp()
    e.A(f"s_add_u32 s{S_T0}, s{S_XBASE}, {14*ROWB}")
    e.A(f"s_sub_u32 s{S_T1}, s{S_T0}, {XBYTES}")
    e.A(f"s_min_u32 s{S_XROW}, s{S_T0}, s{S_T1}")
    def chains_for(i): return [kh for kh in range(5) if RA <= i - 4 + kh < n]
    flush = {RA + 1: [0, 1], RA + 2: [2, 3], RA + 3: [4, 5]}
    i = RA
    while i < NA:
        ex = [(V_ACCA + 4 * o, o) for o in flush.get(i, [])]
        step(e, i, chains_for(i), last_row, ex); e.stamp(); i += 1
    if not cfg.loop:
        while i <= last_row:
            step(e, i, chains_for(i), last_row, []); e.stamp(); i += 1
    else:
        steady = list(range(NA, n)); nst = len(steady)
        start = len(e.L); seg = []
        st_save = cfg.stamps; cfg.stamps = False
        for ii in steady:
            s0 = len(e.L)
            step(e, ii, chains_for(ii), last_row, [])
            seg.append(e.L[s0:])
        cfg.stamps = st_save
        e.L = e.L[:start]
        for k in range(4, nst):
            a, b = seg[k % 4], seg[k]
            assert len(a) == len(b), f"non periodic step {steady[k]}"
            for j in range(len(a)):
                if a[j] != b[j]:
                    ma = re.fullmatch(r"  s_waitcnt vmcnt\((\d+)\)", a[j]); mb = re.fullmatch(r"  s_waitcnt vmcnt\((\d+)\)", b[j])
                    assert ma and mb, (a[j], b[j])
                    a[j] = f"  s_waitcnt vmcnt({min(int(ma.group(1)), int(mb.group(1)))})"
        full, rem = divmod(nst, 4)
        assert rem != 0
        e.A(f"s_mov_b32 s{S_CNT}, {full}")
        e.raw(".p2align 3")
        e.raw("L_loop:")
        for k in range(4):
            if k == rem:
                e.A(f"s_cmp_eq_u32 s{S_CNT}, 0")
                e.A("s_cbranch_scc1 L_down")
                e.A(f"s_sub_u32 s{S_CNT}, s{S_CNT}, 1")
            e.L.extend(seg[k])
        e.A("s_branch L_loop")
        e.raw("L_down:")
        i = n
        e.stamp()
        while i <= last_row:
            step(e, i, chains_for(i), last_row, []); e.stamp(); i += 1
    if cfg.dbg:
        e.A("s_memtime s[50:51]"); e.A("s_memrealtime s[58:59]")
        e.A("s_waitcnt vmcnt(0) lgkmcnt(0)")
        e.A("s_memrealtime s[52:53]"); e.A("s_memtime s[54:55]"); e.A("s_waitcnt lgkmcnt(0)")
    if cfg.stamps:
        e.A("s_waitcnt vmcnt(0)")
        e.stamp()
        e.A(f"s_lshl_b32 s{S_T0}, s2, 2")
        e.A(f"s_add_u32 s{S_T0}, s{S_T0}, s{S_WAVE}")
        e.A(f"s_lshl_b32 s{S_T0}, s{S_T0}, 8")
        e.A(f"s_add_u32 s{S_WS}, s{S_WS}, s{S_T0}")
        e.A(f"s_addc_u32 s{S_WS+1}, s{S_WS+1}, 0")
        e.A("v_lshlrev_b32 v1, 2, v0")
        e.A(f"global_store_dword v1, v{V_ST}, s[{S_WS}:{S_WS+1}]")
    e.raw("L_end:")
    e.A("s_endpgm")
    e.raw('.section .rodata,"a"')
    e.raw(".p2align 6")
    e.raw(".amdhsa_kernel standalone__fft_conv__vision_kernel")
    for l in ("next_free_vgpr 512", "next_free_sgpr 64", "accum_offset 256", "group_segment_fixed_size 0", "kernarg_size 40",
              "user_sgpr_count 2", "user_sgpr_kernarg_segment_ptr 1", "system_sgpr_workgroup_id_x 1"):
        e.raw("  .amdhsa_" + l)
    e.raw(".end_amdhsa_kernel")
    open(cfg.name, "w").write("\n".join(e.L) + "\n")
    return e

if __name__ == "__main__":
    ap = argparse.ArgumentParser()
    ap.add_argument("-o", default=Cfg.name)
    ap.add_argument("--stamps", action="store_true")
    ap.add_argument("--noloop", action="store_true")
    ap.add_argument("--store", default="")
    ap.add_argument("--cap", type=int, default=2)
    ap.add_argument("--look", type=int, default=12)
    ap.add_argument("--early", type=int, default=8)
    a = ap.parse_args()
    cfg = Cfg()
    cfg.name = a.o; cfg.stamps = a.stamps; cfg.loop = not a.noloop; cfg.store_flags = a.store
    cfg.cap = a.cap; cfg.look = a.look; cfg.early = a.early
    e = build(cfg)
    print("lines", len(e.L), "stamps", e.nstamp, "LDS", LDS_BYTES)
```

```python
import sys, argparse, re

class Cfg:
    nrows = 19
    RA = 8
    store_flags = ""
    lst = False
    loop = True
    look = 12
    early = 8
    wearly = 26
    codepf = True
    align12 = True
    name = "standalone__fft_conv__vision.s"

H = W = 224
ROWB = W * 192
XBYTES = H * ROWB
WBYTES = 460800
SLOTB = 7168
NA = 12
XR = NA * SLOTB
X2 = 10 * SLOTB
WS = XR + 4 * SLOTB
WSLOT = 10240
NWS = 4
DUMMY = WS + NWS * WSLOT
LDS_BYTES = DUMMY + 1024

S_X, S_Wt, S_O = 8, 12, 16
S_WS = 20
S_WAVE = 22
S_X0, S_X1, S_XM = 23, 24, 25
S_XBASE, S_XROW, S_OROW, S_CNT = 26, 27, 28, 29
S_T0, S_T1, S_T2, S_T3 = 30, 31, 32, 33
S_WM, S_G, S_W0, S_WM2, S_WMM = 34, 35, 36, 37, 38
S_T4, S_T5 = 39, 40
S_PC = 42
S_CP = 44
V_XAA = 2; V_XAR = 7
V_XD0, V_XD1 = 12, 13
V_WD, V_TR, V_OUT, V_PF = 14, 15, 16, 17
V_T = 18
V_O = 24
V_ST = 28
V_ACC = 32
V_B = 48
V_ACCA = 168
V_PFX = 200
V_PFD = 202
V_WT = 212

def wreg(kh, f, lo=None):
    i = kh * 15 + f
    if i < 64: base, t = 4 * i, "a"
    else: base, t = V_WT + 4 * (i - 64), "v"
    if lo is None: return f"{t}[{base}:{base+3}]"
    return f"{t}[{base+lo}:{base+lo+1}]"
def breg(row, f):
    b = V_B + (row % 2) * 60 + 4 * f
    return f"v[{b}:{b+3}]"
def acc(o): return V_ACC + 4 * (o % 4)
def xlds(row): return row * SLOTB if row < NA else XR + ((row - NA) % 4) * SLOTB
def xslot(row):
    a = xlds(row)
    return ("A", a) if a < X2 else ("R", a - X2)

class Em:
    def __init__(self, cfg):
        self.cfg = cfg; self.L = []
        self.vm = []; self.vm_done = 0
        self.lg = []; self.lg_done = 0; self.lg_pos = []
        self.pos = 0
        self.nl = 0; self.lnames = []
    def A(self, s): self.L.append("  " + s)
    def raw(self, s): self.L.append(s)
    def mfma(self, s): self.A(s); self.pos += 1
    def vmem(self, s, tag): self.A(s); self.vm.append(tag)
    def lds(self, s, tag): self.A(s); self.lg.append(tag); self.lg_pos.append(self.pos)
    def vm_need(self, tags):
        idx = -1
        for tag in tags:
            assert tag in self.vm, (tag, self.vm)
            idx = max(idx, max(i for i, t in enumerate(self.vm) if t == tag))
        return idx
    def wait_vm(self, *tags, force=False):
        idx = self.vm_need(tags)
        if idx < self.vm_done and not force: return False
        n = min(len(self.vm) - 1 - idx, 63)
        self.A(f"s_waitcnt vmcnt({n})"); self.vm_done = max(self.vm_done, len(self.vm) - n)
        return True
    def wait_lg(self, *tags, age=None):
        idx = -1
        for tag in tags:
            assert tag in self.lg, tag
            idx = max(idx, max(i for i, t in enumerate(self.lg) if t == tag))
        if idx < self.lg_done: return False
        if age is not None:
            for i in range(idx + 1, len(self.lg)):
                if self.pos - self.lg_pos[i] >= age: idx = i
        n = min(len(self.lg) - 1 - idx, 15)
        self.A(f"s_waitcnt lgkmcnt({n})"); self.lg_done = len(self.lg) - n
        return True
    def lstamp(self, name=""):
        if not self.cfg.lst: return
        k = self.nl; assert k < 18
        self.A(f"s_memtime s[{64+2*k}:{65+2*k}]")
        self.lnames.append(name); self.nl = k + 1

def x_ops(e, row, seq=False):
    base = xlds(row); ops = []
    I = lambda s: (lambda: e.A(s))
    if not seq:
        ops += [I(f"s_add_u32 s{S_T0}, s{S_XBASE}, {row*ROWB}"), I(f"s_sub_u32 s{S_T1}, s{S_T0}, {XBYTES}"),
                I(f"s_min_u32 s{S_XROW}, s{S_T0}, s{S_T1}")]
    ops += [I(f"s_add_u32 m0, s{S_X0}, {base}"),
            lambda: e.vmem(f"buffer_load_dwordx4 v{V_XD0}, s[{S_X}:{S_X+3}], s{S_XROW} offen lds", f"x{row}")]
    if base: ops += [I(f"s_and_b32 s{S_T2}, s{S_XM}, {base}"), I(f"s_add_u32 m0, s{S_X1}, s{S_T2}")]
    else: ops += [I(f"s_mov_b32 m0, s{S_X1}")]
    ops += [lambda: e.vmem(f"buffer_load_dwordx4 v{V_XD1}, s[{S_X}:{S_X+3}], s{S_XROW} offen lds", f"x{row}")]
    if seq:
        ops += [I(f"s_add_u32 s{S_XROW}, s{S_XROW}, {ROWB}"), I(f"s_sub_u32 s{S_T1}, s{S_XROW}, {XBYTES}"),
                I(f"s_min_u32 s{S_XROW}, s{S_XROW}, s{S_T1}")]
    return ops
def w_ops(e, s):
    ops = []
    I = lambda t: (lambda: e.A(t))
    for m in range(3):
        off = (s % NWS) * WSLOT
        ops.append(I(f"s_mov_b32 s{S_T3}, {(32*s + 960*m)*192}"))
        if m < 2: ops.append(I(f"s_add_u32 m0, s{S_WM}, {off + 4*m*1024}"))
        elif off: ops += [I(f"s_and_b32 s{S_T4}, s{S_WMM}, {off}"), I(f"s_add_u32 m0, s{S_WM2}, s{S_T4}")]
        else: ops.append(I(f"s_mov_b32 m0, s{S_WM2}"))
        ops.append(lambda m=m: e.vmem(f"buffer_load_dwordx4 v{V_WD}, s[{S_Wt}:{S_Wt+3}], s{S_T3} offen lds", f"w{s}"))
    return ops
def emit_now(e, ops):
    for op in ops:
        n0 = len(e.L)
        prev = e.L[-1]
        tmp = len(e.L); op()
        if " lds" in e.L[-1] and re.search(r"\bm0,", e.L[tmp-1]):
            e.L.insert(tmp, "  s_nop 0")

def prologue(e):
    c = e.cfg; A = e.A
    t0, t1, t2, t3 = V_T, V_T+1, V_T+2, V_T+3
    A("s_cmp_ge_u32 s2, 252")
    A("s_cbranch_scc1 L_end")
    A("s_load_dwordx4 s[4:7], s[0:1], 0")
    A(f"s_load_dwordx2 s[{S_O}:{S_O+1}], s[0:1], 16")
    e.lstamp("start")
    A("v_lshrrev_b32 v1, 6, v0")
    A("v_and_b32 v0, 63, v0")
    A(f"v_readfirstlane_b32 s{S_WAVE}, v1")
    A(f"s_lshr_b32 s{S_T0}, s2, 3")
    A(f"s_lshl_b32 s{S_T4}, s{S_T0}, 2")
    A(f"s_add_u32 s{S_T4}, s{S_T4}, s{S_WAVE}")
    if c.codepf:
        A(f"s_getpc_b64 s[{S_PC}:{S_PC+1}]")
    A(f"s_and_b32 s{S_T1}, s2, 7")
    A(f"s_mul_i32 s{S_T2}, s{S_T0}, 86")
    A(f"s_lshr_b32 s{S_T2}, s{S_T2}, 8")
    A(f"s_mul_i32 s{S_T3}, s{S_T2}, 3")
    A(f"s_sub_u32 s{S_G}, s{S_T0}, s{S_T3}")
    A(f"s_mul_i32 s{S_T1}, s{S_T1}, 10")
    A(f"s_add_u32 s{S_T1}, s{S_T1}, s{S_T2}")
    A("s_cmp_lt_u32 s2, 240")
    A("s_cbranch_scc1 L_map_done")
    A(f"s_sub_u32 s{S_T0}, s2, 240")
    A(f"s_mul_i32 s{S_T2}, s{S_T0}, 86")
    A(f"s_lshr_b32 s{S_T2}, s{S_T2}, 8")
    A(f"s_mul_i32 s{S_T3}, s{S_T2}, 3")
    A(f"s_sub_u32 s{S_G}, s{S_T0}, s{S_T3}")
    A(f"s_add_u32 s{S_T1}, s{S_T2}, 80")
    e.raw("L_map_done:")
    A(f"s_mul_i32 s{S_T2}, s{S_T1}, 9363")
    A(f"s_lshr_b32 s{S_T2}, s{S_T2}, 16")
    A(f"s_mul_i32 s{S_T3}, s{S_T2}, 7")
    A(f"s_sub_u32 s{S_T3}, s{S_T1}, s{S_T3}")
    A(f"s_lshl_b32 s{S_W0}, s{S_T3}, 5")
    A(f"s_mul_i32 s{S_T2}, s{S_T2}, {56*21846}")
    A(f"s_lshr_b32 s{S_T2}, s{S_T2}, 16")
    A(f"s_mul_i32 s{S_OROW}, s{S_T2}, {ROWB}")
    A(f"s_add_u32 s{S_XBASE}, s{S_OROW}, {(H-4)*ROWB}")
    A(f"s_mul_i32 s{S_T0}, s{S_WAVE}, 27")
    A(f"v_add_u32 v{t0}, s{S_T0}, v0")
    A(f"v_mul_u32_u24 v{t1}, 3641, v{t0}")
    A(f"v_lshrrev_b32 v{t1}, 16, v{t1}")
    A(f"v_mul_u32_u24 v{t2}, 18, v{t1}")
    A(f"v_sub_u32 v{t2}, v{t0}, v{t2}")
    A(f"s_mul_i32 s{S_T0}, s{S_G}, 18")
    A(f"v_add_u32 v{t2}, s{S_T0}, v{t2}")
    A(f"v_lshlrev_b32 v{t2}, 7, v{t2}")
    A(f"s_add_u32 s{S_T0}, s{S_W0}, {W-4}")
    A(f"s_mul_i32 s{S_T0}, s{S_T0}, 192")
    A(f"v_add_u32 v{t2}, s{S_T0}, v{t2}")
    A(f"v_subrev_u32 v{t0}, {ROWB}, v{t2}")
    A(f"v_min_u32 v{V_T+4}, v{t2}, v{t0}")
    A(f"v_mov_b32 v{V_T+5}, v{t1}")
    A(f"s_mov_b32 s{S_T1}, {ROWB}")
    A(f"s_mov_b32 s{S_T2}, {XBYTES}")
    A(f"v_cmp_gt_u32 vcc, 27, v0")
    A(f"v_add_u32 v{t0}, 3, v{t1}")
    A(f"v_mul_lo_u32 v{t0}, v{t0}, s{S_T1}")
    A(f"v_add_u32 v{t0}, s{S_XBASE}, v{t0}")
    A(f"v_subrev_u32 v{t3}, s{S_T2}, v{t0}")
    A(f"v_min_u32 v{t0}, v{t0}, v{t3}")
    A(f"v_add_u32 v{t0}, v{t0}, v{V_T+4}")
    A(f"v_mov_b32 v{t3}, 0x40000000")
    A(f"v_cndmask_b32 v{V_PFX}, v{t3}, v{t0}, vcc")
    A(f"s_mul_i32 s{S_T0}, s{S_T4}, 29")
    A(f"v_cmp_gt_u32 vcc, 29, v0")
    A(f"v_add_u32 v{t0}, s{S_T0}, v0")
    A(f"v_lshlrev_b32 v{t0}, 7, v{t0}")
    A(f"v_cndmask_b32 v{V_PF}, v{t3}, v{t0}, vcc")
    A("s_waitcnt lgkmcnt(0)")
    for base, lo, hi, n in ((S_X, "s4", "s5", XBYTES), (S_Wt, "s6", "s7", WBYTES)):
        A(f"s_mov_b32 s{base}, {lo}"); A(f"s_mov_b32 s{base+1}, {hi}")
        A(f"s_mov_b32 s{base+2}, {n}"); A(f"s_mov_b32 s{base+3}, 0x20000")
    e.vmem(f"buffer_load_dword v{V_PFD}, v{V_PFX}, s[{S_X}:{S_X+3}], 0 offen", "pf")
    e.vmem(f"buffer_load_dword v{V_PFD+1}, v{V_PF}, s[{S_Wt}:{S_Wt+3}], 0 offen", "pf")
    e.lstamp("pf")
    if c.codepf:
        A(f"s_and_b32 s{S_PC}, s{S_PC}, 0xffffff80")
        A(f"s_lshl_b32 s{S_T5}, s{S_T4}, 8")
        A(f"s_add_u32 s{S_PC}, s{S_PC}, s{S_T5}")
        A(f"s_addc_u32 s{S_PC+1}, s{S_PC+1}, 0")
        A(f"s_cmp_lt_u32 s{S_T5}, CODE_BYTES-132")
        A(f"s_cbranch_scc0 L_nocp")
        A(f"s_load_dword s{S_CP}, s[{S_PC}:{S_PC+1}], 0")
        A(f"s_load_dword s{S_CP+1}, s[{S_PC}:{S_PC+1}], 128")
        e.raw("L_nocp:")
    A(f"s_mov_b32 s{S_O+2}, {XBYTES}")
    A(f"s_mov_b32 s{S_O+3}, 0x20000")
    A(f"s_lshl_b32 s{S_X0}, s{S_WAVE}, 10")
    A(f"s_add_u32 s{S_X1}, s{S_X0}, 4096")
    A(f"s_cmp_eq_u32 s{S_WAVE}, 3")
    A(f"s_cselect_b32 s{S_X1}, {DUMMY}, s{S_X1}")
    A(f"s_cselect_b32 s{S_XM}, 0, -1")
    A(f"s_add_u32 s{S_WM}, s{S_X0}, {WS}")
    A(f"s_add_u32 s{S_WM2}, s{S_WM}, 8192")
    A(f"s_cmp_ge_u32 s{S_WAVE}, 2")
    A(f"s_cselect_b32 s{S_WM2}, {DUMMY}, s{S_WM2}")
    A(f"s_cselect_b32 s{S_WMM}, 0, -1")
    A(f"s_add_u32 s{S_T0}, s{S_W0}, {W-4}")
    A(f"s_lshl_b32 s{S_T1}, s{S_WAVE}, 6")
    for pi in range(2):
        dst = V_XD0 if pi == 0 else V_XD1
        A(f"v_add_u32 v{t0}, s{S_T1}, v0")
        if pi: A(f"v_add_u32 v{t0}, 256, v{t0}")
        A(f"v_mul_u32_u24 v{t1}, 5462, v{t0}")
        A(f"v_lshrrev_b32 v{t1}, 16, v{t1}")
        A(f"v_mul_u32_u24 v{t2}, 12, v{t1}")
        A(f"v_sub_u32 v{t2}, v{t0}, v{t2}")
        A(f"v_lshrrev_b32 v{t3}, 1, v{t1}")
        A(f"v_and_b32 v{t3}, 2, v{t3}")
        A(f"v_xor_b32 v{t2}, v{t2}, v{t3}")
        A(f"v_add_u32 v{t1}, s{S_T0}, v{t1}")
        A(f"v_subrev_u32 v{t3}, {W}, v{t1}")
        A(f"v_min_u32 v{t1}, v{t1}, v{t3}")
        A(f"v_mul_u32_u24 v{t1}, 192, v{t1}")
        if pi: A(f"v_cmp_gt_u32 vcc, 432, v{t0}")
        A(f"v_lshl_add_u32 v{dst}, v{t2}, 4, v{t1}")
        if pi:
            A(f"v_mov_b32 v{t1}, 0x40000000")
            A(f"v_cndmask_b32 v{dst}, v{t1}, v{dst}, vcc")
    A(f"v_lshrrev_b32 v{t0}, 4, v0")
    A(f"v_bfe_u32 v{t1}, v0, 2, 2")
    A(f"v_lshl_add_u32 v{t1}, v{t0}, 3, v{t1}")
    A(f"v_mul_u32_u24 v{t1}, 192, v{t1}")
    A(f"v_and_b32 v{t0}, 1, v{t0}")
    A(f"v_lshlrev_b32 v{t0}, 1, v{t0}")
    A(f"v_and_b32 v{t2}, 3, v0")
    A(f"v_xor_b32 v{t2}, v{t2}, v{t0}")
    A(f"v_lshl_add_u32 v{t1}, v{t2}, 4, v{t1}")
    A(f"s_lshr_b32 s{S_T0}, s{S_WAVE}, 1")
    A(f"s_mul_i32 s{S_T0}, s{S_T0}, {480*192}")
    A(f"s_and_b32 s{S_T1}, s{S_WAVE}, 1")
    A(f"s_mul_i32 s{S_T1}, s{S_T1}, {4*192}")
    A(f"s_add_u32 s{S_T0}, s{S_T0}, s{S_T1}")
    A(f"s_lshl_b32 s{S_T1}, s{S_G}, 6")
    A(f"s_add_u32 s{S_T0}, s{S_T0}, s{S_T1}")
    A(f"v_add_u32 v{V_WD}, s{S_T0}, v{t1}")
    for ops in (x_ops(e, 4), w_ops(e, 0), x_ops(e, 5), w_ops(e, 1)): emit_now(e, ops)
    A(f"v_cmp_lt_u32 vcc, 2, v{V_T+5}")
    A(f"v_add_u32 v{t0}, 6, v{V_T+5}")
    A(f"s_mov_b32 s{S_T1}, {ROWB}")
    A(f"v_cndmask_b32 v{t0}, v{V_T+5}, v{t0}, vcc")
    A(f"s_mov_b32 s{S_T2}, {XBYTES}")
    A(f"v_mul_lo_u32 v{t0}, v{t0}, s{S_T1}")
    A(f"v_add_u32 v{t0}, s{S_XBASE}, v{t0}")
    A(f"v_subrev_u32 v{t3}, s{S_T2}, v{t0}")
    A(f"v_cmp_gt_u32 vcc, 27, v0")
    A(f"v_min_u32 v{t0}, v{t0}, v{t3}")
    A(f"v_add_u32 v{t0}, v{t0}, v{V_T+4}")
    A(f"v_mov_b32 v{t3}, 0x40000000")
    A(f"v_cndmask_b32 v{V_PFX+1}, v{t3}, v{t0}, vcc")
    A(f"v_and_b32 v{V_T}, 15, v0")
    A(f"v_lshrrev_b32 v{V_T+1}, 4, v0")
    A(f"s_lshr_b32 s{S_T0}, s{S_WAVE}, 1")
    A(f"s_lshl_b32 s{S_T0}, s{S_T0}, 4")
    A(f"v_add_u32 v{V_T+4}, s{S_T0}, v{V_T}")
    for kw in range(5):
        A(f"v_add_u32 v{V_T+2}, {4-kw}, v{V_T+4}")
        A(f"v_lshrrev_b32 v{V_T+3}, 1, v{V_T+2}")
        A(f"v_and_b32 v{V_T+3}, 2, v{V_T+3}")
        A(f"v_xor_b32 v{V_T+3}, v{V_T+3}, v{V_T+1}")
        A(f"v_mul_u32_u24 v{V_T+2}, 192, v{V_T+2}")
        A(f"v_lshl_add_u32 v{V_XAA+kw}, v{V_T+3}, 4, v{V_T+2}")
        A(f"v_add_u32 v{V_XAR+kw}, {X2}, v{V_XAA+kw}")
    A(f"s_and_b32 s{S_T1}, s{S_WAVE}, 1")
    A(f"v_and_b32 v{V_T+2}, 1, v{V_T+1}")
    A(f"v_xor_b32 v{V_T+2}, s{S_T1}, v{V_T+2}")
    A(f"v_lshlrev_b32 v{V_T+2}, 5, v{V_T+2}")
    A(f"v_lshrrev_b32 v{V_T+3}, 2, v0")
    A(f"v_lshl_add_u32 v{V_T+2}, v{V_T+3}, 6, v{V_T+2}")
    A(f"v_and_b32 v{V_T+3}, 3, v0")
    A(f"v_lshl_add_u32 v{V_T+2}, v{V_T+3}, 3, v{V_T+2}")
    A(f"v_add_u32 v{V_TR}, {WS}, v{V_T+2}")
    A(f"v_add_u32 v{V_T+2}, s{S_W0}, v{V_T+4}")
    A(f"v_mul_u32_u24 v{V_T+2}, 192, v{V_T+2}")
    A(f"v_lshl_add_u32 v{V_T+2}, v{V_T+1}, 3, v{V_T+2}")
    A(f"s_lshl_b32 s{S_T0}, s{S_G}, 1")
    A(f"s_add_u32 s{S_T0}, s{S_T0}, s{S_T1}")
    A(f"s_lshl_b32 s{S_T0}, s{S_T0}, 5")
    A(f"v_add_u32 v{V_OUT}, s{S_T0}, v{V_T+2}")

def b_read_to(e, row, f, reg, tag):
    kw, cc = divmod(f, 3)
    kind, off = xslot(row)
    base = V_XAA if kind == "A" else V_XAR
    e.lds(f"ds_read_b128 {reg}, v{base+kw} offset:{off + cc*64}", tag)
def tr_read(e, s, kh, h):
    e.lds(f"ds_read_b64_tr_b16 {wreg(kh, s, 2*h)}, v{V_TR} offset:{(s % NWS)*WSLOT + (2*kh + h)*1024}", f"t{s}_{kh}")
def out_ops(e, a, pair, o):
    vo = V_O + 2 * pair
    return [lambda: e.A(f"v_cvt_pk_bf16_f32 v{vo}, v{a}, v{a+1}"),
            lambda: e.A(f"v_cvt_pk_bf16_f32 v{vo+1}, v{a+2}, v{a+3}"),
            lambda: e.vmem(f"buffer_store_dwordx2 v[{vo}:{vo+1}], v{V_OUT}, s[{S_O}:{S_O+3}], s{S_OROW} offen {e.cfg.store_flags}".rstrip(), f"o{o}"),
            lambda: e.A(f"s_add_u32 s{S_OROW}, s{S_OROW}, {ROWB}")]

class Gaps:
    def __init__(self, M, cap=1):
        self.M = M; self.g = [[] for _ in range(M)]; self.cap = cap
    def put(self, p, fn):
        self.g[min(max(p, 0), self.M - 1)].append(fn)
    def seq(self, ops, start, step=1, cap=None):
        cap = self.cap if cap is None else cap
        p = start
        for op in ops:
            while p < self.M - 1 and len(self.g[p]) >= cap: p += 1
            self.put(p, op); p = min(p + step, self.M - 1) if p < self.M - 1 else p
        return p

def block_a(e):
    c = e.cfg; RA = c.RA
    def khs(i): return [kh for kh in range(5) if 0 <= i - 4 + kh < RA]
    stream = [4, 5, 6, 3, 7, 8]
    order = [("M", 0), (4, 0)]
    newrows = {1: (5,), 2: (6, 3), 3: (7, 8)}
    have = [4]
    for p in range(1, 4):
        order.append(("M", p))
        for s in range(p):
            for r in newrows[p]: order.append((r, s))
        have = have + list(newrows[p])
        for r in sorted(have, key=lambda r: -len(khs(r))): order.append((r, p))
    for s in range(4, 15):
        order.append(("M", s))
        for r in sorted(stream, key=lambda r: -len(khs(r))): order.append((r, s))
    mf = []; first = {}; mpos = {}
    for ent in order:
        if ent[0] == "M": mpos[ent[1]] = len(mf)
        else:
            first[ent] = len(mf)
            for kh in khs(ent[0]): mf.append((ent, kh))
    M = len(mf)
    mark_at = {}; prev = 0
    for p in sorted(mpos):
        q = mpos[p]
        if p >= 4: q = max(prev, mpos[p] - c.wearly)
        elif p >= 1: q = max(prev, mpos[p] - c.early)
        mark_at[p] = q; prev = q
    row_marker = {4: 0, 5: 1, 6: 2, 3: 2, 7: 3, 8: 3}
    tasks = []
    pairs = [ent for ent in order if ent[0] != "M"]
    last_use = {}
    for q, (ent, kh) in enumerate(mf): last_use[ent] = q
    for ent in pairs:
        tasks.append(dict(kind="b", ent=ent, ready=mark_at[row_marker[ent[0]]], due=first[ent], done=False))
    for s in range(15):
        for kh in range(5):
            due = min(q for q, (ent, k2) in enumerate(mf) if ent[1] == s and k2 == kh)
            for h in range(2):
                tasks.append(dict(kind="t", s=s, kh=kh, h=h, ready=mark_at[s], due=due, done=False))
    tasks.sort(key=lambda t: (t["due"], 0 if t["kind"] == "t" else 1))
    bslots = [None] * 15; bfree_at = [-1] * 15; bassign = {}
    def issue(t, q):
        if t["kind"] == "t": tr_read(e, t["s"], t["kh"], t["h"])
        else:
            k = min(range(15), key=lambda j: bfree_at[j])
            if bfree_at[k] >= q and bslots[k] is not None: return False
            ent = t["ent"]
            bslots[k] = ent; bfree_at[k] = last_use[ent]; bassign[ent] = k
            reg = V_B + 60 + 4 * k
            b_read_to(e, ent[0], ent[1], f"v[{reg}:{reg+3}]", f"pb{ent[0]}_{ent[1]}")
        t["done"] = True
        return True
    dplan = {0: [("x", 6), ("x", 3), ("w", 2)], 1: [("x", 7), ("x", 8), ("w", 3), ("w", 4)]}
    for p in range(2, 12): dplan[p] = [("w", p + 3)]
    dplan[11] = [("w", 14), ("pfx", 1)]
    dplan[12] = [("x", 2), ("x", 9), ("x", 1)]
    dplan[13] = [("x", 10), ("x", 0), ("x", 11)]
    dplan[14] = [("x", 12), ("x", 13)]
    def ops_of(kind, a):
        if kind == "x": return x_ops(e, a)
        if kind == "w": return w_ops(e, a)
        return [lambda: e.vmem(f"buffer_load_dword v{V_PFD+2}, v{V_PFX+a}, s[{S_X}:{S_X+3}], 0 offen", "pf")]
    dq = []
    marks_sorted = sorted(mark_at)
    for p in marks_sorted:
        ops = []
        for kind, a in dplan.get(p, []): ops += ops_of(kind, a)
        if not ops: continue
        lo = mark_at[p]; hi = mark_at[p+1] if p + 1 in mark_at else M - 2
        span = 0 if p <= 1 else max(hi - lo - len(ops) // 2, 0)
        for k, op in enumerate(ops): dq.append((lo + (k * span) // len(ops), op))
    dq.reverse()
    last_dma = [-10, False]
    def run_dma_op(force=False):
        _, op = dq.pop()
        n0 = len(e.L); op()
        if " lds" in e.L[-1] and re.search(r"\bm0,", e.L[n0-1]): e.L.insert(n0, "  s_nop 0")
    need = {p: [f"w{p}"] + [f"x{r}" for r in row_marker if row_marker[r] == p] for p in marks_sorted}
    cnt = lambda tg: 3 if tg[0] == "w" else 2
    inited = set()
    pre = {}
    for p in marks_sorted:
        if p >= 2:
            pre.setdefault(max(mark_at[p] - 2, mark_at[p-1] + 1), []).append(("vm", p))
            pre.setdefault(max(mark_at[p] - 1, mark_at[p-1] + 1), []).append(("lg", p))
    def do_vm(p):
        while not all(e.vm.count(tg) == cnt(tg) for tg in need[p]): run_dma_op()
        e.wait_vm(*need[p])
    def do_lg(p, q):
        if p < 1: return
        for t in tasks:
            if t["kind"] == "t" and t["s"] == p-1 and not t["done"]: issue(t, q)
        idxs = [i_ for i_, tg in enumerate(e.lg) if tg.startswith(f"t{p-1}_")]
        e.wait_lg(e.lg[max(idxs)])
    for q in range(M):
        for kind, p in pre.get(q, []):
            if mark_at[p] > q:
                (do_vm(p) if kind == "vm" else do_lg(p, q))
        for p in marks_sorted:
            if mark_at[p] == q:
                do_lg(p, q); do_vm(p)
                e.A("s_barrier")
                if p in (0, 2, 3, 4, 9, 14): e.lstamp(f"M{p}")
        ent, kh = mf[q]
        late = [t for t in tasks if not t["done"] and t["due"] <= q]
        if late:
            for t in late:
                assert t["ready"] <= q, (t, q)
                ok = issue(t, q); assert ok
            for t in tasks:
                if t["done"] or t["ready"] > q: continue
                if len(e.lg) - e.lg_done >= 13: break
                if t["kind"] == "b" and t["due"] - q > c.look: continue
                issue(t, q)
        n0 = len(e.L)
        e.wait_lg(f"t{ent[1]}_{kh}", f"pb{ent[0]}_{ent[1]}", age=5)
        o = ent[0] - 4 + kh; a = V_ACCA + 4 * o
        src = f"v[{a}:{a+3}]" if o in inited else "0"
        inited.add(o)
        reg = V_B + 60 + 4 * bassign[ent]
        e.mfma(f"v_mfma_f32_16x16x32_bf16 v[{a}:{a+3}], {wreg(kh, ent[1])}, v[{reg}:{reg+3}], {src}")
        budget = 2
        early_phase = q < mark_at[2]
        if early_phase: budget = 4
        def try_lds():
            for t in tasks:
                if t["done"] or t["ready"] > q: continue
                if t["kind"] == "b" and t["due"] - q > c.look: continue
                if len(e.lg) - e.lg_done >= 14: return False
                if issue(t, q + 1): return True
            return False
        def try_dma():
            if dq and dq[-1][0] <= q: run_dma_op(); return True
            return False
        turn = [try_lds, try_dma]
        k = 0
        while budget > 0:
            if turn[k % 2]() or turn[(k + 1) % 2](): budget -= 1; k += 1
            else: break
    while dq: run_dma_op()
    e.lstamp("streamend")
    deferred = [2, 9, 1, 10, 0, 11]
    seq = deferred + [RA]
    def setreg(k, f):
        b = V_B + (k % 2) * 60 + 4 * f
        return f"v[{b}:{b+3}]"
    e.wait_vm("x2", "x9"); e.A("s_barrier")
    for f in range(15): b_read_to(e, seq[0], f, setreg(0, f), "d0")
    for k, r in enumerate(deferred):
        mfs = []
        for kh in khs(r):
            o = r - 4 + kh; a = V_ACCA + 4 * o
            for f in range(15):
                src = f"v[{a}:{a+3}]" if o in inited else "0"
                inited.add(o)
                mfs.append((f, f"v_mfma_f32_16x16x32_bf16 v[{a}:{a+3}], {wreg(kh, f)}, {setreg(k, f)}, {src}"))
        Mk = len(mfs); nxt = seq[k + 1]
        G = Gaps(Mk)
        if k + 1 < len(deferred) and (k + 1) % 2 == 0:
            e_rows = deferred[k+1:k+3]
            e.wait_vm(*[f"x{r_}" for r_ in e_rows]); e.A("s_barrier")
        span = max(Mk - 3, 15)
        for f in range(15): G.put(min((f * span) // 15, Mk - 1), (lambda f=f: b_read_to(e, nxt, f, setreg(k + 1, f), f"d{k+1}_{f}")))
        for p_, (f, s_) in enumerate(mfs):
            if p_ < 15:
                tag = "d0" if k == 0 else f"d{k}_{f}"
                e.wait_lg(tag, age=5)
            e.mfma(s_)
            for fn in G.g[p_]: fn()
    e.lstamp("defend")

def step(e, i, chains, last_row, extra_out=(), extra_dma=(), prev_tags=None):
    c = e.cfg; RA = c.RA
    mf = []
    for kh in chains:
        o = i - 4 + kh; a = acc(o)
        for f in range(15):
            src = "0" if (kh == 4 and f == 0) else f"v[{a}:{a+3}]"
            mf.append((f, f"v_mfma_f32_16x16x32_bf16 v[{a}:{a+3}], {wreg(kh, f)}, {breg(i, f)}, {src}"))
    M = len(mf)
    G = Gaps(M)
    nxt = i + 1
    nn = i + 2
    did_bar = nxt <= last_row and nxt >= NA
    if did_bar: e.A("s_barrier")
    if nxt <= last_row:
        span = max(M - 9, 15)
        for f in range(15): G.put(min((f * span) // 15, M - 1), (lambda f=f: b_read_to(e, nxt, f, breg(nxt, f), f"b{nxt}_{f}")))
    r4 = i + 4
    if i >= NA and r4 <= last_row: G.seq(x_ops(e, r4, seq=True), 18, step=2)
    for r_ in extra_dma: G.seq(x_ops(e, r_), 1, step=1, cap=(2 if M <= 30 else 1))
    tail = []
    if 0 in chains and i - 4 >= RA:
        o = i - 4; endp = chains.index(0) * 15 + 14
        ops = out_ops(e, acc(o), 0, o)
        if endp + 14 < M: G.seq(ops, endp + 9, step=1)
        else: tail = ops
    for k, (a, o) in enumerate(extra_out):
        G.seq(out_ops(e, a, k % 2, o), (k * M) // max(len(extra_out), 1) + 1, step=1, cap=(2 if M <= 45 else 1))
    if nn <= last_row and nn >= NA:
        G.put(M - 3, lambda: e.wait_vm(f"x{nn}", force=(i >= NA)))
    short = M < 45
    for p, (f, s) in enumerate(mf):
        if prev_tags and p < 15: e.wait_lg(prev_tags(f), age=5)
        e.mfma(s)
        for fn in G.g[p]: fn()
        if p == M - 2 and nxt <= last_row and not short: e.wait_lg(f"b{nxt}_14")
    if tail:
        e.A("s_nop 7"); e.A("s_nop 1"); tail[0](); tail[1](); e.A("s_nop 0"); tail[2](); tail[3]()
    if nxt <= last_row and short and (nn <= last_row and nn >= NA): e.wait_lg(f"b{nxt}_14")

def build(cfg):
    e = Em(cfg); n = cfg.nrows; RA = cfg.RA
    last_row = n + 3
    e.raw(f"; @launch grid=(252,1,1) block=(256,1,1) lds={LDS_BYTES}")
    e.raw('.amdgcn_target "amdgcn-amd-amdhsa--gfx950"')
    e.raw(".text")
    e.raw(".globl standalone__fft_conv__vision_kernel")
    if cfg.align12: e.raw(".p2align 12")
    e.raw(".p2align 8")
    e.raw(".type standalone__fft_conv__vision_kernel,@function")
    e.raw("standalone__fft_conv__vision_kernel:")
    prologue(e)
    block_a(e)
    def chains_for(i): return [kh for kh in range(5) if RA <= i - 4 + kh < n]
    flush = {RA + 1: [0, 1], RA + 2: [2, 3, 4], RA + 3: [5, 6, 7]}
    predma = {RA: [14], RA + 1: [15]}
    i = RA
    while i < NA:
        ex = [(V_ACCA + 4 * o, o) for o in flush.get(i, [])]
        pt = (lambda f: f"d6_{f}") if i == RA else (lambda f, i=i: f"b{i}_{f}")
        step(e, i, chains_for(i), last_row, ex, predma.get(i, []), pt); i += 1
    e.lstamp("rampend")
    e.A(f"s_add_u32 s{S_T0}, s{S_XBASE}, {(NA+4)*ROWB}")
    e.A(f"s_sub_u32 s{S_T1}, s{S_T0}, {XBYTES}")
    e.A(f"s_min_u32 s{S_XROW}, s{S_T0}, s{S_T1}")
    if not cfg.loop:
        while i <= last_row:
            step(e, i, chains_for(i), last_row, prev_tags=(lambda f, i=i: f"b{i}_{f}")); i += 1
    else:
        steady = list(range(NA, n)); nst = len(steady)
        start = len(e.L); seg = []
        for ii in steady:
            s0 = len(e.L)
            step(e, ii, chains_for(ii), last_row, prev_tags=(lambda f, ii=ii: f"b{ii}_{f}"))
            seg.append(e.L[s0:])
        e.L = e.L[:start]
        for k in range(4, nst):
            a, b = seg[k % 4], seg[k]
            assert len(a) == len(b), f"non periodic step {steady[k]}"
            for j in range(len(a)):
                if a[j] != b[j]:
                    ma = re.fullmatch(r"  s_waitcnt vmcnt\((\d+)\)", a[j]); mb = re.fullmatch(r"  s_waitcnt vmcnt\((\d+)\)", b[j])
                    assert ma and mb, (a[j], b[j])
                    a[j] = f"  s_waitcnt vmcnt({min(int(ma.group(1)), int(mb.group(1)))})"
        full, rem = divmod(nst, 4)
        assert rem != 0
        e.A(f"s_mov_b32 s{S_CNT}, {full}")
        e.raw(".p2align 3")
        e.raw("L_loop:")
        for k in range(4):
            if k == rem:
                e.A(f"s_cmp_eq_u32 s{S_CNT}, 0")
                e.A("s_cbranch_scc1 L_down")
                e.A(f"s_sub_u32 s{S_CNT}, s{S_CNT}, 1")
            e.L.extend(seg[k])
        e.A("s_branch L_loop")
        e.raw("L_down:")
        e.lstamp("loopend")
        i = n
        while i <= last_row:
            step(e, i, chains_for(i), last_row, prev_tags=(lambda f, i=i: f"b{i}_{f}")); i += 1
    if cfg.lst:
        e.lstamp("mfmaend"); e.A("s_waitcnt vmcnt(0)"); e.lstamp("drain")
        e.A("s_waitcnt lgkmcnt(0)")
        e.A(f"s_load_dwordx2 s[{S_WS}:{S_WS+1}], s[0:1], 32")
        e.A(f"v_mov_b32 v{V_ST}, 0")
        for k in range(e.nl): e.A(f"v_writelane_b32 v{V_ST}, s{64+2*k}, {k}")
        e.A("s_waitcnt lgkmcnt(0)")
        e.A(f"s_lshl_b32 s{S_T0}, s2, 2")
        e.A(f"s_add_u32 s{S_T0}, s{S_T0}, s{S_WAVE}")
        e.A(f"s_lshl_b32 s{S_T0}, s{S_T0}, 8")
        e.A(f"s_add_u32 s{S_WS}, s{S_WS}, s{S_T0}")
        e.A(f"s_addc_u32 s{S_WS+1}, s{S_WS+1}, 0")
        e.A("v_lshlrev_b32 v1, 2, v0")
        e.A(f"global_store_dword v1, v{V_ST}, s[{S_WS}:{S_WS+1}]")
        print("lstamps:", e.nl, e.lnames)
    e.raw("L_end:")
    e.A("s_endpgm")
    e.raw("L_code_end:")
    e.raw(".set CODE_BYTES, L_code_end - standalone__fft_conv__vision_kernel")
    e.raw('.section .rodata,"a"')
    e.raw(".p2align 6")
    e.raw(".amdhsa_kernel standalone__fft_conv__vision_kernel")
    for l in ("next_free_vgpr 512", "next_free_sgpr 100", "accum_offset 256", "group_segment_fixed_size 0", "kernarg_size 40",
              "user_sgpr_count 2", "user_sgpr_kernarg_segment_ptr 1", "system_sgpr_workgroup_id_x 1"):
        e.raw("  .amdhsa_" + l)
    e.raw(".end_amdhsa_kernel")
    out = []
    for l in e.L:
        if " lds" in l and "buffer_load" in l and out and re.search(r"\bm0,", out[-1]): out.append("  s_nop 0")
        out.append(l)
    e.L = out
    open(cfg.name, "w").write("\n".join(e.L) + "\n")
    return e

if __name__ == "__main__":
    ap = argparse.ArgumentParser()
    ap.add_argument("-o", default=Cfg.name)
    ap.add_argument("--lst", action="store_true")
    ap.add_argument("--noloop", action="store_true")
    ap.add_argument("--store", default="")
    ap.add_argument("--look", type=int, default=12)
    ap.add_argument("--early", type=int, default=8)
    ap.add_argument("--wearly", type=int, default=26)
    ap.add_argument("--nocodepf", action="store_true")
    a = ap.parse_args()
    cfg = Cfg()
    cfg.name = a.o; cfg.lst = a.lst; cfg.loop = not a.noloop; cfg.store_flags = a.store
    cfg.look = a.look; cfg.early = a.early; cfg.wearly = a.wearly; cfg.codepf = not a.nocodepf
    e = build(cfg)
    print("lines", len(e.L), "LDS", LDS_BYTES)
```

```python
import sys, argparse, re

class Cfg:
    nrows = 19
    RA = 8
    store_flags = ""
    lst = False
    loop = True
    look = 12
    early = 8
    wearly = 26
    codepf = True
    diag = False
    groups = "x4,x5,w0|x6,x7|w1|w2"
    direct = [4, 5]
    pf_rows = (6, 2)
    stream = [4, 5, 6, 7]
    deferred = [3, 8, 2, 9, 1, 10, 0, 11]
    nprol = 4
    pfw_split = 15
    pfwb_after = 3
    def_plan = "11:3,8|12:2,9|14:1,10"
    align12 = True
    name = "standalone__fft_conv__vision.s"

H = W = 224
ROWB = W * 192
XBYTES = H * ROWB
WBYTES = 460800
SLOTB = 7168
NA = 12
XR = NA * SLOTB
X2 = 10 * SLOTB
WS = XR + 4 * SLOTB
WSLOT = 10240
NWS = 4
DUMMY = WS + NWS * WSLOT
LDS_BYTES = DUMMY + 1024

S_X, S_Wt, S_O = 8, 12, 16
S_WS = 20
S_WAVE = 22
S_X0, S_X1, S_XM = 23, 24, 25
S_XBASE, S_XROW, S_OROW, S_CNT = 26, 27, 28, 29
S_T0, S_T1, S_T2, S_T3 = 30, 31, 32, 33
S_WM, S_G, S_W0, S_WM2, S_WMM = 34, 35, 36, 37, 38
S_T4, S_T5 = 39, 40
S_PC = 44
S_LAST = 41
V_XAA = 2; V_XAR = 7
V_XD0, V_XD1 = 12, 13
V_WD, V_TR, V_OUT, V_PF = 14, 15, 16, 17
V_T = 18
V_O = 24
V_ST = 28
V_ACC = 32
V_B = 48
V_ACCA = 168
V_PFX = 200
V_PFD = 202
V_PF2 = 206
V_WT = 212

def wreg(kh, f, lo=None):
    i = kh * 15 + f
    if i < 64: base, t = 4 * i, "a"
    else: base, t = V_WT + 4 * (i - 64), "v"
    if lo is None: return f"{t}[{base}:{base+3}]"
    return f"{t}[{base+lo}:{base+lo+1}]"
def breg(row, f):
    b = V_B + (row % 2) * 60 + 4 * f
    return f"v[{b}:{b+3}]"
def acc(o): return V_ACC + 4 * (o % 4)
def xlds(row): return row * SLOTB if row < NA else XR + ((row - NA) % 4) * SLOTB
def xslot(row):
    a = xlds(row)
    return ("A", a) if a < X2 else ("R", a - X2)

class Em:
    def __init__(self, cfg):
        self.cfg = cfg; self.L = []
        self.vm = []; self.vm_done = 0
        self.lg = []; self.lg_done = 0; self.lg_pos = []
        self.pos = 0
        self.nl = 0; self.lnames = []
    def A(self, s): self.L.append("  " + s)
    def raw(self, s): self.L.append(s)
    def mfma(self, s): self.A(s); self.pos += 1
    def vmem(self, s, tag): self.A(s); self.vm.append(tag)
    def lds(self, s, tag): self.A(s); self.lg.append(tag); self.lg_pos.append(self.pos)
    def vm_need(self, tags):
        idx = -1
        for tag in tags:
            assert tag in self.vm, (tag, self.vm)
            idx = max(idx, max(i for i, t in enumerate(self.vm) if t == tag))
        return idx
    def wait_vm(self, *tags, force=False):
        idx = self.vm_need(tags)
        if idx < self.vm_done and not force: return False
        n = min(len(self.vm) - 1 - idx, 63)
        self.A(f"s_waitcnt vmcnt({n})"); self.vm_done = max(self.vm_done, len(self.vm) - n)
        return True
    def wait_lg(self, *tags, age=None):
        idx = -1
        for tag in tags:
            assert tag in self.lg, tag
            idx = max(idx, max(i for i, t in enumerate(self.lg) if t == tag))
        if idx < self.lg_done: return False
        if age is not None:
            for i in range(idx + 1, len(self.lg)):
                if self.pos - self.lg_pos[i] >= age: idx = i
        n = min(len(self.lg) - 1 - idx, 15)
        self.A(f"s_waitcnt lgkmcnt({n})"); self.lg_done = len(self.lg) - n
        return True
    def lstamp(self, name=""):
        if not self.cfg.lst: return
        k = self.nl
        if k >= 18: return
        self.A(f"s_memtime s[{64+2*k}:{65+2*k}]")
        self.lnames.append(name); self.nl = k + 1

def x_ops(e, row, seq=False):
    base = xlds(row); ops = []
    I = lambda s: (lambda: e.A(s))
    if not seq:
        ops += [I(f"s_add_u32 s{S_T0}, s{S_XBASE}, {row*ROWB}"), I(f"s_sub_u32 s{S_T1}, s{S_T0}, {XBYTES}"),
                I(f"s_min_u32 s{S_XROW}, s{S_T0}, s{S_T1}")]
    ops += [I(f"s_add_u32 m0, s{S_X0}, {base}"),
            lambda: e.vmem(f"buffer_load_dwordx4 v{V_XD0}, s[{S_X}:{S_X+3}], s{S_XROW} offen lds", f"x{row}")]
    if base: ops += [I(f"s_and_b32 s{S_T2}, s{S_XM}, {base}"), I(f"s_add_u32 m0, s{S_X1}, s{S_T2}")]
    else: ops += [I(f"s_mov_b32 m0, s{S_X1}")]
    ops += [lambda: e.vmem(f"buffer_load_dwordx4 v{V_XD1}, s[{S_X}:{S_X+3}], s{S_XROW} offen lds", f"x{row}")]
    if seq:
        ops += [I(f"s_add_u32 s{S_XROW}, s{S_XROW}, {ROWB}"), I(f"s_sub_u32 s{S_T1}, s{S_XROW}, {XBYTES}"),
                I(f"s_min_u32 s{S_XROW}, s{S_XROW}, s{S_T1}")]
    return ops
def w_ops(e, s):
    ops = []
    I = lambda t: (lambda: e.A(t))
    for m in range(3):
        off = (s % NWS) * WSLOT
        ops.append(I(f"s_mov_b32 s{S_T3}, {(32*s + 960*m)*192}"))
        if m < 2: ops.append(I(f"s_add_u32 m0, s{S_WM}, {off + 4*m*1024}"))
        elif off: ops += [I(f"s_and_b32 s{S_T4}, s{S_WMM}, {off}"), I(f"s_add_u32 m0, s{S_WM2}, s{S_T4}")]
        else: ops.append(I(f"s_mov_b32 m0, s{S_WM2}"))
        ops.append(lambda m=m: e.vmem(f"buffer_load_dwordx4 v{V_WD}, s[{S_Wt}:{S_Wt+3}], s{S_T3} offen lds", f"w{s}"))
    return ops
def emit_now(e, ops):
    for op in ops:
        n0 = len(e.L)
        prev = e.L[-1]
        tmp = len(e.L); op()
        if " lds" in e.L[-1] and re.search(r"\bm0,", e.L[tmp-1]):
            e.L.insert(tmp, "  s_nop 0")

def prologue(e):
    c = e.cfg; A = e.A
    t0, t1, t2, t3 = V_T, V_T+1, V_T+2, V_T+3
    A("s_cmp_ge_u32 s2, 252")
    A("s_cbranch_scc1 L_end")
    A("s_load_dwordx4 s[4:7], s[0:1], 0")
    A(f"s_load_dwordx2 s[{S_O}:{S_O+1}], s[0:1], 16")
    e.lstamp("start")
    if c.lst: A("s_memrealtime s[60:61]")
    A("v_lshrrev_b32 v1, 6, v0")
    A("v_and_b32 v0, 63, v0")
    A(f"v_readfirstlane_b32 s{S_WAVE}, v1")
    A(f"s_lshr_b32 s{S_T0}, s2, 3")
    A(f"s_and_b32 s{S_T1}, s2, 7")
    A(f"s_mul_i32 s{S_T2}, s{S_T0}, 86")
    A(f"s_lshl_b32 s{S_T4}, s{S_T0}, 2")
    A(f"s_lshr_b32 s{S_T2}, s{S_T2}, 8")
    A(f"s_mul_i32 s{S_T1}, s{S_T1}, 10")
    A(f"s_mul_i32 s{S_T3}, s{S_T2}, 3")
    A(f"s_add_u32 s{S_T1}, s{S_T1}, s{S_T2}")
    A(f"s_sub_u32 s{S_G}, s{S_T0}, s{S_T3}")
    A("s_cmp_lt_u32 s2, 240")
    A("s_cbranch_scc1 L_map_done")
    A(f"s_sub_u32 s{S_T0}, s2, 240")
    A(f"s_mul_i32 s{S_T2}, s{S_T0}, 86")
    A(f"s_lshr_b32 s{S_T2}, s{S_T2}, 8")
    A(f"s_mul_i32 s{S_T3}, s{S_T2}, 3")
    A(f"s_sub_u32 s{S_G}, s{S_T0}, s{S_T3}")
    A(f"s_add_u32 s{S_T1}, s{S_T2}, 80")
    e.raw("L_map_done:")
    A(f"s_add_u32 s{S_T4}, s{S_T4}, s{S_WAVE}")
    A(f"s_mul_i32 s{S_T2}, s{S_T1}, 9363")
    A(f"s_lshl_b32 s{S_T5}, s{S_WAVE}, 6")
    A(f"s_lshr_b32 s{S_T2}, s{S_T2}, 16")
    A(f"v_add_u32 v{t0}, s{S_T5}, v0")
    A(f"s_mul_i32 s{S_T3}, s{S_T2}, 7")
    A(f"s_mul_i32 s{S_LAST}, s{S_T2}, 86")
    A(f"s_sub_u32 s{S_T3}, s{S_T1}, s{S_T3}")
    A(f"s_mul_i32 s{S_T0}, s{S_T2}, {56*21846}")
    A(f"s_lshl_b32 s{S_W0}, s{S_T3}, 5")
    A(f"s_lshr_b32 s{S_T0}, s{S_T0}, 16")
    A(f"s_mul_i32 s{S_OROW}, s{S_T0}, {ROWB}")
    A(f"s_add_u32 s{S_XBASE}, s{S_OROW}, {(H-4)*ROWB}")
    A(f"s_lshr_b32 s{S_LAST}, s{S_LAST}, 8")
    A(f"s_mul_i32 s{S_LAST}, s{S_LAST}, 3")
    A(f"s_cmp_eq_u32 s{S_LAST}, s{S_T2}")
    A(f"s_cselect_b32 s{S_LAST}, 0x40000000, 0")
    A(f"s_add_u32 s{S_T0}, s{S_W0}, {W-4}")
    for pi in range(2):
        dst = V_XD0 if pi == 0 else V_XD1
        if pi: A(f"v_add_u32 v{t0}, 256, v{t0}")
        A(f"v_mul_u32_u24 v{t1}, 5462, v{t0}")
        A(f"v_lshrrev_b32 v{t1}, 16, v{t1}")
        A(f"v_mul_u32_u24 v{t2}, 12, v{t1}")
        A(f"v_lshrrev_b32 v{t3}, 1, v{t1}")
        A(f"v_sub_u32 v{t2}, v{t0}, v{t2}")
        A(f"v_and_b32 v{t3}, 2, v{t3}")
        A(f"v_add_u32 v{t1}, s{S_T0}, v{t1}")
        A(f"v_xor_b32 v{t2}, v{t2}, v{t3}")
        A(f"v_subrev_u32 v{t3}, {W}, v{t1}")
        A(f"v_min_u32 v{t1}, v{t1}, v{t3}")
        if pi: A(f"v_cmp_gt_u32 vcc, 432, v{t0}")
        A(f"v_mul_u32_u24 v{t1}, 192, v{t1}")
        A(f"v_lshl_add_u32 v{dst}, v{t2}, 4, v{t1}")
        if pi:
            A(f"v_mov_b32 v{t1}, 0x40000000")
            A(f"v_cndmask_b32 v{dst}, v{t1}, v{dst}, vcc")
    A(f"s_lshl_b32 s{S_X0}, s{S_WAVE}, 10")
    A(f"s_add_u32 s{S_X1}, s{S_X0}, 4096")
    A(f"s_cmp_eq_u32 s{S_WAVE}, 3")
    A(f"s_cselect_b32 s{S_X1}, {DUMMY}, s{S_X1}")
    A(f"s_cselect_b32 s{S_XM}, 0, -1")
    A(f"s_mov_b32 s{S_X+2}, {XBYTES}"); A(f"s_mov_b32 s{S_X+3}, 0x20000")
    A(f"s_mov_b32 s{S_Wt+2}, {WBYTES}"); A(f"s_mov_b32 s{S_Wt+3}, 0x20000")
    A("s_waitcnt lgkmcnt(0)")
    A(f"s_mov_b32 s{S_X}, s4"); A(f"s_mov_b32 s{S_X+1}, s5")
    A(f"s_mov_b32 s{S_Wt}, s6"); A(f"s_mov_b32 s{S_Wt+1}, s7")
    e.lstamp("karg")
    items = [it for g in c.groups.split("|") for it in g.split(",")]
    assert items[:len(c.direct)] == [f"x{r}" for r in c.direct]
    for r in c.direct: emit_now(e, x_ops(e, r))
    r0, nr = c.pf_rows
    A(f"v_mov_b32 v{V_T+5}, 0x40000000")
    if nr:
        nl = -(-nr * 18 // 4)
        A(f"s_mul_i32 s{S_T0}, s{S_WAVE}, {nl}")
        A(f"v_add_u32 v{t0}, s{S_T0}, v0")
        A(f"v_mul_u32_u24 v{t1}, 3641, v{t0}")
        A(f"s_mul_i32 s{S_T0}, s{S_G}, 18")
        A(f"v_lshrrev_b32 v{t1}, 16, v{t1}")
        A(f"v_mul_u32_u24 v{t2}, 18, v{t1}")
        A(f"v_sub_u32 v{t2}, v{t0}, v{t2}")
        A(f"v_add_u32 v{t2}, s{S_T0}, v{t2}")
        A(f"s_add_u32 s{S_T0}, s{S_W0}, {W-4}")
        A(f"v_lshlrev_b32 v{t2}, 7, v{t2}")
        A(f"s_mul_i32 s{S_T0}, s{S_T0}, 192")
        A(f"s_mov_b32 s{S_T1}, {ROWB}")
        A(f"v_add_u32 v{t2}, s{S_T0}, v{t2}")
        A(f"v_subrev_u32 v{t3}, {ROWB}, v{t2}")
        A(f"v_min_u32 v{t2}, v{t2}, v{t3}")
        A(f"v_add_u32 v{t3}, {r0}, v{t1}")
        A(f"v_mul_lo_u32 v{t3}, v{t3}, s{S_T1}")
        A(f"s_mov_b32 s{S_T2}, {XBYTES}")
        A(f"v_cmp_gt_u32 vcc, {nr*18}, v{t0}")
        A(f"v_add_u32 v{t3}, s{S_XBASE}, v{t3}")
        A(f"v_subrev_u32 v{t1}, s{S_T2}, v{t3}")
        A(f"v_min_u32 v{t3}, v{t3}, v{t1}")
        A(f"v_add_u32 v{t3}, v{t3}, v{t2}")
        A(f"v_cndmask_b32 v{t3}, v{V_T+5}, v{t3}, vcc")
        A(f"v_cmp_gt_u32 vcc, {nl}, v0")
        A("s_nop 1")
        A(f"v_cndmask_b32 v{V_PFX}, v{V_T+5}, v{t3}, vcc")
        e.vmem(f"buffer_load_dword v{V_PFD}, v{V_PFX}, s[{S_X}:{S_X+3}], 0 offen", "pf")
    def wpf(dst, s0, s1):
        per = (s1 - s0) * 48; tot = 5 * per
        nl = -(-tot // 128)
        if s0 == 0 and s1 == 15:
            A(f"s_mul_i32 s{S_T0}, s{S_T4}, {nl}")
            A(f"v_cmp_gt_u32 vcc, {nl}, v0")
            A(f"v_add_u32 v{t0}, s{S_T0}, v0")
            A(f"v_lshlrev_b32 v{t0}, 7, v{t0}")
            A(f"v_cndmask_b32 v{dst}, v{V_T+5}, v{t0}, vcc")
            return
        A(f"s_mul_i32 s{S_T0}, s{S_T4}, {nl}")
        A(f"v_add_u32 v{t0}, s{S_T0}, v0")
        sh = next(b for b in range(12, 23) if all((n_ * (-(-(1 << b) // per))) >> b == n_ // per for n_ in range(128 * nl + 64)))
        mg = -(-(1 << sh) // per)
        A(f"s_mov_b32 s{S_T1}, {mg}")
        A(f"v_mul_lo_u32 v{t1}, v{t0}, s{S_T1}")
        A(f"v_lshrrev_b32 v{t1}, {sh}, v{t1}")
        A(f"v_mul_u32_u24 v{t2}, {per}, v{t1}")
        A(f"v_sub_u32 v{t2}, v{t0}, v{t2}")
        A(f"v_lshlrev_b32 v{t2}, 7, v{t2}")
        A(f"v_mul_u32_u24 v{t1}, {92160}, v{t1}")
        A(f"v_cmp_gt_u32 vcc, {nl}, v0")
        A(f"v_add_u32 v{t2}, v{t2}, v{t1}")
        if s0: A(f"v_add_u32 v{t2}, {s0*6144}, v{t2}")
        else: A("s_nop 0")
        A(f"v_cndmask_b32 v{dst}, v{V_T+5}, v{t2}, vcc")
    wpf(V_PF, 0, c.pfw_split)
    e.vmem(f"buffer_load_dword v{V_PFD+1}, v{V_PF}, s[{S_Wt}:{S_Wt+3}], 0 offen", "pf")
    if c.codepf:
        A(f"s_getpc_b64 s[{S_PC}:{S_PC+1}]")
        e.raw("L_pc:")
        A(f"s_sub_u32 s{S_PC}, s{S_PC}, L_pc-standalone__fft_conv__vision_kernel")
        A(f"s_subb_u32 s{S_PC+1}, s{S_PC+1}, 0")
        A(f"s_and_b32 s{S_PC+1}, s{S_PC+1}, 0xffff")
        A(f"s_mov_b32 s{S_PC+2}, CODE_BYTES")
        A(f"s_mov_b32 s{S_PC+3}, 0x20000")
        A(f"v_cmp_gt_u32 vcc, 2, v0")
        A(f"v_lshlrev_b32 v{t0}, 7, v0")
        A(f"s_lshl_b32 s{S_T5}, s{S_T4}, 8")
        A(f"v_cndmask_b32 v{t0}, v{V_T+5}, v{t0}, vcc")
        e.vmem(f"buffer_load_dword v{V_PFD+3}, v{t0}, s[{S_PC}:{S_PC+3}], s{S_T5} offen", "pf")
    e.lstamp("pf")
    A(f"s_add_u32 s{S_WM}, s{S_X0}, {WS}")
    A(f"s_add_u32 s{S_WM2}, s{S_WM}, 8192")
    A(f"s_cmp_ge_u32 s{S_WAVE}, 2")
    A(f"s_cselect_b32 s{S_WM2}, {DUMMY}, s{S_WM2}")
    A(f"s_cselect_b32 s{S_WMM}, 0, -1")
    A(f"v_lshrrev_b32 v{t0}, 4, v0")
    A(f"v_bfe_u32 v{t1}, v0, 2, 2")
    A(f"v_lshl_add_u32 v{t1}, v{t0}, 3, v{t1}")
    A(f"v_and_b32 v{t0}, 1, v{t0}")
    A(f"v_mul_u32_u24 v{t1}, 192, v{t1}")
    A(f"v_lshlrev_b32 v{t0}, 1, v{t0}")
    A(f"v_and_b32 v{t2}, 3, v0")
    A(f"s_lshr_b32 s{S_T0}, s{S_WAVE}, 1")
    A(f"v_xor_b32 v{t2}, v{t2}, v{t0}")
    A(f"s_mul_i32 s{S_T0}, s{S_T0}, {480*192}")
    A(f"v_lshl_add_u32 v{t1}, v{t2}, 4, v{t1}")
    A(f"s_and_b32 s{S_T1}, s{S_WAVE}, 1")
    A(f"s_mul_i32 s{S_T1}, s{S_T1}, {4*192}")
    A(f"s_add_u32 s{S_T0}, s{S_T0}, s{S_T1}")
    A(f"s_lshl_b32 s{S_T1}, s{S_G}, 6")
    A(f"s_add_u32 s{S_T0}, s{S_T0}, s{S_T1}")
    A(f"v_add_u32 v{V_WD}, s{S_T0}, v{t1}")
    for it in items[len(c.direct):c.nprol]:
        emit_now(e, x_ops(e, int(it[1:])) if it[0] == "x" else w_ops(e, int(it[1:])))
    if c.diag:
        e.lstamp("issued")
        nv = len(e.vm)
        seen = []
        for idx_, tg in enumerate(e.vm):
            if idx_ + 1 < nv and e.vm[idx_ + 1] == tg and tg != "pf": continue
            A(f"s_waitcnt vmcnt({nv - 1 - idx_})"); e.lstamp(tg + "_back")
    if c.pfw_split < 15: wpf(V_PF2, c.pfw_split, 15)
    A(f"s_mov_b32 s{S_O+2}, {XBYTES}")
    A(f"s_mov_b32 s{S_O+3}, 0x20000")
    A(f"v_and_b32 v{V_T}, 15, v0")
    A(f"v_lshrrev_b32 v{V_T+1}, 4, v0")
    A(f"s_lshr_b32 s{S_T0}, s{S_WAVE}, 1")
    A(f"s_lshl_b32 s{S_T0}, s{S_T0}, 4")
    A(f"v_add_u32 v{V_T+4}, s{S_T0}, v{V_T}")
    for kw in range(5):
        A(f"v_add_u32 v{V_T+2}, {4-kw}, v{V_T+4}")
        A(f"v_lshrrev_b32 v{V_T+3}, 1, v{V_T+2}")
        A(f"v_and_b32 v{V_T+3}, 2, v{V_T+3}")
        A(f"v_xor_b32 v{V_T+3}, v{V_T+3}, v{V_T+1}")
        A(f"v_mul_u32_u24 v{V_T+2}, 192, v{V_T+2}")
        A(f"v_lshl_add_u32 v{V_XAA+kw}, v{V_T+3}, 4, v{V_T+2}")
        A(f"v_add_u32 v{V_XAR+kw}, {X2}, v{V_XAA+kw}")
    A(f"s_and_b32 s{S_T1}, s{S_WAVE}, 1")
    A(f"v_and_b32 v{V_T+2}, 1, v{V_T+1}")
    A(f"v_xor_b32 v{V_T+2}, s{S_T1}, v{V_T+2}")
    A(f"v_lshlrev_b32 v{V_T+2}, 5, v{V_T+2}")
    A(f"v_lshrrev_b32 v{V_T+3}, 2, v0")
    A(f"v_lshl_add_u32 v{V_T+2}, v{V_T+3}, 6, v{V_T+2}")
    A(f"v_and_b32 v{V_T+3}, 3, v0")
    A(f"v_lshl_add_u32 v{V_T+2}, v{V_T+3}, 3, v{V_T+2}")
    A(f"v_add_u32 v{V_TR}, {WS}, v{V_T+2}")
    A(f"v_add_u32 v{V_T+2}, s{S_W0}, v{V_T+4}")
    A(f"v_mul_u32_u24 v{V_T+2}, 192, v{V_T+2}")
    A(f"v_lshl_add_u32 v{V_T+2}, v{V_T+1}, 3, v{V_T+2}")
    A(f"s_lshl_b32 s{S_T0}, s{S_G}, 1")
    A(f"s_add_u32 s{S_T0}, s{S_T0}, s{S_T1}")
    A(f"s_lshl_b32 s{S_T0}, s{S_T0}, 5")
    A(f"v_add_u32 v{V_OUT}, s{S_T0}, v{V_T+2}")

def b_read_to(e, row, f, reg, tag):
    kw, cc = divmod(f, 3)
    kind, off = xslot(row)
    base = V_XAA if kind == "A" else V_XAR
    e.lds(f"ds_read_b128 {reg}, v{base+kw} offset:{off + cc*64}", tag)
def tr_read(e, s, kh, h):
    e.lds(f"ds_read_b64_tr_b16 {wreg(kh, s, 2*h)}, v{V_TR} offset:{(s % NWS)*WSLOT + (2*kh + h)*1024}", f"t{s}_{kh}")
def out_ops(e, a, pair, o):
    vo = V_O + 2 * pair
    pre = [lambda: e.A(f"s_add_u32 s{S_OROW}, s{S_OROW}, s{S_LAST}")] if o == e.cfg.nrows - 1 else []
    return pre + [lambda: e.A(f"v_cvt_pk_bf16_f32 v{vo}, v{a}, v{a+1}"),
            lambda: e.A(f"v_cvt_pk_bf16_f32 v{vo+1}, v{a+2}, v{a+3}"),
            lambda: e.vmem(f"buffer_store_dwordx2 v[{vo}:{vo+1}], v{V_OUT}, s[{S_O}:{S_O+3}], s{S_OROW} offen {e.cfg.store_flags}".rstrip(), f"o{o}"),
            lambda: e.A(f"s_add_u32 s{S_OROW}, s{S_OROW}, {ROWB}")]

class Gaps:
    def __init__(self, M, cap=1):
        self.M = M; self.g = [[] for _ in range(M)]; self.cap = cap
    def put(self, p, fn):
        self.g[min(max(p, 0), self.M - 1)].append(fn)
    def seq(self, ops, start, step=1, cap=None):
        cap = self.cap if cap is None else cap
        p = start
        for op in ops:
            while p < self.M - 1 and len(self.g[p]) >= cap: p += 1
            self.put(p, op); p = min(p + step, self.M - 1) if p < self.M - 1 else p
        return p

def block_a(e):
    c = e.cfg; RA = c.RA
    def khs(i): return [kh for kh in range(5) if 0 <= i - 4 + kh < RA]
    stream = list(c.stream)
    groups = [g.split(",") for g in c.groups.split("|")]
    nextw = 1 + max(int(it[1:]) for g in groups for it in g if it[0] == "w")
    groups += [[f"w{s}"] for s in range(nextw, 15)]
    order = []; rows_av = []; s_av = []; sched = set()
    mk_items = {}
    for gi, g in enumerate(groups):
        order.append(("M", gi)); mk_items[gi] = g
        for it in g:
            (rows_av if it[0] == "x" else s_av).append(int(it[1:]))
        for s in sorted(s_av):
            for r in sorted(rows_av, key=lambda r: (-len(khs(r)), r)):
                if (r, s) not in sched: sched.add((r, s)); order.append((r, s))
    assert len(sched) == len(stream) * 15
    w_marker = {int(it[1:]): gi for gi, g in mk_items.items() for it in g if it[0] == "w"}
    row_marker = {int(it[1:]): gi for gi, g in mk_items.items() for it in g if it[0] == "x"}
    nearly = len(c.groups.split("|"))
    mf = []; first = {}; mpos = {}
    for ent in order:
        if ent[0] == "M": mpos[ent[1]] = len(mf)
        else:
            first[ent] = len(mf)
            for kh in khs(ent[0]): mf.append((ent, kh))
    M = len(mf)
    mark_at = {}; prev = 0
    for p in sorted(mpos):
        q = mpos[p]
        if p >= nearly: q = max(prev, mpos[p] - c.wearly)
        elif p >= 1: q = max(prev, mpos[p] - c.early)
        mark_at[p] = q; prev = q
    tasks = []
    pairs = [ent for ent in order if ent[0] != "M"]
    last_use = {}
    for q, (ent, kh) in enumerate(mf): last_use[ent] = q
    for ent in pairs:
        tasks.append(dict(kind="b", ent=ent, ready=mark_at[row_marker[ent[0]]], due=first[ent], done=False))
    for s in range(15):
        for kh in range(5):
            due = min(q for q, (ent, k2) in enumerate(mf) if ent[1] == s and k2 == kh)
            for h in range(2):
                tasks.append(dict(kind="t", s=s, kh=kh, h=h, ready=mark_at[w_marker[s]], due=due, done=False))
    tasks.sort(key=lambda t: (t["due"], 0 if t["kind"] == "t" else 1))
    bslots = [None] * 15; bfree_at = [-1] * 15; bassign = {}
    def issue(t, q):
        if t["kind"] == "t": tr_read(e, t["s"], t["kh"], t["h"])
        else:
            k = min(range(15), key=lambda j: bfree_at[j])
            if bfree_at[k] >= q and bslots[k] is not None: return False
            ent = t["ent"]
            bslots[k] = ent; bfree_at[k] = last_use[ent]; bassign[ent] = k
            reg = V_B + 60 + 4 * k
            b_read_to(e, ent[0], ent[1], f"v[{reg}:{reg+3}]", f"pb{ent[0]}_{ent[1]}")
        t["done"] = True
        return True
    items = [it for g in c.groups.split("|") for it in g.split(",")]
    dplan = {}
    rest = [(it[0], int(it[1:])) for it in items[c.nprol:]]
    issued_w = [int(it[1:]) for it in items if it[0] == "w"]
    dplan[0] = list(rest)
    for s in range(max(issued_w) + 1, min(4, 15)): dplan[0].append(("w", s))
    for s in range(max(max(issued_w) + 1, 4), 15):
        dplan.setdefault(w_marker[s - 3], []).append(("w", s))
    if c.pfw_split < 15: dplan.setdefault(w_marker[c.pfwb_after], []).append(("pfw", 0))
    planned = []
    for part in c.def_plan.split("|"):
        wm, rows_ = part.split(":")
        rows_ = [int(r) for r in rows_.split(",")]
        dplan.setdefault(w_marker[int(wm)], []).extend([("x", r) for r in rows_]); planned += rows_
    late_rows = [r for r in c.deferred if r not in planned] + [12, 13]
    def ops_of(kind, a):
        if kind == "x": return x_ops(e, a)
        if kind == "w": return w_ops(e, a)
        return [lambda: e.vmem(f"buffer_load_dword v{V_PFD+2}, v{V_PF2}, s[{S_Wt}:{S_Wt+3}], 0 offen", "pf")]
    dq = []
    marks_sorted = sorted(mark_at)
    for p in marks_sorted:
        ops = []
        for kind, a in dplan.get(p, []): ops += ops_of(kind, a)
        if not ops: continue
        lo = mark_at[p]; hi = mark_at[p+1] if p + 1 in mark_at else M - 2
        span = 0 if p < nearly - 1 else max(hi - lo - len(ops) // 2, 0)
        for k, op in enumerate(ops): dq.append((lo + (k * span) // len(ops), op))
    dq.reverse()
    last_dma = [-10, False]
    def run_dma_op(force=False):
        _, op = dq.pop()
        n0 = len(e.L); op()
        if " lds" in e.L[-1] and re.search(r"\bm0,", e.L[n0-1]): e.L.insert(n0, "  s_nop 0")
    need = {p: list(mk_items[p]) for p in marks_sorted}
    prevw = {}
    for p in marks_sorted:
        ws = [int(it[1:]) for it in mk_items[p] if it[0] == "w"]
        if ws and ws[0] >= 1: prevw[p] = ws[0] - 1
    cnt = lambda tg: 3 if tg[0] == "w" else 2
    inited = set()
    pre = {}
    for p in marks_sorted:
        if p >= nearly:
            pre.setdefault(max(mark_at[p] - 2, mark_at[p-1] + 1), []).append(("vm", p))
            pre.setdefault(max(mark_at[p] - 1, mark_at[p-1] + 1), []).append(("lg", p))
    def do_vm(p):
        while not all(e.vm.count(tg) == cnt(tg) for tg in need[p]): run_dma_op()
        e.wait_vm(*need[p])
    def do_lg(p, q):
        if p not in prevw: return
        sp = prevw[p]
        for t in tasks:
            if t["kind"] == "t" and t["s"] == sp and not t["done"]: issue(t, q)
        idxs = [i_ for i_, tg in enumerate(e.lg) if tg.startswith(f"t{sp}_")]
        e.wait_lg(e.lg[max(idxs)])
    for q in range(M):
        for kind, p in pre.get(q, []):
            if mark_at[p] > q:
                (do_vm(p) if kind == "vm" else do_lg(p, q))
        for p in marks_sorted:
            if mark_at[p] == q:
                do_lg(p, q); do_vm(p)
                e.A("s_barrier")
                if p in (0, nearly - 1, w_marker[4], w_marker[9], w_marker[14]): e.lstamp(f"M{p}:" + ",".join(mk_items[p]))
        ent, kh = mf[q]
        late = [t for t in tasks if not t["done"] and t["due"] <= q]
        if late:
            for t in late:
                assert t["ready"] <= q, (t, q)
                ok = issue(t, q); assert ok
            for t in tasks:
                if t["done"] or t["ready"] > q: continue
                if len(e.lg) - e.lg_done >= 13: break
                if t["kind"] == "b" and t["due"] - q > c.look: continue
                issue(t, q)
        n0 = len(e.L)
        e.wait_lg(f"t{ent[1]}_{kh}", f"pb{ent[0]}_{ent[1]}", age=5)
        o = ent[0] - 4 + kh; a = V_ACCA + 4 * o
        src = f"v[{a}:{a+3}]" if o in inited else "0"
        inited.add(o)
        reg = V_B + 60 + 4 * bassign[ent]
        e.mfma(f"v_mfma_f32_16x16x32_bf16 v[{a}:{a+3}], {wreg(kh, ent[1])}, v[{reg}:{reg+3}], {src}")
        budget = 2
        early_phase = q < mark_at[nearly - 1]
        if early_phase: budget = 4
        def try_lds():
            for t in tasks:
                if t["done"] or t["ready"] > q: continue
                if t["kind"] == "b" and t["due"] - q > c.look: continue
                if len(e.lg) - e.lg_done >= 14: return False
                if issue(t, q + 1): return True
            return False
        def try_dma():
            if dq and dq[-1][0] <= q: run_dma_op(); return True
            return False
        turn = [try_lds, try_dma]
        k = 0
        while budget > 0:
            if turn[k % 2]() or turn[(k + 1) % 2](): budget -= 1; k += 1
            else: break
    while dq: run_dma_op()
    e.lstamp("streamend")
    deferred = list(c.deferred)
    seq = deferred + [RA]
    assert len(deferred) % 2 == 0
    def setreg(k, f):
        b = V_B + (k % 2) * 60 + 4 * f
        return f"v[{b}:{b+3}]"
    e.wait_vm(f"x{deferred[0]}", f"x{deferred[1]}"); e.A("s_barrier")
    for f in range(15): b_read_to(e, seq[0], f, setreg(0, f), f"d0_{f}")
    for k, r in enumerate(deferred):
        mfs = []
        for kh in khs(r):
            o = r - 4 + kh; a = V_ACCA + 4 * o
            for f in range(15):
                src = f"v[{a}:{a+3}]" if o in inited else "0"
                inited.add(o)
                mfs.append((f, f"v_mfma_f32_16x16x32_bf16 v[{a}:{a+3}], {wreg(kh, f)}, {setreg(k, f)}, {src}"))
        Mk = len(mfs); nxt = seq[k + 1]
        G = Gaps(Mk)
        if k + 1 < len(deferred) and (k + 1) % 2 == 0:
            e_rows = deferred[k+1:k+3]
            e.wait_vm(*[f"x{r_}" for r_ in e_rows]); e.A("s_barrier")
        span = max(Mk - 6, 15)
        for f in range(15): G.put(min((f * span) // 15, Mk - 1), (lambda f=f: b_read_to(e, nxt, f, setreg(k + 1, f), f"d{k+1}_{f}")))
        ntake = 2 if k < 1 else 1
        pos = 2
        for _ in range(ntake):
            if late_rows and Mk >= 30:
                pos = G.seq(x_ops(e, late_rows.pop(0)), pos, step=1, cap=2)
        for p_, (f, s_) in enumerate(mfs):
            if p_ < 15: e.wait_lg(f"d{k}_{f}", age=5)
            e.mfma(s_)
            for fn in G.g[p_]: fn()
    assert not late_rows, late_rows
    e.dtag = f"d{len(deferred)}"
    e.lstamp("defend")

def step(e, i, chains, last_row, extra_out=(), extra_dma=(), prev_tags=None):
    c = e.cfg; RA = c.RA
    mf = []
    for kh in chains:
        o = i - 4 + kh; a = acc(o)
        for f in range(15):
            src = "0" if (kh == 4 and f == 0) else f"v[{a}:{a+3}]"
            mf.append((f, f"v_mfma_f32_16x16x32_bf16 v[{a}:{a+3}], {wreg(kh, f)}, {breg(i, f)}, {src}"))
    M = len(mf)
    G = Gaps(M)
    nxt = i + 1
    nn = i + 2
    did_bar = nxt <= last_row and nxt >= NA
    if did_bar: e.A("s_barrier")
    if nxt <= last_row:
        span = max(M - 9, 15)
        for f in range(15): G.put(min((f * span) // 15, M - 1), (lambda f=f: b_read_to(e, nxt, f, breg(nxt, f), f"b{nxt}_{f}")))
    r4 = i + 4
    if i >= NA and r4 <= last_row: G.seq(x_ops(e, r4, seq=True), 18, step=2)
    for r_ in extra_dma: G.seq(x_ops(e, r_), 1, step=1, cap=(2 if M <= 30 else 1))
    tail = []
    if 0 in chains and i - 4 >= RA:
        o = i - 4; endp = chains.index(0) * 15 + 14
        ops = out_ops(e, acc(o), 0, o)
        if endp + 14 < M: G.seq(ops, endp + 9, step=1)
        else: tail = ops
    for k, (a, o) in enumerate(extra_out):
        G.seq(out_ops(e, a, k % 2, o), (k * M) // max(len(extra_out), 1) + 1, step=1, cap=(2 if M <= 45 else 1))
    if nn <= last_row and nn >= NA:
        G.put(M - 3, lambda: e.wait_vm(f"x{nn}", force=(i >= NA)))
    short = M < 45
    for p, (f, s) in enumerate(mf):
        if prev_tags and p < 15: e.wait_lg(prev_tags(f), age=5)
        e.mfma(s)
        for fn in G.g[p]: fn()
        if p == M - 2 and nxt <= last_row and not short: e.wait_lg(f"b{nxt}_14")
    if tail:
        e.A("s_nop 7"); e.A("s_nop 1")
        for fn in tail: fn()
    if nxt <= last_row and short and (nn <= last_row and nn >= NA): e.wait_lg(f"b{nxt}_14")

def build(cfg):
    e = Em(cfg); n = cfg.nrows; RA = cfg.RA
    last_row = n + 3
    e.raw(f"; @launch grid=(252,1,1) block=(256,1,1) lds={LDS_BYTES}")
    e.raw('.amdgcn_target "amdgcn-amd-amdhsa--gfx950"')
    e.raw(".text")
    e.raw(".globl standalone__fft_conv__vision_kernel")
    if cfg.align12: e.raw(".p2align 12")
    e.raw(".p2align 8")
    e.raw(".type standalone__fft_conv__vision_kernel,@function")
    e.raw("standalone__fft_conv__vision_kernel:")
    prologue(e)
    block_a(e)
    def chains_for(i): return [kh for kh in range(5) if RA <= i - 4 + kh < n]
    flush = {RA + 1: [0, 1], RA + 2: [2, 3, 4], RA + 3: [5, 6, 7]}
    predma = {RA: [14], RA + 1: [15]}
    i = RA
    while i < NA:
        ex = [(V_ACCA + 4 * o, o) for o in flush.get(i, [])]
        pt = (lambda f: f"{e.dtag}_{f}") if i == RA else (lambda f, i=i: f"b{i}_{f}")
        step(e, i, chains_for(i), last_row, ex, predma.get(i, []), pt); i += 1
    e.lstamp("rampend")
    e.A(f"s_add_u32 s{S_T0}, s{S_XBASE}, {(NA+4)*ROWB}")
    e.A(f"s_sub_u32 s{S_T1}, s{S_T0}, {XBYTES}")
    e.A(f"s_min_u32 s{S_XROW}, s{S_T0}, s{S_T1}")
    if not cfg.loop:
        while i <= last_row:
            step(e, i, chains_for(i), last_row, prev_tags=(lambda f, i=i: f"b{i}_{f}")); i += 1
    else:
        steady = list(range(NA, n)); nst = len(steady)
        start = len(e.L); seg = []
        for ii in steady:
            s0 = len(e.L)
            step(e, ii, chains_for(ii), last_row, prev_tags=(lambda f, ii=ii: f"b{ii}_{f}"))
            seg.append(e.L[s0:])
        e.L = e.L[:start]
        for k in range(4, nst):
            a, b = seg[k % 4], seg[k]
            assert len(a) == len(b), f"non periodic step {steady[k]}"
            for j in range(len(a)):
                if a[j] != b[j]:
                    ma = re.fullmatch(r"  s_waitcnt vmcnt\((\d+)\)", a[j]); mb = re.fullmatch(r"  s_waitcnt vmcnt\((\d+)\)", b[j])
                    assert ma and mb, (a[j], b[j])
                    a[j] = f"  s_waitcnt vmcnt({min(int(ma.group(1)), int(mb.group(1)))})"
        full, rem = divmod(nst, 4)
        assert rem != 0
        e.A(f"s_mov_b32 s{S_CNT}, {full}")
        e.raw(".p2align 3")
        e.raw("L_loop:")
        for k in range(4):
            if k == rem:
                e.A(f"s_cmp_eq_u32 s{S_CNT}, 0")
                e.A("s_cbranch_scc1 L_down")
                e.A(f"s_sub_u32 s{S_CNT}, s{S_CNT}, 1")
            e.L.extend(seg[k])
        e.A("s_branch L_loop")
        e.raw("L_down:")
        e.lstamp("loopend")
        i = n
        while i <= last_row:
            step(e, i, chains_for(i), last_row, prev_tags=(lambda f, i=i: f"b{i}_{f}")); i += 1
    if cfg.lst:
        e.lstamp("mfmaend"); e.A("s_waitcnt vmcnt(0)"); e.lstamp("drain")
        e.A("s_memrealtime s[62:63]")
        e.A("s_waitcnt lgkmcnt(0)")
        e.A(f"s_load_dwordx2 s[{S_WS}:{S_WS+1}], s[0:1], 32")
        e.A(f"v_mov_b32 v{V_ST}, 0")
        for k in range(e.nl): e.A(f"v_writelane_b32 v{V_ST}, s{64+2*k}, {k}")
        e.A(f"v_writelane_b32 v{V_ST}, s60, 62"); e.A(f"v_writelane_b32 v{V_ST}, s62, 63")
        e.A("s_waitcnt lgkmcnt(0)")
        e.A(f"s_lshl_b32 s{S_T0}, s2, 2")
        e.A(f"s_add_u32 s{S_T0}, s{S_T0}, s{S_WAVE}")
        e.A(f"s_lshl_b32 s{S_T0}, s{S_T0}, 8")
        e.A(f"s_add_u32 s{S_WS}, s{S_WS}, s{S_T0}")
        e.A(f"s_addc_u32 s{S_WS+1}, s{S_WS+1}, 0")
        e.A("v_lshlrev_b32 v1, 2, v0")
        e.A(f"global_store_dword v1, v{V_ST}, s[{S_WS}:{S_WS+1}]")
        print("lstamps:", e.nl, e.lnames)
    e.raw("L_end:")
    e.A("s_endpgm")
    e.raw("L_code_end:")
    e.raw(".set CODE_BYTES, L_code_end - standalone__fft_conv__vision_kernel")
    e.raw('.section .rodata,"a"')
    e.raw(".p2align 6")
    e.raw(".amdhsa_kernel standalone__fft_conv__vision_kernel")
    for l in ("next_free_vgpr 512", "next_free_sgpr 100", "accum_offset 256", "group_segment_fixed_size 0", "kernarg_size 40",
              "user_sgpr_count 2", "user_sgpr_kernarg_segment_ptr 1", "system_sgpr_workgroup_id_x 1"):
        e.raw("  .amdhsa_" + l)
    e.raw(".end_amdhsa_kernel")
    out = []
    for l in e.L:
        if " lds" in l and "buffer_load" in l and out and re.search(r"\bm0,", out[-1]): out.append("  s_nop 0")
        out.append(l)
    e.L = out
    open(cfg.name, "w").write("\n".join(e.L) + "\n")
    return e

if __name__ == "__main__":
    ap = argparse.ArgumentParser()
    ap.add_argument("-o", default=Cfg.name)
    ap.add_argument("--lst", action="store_true")
    ap.add_argument("--noloop", action="store_true")
    ap.add_argument("--store", default="")
    ap.add_argument("--look", type=int, default=12)
    ap.add_argument("--early", type=int, default=8)
    ap.add_argument("--wearly", type=int, default=26)
    ap.add_argument("--nocodepf", action="store_true")
    ap.add_argument("--diag", action="store_true")
    ap.add_argument("--groups", default=Cfg.groups)
    ap.add_argument("--nprol", type=int, default=4)
    ap.add_argument("--direct", default="4,5")
    ap.add_argument("--pf_rows", default="6,2")
    ap.add_argument("--stream", default="4,5,6,7")
    ap.add_argument("--deferred", default="3,8,2,9,1,10,0,11")
    ap.add_argument("--def_plan", default=Cfg.def_plan)
    ap.add_argument("--pfw_split", type=int, default=15)
    ap.add_argument("--pfwb_after", type=int, default=3)
    a = ap.parse_args()
    cfg = Cfg()
    cfg.name = a.o; cfg.lst = a.lst; cfg.loop = not a.noloop; cfg.store_flags = a.store
    cfg.direct = [int(x) for x in a.direct.split(",")]; cfg.pf_rows = tuple(int(x) for x in a.pf_rows.split(","))
    cfg.stream = [int(x) for x in a.stream.split(",")]; cfg.deferred = [int(x) for x in a.deferred.split(",")]; cfg.def_plan = a.def_plan
    cfg.groups = a.groups; cfg.nprol = a.nprol; cfg.pfw_split = a.pfw_split; cfg.pfwb_after = a.pfwb_after; cfg.diag = a.diag; cfg.look = a.look; cfg.early = a.early; cfg.wearly = a.wearly; cfg.codepf = not a.nocodepf
    e = build(cfg)
    print("lines", len(e.L), "LDS", LDS_BYTES)
```

```python
import sys, argparse, re

class Cfg:
    nrows = 19
    RA = 8
    store_flags = ""
    lst = False
    loop = True
    look = 12
    early = 8
    wearly = 26
    codepf = True
    spin = None
    codepf2 = False
    codepf3 = False
    codepf_all = False
    stepst = False
    dma_pos = 18
    out_pos = 0
    diag = False
    groups = "x4,x5,w0|x6,x7|w1|w2"
    direct = [4, 5]
    pf_rows = (6, 2)
    stream = [4, 5, 6, 7]
    deferred = [3, 8, 2, 9, 1, 10, 0, 11]
    nprol = 4
    pfw_split = 15
    pfwb_after = 3
    def_plan = "11:3,8|12:2,9|14:1,10"
    align12 = True
    name = "standalone__fft_conv__vision.s"

H = W = 224
ROWB = W * 192
XBYTES = H * ROWB
WBYTES = 460800
SLOTB = 7168
NA = 12
XR = NA * SLOTB
X2 = 10 * SLOTB
WS = XR + 4 * SLOTB
WSLOT = 10240
NWS = 4
DUMMY = WS + NWS * WSLOT
LDS_BYTES = DUMMY + 1024

S_X, S_Wt, S_O = 8, 12, 16
S_WS = 20
S_WAVE = 22
S_X0, S_X1, S_XM = 23, 24, 25
S_XBASE, S_XROW, S_OROW, S_CNT = 26, 27, 28, 29
S_T0, S_T1, S_T2, S_T3 = 30, 31, 32, 33
S_WM, S_G, S_W0, S_WM2, S_WMM = 34, 35, 36, 37, 38
S_T4, S_T5 = 39, 40
S_PC = 44
S_CPO = 48
S_LAST = 41
V_XAA = 2; V_XAR = 7
V_XD0, V_XD1 = 12, 13
V_WD, V_TR, V_OUT, V_PF = 14, 15, 16, 17
V_T = 18
V_O = 24
V_ST = 28
V_ACC = 32
V_B = 48
V_ACCA = 168
V_PFX = 200
V_PFD = 202
V_PF2 = 206
V_CPF = 207
V_WT = 212

def wreg(kh, f, lo=None):
    i = kh * 15 + f
    if i < 64: base, t = 4 * i, "a"
    else: base, t = V_WT + 4 * (i - 64), "v"
    if lo is None: return f"{t}[{base}:{base+3}]"
    return f"{t}[{base+lo}:{base+lo+1}]"
def breg(row, f):
    b = V_B + (row % 2) * 60 + 4 * f
    return f"v[{b}:{b+3}]"
def acc(o): return V_ACC + 4 * (o % 4)
def xlds(row): return row * SLOTB if row < NA else XR + ((row - NA) % 4) * SLOTB
def xslot(row):
    a = xlds(row)
    return ("A", a) if a < X2 else ("R", a - X2)

class Em:
    def __init__(self, cfg):
        self.cfg = cfg; self.L = []
        self.vm = []; self.vm_done = 0
        self.lg = []; self.lg_done = 0; self.lg_pos = []
        self.pos = 0
        self.nl = 0; self.lnames = []
    def A(self, s): self.L.append("  " + s)
    def raw(self, s): self.L.append(s)
    def mfma(self, s): self.A(s); self.pos += 1
    def vmem(self, s, tag): self.A(s); self.vm.append(tag)
    def lds(self, s, tag): self.A(s); self.lg.append(tag); self.lg_pos.append(self.pos)
    def vm_need(self, tags):
        idx = -1
        for tag in tags:
            assert tag in self.vm, (tag, self.vm)
            idx = max(idx, max(i for i, t in enumerate(self.vm) if t == tag))
        return idx
    def wait_vm(self, *tags, force=False):
        idx = self.vm_need(tags)
        if idx < self.vm_done and not force: return False
        n = min(len(self.vm) - 1 - idx, 63)
        self.A(f"s_waitcnt vmcnt({n})"); self.vm_done = max(self.vm_done, len(self.vm) - n)
        return True
    def wait_lg(self, *tags, age=None):
        idx = -1
        for tag in tags:
            assert tag in self.lg, tag
            idx = max(idx, max(i for i, t in enumerate(self.lg) if t == tag))
        if idx < self.lg_done: return False
        if age is not None:
            for i in range(idx + 1, len(self.lg)):
                if self.pos - self.lg_pos[i] >= age: idx = i
        n = min(len(self.lg) - 1 - idx, 15)
        self.A(f"s_waitcnt lgkmcnt({n})"); self.lg_done = len(self.lg) - n
        return True
    def lstamp(self, name=""):
        if not self.cfg.lst: return
        if self.cfg.stepst and not (name.startswith("step") or name in ("start", "rampend", "mfmaend", "drain")): return
        k = self.nl
        if k >= 18: return
        self.A(f"s_memtime s[{64+2*k}:{65+2*k}]")
        self.lnames.append(name); self.nl = k + 1

def x_ops(e, row, seq=False):
    base = xlds(row); ops = []
    I = lambda s: (lambda: e.A(s))
    if not seq:
        ops += [I(f"s_add_u32 s{S_T0}, s{S_XBASE}, {row*ROWB}"), I(f"s_sub_u32 s{S_T1}, s{S_T0}, {XBYTES}"),
                I(f"s_min_u32 s{S_XROW}, s{S_T0}, s{S_T1}")]
    ops += [I(f"s_add_u32 m0, s{S_X0}, {base}"),
            lambda: e.vmem(f"buffer_load_dwordx4 v{V_XD0}, s[{S_X}:{S_X+3}], s{S_XROW} offen lds", f"x{row}")]
    if base: ops += [I(f"s_and_b32 s{S_T2}, s{S_XM}, {base}"), I(f"s_add_u32 m0, s{S_X1}, s{S_T2}")]
    else: ops += [I(f"s_mov_b32 m0, s{S_X1}")]
    ops += [lambda: e.vmem(f"buffer_load_dwordx4 v{V_XD1}, s[{S_X}:{S_X+3}], s{S_XROW} offen lds", f"x{row}")]
    if seq:
        ops += [I(f"s_add_u32 s{S_XROW}, s{S_XROW}, {ROWB}"), I(f"s_sub_u32 s{S_T1}, s{S_XROW}, {XBYTES}"),
                I(f"s_min_u32 s{S_XROW}, s{S_XROW}, s{S_T1}")]
    return ops
def w_ops(e, s):
    ops = []
    I = lambda t: (lambda: e.A(t))
    for m in range(3):
        off = (s % NWS) * WSLOT
        ops.append(I(f"s_mov_b32 s{S_T3}, {(32*s + 960*m)*192}"))
        if m < 2: ops.append(I(f"s_add_u32 m0, s{S_WM}, {off + 4*m*1024}"))
        elif off: ops += [I(f"s_and_b32 s{S_T4}, s{S_WMM}, {off}"), I(f"s_add_u32 m0, s{S_WM2}, s{S_T4}")]
        else: ops.append(I(f"s_mov_b32 m0, s{S_WM2}"))
        ops.append(lambda m=m: e.vmem(f"buffer_load_dwordx4 v{V_WD}, s[{S_Wt}:{S_Wt+3}], s{S_T3} offen lds", f"w{s}"))
    return ops
def emit_now(e, ops):
    for op in ops:
        n0 = len(e.L)
        prev = e.L[-1]
        tmp = len(e.L); op()
        if " lds" in e.L[-1] and re.search(r"\bm0,", e.L[tmp-1]):
            e.L.insert(tmp, "  s_nop 0")

def prologue(e):
    c = e.cfg; A = e.A
    t0, t1, t2, t3 = V_T, V_T+1, V_T+2, V_T+3
    A("s_cmp_ge_u32 s2, 252")
    A("s_cbranch_scc1 L_end")
    A("s_load_dwordx4 s[4:7], s[0:1], 0")
    A(f"s_load_dwordx2 s[{S_O}:{S_O+1}], s[0:1], 16")
    e.lstamp("start")
    if c.lst: A("s_memrealtime s[60:61]")
    A("v_lshrrev_b32 v1, 6, v0")
    A("v_and_b32 v0, 63, v0")
    A(f"v_readfirstlane_b32 s{S_WAVE}, v1")
    A(f"s_lshr_b32 s{S_T0}, s2, 3")
    A(f"s_and_b32 s{S_T1}, s2, 7")
    A(f"s_mul_i32 s{S_T2}, s{S_T0}, 86")
    A(f"s_lshl_b32 s{S_T4}, s{S_T0}, 2")
    A(f"s_lshr_b32 s{S_T2}, s{S_T2}, 8")
    A(f"s_mul_i32 s{S_T1}, s{S_T1}, 10")
    A(f"s_mul_i32 s{S_T3}, s{S_T2}, 3")
    A(f"s_add_u32 s{S_T1}, s{S_T1}, s{S_T2}")
    A(f"s_sub_u32 s{S_G}, s{S_T0}, s{S_T3}")
    A("s_cmp_lt_u32 s2, 240")
    A("s_cbranch_scc1 L_map_done")
    A(f"s_sub_u32 s{S_T0}, s2, 240")
    A(f"s_mul_i32 s{S_T2}, s{S_T0}, 86")
    A(f"s_lshr_b32 s{S_T2}, s{S_T2}, 8")
    A(f"s_mul_i32 s{S_T3}, s{S_T2}, 3")
    A(f"s_sub_u32 s{S_G}, s{S_T0}, s{S_T3}")
    A(f"s_add_u32 s{S_T1}, s{S_T2}, 80")
    e.raw("L_map_done:")
    A(f"s_add_u32 s{S_T4}, s{S_T4}, s{S_WAVE}")
    A(f"s_mul_i32 s{S_T2}, s{S_T1}, 9363")
    A(f"s_lshl_b32 s{S_T5}, s{S_WAVE}, 6")
    A(f"s_lshr_b32 s{S_T2}, s{S_T2}, 16")
    A(f"v_add_u32 v{t0}, s{S_T5}, v0")
    A(f"s_mul_i32 s{S_T3}, s{S_T2}, 7")
    A(f"s_mul_i32 s{S_LAST}, s{S_T2}, 86")
    A(f"s_sub_u32 s{S_T3}, s{S_T1}, s{S_T3}")
    A(f"s_mul_i32 s{S_T0}, s{S_T2}, {56*21846}")
    A(f"s_lshl_b32 s{S_W0}, s{S_T3}, 5")
    A(f"s_lshr_b32 s{S_T0}, s{S_T0}, 16")
    A(f"s_mul_i32 s{S_OROW}, s{S_T0}, {ROWB}")
    A(f"s_add_u32 s{S_XBASE}, s{S_OROW}, {(H-4)*ROWB}")
    A(f"s_lshr_b32 s{S_LAST}, s{S_LAST}, 8")
    A(f"s_mul_i32 s{S_LAST}, s{S_LAST}, 3")
    A(f"s_cmp_eq_u32 s{S_LAST}, s{S_T2}")
    A(f"s_cselect_b32 s{S_LAST}, 0x40000000, 0")
    A(f"s_add_u32 s{S_T0}, s{S_W0}, {W-4}")
    for pi in range(2):
        dst = V_XD0 if pi == 0 else V_XD1
        if pi: A(f"v_add_u32 v{t0}, 256, v{t0}")
        A(f"v_mul_u32_u24 v{t1}, 5462, v{t0}")
        A(f"v_lshrrev_b32 v{t1}, 16, v{t1}")
        A(f"v_mul_u32_u24 v{t2}, 12, v{t1}")
        A(f"v_lshrrev_b32 v{t3}, 1, v{t1}")
        A(f"v_sub_u32 v{t2}, v{t0}, v{t2}")
        A(f"v_and_b32 v{t3}, 2, v{t3}")
        A(f"v_add_u32 v{t1}, s{S_T0}, v{t1}")
        A(f"v_xor_b32 v{t2}, v{t2}, v{t3}")
        A(f"v_subrev_u32 v{t3}, {W}, v{t1}")
        A(f"v_min_u32 v{t1}, v{t1}, v{t3}")
        if pi: A(f"v_cmp_gt_u32 vcc, 432, v{t0}")
        A(f"v_mul_u32_u24 v{t1}, 192, v{t1}")
        A(f"v_lshl_add_u32 v{dst}, v{t2}, 4, v{t1}")
        if pi:
            A(f"v_mov_b32 v{t1}, 0x40000000")
            A(f"v_cndmask_b32 v{dst}, v{t1}, v{dst}, vcc")
    A(f"s_lshl_b32 s{S_X0}, s{S_WAVE}, 10")
    A(f"s_add_u32 s{S_X1}, s{S_X0}, 4096")
    A(f"s_cmp_eq_u32 s{S_WAVE}, 3")
    A(f"s_cselect_b32 s{S_X1}, {DUMMY}, s{S_X1}")
    A(f"s_cselect_b32 s{S_XM}, 0, -1")
    A(f"s_mov_b32 s{S_X+2}, {XBYTES}"); A(f"s_mov_b32 s{S_X+3}, 0x20000")
    A(f"s_mov_b32 s{S_Wt+2}, {WBYTES}"); A(f"s_mov_b32 s{S_Wt+3}, 0x20000")
    A("s_waitcnt lgkmcnt(0)")
    A(f"s_mov_b32 s{S_X}, s4"); A(f"s_mov_b32 s{S_X+1}, s5")
    A(f"s_mov_b32 s{S_Wt}, s6"); A(f"s_mov_b32 s{S_Wt+1}, s7")
    e.lstamp("karg")
    items = [it for g in c.groups.split("|") for it in g.split(",")]
    assert items[:len(c.direct)] == [f"x{r}" for r in c.direct]
    for r in c.direct: emit_now(e, x_ops(e, r))
    r0, nr = c.pf_rows
    A(f"v_mov_b32 v{V_T+5}, 0x40000000")
    if nr:
        nl = -(-nr * 18 // 4)
        A(f"s_mul_i32 s{S_T0}, s{S_WAVE}, {nl}")
        A(f"v_add_u32 v{t0}, s{S_T0}, v0")
        A(f"v_mul_u32_u24 v{t1}, 3641, v{t0}")
        A(f"s_mul_i32 s{S_T0}, s{S_G}, 18")
        A(f"v_lshrrev_b32 v{t1}, 16, v{t1}")
        A(f"v_mul_u32_u24 v{t2}, 18, v{t1}")
        A(f"v_sub_u32 v{t2}, v{t0}, v{t2}")
        A(f"v_add_u32 v{t2}, s{S_T0}, v{t2}")
        A(f"s_add_u32 s{S_T0}, s{S_W0}, {W-4}")
        A(f"v_lshlrev_b32 v{t2}, 7, v{t2}")
        A(f"s_mul_i32 s{S_T0}, s{S_T0}, 192")
        A(f"s_mov_b32 s{S_T1}, {ROWB}")
        A(f"v_add_u32 v{t2}, s{S_T0}, v{t2}")
        A(f"v_subrev_u32 v{t3}, {ROWB}, v{t2}")
        A(f"v_min_u32 v{t2}, v{t2}, v{t3}")
        A(f"v_add_u32 v{t3}, {r0}, v{t1}")
        A(f"v_mul_lo_u32 v{t3}, v{t3}, s{S_T1}")
        A(f"s_mov_b32 s{S_T2}, {XBYTES}")
        A(f"v_cmp_gt_u32 vcc, {nr*18}, v{t0}")
        A(f"v_add_u32 v{t3}, s{S_XBASE}, v{t3}")
        A(f"v_subrev_u32 v{t1}, s{S_T2}, v{t3}")
        A(f"v_min_u32 v{t3}, v{t3}, v{t1}")
        A(f"v_add_u32 v{t3}, v{t3}, v{t2}")
        A(f"v_cndmask_b32 v{t3}, v{V_T+5}, v{t3}, vcc")
        A(f"v_cmp_gt_u32 vcc, {nl}, v0")
        A("s_nop 1")
        A(f"v_cndmask_b32 v{V_PFX}, v{V_T+5}, v{t3}, vcc")
        e.vmem(f"buffer_load_dword v{V_PFD}, v{V_PFX}, s[{S_X}:{S_X+3}], 0 offen", "pf")
    def wpf(dst, s0, s1):
        per = (s1 - s0) * 48; tot = 5 * per
        nl = -(-tot // 128)
        if s0 == 0 and s1 == 15:
            A(f"s_mul_i32 s{S_T0}, s{S_T4}, {nl}")
            A(f"v_cmp_gt_u32 vcc, {nl}, v0")
            A(f"v_add_u32 v{t0}, s{S_T0}, v0")
            A(f"v_lshlrev_b32 v{t0}, 7, v{t0}")
            A(f"v_cndmask_b32 v{dst}, v{V_T+5}, v{t0}, vcc")
            return
        A(f"s_mul_i32 s{S_T0}, s{S_T4}, {nl}")
        A(f"v_add_u32 v{t0}, s{S_T0}, v0")
        sh = next(b for b in range(12, 23) if all((n_ * (-(-(1 << b) // per))) >> b == n_ // per for n_ in range(128 * nl + 64)))
        mg = -(-(1 << sh) // per)
        A(f"s_mov_b32 s{S_T1}, {mg}")
        A(f"v_mul_lo_u32 v{t1}, v{t0}, s{S_T1}")
        A(f"v_lshrrev_b32 v{t1}, {sh}, v{t1}")
        A(f"v_mul_u32_u24 v{t2}, {per}, v{t1}")
        A(f"v_sub_u32 v{t2}, v{t0}, v{t2}")
        A(f"v_lshlrev_b32 v{t2}, 7, v{t2}")
        A(f"v_mul_u32_u24 v{t1}, {92160}, v{t1}")
        A(f"v_cmp_gt_u32 vcc, {nl}, v0")
        A(f"v_add_u32 v{t2}, v{t2}, v{t1}")
        if s0: A(f"v_add_u32 v{t2}, {s0*6144}, v{t2}")
        else: A("s_nop 0")
        A(f"v_cndmask_b32 v{dst}, v{V_T+5}, v{t2}, vcc")
    wpf(V_PF, 0, c.pfw_split)
    e.vmem(f"buffer_load_dword v{V_PFD+1}, v{V_PF}, s[{S_Wt}:{S_Wt+3}], 0 offen", "pf")
    if c.codepf:
        A(f"s_getpc_b64 s[{S_PC}:{S_PC+1}]")
        e.raw("L_pc:")
        A(f"s_sub_u32 s{S_PC}, s{S_PC}, L_pc-standalone__fft_conv__vision_kernel")
        A(f"s_subb_u32 s{S_PC+1}, s{S_PC+1}, 0")
        A(f"s_and_b32 s{S_PC+1}, s{S_PC+1}, 0xffff")
        A(f"s_mov_b32 s{S_PC+2}, CODE_BYTES")
        A(f"s_mov_b32 s{S_PC+3}, 0x20000")
        if c.codepf_all:
            A(f"v_lshlrev_b32 v{V_CPF}, 7, v0")
            A(f"s_lshl_b32 s{S_CPO}, s{S_WAVE}, 13")
        else:
            A(f"v_cmp_gt_u32 vcc, 2, v0")
            A(f"v_lshlrev_b32 v{t0}, 7, v0")
            A(f"s_lshl_b32 s{S_CPO}, s{S_T4}, 8")
            A(f"v_cndmask_b32 v{V_CPF}, v{V_T+5}, v{t0}, vcc")
        e.vmem(f"buffer_load_dword v{V_PFD+3}, v{V_CPF}, s[{S_PC}:{S_PC+3}], s{S_CPO} offen", "pf")
    e.lstamp("pf")
    A(f"s_add_u32 s{S_WM}, s{S_X0}, {WS}")
    A(f"s_add_u32 s{S_WM2}, s{S_WM}, 8192")
    A(f"s_cmp_ge_u32 s{S_WAVE}, 2")
    A(f"s_cselect_b32 s{S_WM2}, {DUMMY}, s{S_WM2}")
    A(f"s_cselect_b32 s{S_WMM}, 0, -1")
    A(f"v_lshrrev_b32 v{t0}, 4, v0")
    A(f"v_bfe_u32 v{t1}, v0, 2, 2")
    A(f"v_lshl_add_u32 v{t1}, v{t0}, 3, v{t1}")
    A(f"v_and_b32 v{t0}, 1, v{t0}")
    A(f"v_mul_u32_u24 v{t1}, 192, v{t1}")
    A(f"v_lshlrev_b32 v{t0}, 1, v{t0}")
    A(f"v_and_b32 v{t2}, 3, v0")
    A(f"s_lshr_b32 s{S_T0}, s{S_WAVE}, 1")
    A(f"v_xor_b32 v{t2}, v{t2}, v{t0}")
    A(f"s_mul_i32 s{S_T0}, s{S_T0}, {480*192}")
    A(f"v_lshl_add_u32 v{t1}, v{t2}, 4, v{t1}")
    A(f"s_and_b32 s{S_T1}, s{S_WAVE}, 1")
    A(f"s_mul_i32 s{S_T1}, s{S_T1}, {4*192}")
    A(f"s_add_u32 s{S_T0}, s{S_T0}, s{S_T1}")
    A(f"s_lshl_b32 s{S_T1}, s{S_G}, 6")
    A(f"s_add_u32 s{S_T0}, s{S_T0}, s{S_T1}")
    A(f"v_add_u32 v{V_WD}, s{S_T0}, v{t1}")
    for it in items[len(c.direct):c.nprol]:
        emit_now(e, x_ops(e, int(it[1:])) if it[0] == "x" else w_ops(e, int(it[1:])))
    if c.diag:
        e.lstamp("issued")
        nv = len(e.vm)
        seen = []
        for idx_, tg in enumerate(e.vm):
            if idx_ + 1 < nv and e.vm[idx_ + 1] == tg and tg != "pf": continue
            A(f"s_waitcnt vmcnt({nv - 1 - idx_})"); e.lstamp(tg + "_back")
    if c.pfw_split < 15: wpf(V_PF2, c.pfw_split, 15)
    A(f"s_mov_b32 s{S_O+2}, {XBYTES}")
    A(f"s_mov_b32 s{S_O+3}, 0x20000")
    A(f"v_and_b32 v{V_T}, 15, v0")
    A(f"v_lshrrev_b32 v{V_T+1}, 4, v0")
    A(f"s_lshr_b32 s{S_T0}, s{S_WAVE}, 1")
    A(f"s_lshl_b32 s{S_T0}, s{S_T0}, 4")
    A(f"v_add_u32 v{V_T+4}, s{S_T0}, v{V_T}")
    for kw in range(5):
        A(f"v_add_u32 v{V_T+2}, {4-kw}, v{V_T+4}")
        A(f"v_lshrrev_b32 v{V_T+3}, 1, v{V_T+2}")
        A(f"v_and_b32 v{V_T+3}, 2, v{V_T+3}")
        A(f"v_xor_b32 v{V_T+3}, v{V_T+3}, v{V_T+1}")
        A(f"v_mul_u32_u24 v{V_T+2}, 192, v{V_T+2}")
        A(f"v_lshl_add_u32 v{V_XAA+kw}, v{V_T+3}, 4, v{V_T+2}")
        A(f"v_add_u32 v{V_XAR+kw}, {X2}, v{V_XAA+kw}")
    A(f"s_and_b32 s{S_T1}, s{S_WAVE}, 1")
    A(f"v_and_b32 v{V_T+2}, 1, v{V_T+1}")
    A(f"v_xor_b32 v{V_T+2}, s{S_T1}, v{V_T+2}")
    A(f"v_lshlrev_b32 v{V_T+2}, 5, v{V_T+2}")
    A(f"v_lshrrev_b32 v{V_T+3}, 2, v0")
    A(f"v_lshl_add_u32 v{V_T+2}, v{V_T+3}, 6, v{V_T+2}")
    A(f"v_and_b32 v{V_T+3}, 3, v0")
    A(f"v_lshl_add_u32 v{V_T+2}, v{V_T+3}, 3, v{V_T+2}")
    A(f"v_add_u32 v{V_TR}, {WS}, v{V_T+2}")
    A(f"v_add_u32 v{V_T+2}, s{S_W0}, v{V_T+4}")
    A(f"v_mul_u32_u24 v{V_T+2}, 192, v{V_T+2}")
    A(f"v_lshl_add_u32 v{V_T+2}, v{V_T+1}, 3, v{V_T+2}")
    A(f"s_lshl_b32 s{S_T0}, s{S_G}, 1")
    A(f"s_add_u32 s{S_T0}, s{S_T0}, s{S_T1}")
    A(f"s_lshl_b32 s{S_T0}, s{S_T0}, 5")
    A(f"v_add_u32 v{V_OUT}, s{S_T0}, v{V_T+2}")

def b_read_to(e, row, f, reg, tag):
    kw, cc = divmod(f, 3)
    kind, off = xslot(row)
    base = V_XAA if kind == "A" else V_XAR
    e.lds(f"ds_read_b128 {reg}, v{base+kw} offset:{off + cc*64}", tag)
def tr_read(e, s, kh, h):
    e.lds(f"ds_read_b64_tr_b16 {wreg(kh, s, 2*h)}, v{V_TR} offset:{(s % NWS)*WSLOT + (2*kh + h)*1024}", f"t{s}_{kh}")
def out_ops(e, a, pair, o):
    vo = V_O + 2 * pair
    pre = [lambda: e.A(f"s_add_u32 s{S_OROW}, s{S_OROW}, s{S_LAST}")] if o == e.cfg.nrows - 1 else []
    return pre + [lambda: e.A(f"v_cvt_pk_bf16_f32 v{vo}, v{a}, v{a+1}"),
            lambda: e.A(f"v_cvt_pk_bf16_f32 v{vo+1}, v{a+2}, v{a+3}"),
            lambda: e.vmem(f"buffer_store_dwordx2 v[{vo}:{vo+1}], v{V_OUT}, s[{S_O}:{S_O+3}], s{S_OROW} offen {e.cfg.store_flags}".rstrip(), f"o{o}"),
            lambda: e.A(f"s_add_u32 s{S_OROW}, s{S_OROW}, {ROWB}")]

class Gaps:
    def __init__(self, M, cap=1):
        self.M = M; self.g = [[] for _ in range(M)]; self.cap = cap
    def put(self, p, fn):
        self.g[min(max(p, 0), self.M - 1)].append(fn)
    def seq(self, ops, start, step=1, cap=None):
        cap = self.cap if cap is None else cap
        p = start
        for op in ops:
            while p < self.M - 1 and len(self.g[p]) >= cap: p += 1
            self.put(p, op); p = min(p + step, self.M - 1) if p < self.M - 1 else p
        return p

def block_a(e):
    c = e.cfg; RA = c.RA
    def khs(i): return [kh for kh in range(5) if 0 <= i - 4 + kh < RA]
    stream = list(c.stream)
    groups = [g.split(",") for g in c.groups.split("|")]
    nextw = 1 + max(int(it[1:]) for g in groups for it in g if it[0] == "w")
    groups += [[f"w{s}"] for s in range(nextw, 15)]
    order = []; rows_av = []; s_av = []; sched = set()
    mk_items = {}
    for gi, g in enumerate(groups):
        order.append(("M", gi)); mk_items[gi] = g
        for it in g:
            (rows_av if it[0] == "x" else s_av).append(int(it[1:]))
        for s in sorted(s_av):
            for r in sorted(rows_av, key=lambda r: (-len(khs(r)), r)):
                if (r, s) not in sched: sched.add((r, s)); order.append((r, s))
    assert len(sched) == len(stream) * 15
    w_marker = {int(it[1:]): gi for gi, g in mk_items.items() for it in g if it[0] == "w"}
    row_marker = {int(it[1:]): gi for gi, g in mk_items.items() for it in g if it[0] == "x"}
    nearly = len(c.groups.split("|"))
    mf = []; first = {}; mpos = {}
    for ent in order:
        if ent[0] == "M": mpos[ent[1]] = len(mf)
        else:
            first[ent] = len(mf)
            for kh in khs(ent[0]): mf.append((ent, kh))
    M = len(mf)
    mark_at = {}; prev = 0
    for p in sorted(mpos):
        q = mpos[p]
        if p >= nearly: q = max(prev, mpos[p] - c.wearly)
        elif p >= 1: q = max(prev, mpos[p] - c.early)
        mark_at[p] = q; prev = q
    tasks = []
    pairs = [ent for ent in order if ent[0] != "M"]
    last_use = {}
    for q, (ent, kh) in enumerate(mf): last_use[ent] = q
    for ent in pairs:
        tasks.append(dict(kind="b", ent=ent, ready=mark_at[row_marker[ent[0]]], due=first[ent], done=False))
    for s in range(15):
        for kh in range(5):
            due = min(q for q, (ent, k2) in enumerate(mf) if ent[1] == s and k2 == kh)
            for h in range(2):
                tasks.append(dict(kind="t", s=s, kh=kh, h=h, ready=mark_at[w_marker[s]], due=due, done=False))
    tasks.sort(key=lambda t: (t["due"], 0 if t["kind"] == "t" else 1))
    bslots = [None] * 15; bfree_at = [-1] * 15; bassign = {}
    def issue(t, q):
        if t["kind"] == "t": tr_read(e, t["s"], t["kh"], t["h"])
        else:
            k = min(range(15), key=lambda j: bfree_at[j])
            if bfree_at[k] >= q and bslots[k] is not None: return False
            ent = t["ent"]
            bslots[k] = ent; bfree_at[k] = last_use[ent]; bassign[ent] = k
            reg = V_B + 60 + 4 * k
            b_read_to(e, ent[0], ent[1], f"v[{reg}:{reg+3}]", f"pb{ent[0]}_{ent[1]}")
        t["done"] = True
        return True
    items = [it for g in c.groups.split("|") for it in g.split(",")]
    dplan = {}
    rest = [(it[0], int(it[1:])) for it in items[c.nprol:]]
    issued_w = [int(it[1:]) for it in items if it[0] == "w"]
    dplan[0] = list(rest)
    for s in range(max(issued_w) + 1, min(4, 15)): dplan[0].append(("w", s))
    for s in range(max(max(issued_w) + 1, 4), 15):
        dplan.setdefault(w_marker[s - 3], []).append(("w", s))
    if c.pfw_split < 15: dplan.setdefault(w_marker[c.pfwb_after], []).append(("pfw", 0))
    planned = []
    for part in c.def_plan.split("|"):
        wm, rows_ = part.split(":")
        rows_ = [int(r) for r in rows_.split(",")]
        dplan.setdefault(w_marker[int(wm)], []).extend([("x", r) for r in rows_]); planned += rows_
    late_rows = [r for r in c.deferred if r not in planned] + [12, 13]
    def ops_of(kind, a):
        if kind == "x": return x_ops(e, a)
        if kind == "w": return w_ops(e, a)
        return [lambda: e.vmem(f"buffer_load_dword v{V_PFD+2}, v{V_PF2}, s[{S_Wt}:{S_Wt+3}], 0 offen", "pf")]
    dq = []
    marks_sorted = sorted(mark_at)
    for p in marks_sorted:
        ops = []
        for kind, a in dplan.get(p, []): ops += ops_of(kind, a)
        if not ops: continue
        lo = mark_at[p]; hi = mark_at[p+1] if p + 1 in mark_at else M - 2
        span = 0 if p < nearly - 1 else max(hi - lo - len(ops) // 2, 0)
        for k, op in enumerate(ops): dq.append((lo + (k * span) // len(ops), op))
    dq.reverse()
    last_dma = [-10, False]
    def run_dma_op(force=False):
        _, op = dq.pop()
        n0 = len(e.L); op()
        if " lds" in e.L[-1] and re.search(r"\bm0,", e.L[n0-1]): e.L.insert(n0, "  s_nop 0")
    need = {p: list(mk_items[p]) for p in marks_sorted}
    prevw = {}
    for p in marks_sorted:
        ws = [int(it[1:]) for it in mk_items[p] if it[0] == "w"]
        if ws and ws[0] >= 1: prevw[p] = ws[0] - 1
    cnt = lambda tg: 3 if tg[0] == "w" else 2
    inited = set()
    pre = {}
    for p in marks_sorted:
        if p >= nearly:
            pre.setdefault(max(mark_at[p] - 2, mark_at[p-1] + 1), []).append(("vm", p))
            pre.setdefault(max(mark_at[p] - 1, mark_at[p-1] + 1), []).append(("lg", p))
    def do_vm(p):
        while not all(e.vm.count(tg) == cnt(tg) for tg in need[p]): run_dma_op()
        e.wait_vm(*need[p])
    def do_lg(p, q):
        if p not in prevw: return
        sp = prevw[p]
        for t in tasks:
            if t["kind"] == "t" and t["s"] == sp and not t["done"]: issue(t, q)
        idxs = [i_ for i_, tg in enumerate(e.lg) if tg.startswith(f"t{sp}_")]
        e.wait_lg(e.lg[max(idxs)])
    for q in range(M):
        for kind, p in pre.get(q, []):
            if mark_at[p] > q:
                (do_vm(p) if kind == "vm" else do_lg(p, q))
        for p in marks_sorted:
            if mark_at[p] == q:
                do_lg(p, q); do_vm(p)
                e.A("s_barrier")
                if p in (0, nearly - 1, w_marker[4], w_marker[9], w_marker[14]): e.lstamp(f"M{p}:" + ",".join(mk_items[p]))
        ent, kh = mf[q]
        late = [t for t in tasks if not t["done"] and t["due"] <= q]
        if late:
            for t in late:
                assert t["ready"] <= q, (t, q)
                ok = issue(t, q); assert ok
            for t in tasks:
                if t["done"] or t["ready"] > q: continue
                if len(e.lg) - e.lg_done >= 13: break
                if t["kind"] == "b" and t["due"] - q > c.look: continue
                issue(t, q)
        n0 = len(e.L)
        e.wait_lg(f"t{ent[1]}_{kh}", f"pb{ent[0]}_{ent[1]}", age=5)
        o = ent[0] - 4 + kh; a = V_ACCA + 4 * o
        src = f"v[{a}:{a+3}]" if o in inited else "0"
        inited.add(o)
        reg = V_B + 60 + 4 * bassign[ent]
        e.mfma(f"v_mfma_f32_16x16x32_bf16 v[{a}:{a+3}], {wreg(kh, ent[1])}, v[{reg}:{reg+3}], {src}")
        budget = 2
        early_phase = q < mark_at[nearly - 1]
        if early_phase: budget = 4
        def try_lds():
            for t in tasks:
                if t["done"] or t["ready"] > q: continue
                if t["kind"] == "b" and t["due"] - q > c.look: continue
                if len(e.lg) - e.lg_done >= 14: return False
                if issue(t, q + 1): return True
            return False
        def try_dma():
            if dq and dq[-1][0] <= q: run_dma_op(); return True
            return False
        turn = [try_lds, try_dma]
        k = 0
        while budget > 0:
            if turn[k % 2]() or turn[(k + 1) % 2](): budget -= 1; k += 1
            else: break
    while dq: run_dma_op()
    if c.codepf2: e.vmem(f"buffer_load_dword v{V_PFD+3}, v{V_CPF}, s[{S_PC}:{S_PC+3}], s{S_CPO} offen", "pf")
    e.lstamp("streamend")
    deferred = list(c.deferred)
    seq = deferred + [RA]
    par = len(deferred) % 2
    def setreg(k, f):
        b = V_B + ((k + par) % 2) * 60 + 4 * f
        return f"v[{b}:{b+3}]"
    vis = {}
    k0 = 0
    if par: vis[0] = [deferred[0]]; k0 = 1
    for k_ in range(k0, len(deferred), 2): vis[k_] = deferred[k_:k_+2]
    e.wait_vm(*[f"x{r_}" for r_ in vis[0]]); e.A("s_barrier")
    for f in range(15): b_read_to(e, seq[0], f, setreg(0, f), f"d0_{f}")
    for k, r in enumerate(deferred):
        mfs = []
        for kh in khs(r):
            o = r - 4 + kh; a = V_ACCA + 4 * o
            for f in range(15):
                src = f"v[{a}:{a+3}]" if o in inited else "0"
                inited.add(o)
                mfs.append((f, f"v_mfma_f32_16x16x32_bf16 v[{a}:{a+3}], {wreg(kh, f)}, {setreg(k, f)}, {src}"))
        Mk = len(mfs); nxt = seq[k + 1]
        G = Gaps(Mk)
        if (k + 1) in vis:
            e.wait_vm(*[f"x{r_}" for r_ in vis[k+1]]); e.A("s_barrier")
        span = max(Mk - 6, 15)
        for f in range(15): G.put(min((f * span) // 15, Mk - 1), (lambda f=f: b_read_to(e, nxt, f, setreg(k + 1, f), f"d{k+1}_{f}")))
        ntake = 2 if k < 1 else 1
        pos = 2
        for _ in range(ntake):
            if late_rows and Mk >= 30:
                pos = G.seq(x_ops(e, late_rows.pop(0)), pos, step=1, cap=2)
        for p_, (f, s_) in enumerate(mfs):
            if p_ < 15: e.wait_lg(f"d{k}_{f}", age=5)
            e.mfma(s_)
            for fn in G.g[p_]: fn()
    assert not late_rows, late_rows
    e.dtag = f"d{len(deferred)}"
    e.lstamp("defend")

def step(e, i, chains, last_row, extra_out=(), extra_dma=(), prev_tags=None):
    c = e.cfg; RA = c.RA
    mf = []
    for kh in chains:
        o = i - 4 + kh; a = acc(o)
        for f in range(15):
            src = "0" if (kh == 4 and f == 0) else f"v[{a}:{a+3}]"
            mf.append((f, f"v_mfma_f32_16x16x32_bf16 v[{a}:{a+3}], {wreg(kh, f)}, {breg(i, f)}, {src}"))
    M = len(mf)
    G = Gaps(M)
    nxt = i + 1
    nn = i + 2
    did_bar = nxt <= last_row and nxt >= NA
    if did_bar: e.A("s_barrier")
    if nxt <= last_row:
        span = max(M - 9, 15)
        for f in range(15): G.put(min((f * span) // 15, M - 1), (lambda f=f: b_read_to(e, nxt, f, breg(nxt, f), f"b{nxt}_{f}")))
    r4 = i + 4
    if i >= NA and r4 <= last_row: G.seq(x_ops(e, r4, seq=True), c.dma_pos, step=2)
    for r_ in extra_dma: G.seq(x_ops(e, r_), 1, step=1, cap=(2 if M <= 30 else 1))
    tail = []
    if 0 in chains and i - 4 >= RA:
        o = i - 4; endp = chains.index(0) * 15 + 14
        ops = out_ops(e, acc(o), 0, o)
        if endp + 14 < M: G.seq(ops, max(endp + 9, c.out_pos if M == 75 else 0), step=1)
        else: tail = ops
    for k, (a, o) in enumerate(extra_out):
        G.seq(out_ops(e, a, k % 2, o), (k * M) // max(len(extra_out), 1) + 1, step=1, cap=(2 if M <= 45 else 1))
    if nn <= last_row and nn >= NA:
        G.put(M - 3, lambda: e.wait_vm(f"x{nn}", force=(i >= NA)))
    short = M < 45
    for p, (f, s) in enumerate(mf):
        if prev_tags and p < 15: e.wait_lg(prev_tags(f), age=5)
        e.mfma(s)
        for fn in G.g[p]: fn()
        if p == M - 2 and nxt <= last_row and not short: e.wait_lg(f"b{nxt}_14")
    if tail:
        e.A("s_nop 7"); e.A("s_nop 1")
        for fn in tail: fn()
    if nxt <= last_row and short and (nn <= last_row and nn >= NA): e.wait_lg(f"b{nxt}_14")

def build(cfg):
    e = Em(cfg); n = cfg.nrows; RA = cfg.RA
    last_row = n + 3
    e.raw("; direct 5x5 circular convolution; weights stationary in registers; start block overlaps the weight arrival")
    e.raw(f"; @launch grid=(252,1,1) block=(256,1,1) lds={LDS_BYTES}")
    e.raw('.amdgcn_target "amdgcn-amd-amdhsa--gfx950"')
    e.raw(".text")
    e.raw(".globl standalone__fft_conv__vision_kernel")
    if cfg.align12: e.raw(".p2align 12")
    e.raw(".p2align 8")
    e.raw(".type standalone__fft_conv__vision_kernel,@function")
    e.raw("standalone__fft_conv__vision_kernel:")
    prologue(e)
    block_a(e)
    def chains_for(i): return [kh for kh in range(5) if RA <= i - 4 + kh < n]
    flush = {RA + 1: [0, 1], RA + 2: [2, 3, 4], RA + 3: [5, 6, 7]}
    predma = {RA: [14], RA + 1: [15]}
    i = RA
    while i < NA:
        ex = [(V_ACCA + 4 * o, o) for o in flush.get(i, [])]
        pt = (lambda f: f"{e.dtag}_{f}") if i == RA else (lambda f, i=i: f"b{i}_{f}")
        step(e, i, chains_for(i), last_row, ex, predma.get(i, []), pt); i += 1
    if cfg.codepf3: e.vmem(f"buffer_load_dword v{V_PFD+3}, v{V_CPF}, s[{S_PC}:{S_PC+3}], s{S_CPO} offen", "pf")
    e.lstamp("rampend")
    e.A(f"s_add_u32 s{S_T0}, s{S_XBASE}, {(NA+4)*ROWB}")
    e.A(f"s_sub_u32 s{S_T1}, s{S_T0}, {XBYTES}")
    e.A(f"s_min_u32 s{S_XROW}, s{S_T0}, s{S_T1}")
    if not cfg.loop:
        while i <= last_row:
            step(e, i, chains_for(i), last_row, prev_tags=(lambda f, i=i: f"b{i}_{f}")); i += 1
            if i <= last_row: e.lstamp(f"step{i}")
    else:
        steady = list(range(NA, n)); nst = len(steady)
        start = len(e.L); seg = []
        for ii in steady:
            s0 = len(e.L)
            step(e, ii, chains_for(ii), last_row, prev_tags=(lambda f, ii=ii: f"b{ii}_{f}"))
            seg.append(e.L[s0:])
        e.L = e.L[:start]
        for k in range(4, nst):
            a, b = seg[k % 4], seg[k]
            assert len(a) == len(b), f"non periodic step {steady[k]}"
            for j in range(len(a)):
                if a[j] != b[j]:
                    ma = re.fullmatch(r"  s_waitcnt vmcnt\((\d+)\)", a[j]); mb = re.fullmatch(r"  s_waitcnt vmcnt\((\d+)\)", b[j])
                    assert ma and mb, (a[j], b[j])
                    a[j] = f"  s_waitcnt vmcnt({min(int(ma.group(1)), int(mb.group(1)))})"
        full, rem = divmod(nst, 4)
        assert rem != 0
        e.A(f"s_mov_b32 s{S_CNT}, {full}")
        e.raw(".p2align 3")
        e.raw("L_loop:")
        for k in range(4):
            if k == rem:
                e.A(f"s_cmp_eq_u32 s{S_CNT}, 0")
                e.A("s_cbranch_scc1 L_down")
                e.A(f"s_sub_u32 s{S_CNT}, s{S_CNT}, 1")
            e.L.extend(seg[k])
        e.A("s_branch L_loop")
        e.raw("L_down:")
        e.lstamp("loopend")
        i = n
        while i <= last_row:
            step(e, i, chains_for(i), last_row, prev_tags=(lambda f, i=i: f"b{i}_{f}")); i += 1
    if cfg.spin:
        e.lstamp("mfmaend"); e.A("s_waitcnt vmcnt(0) lgkmcnt(0)")
        ia, ib, K = e.lnames.index(cfg.spin[0]), e.lnames.index(cfg.spin[1]), cfg.spin[2]
        e.A(f"s_sub_u32 s50, s{64+2*ib}, s{64+2*ia}")
        e.A(f"s_mul_i32 s50, s50, {K}")
        e.A("s_memtime s[52:53]"); e.A("s_waitcnt lgkmcnt(0)")
        e.raw("L_spin:")
        e.A("s_memtime s[54:55]"); e.A("s_waitcnt lgkmcnt(0)")
        e.A("s_sub_u32 s51, s54, s52"); e.A("s_cmp_lt_u32 s51, s50"); e.A("s_cbranch_scc1 L_spin")
    elif cfg.lst:
        e.lstamp("mfmaend"); e.A("s_waitcnt vmcnt(0)"); e.lstamp("drain")
        e.A("s_memrealtime s[62:63]")
        e.A("s_waitcnt lgkmcnt(0)")
        e.A(f"s_load_dwordx2 s[{S_WS}:{S_WS+1}], s[0:1], 32")
        e.A(f"v_mov_b32 v{V_ST}, 0")
        for k in range(e.nl): e.A(f"v_writelane_b32 v{V_ST}, s{64+2*k}, {k}")
        e.A(f"v_writelane_b32 v{V_ST}, s60, 62"); e.A(f"v_writelane_b32 v{V_ST}, s62, 63")
        e.A("s_waitcnt lgkmcnt(0)")
        e.A(f"s_lshl_b32 s{S_T0}, s2, 2")
        e.A(f"s_add_u32 s{S_T0}, s{S_T0}, s{S_WAVE}")
        e.A(f"s_lshl_b32 s{S_T0}, s{S_T0}, 8")
        e.A(f"s_add_u32 s{S_WS}, s{S_WS}, s{S_T0}")
        e.A(f"s_addc_u32 s{S_WS+1}, s{S_WS+1}, 0")
        e.A("v_lshlrev_b32 v1, 2, v0")
        e.A(f"global_store_dword v1, v{V_ST}, s[{S_WS}:{S_WS+1}]")
        print("lstamps:", e.nl, e.lnames)
    e.raw("L_end:")
    e.A("s_endpgm")
    e.raw("L_code_end:")
    e.raw('.section .rodata,"a"')
    e.raw(".p2align 6")
    e.raw(".amdhsa_kernel standalone__fft_conv__vision_kernel")
    for l in ("next_free_vgpr 512", "next_free_sgpr 100", "accum_offset 256", "group_segment_fixed_size 0", "kernarg_size 40",
              "user_sgpr_count 2", "user_sgpr_kernarg_segment_ptr 1", "system_sgpr_workgroup_id_x 1"):
        e.raw("  .amdhsa_" + l)
    e.raw(".end_amdhsa_kernel")
    out = []
    for l in e.L:
        if " lds" in l and "buffer_load" in l and out and re.search(r"\bm0,", out[-1]): out.append("  s_nop 0")
        out.append(l)
    e.L = out
    import subprocess, tempfile, os
    size = 0x7fff
    for _ in range(2):
        txt = "\n".join(l.replace("CODE_BYTES", str(size)) for l in e.L) + "\n"
        with tempfile.TemporaryDirectory() as td:
            open(td + "/k.s", "w").write(txt)
            subprocess.run(["clang", "-x", "assembler", "-target", "amdgcn-amd-amdhsa", "-mcpu=gfx950", "-c", td + "/k.s", "-o", td + "/k.o"], check=True)
            dis = subprocess.run(["llvm-objdump", "-d", "--mcpu=gfx950", td + "/k.o"], capture_output=True, text=True).stdout
        sym = {}
        for l in dis.splitlines():
            m_ = re.match(r"([0-9a-f]{16}) <(.*)>:", l)
            if m_: sym[m_.group(2)] = int(m_.group(1), 16)
        size = sym["L_end"] + 4 - sym["standalone__fft_conv__vision_kernel"]
        assert size - 4 > sym["L_pc"] - sym["standalone__fft_conv__vision_kernel"] if "L_pc" in sym else True
    e.code_size = size
    e.L = [l.replace("CODE_BYTES", str(size)) for l in e.L]
    open(cfg.name, "w").write("\n".join(e.L) + "\n")
    return e

if __name__ == "__main__":
    ap = argparse.ArgumentParser()
    ap.add_argument("-o", default=Cfg.name)
    ap.add_argument("--lst", action="store_true")
    ap.add_argument("--noloop", action="store_true")
    ap.add_argument("--store", default="")
    ap.add_argument("--look", type=int, default=12)
    ap.add_argument("--early", type=int, default=8)
    ap.add_argument("--wearly", type=int, default=26)
    ap.add_argument("--nocodepf", action="store_true")
    ap.add_argument("--spin", default="")
    ap.add_argument("--codepf2", action="store_true")
    ap.add_argument("--codepf3", action="store_true")
    ap.add_argument("--codepf_all", action="store_true")
    ap.add_argument("--stepst", action="store_true")
    ap.add_argument("--dma_pos", type=int, default=18)
    ap.add_argument("--out_pos", type=int, default=0)
    ap.add_argument("--diag", action="store_true")
    ap.add_argument("--groups", default=Cfg.groups)
    ap.add_argument("--nprol", type=int, default=4)
    ap.add_argument("--direct", default="4,5")
    ap.add_argument("--pf_rows", default="6,2")
    ap.add_argument("--stream", default="4,5,6,7")
    ap.add_argument("--deferred", default="3,8,2,9,1,10,0,11")
    ap.add_argument("--def_plan", default=Cfg.def_plan)
    ap.add_argument("--pfw_split", type=int, default=15)
    ap.add_argument("--pfwb_after", type=int, default=3)
    a = ap.parse_args()
    cfg = Cfg()
    cfg.name = a.o; cfg.lst = a.lst; cfg.loop = not a.noloop; cfg.store_flags = a.store
    cfg.direct = [int(x) for x in a.direct.split(",")]; cfg.pf_rows = tuple(int(x) for x in a.pf_rows.split(","))
    cfg.stream = [int(x) for x in a.stream.split(",")]; cfg.deferred = [int(x) for x in a.deferred.split(",")]; cfg.def_plan = a.def_plan
    cfg.groups = a.groups; cfg.nprol = a.nprol; cfg.pfw_split = a.pfw_split; cfg.pfwb_after = a.pfwb_after; cfg.diag = a.diag; cfg.dma_pos = a.dma_pos; cfg.out_pos = a.out_pos; cfg.stepst = a.stepst; cfg.codepf2 = a.codepf2; cfg.codepf_all = a.codepf_all; cfg.codepf3 = a.codepf3; cfg.spin = (lambda p: (p[0], p[1], int(p[2])) )(a.spin.split("/")) if a.spin else None
    if cfg.spin: cfg.lst = True
    cfg.look = a.look; cfg.early = a.early; cfg.wearly = a.wearly; cfg.codepf = not a.nocodepf
    e = build(cfg)
    print("lines", len(e.L), "LDS", LDS_BYTES, "code", e.code_size)
```

```python
import sys, argparse, re

class Cfg:
    nrows = 19
    RA = 8
    store_flags = ""
    lst = False
    loop = True
    look = 12
    early = 8
    wearly = 26
    codepf = True
    endwait = False
    spin = None
    codepf2 = False
    codepf3 = False
    codepf_all = False
    stepst = False
    dma_pos = 18
    out_pos = 0
    diag = False
    groups = "x4,x5,w0|x6,x7|w1|w2"
    direct = [4, 5]
    pf_rows = (6, 2)
    stream = [4, 5, 6, 7]
    deferred = [3, 8, 2, 9, 1, 10, 0, 11]
    nprol = 4
    pfw_split = 15
    pfwb_after = 3
    def_plan = "11:3,8|12:2,9|14:1,10"
    align12 = True
    name = "standalone__fft_conv__vision.s"

H = W = 224
ROWB = W * 192
XBYTES = H * ROWB
WBYTES = 460800
SLOTB = 7168
NA = 12
XR = NA * SLOTB
X2 = 10 * SLOTB
WS = XR + 4 * SLOTB
WSLOT = 10240
NWS = 4
DUMMY = WS + NWS * WSLOT
LDS_BYTES = DUMMY + 1024

S_X, S_Wt, S_O = 8, 12, 16
S_WS = 20
S_WAVE = 22
S_X0, S_X1, S_XM = 23, 24, 25
S_XBASE, S_XROW, S_OROW, S_CNT = 26, 27, 28, 29
S_T0, S_T1, S_T2, S_T3 = 30, 31, 32, 33
S_WM, S_G, S_W0, S_WM2, S_WMM = 34, 35, 36, 37, 38
S_T4, S_T5 = 39, 40
S_PC = 44
S_CPO = 48
S_LAST = 41
V_XAA = 2; V_XAR = 7
V_XD0, V_XD1 = 12, 13
V_WD, V_TR, V_OUT, V_PF = 14, 15, 16, 17
V_T = 18
V_O = 24
V_ST = 28
V_ACC = 32
V_B = 48
V_ACCA = 168
V_PFX = 200
V_PFD = 202
V_PF2 = 206
V_CPF = 207
V_WT = 212

def wreg(kh, f, lo=None):
    i = kh * 15 + f
    if i < 64: base, t = 4 * i, "a"
    else: base, t = V_WT + 4 * (i - 64), "v"
    if lo is None: return f"{t}[{base}:{base+3}]"
    return f"{t}[{base+lo}:{base+lo+1}]"
def breg(row, f):
    b = V_B + (row % 2) * 60 + 4 * f
    return f"v[{b}:{b+3}]"
def acc(o): return V_ACC + 4 * (o % 4)
def xlds(row): return row * SLOTB if row < NA else XR + ((row - NA) % 4) * SLOTB
def xslot(row):
    a = xlds(row)
    return ("A", a) if a < X2 else ("R", a - X2)

class Em:
    def __init__(self, cfg):
        self.cfg = cfg; self.L = []
        self.vm = []; self.vm_done = 0
        self.lg = []; self.lg_done = 0; self.lg_pos = []
        self.pos = 0
        self.nl = 0; self.lnames = []
    def A(self, s): self.L.append("  " + s)
    def raw(self, s): self.L.append(s)
    def mfma(self, s): self.A(s); self.pos += 1
    def vmem(self, s, tag): self.A(s); self.vm.append(tag)
    def lds(self, s, tag): self.A(s); self.lg.append(tag); self.lg_pos.append(self.pos)
    def vm_need(self, tags):
        idx = -1
        for tag in tags:
            assert tag in self.vm, (tag, self.vm)
            idx = max(idx, max(i for i, t in enumerate(self.vm) if t == tag))
        return idx
    def wait_vm(self, *tags, force=False):
        idx = self.vm_need(tags)
        if idx < self.vm_done and not force: return False
        n = min(len(self.vm) - 1 - idx, 63)
        self.A(f"s_waitcnt vmcnt({n})"); self.vm_done = max(self.vm_done, len(self.vm) - n)
        return True
    def wait_lg(self, *tags, age=None):
        idx = -1
        for tag in tags:
            assert tag in self.lg, tag
            idx = max(idx, max(i for i, t in enumerate(self.lg) if t == tag))
        if idx < self.lg_done: return False
        if age is not None:
            for i in range(idx + 1, len(self.lg)):
                if self.pos - self.lg_pos[i] >= age: idx = i
        n = min(len(self.lg) - 1 - idx, 15)
        self.A(f"s_waitcnt lgkmcnt({n})"); self.lg_done = len(self.lg) - n
        return True
    def lstamp(self, name=""):
        if not self.cfg.lst: return
        if self.cfg.stepst and not (name.startswith("step") or name in ("start", "rampend", "mfmaend", "drain")): return
        k = self.nl
        if k >= 18: return
        self.A(f"s_memtime s[{64+2*k}:{65+2*k}]")
        self.lnames.append(name); self.nl = k + 1

def x_ops(e, row, seq=False):
    base = xlds(row); ops = []
    I = lambda s: (lambda: e.A(s))
    if not seq:
        ops += [I(f"s_add_u32 s{S_T0}, s{S_XBASE}, {row*ROWB}"), I(f"s_sub_u32 s{S_T1}, s{S_T0}, {XBYTES}"),
                I(f"s_min_u32 s{S_XROW}, s{S_T0}, s{S_T1}")]
    ops += [I(f"s_add_u32 m0, s{S_X0}, {base}"),
            lambda: e.vmem(f"buffer_load_dwordx4 v{V_XD0}, s[{S_X}:{S_X+3}], s{S_XROW} offen lds", f"x{row}")]
    if base: ops += [I(f"s_and_b32 s{S_T2}, s{S_XM}, {base}"), I(f"s_add_u32 m0, s{S_X1}, s{S_T2}")]
    else: ops += [I(f"s_mov_b32 m0, s{S_X1}")]
    ops += [lambda: e.vmem(f"buffer_load_dwordx4 v{V_XD1}, s[{S_X}:{S_X+3}], s{S_XROW} offen lds", f"x{row}")]
    if seq:
        ops += [I(f"s_add_u32 s{S_XROW}, s{S_XROW}, {ROWB}"), I(f"s_sub_u32 s{S_T1}, s{S_XROW}, {XBYTES}"),
                I(f"s_min_u32 s{S_XROW}, s{S_XROW}, s{S_T1}")]
    return ops
def w_ops(e, s):
    ops = []
    I = lambda t: (lambda: e.A(t))
    for m in range(3):
        off = (s % NWS) * WSLOT
        ops.append(I(f"s_mov_b32 s{S_T3}, {(32*s + 960*m)*192}"))
        if m < 2: ops.append(I(f"s_add_u32 m0, s{S_WM}, {off + 4*m*1024}"))
        elif off: ops += [I(f"s_and_b32 s{S_T4}, s{S_WMM}, {off}"), I(f"s_add_u32 m0, s{S_WM2}, s{S_T4}")]
        else: ops.append(I(f"s_mov_b32 m0, s{S_WM2}"))
        ops.append(lambda m=m: e.vmem(f"buffer_load_dwordx4 v{V_WD}, s[{S_Wt}:{S_Wt+3}], s{S_T3} offen lds", f"w{s}"))
    return ops
def emit_now(e, ops):
    for op in ops:
        n0 = len(e.L)
        prev = e.L[-1]
        tmp = len(e.L); op()
        if " lds" in e.L[-1] and re.search(r"\bm0,", e.L[tmp-1]):
            e.L.insert(tmp, "  s_nop 0")

def prologue(e):
    c = e.cfg; A = e.A
    t0, t1, t2, t3 = V_T, V_T+1, V_T+2, V_T+3
    A("s_cmp_ge_u32 s2, 252")
    A("s_cbranch_scc1 L_end")
    A("s_load_dwordx4 s[4:7], s[0:1], 0")
    A(f"s_load_dwordx2 s[{S_O}:{S_O+1}], s[0:1], 16")
    e.lstamp("start")
    if c.lst: A("s_memrealtime s[60:61]")
    A("v_lshrrev_b32 v1, 6, v0")
    A("v_and_b32 v0, 63, v0")
    A(f"v_readfirstlane_b32 s{S_WAVE}, v1")
    A(f"s_lshr_b32 s{S_T0}, s2, 3")
    A(f"s_and_b32 s{S_T1}, s2, 7")
    A(f"s_mul_i32 s{S_T2}, s{S_T0}, 86")
    A(f"s_lshl_b32 s{S_T4}, s{S_T0}, 2")
    A(f"s_lshr_b32 s{S_T2}, s{S_T2}, 8")
    A(f"s_mul_i32 s{S_T1}, s{S_T1}, 10")
    A(f"s_mul_i32 s{S_T3}, s{S_T2}, 3")
    A(f"s_add_u32 s{S_T1}, s{S_T1}, s{S_T2}")
    A(f"s_sub_u32 s{S_G}, s{S_T0}, s{S_T3}")
    A("s_cmp_lt_u32 s2, 240")
    A("s_cbranch_scc1 L_map_done")
    A(f"s_sub_u32 s{S_T0}, s2, 240")
    A(f"s_mul_i32 s{S_T2}, s{S_T0}, 86")
    A(f"s_lshr_b32 s{S_T2}, s{S_T2}, 8")
    A(f"s_mul_i32 s{S_T3}, s{S_T2}, 3")
    A(f"s_sub_u32 s{S_G}, s{S_T0}, s{S_T3}")
    A(f"s_add_u32 s{S_T1}, s{S_T2}, 80")
    e.raw("L_map_done:")
    A(f"s_add_u32 s{S_T4}, s{S_T4}, s{S_WAVE}")
    A(f"s_mul_i32 s{S_T2}, s{S_T1}, 9363")
    A(f"s_lshl_b32 s{S_T5}, s{S_WAVE}, 6")
    A(f"s_lshr_b32 s{S_T2}, s{S_T2}, 16")
    A(f"v_add_u32 v{t0}, s{S_T5}, v0")
    A(f"s_mul_i32 s{S_T3}, s{S_T2}, 7")
    A(f"s_mul_i32 s{S_LAST}, s{S_T2}, 86")
    A(f"s_sub_u32 s{S_T3}, s{S_T1}, s{S_T3}")
    A(f"s_mul_i32 s{S_T0}, s{S_T2}, {56*21846}")
    A(f"s_lshl_b32 s{S_W0}, s{S_T3}, 5")
    A(f"s_lshr_b32 s{S_T0}, s{S_T0}, 16")
    A(f"s_mul_i32 s{S_OROW}, s{S_T0}, {ROWB}")
    A(f"s_add_u32 s{S_XBASE}, s{S_OROW}, {(H-4)*ROWB}")
    A(f"s_lshr_b32 s{S_LAST}, s{S_LAST}, 8")
    A(f"s_mul_i32 s{S_LAST}, s{S_LAST}, 3")
    A(f"s_cmp_eq_u32 s{S_LAST}, s{S_T2}")
    A(f"s_cselect_b32 s{S_LAST}, 0x40000000, 0")
    A(f"s_add_u32 s{S_T0}, s{S_W0}, {W-4}")
    for pi in range(2):
        dst = V_XD0 if pi == 0 else V_XD1
        if pi: A(f"v_add_u32 v{t0}, 256, v{t0}")
        A(f"v_mul_u32_u24 v{t1}, 5462, v{t0}")
        A(f"v_lshrrev_b32 v{t1}, 16, v{t1}")
        A(f"v_mul_u32_u24 v{t2}, 12, v{t1}")
        A(f"v_lshrrev_b32 v{t3}, 1, v{t1}")
        A(f"v_sub_u32 v{t2}, v{t0}, v{t2}")
        A(f"v_and_b32 v{t3}, 2, v{t3}")
        A(f"v_add_u32 v{t1}, s{S_T0}, v{t1}")
        A(f"v_xor_b32 v{t2}, v{t2}, v{t3}")
        A(f"v_subrev_u32 v{t3}, {W}, v{t1}")
        A(f"v_min_u32 v{t1}, v{t1}, v{t3}")
        if pi: A(f"v_cmp_gt_u32 vcc, 432, v{t0}")
        A(f"v_mul_u32_u24 v{t1}, 192, v{t1}")
        A(f"v_lshl_add_u32 v{dst}, v{t2}, 4, v{t1}")
        if pi:
            A(f"v_mov_b32 v{t1}, 0x40000000")
            A(f"v_cndmask_b32 v{dst}, v{t1}, v{dst}, vcc")
    A(f"s_lshl_b32 s{S_X0}, s{S_WAVE}, 10")
    A(f"s_add_u32 s{S_X1}, s{S_X0}, 4096")
    A(f"s_cmp_eq_u32 s{S_WAVE}, 3")
    A(f"s_cselect_b32 s{S_X1}, {DUMMY}, s{S_X1}")
    A(f"s_cselect_b32 s{S_XM}, 0, -1")
    A(f"s_mov_b32 s{S_X+2}, {XBYTES}"); A(f"s_mov_b32 s{S_X+3}, 0x20000")
    A(f"s_mov_b32 s{S_Wt+2}, {WBYTES}"); A(f"s_mov_b32 s{S_Wt+3}, 0x20000")
    A("s_waitcnt lgkmcnt(0)")
    A(f"s_mov_b32 s{S_X}, s4"); A(f"s_mov_b32 s{S_X+1}, s5")
    A(f"s_mov_b32 s{S_Wt}, s6"); A(f"s_mov_b32 s{S_Wt+1}, s7")
    e.lstamp("karg")
    items = [it for g in c.groups.split("|") for it in g.split(",")]
    assert items[:len(c.direct)] == [f"x{r}" for r in c.direct]
    for r in c.direct: emit_now(e, x_ops(e, r))
    r0, nr = c.pf_rows
    A(f"v_mov_b32 v{V_T+5}, 0x40000000")
    if nr:
        nl = -(-nr * 18 // 4)
        A(f"s_mul_i32 s{S_T0}, s{S_WAVE}, {nl}")
        A(f"v_add_u32 v{t0}, s{S_T0}, v0")
        A(f"v_mul_u32_u24 v{t1}, 3641, v{t0}")
        A(f"s_mul_i32 s{S_T0}, s{S_G}, 18")
        A(f"v_lshrrev_b32 v{t1}, 16, v{t1}")
        A(f"v_mul_u32_u24 v{t2}, 18, v{t1}")
        A(f"v_sub_u32 v{t2}, v{t0}, v{t2}")
        A(f"v_add_u32 v{t2}, s{S_T0}, v{t2}")
        A(f"s_add_u32 s{S_T0}, s{S_W0}, {W-4}")
        A(f"v_lshlrev_b32 v{t2}, 7, v{t2}")
        A(f"s_mul_i32 s{S_T0}, s{S_T0}, 192")
        A(f"s_mov_b32 s{S_T1}, {ROWB}")
        A(f"v_add_u32 v{t2}, s{S_T0}, v{t2}")
        A(f"v_subrev_u32 v{t3}, {ROWB}, v{t2}")
        A(f"v_min_u32 v{t2}, v{t2}, v{t3}")
        A(f"v_add_u32 v{t3}, {r0}, v{t1}")
        A(f"v_mul_lo_u32 v{t3}, v{t3}, s{S_T1}")
        A(f"s_mov_b32 s{S_T2}, {XBYTES}")
        A(f"v_cmp_gt_u32 vcc, {nr*18}, v{t0}")
        A(f"v_add_u32 v{t3}, s{S_XBASE}, v{t3}")
        A(f"v_subrev_u32 v{t1}, s{S_T2}, v{t3}")
        A(f"v_min_u32 v{t3}, v{t3}, v{t1}")
        A(f"v_add_u32 v{t3}, v{t3}, v{t2}")
        A(f"v_cndmask_b32 v{t3}, v{V_T+5}, v{t3}, vcc")
        A(f"v_cmp_gt_u32 vcc, {nl}, v0")
        A("s_nop 1")
        A(f"v_cndmask_b32 v{V_PFX}, v{V_T+5}, v{t3}, vcc")
        e.vmem(f"buffer_load_dword v{V_PFD}, v{V_PFX}, s[{S_X}:{S_X+3}], 0 offen", "pf")
    def wpf(dst, s0, s1):
        per = (s1 - s0) * 48; tot = 5 * per
        nl = -(-tot // 128)
        if s0 == 0 and s1 == 15:
            A(f"s_mul_i32 s{S_T0}, s{S_T4}, {nl}")
            A(f"v_cmp_gt_u32 vcc, {nl}, v0")
            A(f"v_add_u32 v{t0}, s{S_T0}, v0")
            A(f"v_lshlrev_b32 v{t0}, 7, v{t0}")
            A(f"v_cndmask_b32 v{dst}, v{V_T+5}, v{t0}, vcc")
            return
        A(f"s_mul_i32 s{S_T0}, s{S_T4}, {nl}")
        A(f"v_add_u32 v{t0}, s{S_T0}, v0")
        sh = next(b for b in range(12, 23) if all((n_ * (-(-(1 << b) // per))) >> b == n_ // per for n_ in range(128 * nl + 64)))
        mg = -(-(1 << sh) // per)
        A(f"s_mov_b32 s{S_T1}, {mg}")
        A(f"v_mul_lo_u32 v{t1}, v{t0}, s{S_T1}")
        A(f"v_lshrrev_b32 v{t1}, {sh}, v{t1}")
        A(f"v_mul_u32_u24 v{t2}, {per}, v{t1}")
        A(f"v_sub_u32 v{t2}, v{t0}, v{t2}")
        A(f"v_lshlrev_b32 v{t2}, 7, v{t2}")
        A(f"v_mul_u32_u24 v{t1}, {92160}, v{t1}")
        A(f"v_cmp_gt_u32 vcc, {nl}, v0")
        A(f"v_add_u32 v{t2}, v{t2}, v{t1}")
        if s0: A(f"v_add_u32 v{t2}, {s0*6144}, v{t2}")
        else: A("s_nop 0")
        A(f"v_cndmask_b32 v{dst}, v{V_T+5}, v{t2}, vcc")
    wpf(V_PF, 0, c.pfw_split)
    e.vmem(f"buffer_load_dword v{V_PFD+1}, v{V_PF}, s[{S_Wt}:{S_Wt+3}], 0 offen", "pf")
    if c.codepf:
        A(f"s_getpc_b64 s[{S_PC}:{S_PC+1}]")
        e.raw("L_pc:")
        A(f"s_sub_u32 s{S_PC}, s{S_PC}, L_pc-standalone__fft_conv__vision_kernel")
        A(f"s_subb_u32 s{S_PC+1}, s{S_PC+1}, 0")
        A(f"s_and_b32 s{S_PC+1}, s{S_PC+1}, 0xffff")
        A(f"s_mov_b32 s{S_PC+2}, CODE_BYTES")
        A(f"s_mov_b32 s{S_PC+3}, 0x20000")
        if c.codepf_all:
            A(f"v_lshlrev_b32 v{V_CPF}, 7, v0")
            A(f"s_lshl_b32 s{S_CPO}, s{S_WAVE}, 13")
        else:
            A(f"v_cmp_gt_u32 vcc, 2, v0")
            A(f"v_lshlrev_b32 v{t0}, 7, v0")
            A(f"s_lshl_b32 s{S_CPO}, s{S_T4}, 8")
            A(f"v_cndmask_b32 v{V_CPF}, v{V_T+5}, v{t0}, vcc")
        e.vmem(f"buffer_load_dword v{V_PFD+3}, v{V_CPF}, s[{S_PC}:{S_PC+3}], s{S_CPO} offen", "pf")
    e.lstamp("pf")
    A(f"s_add_u32 s{S_WM}, s{S_X0}, {WS}")
    A(f"s_add_u32 s{S_WM2}, s{S_WM}, 8192")
    A(f"s_cmp_ge_u32 s{S_WAVE}, 2")
    A(f"s_cselect_b32 s{S_WM2}, {DUMMY}, s{S_WM2}")
    A(f"s_cselect_b32 s{S_WMM}, 0, -1")
    A(f"v_lshrrev_b32 v{t0}, 4, v0")
    A(f"v_bfe_u32 v{t1}, v0, 2, 2")
    A(f"v_lshl_add_u32 v{t1}, v{t0}, 3, v{t1}")
    A(f"v_and_b32 v{t0}, 1, v{t0}")
    A(f"v_mul_u32_u24 v{t1}, 192, v{t1}")
    A(f"v_lshlrev_b32 v{t0}, 1, v{t0}")
    A(f"v_and_b32 v{t2}, 3, v0")
    A(f"s_lshr_b32 s{S_T0}, s{S_WAVE}, 1")
    A(f"v_xor_b32 v{t2}, v{t2}, v{t0}")
    A(f"s_mul_i32 s{S_T0}, s{S_T0}, {480*192}")
    A(f"v_lshl_add_u32 v{t1}, v{t2}, 4, v{t1}")
    A(f"s_and_b32 s{S_T1}, s{S_WAVE}, 1")
    A(f"s_mul_i32 s{S_T1}, s{S_T1}, {4*192}")
    A(f"s_add_u32 s{S_T0}, s{S_T0}, s{S_T1}")
    A(f"s_lshl_b32 s{S_T1}, s{S_G}, 6")
    A(f"s_add_u32 s{S_T0}, s{S_T0}, s{S_T1}")
    A(f"v_add_u32 v{V_WD}, s{S_T0}, v{t1}")
    for it in items[len(c.direct):c.nprol]:
        emit_now(e, x_ops(e, int(it[1:])) if it[0] == "x" else w_ops(e, int(it[1:])))
    if c.diag:
        e.lstamp("issued")
        nv = len(e.vm)
        seen = []
        for idx_, tg in enumerate(e.vm):
            if idx_ + 1 < nv and e.vm[idx_ + 1] == tg and tg != "pf": continue
            A(f"s_waitcnt vmcnt({nv - 1 - idx_})"); e.lstamp(tg + "_back")
    if c.pfw_split < 15: wpf(V_PF2, c.pfw_split, 15)
    A(f"s_mov_b32 s{S_O+2}, {XBYTES}")
    A(f"s_mov_b32 s{S_O+3}, 0x20000")
    A(f"v_and_b32 v{V_T}, 15, v0")
    A(f"v_lshrrev_b32 v{V_T+1}, 4, v0")
    A(f"s_lshr_b32 s{S_T0}, s{S_WAVE}, 1")
    A(f"s_lshl_b32 s{S_T0}, s{S_T0}, 4")
    A(f"v_add_u32 v{V_T+4}, s{S_T0}, v{V_T}")
    for kw in range(5):
        A(f"v_add_u32 v{V_T+2}, {4-kw}, v{V_T+4}")
        A(f"v_lshrrev_b32 v{V_T+3}, 1, v{V_T+2}")
        A(f"v_and_b32 v{V_T+3}, 2, v{V_T+3}")
        A(f"v_xor_b32 v{V_T+3}, v{V_T+3}, v{V_T+1}")
        A(f"v_mul_u32_u24 v{V_T+2}, 192, v{V_T+2}")
        A(f"v_lshl_add_u32 v{V_XAA+kw}, v{V_T+3}, 4, v{V_T+2}")
        A(f"v_add_u32 v{V_XAR+kw}, {X2}, v{V_XAA+kw}")
    A(f"s_and_b32 s{S_T1}, s{S_WAVE}, 1")
    A(f"v_and_b32 v{V_T+2}, 1, v{V_T+1}")
    A(f"v_xor_b32 v{V_T+2}, s{S_T1}, v{V_T+2}")
    A(f"v_lshlrev_b32 v{V_T+2}, 5, v{V_T+2}")
    A(f"v_lshrrev_b32 v{V_T+3}, 2, v0")
    A(f"v_lshl_add_u32 v{V_T+2}, v{V_T+3}, 6, v{V_T+2}")
    A(f"v_and_b32 v{V_T+3}, 3, v0")
    A(f"v_lshl_add_u32 v{V_T+2}, v{V_T+3}, 3, v{V_T+2}")
    A(f"v_add_u32 v{V_TR}, {WS}, v{V_T+2}")
    A(f"v_add_u32 v{V_T+2}, s{S_W0}, v{V_T+4}")
    A(f"v_mul_u32_u24 v{V_T+2}, 192, v{V_T+2}")
    A(f"v_lshl_add_u32 v{V_T+2}, v{V_T+1}, 3, v{V_T+2}")
    A(f"s_lshl_b32 s{S_T0}, s{S_G}, 1")
    A(f"s_add_u32 s{S_T0}, s{S_T0}, s{S_T1}")
    A(f"s_lshl_b32 s{S_T0}, s{S_T0}, 5")
    A(f"v_add_u32 v{V_OUT}, s{S_T0}, v{V_T+2}")

def b_read_to(e, row, f, reg, tag):
    kw, cc = divmod(f, 3)
    kind, off = xslot(row)
    base = V_XAA if kind == "A" else V_XAR
    e.lds(f"ds_read_b128 {reg}, v{base+kw} offset:{off + cc*64}", tag)
def tr_read(e, s, kh, h):
    e.lds(f"ds_read_b64_tr_b16 {wreg(kh, s, 2*h)}, v{V_TR} offset:{(s % NWS)*WSLOT + (2*kh + h)*1024}", f"t{s}_{kh}")
def out_ops(e, a, pair, o):
    vo = V_O + 2 * pair
    pre = [lambda: e.A(f"s_add_u32 s{S_OROW}, s{S_OROW}, s{S_LAST}")] if o == e.cfg.nrows - 1 else []
    return pre + [lambda: e.A(f"v_cvt_pk_bf16_f32 v{vo}, v{a}, v{a+1}"),
            lambda: e.A(f"v_cvt_pk_bf16_f32 v{vo+1}, v{a+2}, v{a+3}"),
            lambda: e.vmem(f"buffer_store_dwordx2 v[{vo}:{vo+1}], v{V_OUT}, s[{S_O}:{S_O+3}], s{S_OROW} offen {e.cfg.store_flags}".rstrip(), f"o{o}"),
            lambda: e.A(f"s_add_u32 s{S_OROW}, s{S_OROW}, {ROWB}")]

class Gaps:
    def __init__(self, M, cap=1):
        self.M = M; self.g = [[] for _ in range(M)]; self.cap = cap
    def put(self, p, fn):
        self.g[min(max(p, 0), self.M - 1)].append(fn)
    def seq(self, ops, start, step=1, cap=None):
        cap = self.cap if cap is None else cap
        p = start
        for op in ops:
            while p < self.M - 1 and len(self.g[p]) >= cap: p += 1
            self.put(p, op); p = min(p + step, self.M - 1) if p < self.M - 1 else p
        return p

def block_a(e):
    c = e.cfg; RA = c.RA
    def khs(i): return [kh for kh in range(5) if 0 <= i - 4 + kh < RA]
    stream = list(c.stream)
    groups = [g.split(",") for g in c.groups.split("|")]
    nextw = 1 + max(int(it[1:]) for g in groups for it in g if it[0] == "w")
    groups += [[f"w{s}"] for s in range(nextw, 15)]
    order = []; rows_av = []; s_av = []; sched = set()
    mk_items = {}
    for gi, g in enumerate(groups):
        order.append(("M", gi)); mk_items[gi] = g
        for it in g:
            (rows_av if it[0] == "x" else s_av).append(int(it[1:]))
        for s in sorted(s_av):
            for r in sorted(rows_av, key=lambda r: (-len(khs(r)), r)):
                if (r, s) not in sched: sched.add((r, s)); order.append((r, s))
    assert len(sched) == len(stream) * 15
    w_marker = {int(it[1:]): gi for gi, g in mk_items.items() for it in g if it[0] == "w"}
    row_marker = {int(it[1:]): gi for gi, g in mk_items.items() for it in g if it[0] == "x"}
    nearly = len(c.groups.split("|"))
    mf = []; first = {}; mpos = {}
    for ent in order:
        if ent[0] == "M": mpos[ent[1]] = len(mf)
        else:
            first[ent] = len(mf)
            for kh in khs(ent[0]): mf.append((ent, kh))
    M = len(mf)
    mark_at = {}; prev = 0
    for p in sorted(mpos):
        q = mpos[p]
        if p >= nearly: q = max(prev, mpos[p] - c.wearly)
        elif p >= 1: q = max(prev, mpos[p] - c.early)
        mark_at[p] = q; prev = q
    tasks = []
    pairs = [ent for ent in order if ent[0] != "M"]
    last_use = {}
    for q, (ent, kh) in enumerate(mf): last_use[ent] = q
    for ent in pairs:
        tasks.append(dict(kind="b", ent=ent, ready=mark_at[row_marker[ent[0]]], due=first[ent], done=False))
    for s in range(15):
        for kh in range(5):
            due = min(q for q, (ent, k2) in enumerate(mf) if ent[1] == s and k2 == kh)
            for h in range(2):
                tasks.append(dict(kind="t", s=s, kh=kh, h=h, ready=mark_at[w_marker[s]], due=due, done=False))
    tasks.sort(key=lambda t: (t["due"], 0 if t["kind"] == "t" else 1))
    bslots = [None] * 15; bfree_at = [-1] * 15; bassign = {}
    def issue(t, q):
        if t["kind"] == "t": tr_read(e, t["s"], t["kh"], t["h"])
        else:
            k = min(range(15), key=lambda j: bfree_at[j])
            if bfree_at[k] >= q and bslots[k] is not None: return False
            ent = t["ent"]
            bslots[k] = ent; bfree_at[k] = last_use[ent]; bassign[ent] = k
            reg = V_B + 60 + 4 * k
            b_read_to(e, ent[0], ent[1], f"v[{reg}:{reg+3}]", f"pb{ent[0]}_{ent[1]}")
        t["done"] = True
        return True
    items = [it for g in c.groups.split("|") for it in g.split(",")]
    dplan = {}
    rest = [(it[0], int(it[1:])) for it in items[c.nprol:]]
    issued_w = [int(it[1:]) for it in items if it[0] == "w"]
    dplan[0] = list(rest)
    for s in range(max(issued_w) + 1, min(4, 15)): dplan[0].append(("w", s))
    for s in range(max(max(issued_w) + 1, 4), 15):
        dplan.setdefault(w_marker[s - 3], []).append(("w", s))
    if c.pfw_split < 15: dplan.setdefault(w_marker[c.pfwb_after], []).append(("pfw", 0))
    planned = []
    for part in c.def_plan.split("|"):
        wm, rows_ = part.split(":")
        rows_ = [int(r) for r in rows_.split(",")]
        dplan.setdefault(w_marker[int(wm)], []).extend([("x", r) for r in rows_]); planned += rows_
    late_rows = [r for r in c.deferred if r not in planned] + [12, 13]
    def ops_of(kind, a):
        if kind == "x": return x_ops(e, a)
        if kind == "w": return w_ops(e, a)
        return [lambda: e.vmem(f"buffer_load_dword v{V_PFD+2}, v{V_PF2}, s[{S_Wt}:{S_Wt+3}], 0 offen", "pf")]
    dq = []
    marks_sorted = sorted(mark_at)
    for p in marks_sorted:
        ops = []
        for kind, a in dplan.get(p, []): ops += ops_of(kind, a)
        if not ops: continue
        lo = mark_at[p]; hi = mark_at[p+1] if p + 1 in mark_at else M - 2
        span = 0 if p < nearly - 1 else max(hi - lo - len(ops) // 2, 0)
        for k, op in enumerate(ops): dq.append((lo + (k * span) // len(ops), op))
    dq.reverse()
    last_dma = [-10, False]
    def run_dma_op(force=False):
        _, op = dq.pop()
        n0 = len(e.L); op()
        if " lds" in e.L[-1] and re.search(r"\bm0,", e.L[n0-1]): e.L.insert(n0, "  s_nop 0")
    need = {p: list(mk_items[p]) for p in marks_sorted}
    prevw = {}
    for p in marks_sorted:
        ws = [int(it[1:]) for it in mk_items[p] if it[0] == "w"]
        if ws and ws[0] >= 1: prevw[p] = ws[0] - 1
    cnt = lambda tg: 3 if tg[0] == "w" else 2
    inited = set()
    pre = {}
    for p in marks_sorted:
        if p >= nearly:
            pre.setdefault(max(mark_at[p] - 2, mark_at[p-1] + 1), []).append(("vm", p))
            pre.setdefault(max(mark_at[p] - 1, mark_at[p-1] + 1), []).append(("lg", p))
    def do_vm(p):
        while not all(e.vm.count(tg) == cnt(tg) for tg in need[p]): run_dma_op()
        e.wait_vm(*need[p])
    def do_lg(p, q):
        if p not in prevw: return
        sp = prevw[p]
        for t in tasks:
            if t["kind"] == "t" and t["s"] == sp and not t["done"]: issue(t, q)
        idxs = [i_ for i_, tg in enumerate(e.lg) if tg.startswith(f"t{sp}_")]
        e.wait_lg(e.lg[max(idxs)])
    for q in range(M):
        for kind, p in pre.get(q, []):
            if mark_at[p] > q:
                (do_vm(p) if kind == "vm" else do_lg(p, q))
        for p in marks_sorted:
            if mark_at[p] == q:
                do_lg(p, q); do_vm(p)
                e.A("s_barrier")
                if p in (0, nearly - 1, w_marker[4], w_marker[9], w_marker[14]): e.lstamp(f"M{p}:" + ",".join(mk_items[p]))
        ent, kh = mf[q]
        late = [t for t in tasks if not t["done"] and t["due"] <= q]
        if late:
            for t in late:
                assert t["ready"] <= q, (t, q)
                ok = issue(t, q); assert ok
            for t in tasks:
                if t["done"] or t["ready"] > q: continue
                if len(e.lg) - e.lg_done >= 13: break
                if t["kind"] == "b" and t["due"] - q > c.look: continue
                issue(t, q)
        n0 = len(e.L)
        e.wait_lg(f"t{ent[1]}_{kh}", f"pb{ent[0]}_{ent[1]}", age=5)
        o = ent[0] - 4 + kh; a = V_ACCA + 4 * o
        src = f"v[{a}:{a+3}]" if o in inited else "0"
        inited.add(o)
        reg = V_B + 60 + 4 * bassign[ent]
        e.mfma(f"v_mfma_f32_16x16x32_bf16 v[{a}:{a+3}], {wreg(kh, ent[1])}, v[{reg}:{reg+3}], {src}")
        budget = 2
        early_phase = q < mark_at[nearly - 1]
        if early_phase: budget = 4
        def try_lds():
            for t in tasks:
                if t["done"] or t["ready"] > q: continue
                if t["kind"] == "b" and t["due"] - q > c.look: continue
                if len(e.lg) - e.lg_done >= 14: return False
                if issue(t, q + 1): return True
            return False
        def try_dma():
            if dq and dq[-1][0] <= q: run_dma_op(); return True
            return False
        turn = [try_lds, try_dma]
        k = 0
        while budget > 0:
            if turn[k % 2]() or turn[(k + 1) % 2](): budget -= 1; k += 1
            else: break
    while dq: run_dma_op()
    if c.codepf2: e.vmem(f"buffer_load_dword v{V_PFD+3}, v{V_CPF}, s[{S_PC}:{S_PC+3}], s{S_CPO} offen", "pf")
    e.lstamp("streamend")
    deferred = list(c.deferred)
    seq = deferred + [RA]
    par = len(deferred) % 2
    def setreg(k, f):
        b = V_B + ((k + par) % 2) * 60 + 4 * f
        return f"v[{b}:{b+3}]"
    vis = {}
    k0 = 0
    if par: vis[0] = [deferred[0]]; k0 = 1
    for k_ in range(k0, len(deferred), 2): vis[k_] = deferred[k_:k_+2]
    e.wait_vm(*[f"x{r_}" for r_ in vis[0]]); e.A("s_barrier")
    for f in range(15): b_read_to(e, seq[0], f, setreg(0, f), f"d0_{f}")
    for k, r in enumerate(deferred):
        mfs = []
        for kh in khs(r):
            o = r - 4 + kh; a = V_ACCA + 4 * o
            for f in range(15):
                src = f"v[{a}:{a+3}]" if o in inited else "0"
                inited.add(o)
                mfs.append((f, f"v_mfma_f32_16x16x32_bf16 v[{a}:{a+3}], {wreg(kh, f)}, {setreg(k, f)}, {src}"))
        Mk = len(mfs); nxt = seq[k + 1]
        G = Gaps(Mk)
        if (k + 1) in vis:
            e.wait_vm(*[f"x{r_}" for r_ in vis[k+1]]); e.A("s_barrier")
        span = max(Mk - 6, 15)
        for f in range(15): G.put(min((f * span) // 15, Mk - 1), (lambda f=f: b_read_to(e, nxt, f, setreg(k + 1, f), f"d{k+1}_{f}")))
        ntake = 2 if k < 1 else 1
        pos = 2
        for _ in range(ntake):
            if late_rows and Mk >= 30:
                pos = G.seq(x_ops(e, late_rows.pop(0)), pos, step=1, cap=2)
        for p_, (f, s_) in enumerate(mfs):
            if p_ < 15: e.wait_lg(f"d{k}_{f}", age=5)
            e.mfma(s_)
            for fn in G.g[p_]: fn()
    assert not late_rows, late_rows
    e.dtag = f"d{len(deferred)}"
    e.lstamp("defend")

def step(e, i, chains, last_row, extra_out=(), extra_dma=(), prev_tags=None):
    c = e.cfg; RA = c.RA
    mf = []
    for kh in chains:
        o = i - 4 + kh; a = acc(o)
        for f in range(15):
            src = "0" if (kh == 4 and f == 0) else f"v[{a}:{a+3}]"
            mf.append((f, f"v_mfma_f32_16x16x32_bf16 v[{a}:{a+3}], {wreg(kh, f)}, {breg(i, f)}, {src}"))
    M = len(mf)
    G = Gaps(M)
    nxt = i + 1
    nn = i + 2
    did_bar = nxt <= last_row and nxt >= NA
    if did_bar: e.A("s_barrier")
    if nxt <= last_row:
        span = max(M - 9, 15)
        for f in range(15): G.put(min((f * span) // 15, M - 1), (lambda f=f: b_read_to(e, nxt, f, breg(nxt, f), f"b{nxt}_{f}")))
    r4 = i + 4
    if i >= NA and r4 <= last_row: G.seq(x_ops(e, r4, seq=True), c.dma_pos, step=2)
    for r_ in extra_dma: G.seq(x_ops(e, r_), 1, step=1, cap=(2 if M <= 30 else 1))
    tail = []
    if 0 in chains and i - 4 >= RA:
        o = i - 4; endp = chains.index(0) * 15 + 14
        ops = out_ops(e, acc(o), 0, o)
        if endp + 14 < M: G.seq(ops, max(endp + 9, c.out_pos if M == 75 else 0), step=1)
        else: tail = ops
    for k, (a, o) in enumerate(extra_out):
        G.seq(out_ops(e, a, k % 2, o), (k * M) // max(len(extra_out), 1) + 1, step=1, cap=(2 if M <= 45 else 1))
    if nn <= last_row and nn >= NA:
        G.put(M - 3, lambda: e.wait_vm(f"x{nn}", force=(i >= NA)))
    short = M < 45
    for p, (f, s) in enumerate(mf):
        if prev_tags and p < 15: e.wait_lg(prev_tags(f), age=5)
        e.mfma(s)
        for fn in G.g[p]: fn()
        if p == M - 2 and nxt <= last_row and not short: e.wait_lg(f"b{nxt}_14")
    if tail:
        e.A("s_nop 7"); e.A("s_nop 1")
        for fn in tail: fn()
    if nxt <= last_row and short and (nn <= last_row and nn >= NA): e.wait_lg(f"b{nxt}_14")

def build(cfg):
    e = Em(cfg); n = cfg.nrows; RA = cfg.RA
    last_row = n + 3
    e.raw("; direct 5x5 circular convolution; weights stationary in registers; start block overlaps the weight arrival")
    e.raw(f"; @launch grid=(252,1,1) block=(256,1,1) lds={LDS_BYTES}")
    e.raw('.amdgcn_target "amdgcn-amd-amdhsa--gfx950"')
    e.raw(".text")
    e.raw(".globl standalone__fft_conv__vision_kernel")
    if cfg.align12: e.raw(".p2align 12")
    e.raw(".p2align 8")
    e.raw(".type standalone__fft_conv__vision_kernel,@function")
    e.raw("standalone__fft_conv__vision_kernel:")
    prologue(e)
    block_a(e)
    def chains_for(i): return [kh for kh in range(5) if RA <= i - 4 + kh < n]
    flush = {RA + 1: [0, 1], RA + 2: [2, 3, 4], RA + 3: [5, 6, 7]}
    predma = {RA: [14], RA + 1: [15]}
    i = RA
    while i < NA:
        ex = [(V_ACCA + 4 * o, o) for o in flush.get(i, [])]
        pt = (lambda f: f"{e.dtag}_{f}") if i == RA else (lambda f, i=i: f"b{i}_{f}")
        step(e, i, chains_for(i), last_row, ex, predma.get(i, []), pt); i += 1
    if cfg.codepf3: e.vmem(f"buffer_load_dword v{V_PFD+3}, v{V_CPF}, s[{S_PC}:{S_PC+3}], s{S_CPO} offen", "pf")
    e.lstamp("rampend")
    e.A(f"s_add_u32 s{S_T0}, s{S_XBASE}, {(NA+4)*ROWB}")
    e.A(f"s_sub_u32 s{S_T1}, s{S_T0}, {XBYTES}")
    e.A(f"s_min_u32 s{S_XROW}, s{S_T0}, s{S_T1}")
    if not cfg.loop:
        while i <= last_row:
            step(e, i, chains_for(i), last_row, prev_tags=(lambda f, i=i: f"b{i}_{f}")); i += 1
            if i <= last_row: e.lstamp(f"step{i}")
    else:
        steady = list(range(NA, n)); nst = len(steady)
        start = len(e.L); seg = []
        for ii in steady:
            s0 = len(e.L)
            step(e, ii, chains_for(ii), last_row, prev_tags=(lambda f, ii=ii: f"b{ii}_{f}"))
            seg.append(e.L[s0:])
        e.L = e.L[:start]
        for k in range(4, nst):
            a, b = seg[k % 4], seg[k]
            assert len(a) == len(b), f"non periodic step {steady[k]}"
            for j in range(len(a)):
                if a[j] != b[j]:
                    ma = re.fullmatch(r"  s_waitcnt vmcnt\((\d+)\)", a[j]); mb = re.fullmatch(r"  s_waitcnt vmcnt\((\d+)\)", b[j])
                    assert ma and mb, (a[j], b[j])
                    a[j] = f"  s_waitcnt vmcnt({min(int(ma.group(1)), int(mb.group(1)))})"
        full, rem = divmod(nst, 4)
        assert rem != 0
        e.A(f"s_mov_b32 s{S_CNT}, {full}")
        e.raw(".p2align 3")
        e.raw("L_loop:")
        for k in range(4):
            if k == rem:
                e.A(f"s_cmp_eq_u32 s{S_CNT}, 0")
                e.A("s_cbranch_scc1 L_down")
                e.A(f"s_sub_u32 s{S_CNT}, s{S_CNT}, 1")
            e.L.extend(seg[k])
        e.A("s_branch L_loop")
        e.raw("L_down:")
        e.lstamp("loopend")
        i = n
        while i <= last_row:
            step(e, i, chains_for(i), last_row, prev_tags=(lambda f, i=i: f"b{i}_{f}")); i += 1
    if cfg.spin:
        e.lstamp("mfmaend"); e.A("s_waitcnt vmcnt(0) lgkmcnt(0)")
        ia, ib, K = e.lnames.index(cfg.spin[0]), e.lnames.index(cfg.spin[1]), cfg.spin[2]
        e.A(f"s_sub_u32 s50, s{64+2*ib}, s{64+2*ia}")
        e.A(f"s_mul_i32 s50, s50, {K}")
        e.A("s_memtime s[52:53]"); e.A("s_waitcnt lgkmcnt(0)")
        e.raw("L_spin:")
        e.A("s_memtime s[54:55]"); e.A("s_waitcnt lgkmcnt(0)")
        e.A("s_sub_u32 s51, s54, s52"); e.A("s_cmp_lt_u32 s51, s50"); e.A("s_cbranch_scc1 L_spin")
    elif cfg.lst:
        e.lstamp("mfmaend"); e.A("s_waitcnt vmcnt(0)"); e.lstamp("drain")
        e.A("s_memrealtime s[62:63]")
        e.A("s_waitcnt lgkmcnt(0)")
        e.A(f"s_load_dwordx2 s[{S_WS}:{S_WS+1}], s[0:1], 32")
        e.A(f"v_mov_b32 v{V_ST}, 0")
        for k in range(e.nl): e.A(f"v_writelane_b32 v{V_ST}, s{64+2*k}, {k}")
        e.A(f"v_writelane_b32 v{V_ST}, s60, 62"); e.A(f"v_writelane_b32 v{V_ST}, s62, 63")
        e.A("s_waitcnt lgkmcnt(0)")
        e.A(f"s_lshl_b32 s{S_T0}, s2, 2")
        e.A(f"s_add_u32 s{S_T0}, s{S_T0}, s{S_WAVE}")
        e.A(f"s_lshl_b32 s{S_T0}, s{S_T0}, 8")
        e.A(f"s_add_u32 s{S_WS}, s{S_WS}, s{S_T0}")
        e.A(f"s_addc_u32 s{S_WS+1}, s{S_WS+1}, 0")
        e.A("v_lshlrev_b32 v1, 2, v0")
        e.A(f"global_store_dword v1, v{V_ST}, s[{S_WS}:{S_WS+1}]")
        print("lstamps:", e.nl, e.lnames)
    if cfg.endwait: e.A("s_waitcnt vmcnt(0)")
    e.raw("L_end:")
    e.A("s_endpgm")
    e.raw("L_code_end:")
    e.raw('.section .rodata,"a"')
    e.raw(".p2align 6")
    e.raw(".amdhsa_kernel standalone__fft_conv__vision_kernel")
    for l in ("next_free_vgpr 512", "next_free_sgpr 100", "accum_offset 256", "group_segment_fixed_size 0", "kernarg_size 40",
              "user_sgpr_count 2", "user_sgpr_kernarg_segment_ptr 1", "system_sgpr_workgroup_id_x 1"):
        e.raw("  .amdhsa_" + l)
    e.raw(".end_amdhsa_kernel")
    out = []
    for l in e.L:
        if " lds" in l and "buffer_load" in l and out and re.search(r"\bm0,", out[-1]): out.append("  s_nop 0")
        out.append(l)
    e.L = out
    import subprocess, tempfile, os
    size = 0x7fff
    for _ in range(2):
        txt = "\n".join(l.replace("CODE_BYTES", str(size)) for l in e.L) + "\n"
        with tempfile.TemporaryDirectory() as td:
            open(td + "/k.s", "w").write(txt)
            subprocess.run(["clang", "-x", "assembler", "-target", "amdgcn-amd-amdhsa", "-mcpu=gfx950", "-c", td + "/k.s", "-o", td + "/k.o"], check=True)
            dis = subprocess.run(["llvm-objdump", "-d", "--mcpu=gfx950", td + "/k.o"], capture_output=True, text=True).stdout
        sym = {}
        for l in dis.splitlines():
            m_ = re.match(r"([0-9a-f]{16}) <(.*)>:", l)
            if m_: sym[m_.group(2)] = int(m_.group(1), 16)
        size = sym["L_end"] + 4 - sym["standalone__fft_conv__vision_kernel"]
        assert size - 4 > sym["L_pc"] - sym["standalone__fft_conv__vision_kernel"] if "L_pc" in sym else True
    e.code_size = size
    e.L = [l.replace("CODE_BYTES", str(size)) for l in e.L]
    open(cfg.name, "w").write("\n".join(e.L) + "\n")
    return e

if __name__ == "__main__":
    ap = argparse.ArgumentParser()
    ap.add_argument("-o", default=Cfg.name)
    ap.add_argument("--lst", action="store_true")
    ap.add_argument("--noloop", action="store_true")
    ap.add_argument("--store", default="")
    ap.add_argument("--look", type=int, default=12)
    ap.add_argument("--early", type=int, default=8)
    ap.add_argument("--wearly", type=int, default=26)
    ap.add_argument("--nocodepf", action="store_true")
    ap.add_argument("--endwait", action="store_true")
    ap.add_argument("--spin", default="")
    ap.add_argument("--codepf2", action="store_true")
    ap.add_argument("--codepf3", action="store_true")
    ap.add_argument("--codepf_all", action="store_true")
    ap.add_argument("--stepst", action="store_true")
    ap.add_argument("--dma_pos", type=int, default=18)
    ap.add_argument("--out_pos", type=int, default=0)
    ap.add_argument("--diag", action="store_true")
    ap.add_argument("--groups", default=Cfg.groups)
    ap.add_argument("--nprol", type=int, default=4)
    ap.add_argument("--direct", default="4,5")
    ap.add_argument("--pf_rows", default="6,2")
    ap.add_argument("--stream", default="4,5,6,7")
    ap.add_argument("--deferred", default="3,8,2,9,1,10,0,11")
    ap.add_argument("--def_plan", default=Cfg.def_plan)
    ap.add_argument("--pfw_split", type=int, default=15)
    ap.add_argument("--pfwb_after", type=int, default=3)
    a = ap.parse_args()
    cfg = Cfg()
    cfg.name = a.o; cfg.lst = a.lst; cfg.loop = not a.noloop; cfg.store_flags = a.store
    cfg.direct = [int(x) for x in a.direct.split(",")]; cfg.pf_rows = tuple(int(x) for x in a.pf_rows.split(","))
    cfg.stream = [int(x) for x in a.stream.split(",")]; cfg.deferred = [int(x) for x in a.deferred.split(",")]; cfg.def_plan = a.def_plan
    cfg.groups = a.groups; cfg.nprol = a.nprol; cfg.pfw_split = a.pfw_split; cfg.pfwb_after = a.pfwb_after; cfg.diag = a.diag; cfg.dma_pos = a.dma_pos; cfg.out_pos = a.out_pos; cfg.stepst = a.stepst; cfg.codepf2 = a.codepf2; cfg.codepf_all = a.codepf_all; cfg.codepf3 = a.codepf3; cfg.spin = (lambda p: (p[0], p[1], int(p[2])) )(a.spin.split("/")) if a.spin else None
    if cfg.spin: cfg.lst = True
    cfg.endwait = a.endwait; cfg.look = a.look; cfg.early = a.early; cfg.wearly = a.wearly; cfg.codepf = not a.nocodepf
    e = build(cfg)
    print("lines", len(e.L), "LDS", LDS_BYTES, "code", e.code_size)
```

```python
import sys, argparse, re

class Cfg:
    nrows = 19
    RA = 8
    store_flags = ""
    lst = False
    loop = True
    look = 12
    early = 8
    wearly = 26
    codepf = True
    dpre = 14
    late_calc = True
    endwait = False
    spin = None
    codepf2 = False
    codepf3 = False
    codepf_all = False
    stepst = False
    dma_pos = 18
    out_pos = 0
    diag = False
    groups = "x4,x5,w0|x6,x7|w1|w2"
    direct = [4, 5]
    pf_rows = (6, 2)
    stream = [4, 5, 6, 7]
    deferred = [3, 8, 2, 9, 1, 10, 0, 11]
    nprol = 4
    pfw_split = 15
    pfwb_after = 3
    def_plan = "11:3,8|12:2,9|14:1,10"
    align12 = True
    name = "standalone__fft_conv__vision.s"

H = W = 224
ROWB = W * 192
XBYTES = H * ROWB
WBYTES = 460800
SLOTB = 7168
NA = 12
XR = NA * SLOTB
X2 = 10 * SLOTB
WS = XR + 4 * SLOTB
WSLOT = 10240
NWS = 4
DUMMY = WS + NWS * WSLOT
LDS_BYTES = DUMMY + 1024

S_X, S_Wt, S_O = 8, 12, 16
S_WS = 20
S_WAVE = 22
S_X0, S_X1, S_XM = 23, 24, 25
S_XBASE, S_XROW, S_OROW, S_CNT = 26, 27, 28, 29
S_T0, S_T1, S_T2, S_T3 = 30, 31, 32, 33
S_WM, S_G, S_W0, S_WM2, S_WMM = 34, 35, 36, 37, 38
S_T4, S_T5 = 39, 40
S_PC = 44
S_CPO = 48
S_LAST = 41
V_XAA = 2; V_XAR = 7
V_XD0, V_XD1 = 12, 13
V_WD, V_TR, V_OUT, V_PF = 14, 15, 16, 17
V_T = 18
V_O = 24
V_ST = 28
V_ACC = 32
V_B = 48
V_ACCA = 168
V_PFX = 200
V_PFD = 202
V_PF2 = 206
V_CPF = 207
V_WT = 212

def wreg(kh, f, lo=None):
    i = kh * 15 + f
    if i < 64: base, t = 4 * i, "a"
    else: base, t = V_WT + 4 * (i - 64), "v"
    if lo is None: return f"{t}[{base}:{base+3}]"
    return f"{t}[{base+lo}:{base+lo+1}]"
def breg(row, f):
    b = V_B + (row % 2) * 60 + 4 * f
    return f"v[{b}:{b+3}]"
def acc(o): return V_ACC + 4 * (o % 4)
def xlds(row): return row * SLOTB if row < NA else XR + ((row - NA) % 4) * SLOTB
def xslot(row):
    a = xlds(row)
    return ("A", a) if a < X2 else ("R", a - X2)

class Em:
    def __init__(self, cfg):
        self.cfg = cfg; self.L = []
        self.vm = []; self.vm_done = 0
        self.lg = []; self.lg_done = 0; self.lg_pos = []
        self.pos = 0
        self.nl = 0; self.lnames = []
    def A(self, s): self.L.append("  " + s)
    def raw(self, s): self.L.append(s)
    def mfma(self, s): self.A(s); self.pos += 1
    def vmem(self, s, tag): self.A(s); self.vm.append(tag)
    def lds(self, s, tag): self.A(s); self.lg.append(tag); self.lg_pos.append(self.pos)
    def vm_need(self, tags):
        idx = -1
        for tag in tags:
            assert tag in self.vm, (tag, self.vm)
            idx = max(idx, max(i for i, t in enumerate(self.vm) if t == tag))
        return idx
    def wait_vm(self, *tags, force=False):
        idx = self.vm_need(tags)
        if idx < self.vm_done and not force: return False
        n = min(len(self.vm) - 1 - idx, 63)
        self.A(f"s_waitcnt vmcnt({n})"); self.vm_done = max(self.vm_done, len(self.vm) - n)
        return True
    def wait_lg(self, *tags, age=None):
        idx = -1
        for tag in tags:
            assert tag in self.lg, tag
            idx = max(idx, max(i for i, t in enumerate(self.lg) if t == tag))
        if idx < self.lg_done: return False
        if age is not None:
            for i in range(idx + 1, len(self.lg)):
                if self.pos - self.lg_pos[i] >= age: idx = i
        n = min(len(self.lg) - 1 - idx, 15)
        self.A(f"s_waitcnt lgkmcnt({n})"); self.lg_done = len(self.lg) - n
        return True
    def lstamp(self, name=""):
        if not self.cfg.lst: return
        if self.cfg.stepst and not (name.startswith("step") or name in ("start", "rampend", "mfmaend", "drain")): return
        k = self.nl
        if k >= 18: return
        self.A(f"s_memtime s[{64+2*k}:{65+2*k}]")
        self.lnames.append(name); self.nl = k + 1

def x_ops(e, row, seq=False):
    base = xlds(row); ops = []
    I = lambda s: (lambda: e.A(s))
    if not seq:
        ops += [I(f"s_add_u32 s{S_T0}, s{S_XBASE}, {row*ROWB}"), I(f"s_sub_u32 s{S_T1}, s{S_T0}, {XBYTES}"),
                I(f"s_min_u32 s{S_XROW}, s{S_T0}, s{S_T1}")]
    ops += [I(f"s_add_u32 m0, s{S_X0}, {base}"),
            lambda: e.vmem(f"buffer_load_dwordx4 v{V_XD0}, s[{S_X}:{S_X+3}], s{S_XROW} offen lds", f"x{row}")]
    if base: ops += [I(f"s_and_b32 s{S_T2}, s{S_XM}, {base}"), I(f"s_add_u32 m0, s{S_X1}, s{S_T2}")]
    else: ops += [I(f"s_mov_b32 m0, s{S_X1}")]
    ops += [lambda: e.vmem(f"buffer_load_dwordx4 v{V_XD1}, s[{S_X}:{S_X+3}], s{S_XROW} offen lds", f"x{row}")]
    if seq:
        ops += [I(f"s_add_u32 s{S_XROW}, s{S_XROW}, {ROWB}"), I(f"s_sub_u32 s{S_T1}, s{S_XROW}, {XBYTES}"),
                I(f"s_min_u32 s{S_XROW}, s{S_XROW}, s{S_T1}")]
    return ops
def w_ops(e, s):
    ops = []
    I = lambda t: (lambda: e.A(t))
    for m in range(3):
        off = (s % NWS) * WSLOT
        ops.append(I(f"s_mov_b32 s{S_T3}, {(32*s + 960*m)*192}"))
        if m < 2: ops.append(I(f"s_add_u32 m0, s{S_WM}, {off + 4*m*1024}"))
        elif off: ops += [I(f"s_and_b32 s{S_T4}, s{S_WMM}, {off}"), I(f"s_add_u32 m0, s{S_WM2}, s{S_T4}")]
        else: ops.append(I(f"s_mov_b32 m0, s{S_WM2}"))
        ops.append(lambda m=m: e.vmem(f"buffer_load_dwordx4 v{V_WD}, s[{S_Wt}:{S_Wt+3}], s{S_T3} offen lds", f"w{s}"))
    return ops
def emit_now(e, ops):
    for op in ops:
        n0 = len(e.L)
        prev = e.L[-1]
        tmp = len(e.L); op()
        if " lds" in e.L[-1] and re.search(r"\bm0,", e.L[tmp-1]):
            e.L.insert(tmp, "  s_nop 0")

def prologue(e):
    c = e.cfg; A = e.A
    t0, t1, t2, t3 = V_T, V_T+1, V_T+2, V_T+3
    A("s_cmp_ge_u32 s2, 252")
    A("s_cbranch_scc1 L_end")
    A("s_load_dwordx4 s[4:7], s[0:1], 0")
    A(f"s_load_dwordx2 s[{S_O}:{S_O+1}], s[0:1], 16")
    e.lstamp("start")
    if c.lst: A("s_memrealtime s[60:61]")
    A("v_lshrrev_b32 v1, 6, v0")
    A("v_and_b32 v0, 63, v0")
    A(f"v_readfirstlane_b32 s{S_WAVE}, v1")
    A(f"s_lshr_b32 s{S_T0}, s2, 3")
    A(f"s_and_b32 s{S_T1}, s2, 7")
    A(f"s_mul_i32 s{S_T2}, s{S_T0}, 86")
    A(f"s_lshl_b32 s{S_T4}, s{S_T0}, 2")
    A(f"s_lshr_b32 s{S_T2}, s{S_T2}, 8")
    A(f"s_mul_i32 s{S_T1}, s{S_T1}, 10")
    A(f"s_mul_i32 s{S_T3}, s{S_T2}, 3")
    A(f"s_add_u32 s{S_T1}, s{S_T1}, s{S_T2}")
    A(f"s_sub_u32 s{S_G}, s{S_T0}, s{S_T3}")
    A("s_cmp_lt_u32 s2, 240")
    A("s_cbranch_scc1 L_map_done")
    A(f"s_sub_u32 s{S_T0}, s2, 240")
    A(f"s_mul_i32 s{S_T2}, s{S_T0}, 86")
    A(f"s_lshr_b32 s{S_T2}, s{S_T2}, 8")
    A(f"s_mul_i32 s{S_T3}, s{S_T2}, 3")
    A(f"s_sub_u32 s{S_G}, s{S_T0}, s{S_T3}")
    A(f"s_add_u32 s{S_T1}, s{S_T2}, 80")
    e.raw("L_map_done:")
    A(f"s_add_u32 s{S_T4}, s{S_T4}, s{S_WAVE}")
    A(f"s_mul_i32 s{S_T2}, s{S_T1}, 9363")
    A(f"s_lshl_b32 s{S_T5}, s{S_WAVE}, 6")
    A(f"s_lshr_b32 s{S_T2}, s{S_T2}, 16")
    A(f"v_add_u32 v{t0}, s{S_T5}, v0")
    A(f"s_mul_i32 s{S_T3}, s{S_T2}, 7")
    A(f"s_mul_i32 s{S_LAST}, s{S_T2}, 86")
    A(f"s_sub_u32 s{S_T3}, s{S_T1}, s{S_T3}")
    A(f"s_mul_i32 s{S_T0}, s{S_T2}, {56*21846}")
    A(f"s_lshl_b32 s{S_W0}, s{S_T3}, 5")
    A(f"s_lshr_b32 s{S_T0}, s{S_T0}, 16")
    A(f"s_mul_i32 s{S_OROW}, s{S_T0}, {ROWB}")
    A(f"s_add_u32 s{S_XBASE}, s{S_OROW}, {(H-4)*ROWB}")
    A(f"s_lshr_b32 s{S_LAST}, s{S_LAST}, 8")
    A(f"s_mul_i32 s{S_LAST}, s{S_LAST}, 3")
    A(f"s_cmp_eq_u32 s{S_LAST}, s{S_T2}")
    A(f"s_cselect_b32 s{S_LAST}, 0x40000000, 0")
    A(f"s_add_u32 s{S_T0}, s{S_W0}, {W-4}")
    for pi in range(2):
        dst = V_XD0 if pi == 0 else V_XD1
        if pi: A(f"v_add_u32 v{t0}, 256, v{t0}")
        A(f"v_mul_u32_u24 v{t1}, 5462, v{t0}")
        A(f"v_lshrrev_b32 v{t1}, 16, v{t1}")
        A(f"v_mul_u32_u24 v{t2}, 12, v{t1}")
        A(f"v_lshrrev_b32 v{t3}, 1, v{t1}")
        A(f"v_sub_u32 v{t2}, v{t0}, v{t2}")
        A(f"v_and_b32 v{t3}, 2, v{t3}")
        A(f"v_add_u32 v{t1}, s{S_T0}, v{t1}")
        A(f"v_xor_b32 v{t2}, v{t2}, v{t3}")
        A(f"v_subrev_u32 v{t3}, {W}, v{t1}")
        A(f"v_min_u32 v{t1}, v{t1}, v{t3}")
        if pi: A(f"v_cmp_gt_u32 vcc, 432, v{t0}")
        A(f"v_mul_u32_u24 v{t1}, 192, v{t1}")
        A(f"v_lshl_add_u32 v{dst}, v{t2}, 4, v{t1}")
        if pi:
            A(f"v_mov_b32 v{t1}, 0x40000000")
            A(f"v_cndmask_b32 v{dst}, v{t1}, v{dst}, vcc")
    A(f"s_lshl_b32 s{S_X0}, s{S_WAVE}, 10")
    A(f"s_add_u32 s{S_X1}, s{S_X0}, 4096")
    A(f"s_cmp_eq_u32 s{S_WAVE}, 3")
    A(f"s_cselect_b32 s{S_X1}, {DUMMY}, s{S_X1}")
    A(f"s_cselect_b32 s{S_XM}, 0, -1")
    A(f"s_mov_b32 s{S_X+2}, {XBYTES}"); A(f"s_mov_b32 s{S_X+3}, 0x20000")
    A(f"s_mov_b32 s{S_Wt+2}, {WBYTES}"); A(f"s_mov_b32 s{S_Wt+3}, 0x20000")
    items = [it for g in c.groups.split("|") for it in g.split(",")]
    assert items[:len(c.direct)] == [f"x{r}" for r in c.direct]
    r0, nr = c.pf_rows
    A(f"v_mov_b32 v{V_T+5}, 0x40000000")
    if nr:
        nl = -(-nr * 18 // 4)
        A(f"s_mul_i32 s{S_T0}, s{S_WAVE}, {nl}")
        A(f"v_add_u32 v{t0}, s{S_T0}, v0")
        A(f"v_mul_u32_u24 v{t1}, 3641, v{t0}")
        A(f"s_mul_i32 s{S_T0}, s{S_G}, 18")
        A(f"v_lshrrev_b32 v{t1}, 16, v{t1}")
        A(f"v_mul_u32_u24 v{t2}, 18, v{t1}")
        A(f"v_sub_u32 v{t2}, v{t0}, v{t2}")
        A(f"v_add_u32 v{t2}, s{S_T0}, v{t2}")
        A(f"s_add_u32 s{S_T0}, s{S_W0}, {W-4}")
        A(f"v_lshlrev_b32 v{t2}, 7, v{t2}")
        A(f"s_mul_i32 s{S_T0}, s{S_T0}, 192")
        A(f"s_mov_b32 s{S_T1}, {ROWB}")
        A(f"v_add_u32 v{t2}, s{S_T0}, v{t2}")
        A(f"v_subrev_u32 v{t3}, {ROWB}, v{t2}")
        A(f"v_min_u32 v{t2}, v{t2}, v{t3}")
        A(f"v_add_u32 v{t3}, {r0}, v{t1}")
        A(f"v_mul_lo_u32 v{t3}, v{t3}, s{S_T1}")
        A(f"s_mov_b32 s{S_T2}, {XBYTES}")
        A(f"v_cmp_gt_u32 vcc, {nr*18}, v{t0}")
        A(f"v_add_u32 v{t3}, s{S_XBASE}, v{t3}")
        A(f"v_subrev_u32 v{t1}, s{S_T2}, v{t3}")
        A(f"v_min_u32 v{t3}, v{t3}, v{t1}")
        A(f"v_add_u32 v{t3}, v{t3}, v{t2}")
        A(f"v_cndmask_b32 v{t3}, v{V_T+5}, v{t3}, vcc")
        A(f"v_cmp_gt_u32 vcc, {nl}, v0")
        A("s_nop 1")
        A(f"v_cndmask_b32 v{V_PFX}, v{V_T+5}, v{t3}, vcc")
    def wpf(dst, s0, s1):
        per = (s1 - s0) * 48; tot = 5 * per
        nl = -(-tot // 128)
        if s0 == 0 and s1 == 15:
            A(f"s_mul_i32 s{S_T0}, s{S_T4}, {nl}")
            A(f"v_cmp_gt_u32 vcc, {nl}, v0")
            A(f"v_add_u32 v{t0}, s{S_T0}, v0")
            A(f"v_lshlrev_b32 v{t0}, 7, v{t0}")
            A(f"v_cndmask_b32 v{dst}, v{V_T+5}, v{t0}, vcc")
            return
        A(f"s_mul_i32 s{S_T0}, s{S_T4}, {nl}")
        A(f"v_add_u32 v{t0}, s{S_T0}, v0")
        sh = next(b for b in range(12, 23) if all((n_ * (-(-(1 << b) // per))) >> b == n_ // per for n_ in range(128 * nl + 64)))
        mg = -(-(1 << sh) // per)
        A(f"s_mov_b32 s{S_T1}, {mg}")
        A(f"v_mul_lo_u32 v{t1}, v{t0}, s{S_T1}")
        A(f"v_lshrrev_b32 v{t1}, {sh}, v{t1}")
        A(f"v_mul_u32_u24 v{t2}, {per}, v{t1}")
        A(f"v_sub_u32 v{t2}, v{t0}, v{t2}")
        A(f"v_lshlrev_b32 v{t2}, 7, v{t2}")
        A(f"v_mul_u32_u24 v{t1}, {92160}, v{t1}")
        A(f"v_cmp_gt_u32 vcc, {nl}, v0")
        A(f"v_add_u32 v{t2}, v{t2}, v{t1}")
        if s0: A(f"v_add_u32 v{t2}, {s0*6144}, v{t2}")
        else: A("s_nop 0")
        A(f"v_cndmask_b32 v{dst}, v{V_T+5}, v{t2}, vcc")
    wpf(V_PF, 0, c.pfw_split)
    if c.codepf:
        A(f"s_getpc_b64 s[{S_PC}:{S_PC+1}]")
        e.raw("L_pc:")
        A(f"s_sub_u32 s{S_PC}, s{S_PC}, L_pc-standalone__fft_conv__vision_kernel")
        A(f"s_subb_u32 s{S_PC+1}, s{S_PC+1}, 0")
        A(f"s_and_b32 s{S_PC+1}, s{S_PC+1}, 0xffff")
        A(f"s_mov_b32 s{S_PC+2}, CODE_BYTES")
        A(f"s_mov_b32 s{S_PC+3}, 0x20000")
        if c.codepf_all:
            A(f"v_lshlrev_b32 v{V_CPF}, 7, v0")
            A(f"s_lshl_b32 s{S_CPO}, s{S_WAVE}, 13")
        else:
            A(f"v_cmp_gt_u32 vcc, 2, v0")
            A(f"v_lshlrev_b32 v{t0}, 7, v0")
            A(f"s_lshl_b32 s{S_CPO}, s{S_T4}, 8")
            A(f"v_cndmask_b32 v{V_CPF}, v{V_T+5}, v{t0}, vcc")
    A(f"s_add_u32 s{S_WM}, s{S_X0}, {WS}")
    A(f"s_add_u32 s{S_WM2}, s{S_WM}, 8192")
    A(f"s_cmp_ge_u32 s{S_WAVE}, 2")
    A(f"s_cselect_b32 s{S_WM2}, {DUMMY}, s{S_WM2}")
    A(f"s_cselect_b32 s{S_WMM}, 0, -1")
    A(f"v_lshrrev_b32 v{t0}, 4, v0")
    A(f"v_bfe_u32 v{t1}, v0, 2, 2")
    A(f"v_lshl_add_u32 v{t1}, v{t0}, 3, v{t1}")
    A(f"v_and_b32 v{t0}, 1, v{t0}")
    A(f"v_mul_u32_u24 v{t1}, 192, v{t1}")
    A(f"v_lshlrev_b32 v{t0}, 1, v{t0}")
    A(f"v_and_b32 v{t2}, 3, v0")
    A(f"s_lshr_b32 s{S_T0}, s{S_WAVE}, 1")
    A(f"v_xor_b32 v{t2}, v{t2}, v{t0}")
    A(f"s_mul_i32 s{S_T0}, s{S_T0}, {480*192}")
    A(f"v_lshl_add_u32 v{t1}, v{t2}, 4, v{t1}")
    A(f"s_and_b32 s{S_T1}, s{S_WAVE}, 1")
    A(f"s_mul_i32 s{S_T1}, s{S_T1}, {4*192}")
    A(f"s_add_u32 s{S_T0}, s{S_T0}, s{S_T1}")
    A(f"s_lshl_b32 s{S_T1}, s{S_G}, 6")
    A(f"s_add_u32 s{S_T0}, s{S_T0}, s{S_T1}")
    A(f"v_add_u32 v{V_WD}, s{S_T0}, v{t1}")
    late = c.late_calc
    def tail_calc():
        if c.pfw_split < 15: wpf(V_PF2, c.pfw_split, 15)
        A(f"s_mov_b32 s{S_O+2}, {XBYTES}")
        A(f"s_mov_b32 s{S_O+3}, 0x20000")
        A(f"v_and_b32 v{V_T}, 15, v0")
        A(f"v_lshrrev_b32 v{V_T+1}, 4, v0")
        A(f"s_lshr_b32 s{S_T0}, s{S_WAVE}, 1")
        A(f"s_lshl_b32 s{S_T0}, s{S_T0}, 4")
        A(f"v_add_u32 v{V_T+4}, s{S_T0}, v{V_T}")
        for kw in range(5):
            A(f"v_add_u32 v{V_T+2}, {4-kw}, v{V_T+4}")
            A(f"v_lshrrev_b32 v{V_T+3}, 1, v{V_T+2}")
            A(f"v_and_b32 v{V_T+3}, 2, v{V_T+3}")
            A(f"v_xor_b32 v{V_T+3}, v{V_T+3}, v{V_T+1}")
            A(f"v_mul_u32_u24 v{V_T+2}, 192, v{V_T+2}")
            A(f"v_lshl_add_u32 v{V_XAA+kw}, v{V_T+3}, 4, v{V_T+2}")
            A(f"v_add_u32 v{V_XAR+kw}, {X2}, v{V_XAA+kw}")
        A(f"s_and_b32 s{S_T1}, s{S_WAVE}, 1")
        A(f"v_and_b32 v{V_T+2}, 1, v{V_T+1}")
        A(f"v_xor_b32 v{V_T+2}, s{S_T1}, v{V_T+2}")
        A(f"v_lshlrev_b32 v{V_T+2}, 5, v{V_T+2}")
        A(f"v_lshrrev_b32 v{V_T+3}, 2, v0")
        A(f"v_lshl_add_u32 v{V_T+2}, v{V_T+3}, 6, v{V_T+2}")
        A(f"v_and_b32 v{V_T+3}, 3, v0")
        A(f"v_lshl_add_u32 v{V_T+2}, v{V_T+3}, 3, v{V_T+2}")
        A(f"v_add_u32 v{V_TR}, {WS}, v{V_T+2}")
        A(f"v_add_u32 v{V_T+2}, s{S_W0}, v{V_T+4}")
        A(f"v_mul_u32_u24 v{V_T+2}, 192, v{V_T+2}")
        A(f"v_lshl_add_u32 v{V_T+2}, v{V_T+1}, 3, v{V_T+2}")
        A(f"s_lshl_b32 s{S_T0}, s{S_G}, 1")
        A(f"s_add_u32 s{S_T0}, s{S_T0}, s{S_T1}")
        A(f"s_lshl_b32 s{S_T0}, s{S_T0}, 5")
        A(f"v_add_u32 v{V_OUT}, s{S_T0}, v{V_T+2}")
    if not late: tail_calc()
    A("s_waitcnt lgkmcnt(0)")
    A(f"s_mov_b32 s{S_X}, s4"); A(f"s_mov_b32 s{S_X+1}, s5")
    A(f"s_mov_b32 s{S_Wt}, s6"); A(f"s_mov_b32 s{S_Wt+1}, s7")
    e.lstamp("karg")
    for r in c.direct: emit_now(e, x_ops(e, r))
    if c.pf_rows[1]: e.vmem(f"buffer_load_dword v{V_PFD}, v{V_PFX}, s[{S_X}:{S_X+3}], 0 offen", "pf")
    e.vmem(f"buffer_load_dword v{V_PFD+1}, v{V_PF}, s[{S_Wt}:{S_Wt+3}], 0 offen", "pf")
    if c.codepf: e.vmem(f"buffer_load_dword v{V_PFD+3}, v{V_CPF}, s[{S_PC}:{S_PC+3}], s{S_CPO} offen", "pf")
    e.lstamp("pf")
    for it in items[len(c.direct):c.nprol]:
        emit_now(e, x_ops(e, int(it[1:])) if it[0] == "x" else w_ops(e, int(it[1:])))
    if c.diag:
        e.lstamp("issued")
        nv = len(e.vm)
        seen = []
        for idx_, tg in enumerate(e.vm):
            if idx_ + 1 < nv and e.vm[idx_ + 1] == tg and tg != "pf": continue
            A(f"s_waitcnt vmcnt({nv - 1 - idx_})"); e.lstamp(tg + "_back")
    if late: tail_calc()

def b_read_to(e, row, f, reg, tag):
    kw, cc = divmod(f, 3)
    kind, off = xslot(row)
    base = V_XAA if kind == "A" else V_XAR
    e.lds(f"ds_read_b128 {reg}, v{base+kw} offset:{off + cc*64}", tag)
def tr_read(e, s, kh, h):
    e.lds(f"ds_read_b64_tr_b16 {wreg(kh, s, 2*h)}, v{V_TR} offset:{(s % NWS)*WSLOT + (2*kh + h)*1024}", f"t{s}_{kh}")
def out_ops(e, a, pair, o):
    vo = V_O + 2 * pair
    pre = [lambda: e.A(f"s_add_u32 s{S_OROW}, s{S_OROW}, s{S_LAST}")] if o == e.cfg.nrows - 1 else []
    return pre + [lambda: e.A(f"v_cvt_pk_bf16_f32 v{vo}, v{a}, v{a+1}"),
            lambda: e.A(f"v_cvt_pk_bf16_f32 v{vo+1}, v{a+2}, v{a+3}"),
            lambda: e.vmem(f"buffer_store_dwordx2 v[{vo}:{vo+1}], v{V_OUT}, s[{S_O}:{S_O+3}], s{S_OROW} offen {e.cfg.store_flags}".rstrip(), f"o{o}"),
            lambda: e.A(f"s_add_u32 s{S_OROW}, s{S_OROW}, {ROWB}")]

class Gaps:
    def __init__(self, M, cap=1):
        self.M = M; self.g = [[] for _ in range(M)]; self.cap = cap
    def put(self, p, fn):
        self.g[min(max(p, 0), self.M - 1)].append(fn)
    def seq(self, ops, start, step=1, cap=None):
        cap = self.cap if cap is None else cap
        p = start
        for op in ops:
            while p < self.M - 1 and len(self.g[p]) >= cap: p += 1
            self.put(p, op); p = min(p + step, self.M - 1) if p < self.M - 1 else p
        return p

def block_a(e):
    c = e.cfg; RA = c.RA
    def khs(i): return [kh for kh in range(5) if 0 <= i - 4 + kh < RA]
    stream = list(c.stream)
    groups = [g.split(",") for g in c.groups.split("|")]
    nextw = 1 + max(int(it[1:]) for g in groups for it in g if it[0] == "w")
    groups += [[f"w{s}"] for s in range(nextw, 15)]
    order = []; rows_av = []; s_av = []; sched = set()
    mk_items = {}
    for gi, g in enumerate(groups):
        order.append(("M", gi)); mk_items[gi] = g
        for it in g:
            (rows_av if it[0] == "x" else s_av).append(int(it[1:]))
        for s in sorted(s_av):
            for r in sorted(rows_av, key=lambda r: (-len(khs(r)), r)):
                if (r, s) not in sched: sched.add((r, s)); order.append((r, s))
    assert len(sched) == len(stream) * 15
    w_marker = {int(it[1:]): gi for gi, g in mk_items.items() for it in g if it[0] == "w"}
    row_marker = {int(it[1:]): gi for gi, g in mk_items.items() for it in g if it[0] == "x"}
    nearly = len(c.groups.split("|"))
    mf = []; first = {}; mpos = {}
    for ent in order:
        if ent[0] == "M": mpos[ent[1]] = len(mf)
        else:
            first[ent] = len(mf)
            for kh in khs(ent[0]): mf.append((ent, kh))
    M = len(mf)
    mark_at = {}; prev = 0
    for p in sorted(mpos):
        q = mpos[p]
        if p >= nearly: q = max(prev, mpos[p] - c.wearly)
        elif p >= 1: q = max(prev, mpos[p] - c.early)
        mark_at[p] = q; prev = q
    tasks = []
    pairs = [ent for ent in order if ent[0] != "M"]
    last_use = {}
    for q, (ent, kh) in enumerate(mf): last_use[ent] = q
    for ent in pairs:
        tasks.append(dict(kind="b", ent=ent, ready=mark_at[row_marker[ent[0]]], due=first[ent], done=False))
    for s in range(15):
        for kh in range(5):
            due = min(q for q, (ent, k2) in enumerate(mf) if ent[1] == s and k2 == kh)
            for h in range(2):
                tasks.append(dict(kind="t", s=s, kh=kh, h=h, ready=mark_at[w_marker[s]], due=due, done=False))
    tasks.sort(key=lambda t: (t["due"], 0 if t["kind"] == "t" else 1))
    bslots = [None] * 15; bfree_at = [-1] * 15; bassign = {}
    def issue(t, q):
        if t["kind"] == "t": tr_read(e, t["s"], t["kh"], t["h"])
        else:
            k = min(range(15), key=lambda j: bfree_at[j])
            if bfree_at[k] >= q and bslots[k] is not None: return False
            ent = t["ent"]
            bslots[k] = ent; bfree_at[k] = last_use[ent]; bassign[ent] = k
            reg = V_B + 60 + 4 * k
            b_read_to(e, ent[0], ent[1], f"v[{reg}:{reg+3}]", f"pb{ent[0]}_{ent[1]}")
        t["done"] = True
        return True
    items = [it for g in c.groups.split("|") for it in g.split(",")]
    dplan = {}
    rest = [(it[0], int(it[1:])) for it in items[c.nprol:]]
    issued_w = [int(it[1:]) for it in items if it[0] == "w"]
    dplan[0] = list(rest)
    for s in range(max(issued_w) + 1, min(4, 15)): dplan[0].append(("w", s))
    for s in range(max(max(issued_w) + 1, 4), 15):
        dplan.setdefault(w_marker[s - 3], []).append(("w", s))
    if c.pfw_split < 15: dplan.setdefault(w_marker[c.pfwb_after], []).append(("pfw", 0))
    planned = []
    for part in c.def_plan.split("|"):
        wm, rows_ = part.split(":")
        rows_ = [int(r) for r in rows_.split(",")]
        dplan.setdefault(w_marker[int(wm)], []).extend([("x", r) for r in rows_]); planned += rows_
    late_rows = [r for r in c.deferred if r not in planned] + [12, 13]
    def ops_of(kind, a):
        if kind == "x": return x_ops(e, a)
        if kind == "w": return w_ops(e, a)
        return [lambda: e.vmem(f"buffer_load_dword v{V_PFD+2}, v{V_PF2}, s[{S_Wt}:{S_Wt+3}], 0 offen", "pf")]
    dq = []
    marks_sorted = sorted(mark_at)
    for p in marks_sorted:
        ops = []
        for kind, a in dplan.get(p, []): ops += ops_of(kind, a)
        if not ops: continue
        lo = mark_at[p]; hi = mark_at[p+1] if p + 1 in mark_at else M - 2
        span = 0 if p < nearly - 1 else max(hi - lo - len(ops) // 2, 0)
        for k, op in enumerate(ops): dq.append((lo + (k * span) // len(ops), op))
    dq.reverse()
    last_dma = [-10, False]
    def run_dma_op(force=False):
        _, op = dq.pop()
        n0 = len(e.L); op()
        if " lds" in e.L[-1] and re.search(r"\bm0,", e.L[n0-1]): e.L.insert(n0, "  s_nop 0")
    need = {p: list(mk_items[p]) for p in marks_sorted}
    prevw = {}
    for p in marks_sorted:
        ws = [int(it[1:]) for it in mk_items[p] if it[0] == "w"]
        if ws and ws[0] >= 1: prevw[p] = ws[0] - 1
    cnt = lambda tg: 3 if tg[0] == "w" else 2
    inited = set()
    deferred = list(c.deferred)
    par = len(deferred) % 2
    def setreg(k, f):
        b = V_B + ((k + par) % 2) * 60 + 4 * f
        return f"v[{b}:{b+3}]"
    vis = {}
    k0 = 0
    if par: vis[0] = [deferred[0]]; k0 = 1
    for k_ in range(k0, len(deferred), 2): vis[k_] = deferred[k_:k_+2]
    dpre = c.dpre if par == 0 else 0
    q_d = M - dpre if dpre else None
    d_issued = []
    pre = {}
    for p in marks_sorted:
        if p >= nearly:
            pre.setdefault(max(mark_at[p] - 2, mark_at[p-1] + 1), []).append(("vm", p))
            pre.setdefault(max(mark_at[p] - 1, mark_at[p-1] + 1), []).append(("lg", p))
    def do_vm(p):
        while not all(e.vm.count(tg) == cnt(tg) for tg in need[p]): run_dma_op()
        e.wait_vm(*need[p])
    def do_lg(p, q):
        if p not in prevw: return
        sp = prevw[p]
        for t in tasks:
            if t["kind"] == "t" and t["s"] == sp and not t["done"]: issue(t, q)
        idxs = [i_ for i_, tg in enumerate(e.lg) if tg.startswith(f"t{sp}_")]
        e.wait_lg(e.lg[max(idxs)])
    for q in range(M):
        for kind, p in pre.get(q, []):
            if mark_at[p] > q:
                (do_vm(p) if kind == "vm" else do_lg(p, q))
        for p in marks_sorted:
            if mark_at[p] == q:
                do_lg(p, q); do_vm(p)
                e.A("s_barrier")
                if p in (0, nearly - 1, w_marker[4], w_marker[9], w_marker[14]): e.lstamp(f"M{p}:" + ",".join(mk_items[p]))
        if q_d is not None and q == q_d:
            while not all(e.vm.count(f"x{r_}") == 2 for r_ in vis[0]): run_dma_op()
            e.wait_vm(*[f"x{r_}" for r_ in vis[0]]); e.A("s_barrier")
        ent, kh = mf[q]
        late = [t for t in tasks if not t["done"] and t["due"] <= q]
        if late:
            for t in late:
                assert t["ready"] <= q, (t, q)
                ok = issue(t, q); assert ok
            for t in tasks:
                if t["done"] or t["ready"] > q: continue
                if len(e.lg) - e.lg_done >= 13: break
                if t["kind"] == "b" and t["due"] - q > c.look: continue
                issue(t, q)
        n0 = len(e.L)
        e.wait_lg(f"t{ent[1]}_{kh}", f"pb{ent[0]}_{ent[1]}", age=5)
        o = ent[0] - 4 + kh; a = V_ACCA + 4 * o
        src = f"v[{a}:{a+3}]" if o in inited else "0"
        inited.add(o)
        reg = V_B + 60 + 4 * bassign[ent]
        e.mfma(f"v_mfma_f32_16x16x32_bf16 v[{a}:{a+3}], {wreg(kh, ent[1])}, v[{reg}:{reg+3}], {src}")
        budget = 2
        early_phase = q < mark_at[nearly - 1]
        if early_phase: budget = 4
        def try_lds():
            for t in tasks:
                if t["done"] or t["ready"] > q: continue
                if t["kind"] == "b" and t["due"] - q > c.look: continue
                if len(e.lg) - e.lg_done >= 14: return False
                if issue(t, q + 1): return True
            return False
        def try_dma():
            if dq and dq[-1][0] <= q: run_dma_op(); return True
            return False
        def try_d():
            if q_d is not None and q >= q_d and len(d_issued) < 15 and len(e.lg) - e.lg_done < 14:
                f = len(d_issued); d_issued.append(f)
                b_read_to(e, deferred[0], f, setreg(0, f), f"d0_{f}"); return True
            return False
        _lds = try_lds
        def try_lds(): return _lds() or try_d()
        turn = [try_lds, try_dma]
        k = 0
        while budget > 0:
            if turn[k % 2]() or turn[(k + 1) % 2](): budget -= 1; k += 1
            else: break
    while dq: run_dma_op()
    if c.codepf2: e.vmem(f"buffer_load_dword v{V_PFD+3}, v{V_CPF}, s[{S_PC}:{S_PC+3}], s{S_CPO} offen", "pf")
    e.lstamp("streamend")
    seq = deferred + [RA]
    if q_d is None:
        e.wait_vm(*[f"x{r_}" for r_ in vis[0]]); e.A("s_barrier")
    for f in range(len(d_issued), 15): b_read_to(e, seq[0], f, setreg(0, f), f"d0_{f}")
    for k, r in enumerate(deferred):
        mfs = []
        for kh in khs(r):
            o = r - 4 + kh; a = V_ACCA + 4 * o
            for f in range(15):
                src = f"v[{a}:{a+3}]" if o in inited else "0"
                inited.add(o)
                mfs.append((f, f"v_mfma_f32_16x16x32_bf16 v[{a}:{a+3}], {wreg(kh, f)}, {setreg(k, f)}, {src}"))
        Mk = len(mfs); nxt = seq[k + 1]
        G = Gaps(Mk)
        if (k + 1) in vis:
            e.wait_vm(*[f"x{r_}" for r_ in vis[k+1]]); e.A("s_barrier")
        span = max(Mk - 6, 15)
        for f in range(15): G.put(min((f * span) // 15, Mk - 1), (lambda f=f: b_read_to(e, nxt, f, setreg(k + 1, f), f"d{k+1}_{f}")))
        ntake = 2 if k < 1 else 1
        pos = 2
        for _ in range(ntake):
            if late_rows and Mk >= 30:
                pos = G.seq(x_ops(e, late_rows.pop(0)), pos, step=1, cap=2)
        for p_, (f, s_) in enumerate(mfs):
            if p_ < 15: e.wait_lg(f"d{k}_{f}", age=5)
            e.mfma(s_)
            for fn in G.g[p_]: fn()
    assert not late_rows, late_rows
    e.dtag = f"d{len(deferred)}"
    e.lstamp("defend")

def step(e, i, chains, last_row, extra_out=(), extra_dma=(), prev_tags=None):
    c = e.cfg; RA = c.RA
    mf = []
    for kh in chains:
        o = i - 4 + kh; a = acc(o)
        for f in range(15):
            src = "0" if (kh == 4 and f == 0) else f"v[{a}:{a+3}]"
            mf.append((f, f"v_mfma_f32_16x16x32_bf16 v[{a}:{a+3}], {wreg(kh, f)}, {breg(i, f)}, {src}"))
    M = len(mf)
    G = Gaps(M)
    nxt = i + 1
    nn = i + 2
    did_bar = nxt <= last_row and nxt >= NA
    if did_bar: e.A("s_barrier")
    if nxt <= last_row:
        span = max(M - 9, 15)
        for f in range(15): G.put(min((f * span) // 15, M - 1), (lambda f=f: b_read_to(e, nxt, f, breg(nxt, f), f"b{nxt}_{f}")))
    r4 = i + 4
    if i >= NA and r4 <= last_row: G.seq(x_ops(e, r4, seq=True), c.dma_pos, step=2)
    for r_ in extra_dma: G.seq(x_ops(e, r_), 1, step=1, cap=(2 if M <= 30 else 1))
    tail = []
    if 0 in chains and i - 4 >= RA:
        o = i - 4; endp = chains.index(0) * 15 + 14
        ops = out_ops(e, acc(o), 0, o)
        if endp + 14 < M: G.seq(ops, max(endp + 9, c.out_pos if M == 75 else 0), step=1)
        else: tail = ops
    for k, (a, o) in enumerate(extra_out):
        G.seq(out_ops(e, a, k % 2, o), (k * M) // max(len(extra_out), 1) + 1, step=1, cap=(2 if M <= 45 else 1))
    if nn <= last_row and nn >= NA:
        G.put(M - 3, lambda: e.wait_vm(f"x{nn}", force=(i >= NA)))
    short = M < 45
    for p, (f, s) in enumerate(mf):
        if prev_tags and p < 15: e.wait_lg(prev_tags(f), age=5)
        e.mfma(s)
        for fn in G.g[p]: fn()
        if p == M - 2 and nxt <= last_row and not short: e.wait_lg(f"b{nxt}_14")
    if tail:
        e.A("s_nop 7"); e.A("s_nop 1")
        for fn in tail: fn()
    if nxt <= last_row and short and (nn <= last_row and nn >= NA): e.wait_lg(f"b{nxt}_14")

def build(cfg):
    e = Em(cfg); n = cfg.nrows; RA = cfg.RA
    last_row = n + 3
    e.raw("; direct 5x5 circular convolution; weights stationary in registers; start block overlaps the weight arrival")
    e.raw(f"; @launch grid=(252,1,1) block=(256,1,1) lds={LDS_BYTES}")
    e.raw('.amdgcn_target "amdgcn-amd-amdhsa--gfx950"')
    e.raw(".text")
    e.raw(".globl standalone__fft_conv__vision_kernel")
    if cfg.align12: e.raw(".p2align 12")
    e.raw(".p2align 8")
    e.raw(".type standalone__fft_conv__vision_kernel,@function")
    e.raw("standalone__fft_conv__vision_kernel:")
    prologue(e)
    block_a(e)
    def chains_for(i): return [kh for kh in range(5) if RA <= i - 4 + kh < n]
    flush = {RA + 1: [0, 1], RA + 2: [2, 3, 4], RA + 3: [5, 6, 7]}
    predma = {RA: [14], RA + 1: [15]}
    i = RA
    while i < NA:
        ex = [(V_ACCA + 4 * o, o) for o in flush.get(i, [])]
        pt = (lambda f: f"{e.dtag}_{f}") if i == RA else (lambda f, i=i: f"b{i}_{f}")
        step(e, i, chains_for(i), last_row, ex, predma.get(i, []), pt); i += 1
    if cfg.codepf3: e.vmem(f"buffer_load_dword v{V_PFD+3}, v{V_CPF}, s[{S_PC}:{S_PC+3}], s{S_CPO} offen", "pf")
    e.lstamp("rampend")
    e.A(f"s_add_u32 s{S_T0}, s{S_XBASE}, {(NA+4)*ROWB}")
    e.A(f"s_sub_u32 s{S_T1}, s{S_T0}, {XBYTES}")
    e.A(f"s_min_u32 s{S_XROW}, s{S_T0}, s{S_T1}")
    if not cfg.loop:
        while i <= last_row:
            step(e, i, chains_for(i), last_row, prev_tags=(lambda f, i=i: f"b{i}_{f}")); i += 1
            if i <= last_row: e.lstamp(f"step{i}")
    else:
        steady = list(range(NA, n)); nst = len(steady)
        start = len(e.L); seg = []
        for ii in steady:
            s0 = len(e.L)
            step(e, ii, chains_for(ii), last_row, prev_tags=(lambda f, ii=ii: f"b{ii}_{f}"))
            seg.append(e.L[s0:])
        e.L = e.L[:start]
        for k in range(4, nst):
            a, b = seg[k % 4], seg[k]
            assert len(a) == len(b), f"non periodic step {steady[k]}"
            for j in range(len(a)):
                if a[j] != b[j]:
                    ma = re.fullmatch(r"  s_waitcnt vmcnt\((\d+)\)", a[j]); mb = re.fullmatch(r"  s_waitcnt vmcnt\((\d+)\)", b[j])
                    assert ma and mb, (a[j], b[j])
                    a[j] = f"  s_waitcnt vmcnt({min(int(ma.group(1)), int(mb.group(1)))})"
        full, rem = divmod(nst, 4)
        assert rem != 0
        e.A(f"s_mov_b32 s{S_CNT}, {full}")
        e.raw(".p2align 3")
        e.raw("L_loop:")
        for k in range(4):
            if k == rem:
                e.A(f"s_cmp_eq_u32 s{S_CNT}, 0")
                e.A("s_cbranch_scc1 L_down")
                e.A(f"s_sub_u32 s{S_CNT}, s{S_CNT}, 1")
            e.L.extend(seg[k])
        e.A("s_branch L_loop")
        e.raw("L_down:")
        e.lstamp("loopend")
        i = n
        while i <= last_row:
            step(e, i, chains_for(i), last_row, prev_tags=(lambda f, i=i: f"b{i}_{f}")); i += 1
    if cfg.spin:
        e.lstamp("mfmaend"); e.A("s_waitcnt vmcnt(0) lgkmcnt(0)")
        ia, ib, K = e.lnames.index(cfg.spin[0]), e.lnames.index(cfg.spin[1]), cfg.spin[2]
        e.A(f"s_sub_u32 s50, s{64+2*ib}, s{64+2*ia}")
        e.A(f"s_mul_i32 s50, s50, {K}")
        e.A("s_memtime s[52:53]"); e.A("s_waitcnt lgkmcnt(0)")
        e.raw("L_spin:")
        e.A("s_memtime s[54:55]"); e.A("s_waitcnt lgkmcnt(0)")
        e.A("s_sub_u32 s51, s54, s52"); e.A("s_cmp_lt_u32 s51, s50"); e.A("s_cbranch_scc1 L_spin")
    elif cfg.lst:
        e.lstamp("mfmaend"); e.A("s_waitcnt vmcnt(0)"); e.lstamp("drain")
        e.A("s_memrealtime s[62:63]")
        e.A("s_waitcnt lgkmcnt(0)")
        e.A(f"s_load_dwordx2 s[{S_WS}:{S_WS+1}], s[0:1], 32")
        e.A(f"v_mov_b32 v{V_ST}, 0")
        for k in range(e.nl): e.A(f"v_writelane_b32 v{V_ST}, s{64+2*k}, {k}")
        e.A(f"v_writelane_b32 v{V_ST}, s60, 62"); e.A(f"v_writelane_b32 v{V_ST}, s62, 63")
        e.A("s_waitcnt lgkmcnt(0)")
        e.A(f"s_lshl_b32 s{S_T0}, s2, 2")
        e.A(f"s_add_u32 s{S_T0}, s{S_T0}, s{S_WAVE}")
        e.A(f"s_lshl_b32 s{S_T0}, s{S_T0}, 8")
        e.A(f"s_add_u32 s{S_WS}, s{S_WS}, s{S_T0}")
        e.A(f"s_addc_u32 s{S_WS+1}, s{S_WS+1}, 0")
        e.A("v_lshlrev_b32 v1, 2, v0")
        e.A(f"global_store_dword v1, v{V_ST}, s[{S_WS}:{S_WS+1}]")
        print("lstamps:", e.nl, e.lnames)
    if cfg.endwait: e.A("s_waitcnt vmcnt(0)")
    e.raw("L_end:")
    e.A("s_endpgm")
    e.raw("L_code_end:")
    e.raw('.section .rodata,"a"')
    e.raw(".p2align 6")
    e.raw(".amdhsa_kernel standalone__fft_conv__vision_kernel")
    for l in ("next_free_vgpr 512", "next_free_sgpr 100", "accum_offset 256", "group_segment_fixed_size 0", "kernarg_size 40",
              "user_sgpr_count 2", "user_sgpr_kernarg_segment_ptr 1", "system_sgpr_workgroup_id_x 1"):
        e.raw("  .amdhsa_" + l)
    e.raw(".end_amdhsa_kernel")
    out = []
    for l in e.L:
        if " lds" in l and "buffer_load" in l and out and re.search(r"\bm0,", out[-1]): out.append("  s_nop 0")
        out.append(l)
    e.L = out
    import subprocess, tempfile, os
    size = 0x7fff
    for _ in range(2):
        txt = "\n".join(l.replace("CODE_BYTES", str(size)) for l in e.L) + "\n"
        with tempfile.TemporaryDirectory() as td:
            open(td + "/k.s", "w").write(txt)
            subprocess.run(["clang", "-x", "assembler", "-target", "amdgcn-amd-amdhsa", "-mcpu=gfx950", "-c", td + "/k.s", "-o", td + "/k.o"], check=True)
            dis = subprocess.run(["llvm-objdump", "-d", "--mcpu=gfx950", td + "/k.o"], capture_output=True, text=True).stdout
        sym = {}
        for l in dis.splitlines():
            m_ = re.match(r"([0-9a-f]{16}) <(.*)>:", l)
            if m_: sym[m_.group(2)] = int(m_.group(1), 16)
        size = sym["L_end"] + 4 - sym["standalone__fft_conv__vision_kernel"]
        assert size - 4 > sym["L_pc"] - sym["standalone__fft_conv__vision_kernel"] if "L_pc" in sym else True
    e.code_size = size
    e.L = [l.replace("CODE_BYTES", str(size)) for l in e.L]
    open(cfg.name, "w").write("\n".join(e.L) + "\n")
    return e

if __name__ == "__main__":
    ap = argparse.ArgumentParser()
    ap.add_argument("-o", default=Cfg.name)
    ap.add_argument("--lst", action="store_true")
    ap.add_argument("--noloop", action="store_true")
    ap.add_argument("--store", default="")
    ap.add_argument("--look", type=int, default=12)
    ap.add_argument("--early", type=int, default=8)
    ap.add_argument("--wearly", type=int, default=26)
    ap.add_argument("--nocodepf", action="store_true")
    ap.add_argument("--dpre", type=int, default=14)
    ap.add_argument("--early_calc", action="store_true")
    ap.add_argument("--endwait", action="store_true")
    ap.add_argument("--spin", default="")
    ap.add_argument("--codepf2", action="store_true")
    ap.add_argument("--codepf3", action="store_true")
    ap.add_argument("--codepf_all", action="store_true")
    ap.add_argument("--stepst", action="store_true")
    ap.add_argument("--dma_pos", type=int, default=18)
    ap.add_argument("--out_pos", type=int, default=0)
    ap.add_argument("--diag", action="store_true")
    ap.add_argument("--groups", default=Cfg.groups)
    ap.add_argument("--nprol", type=int, default=4)
    ap.add_argument("--direct", default="4,5")
    ap.add_argument("--pf_rows", default="6,2")
    ap.add_argument("--stream", default="4,5,6,7")
    ap.add_argument("--deferred", default="3,8,2,9,1,10,0,11")
    ap.add_argument("--def_plan", default=Cfg.def_plan)
    ap.add_argument("--pfw_split", type=int, default=15)
    ap.add_argument("--pfwb_after", type=int, default=3)
    a = ap.parse_args()
    cfg = Cfg()
    cfg.name = a.o; cfg.lst = a.lst; cfg.loop = not a.noloop; cfg.store_flags = a.store
    cfg.direct = [int(x) for x in a.direct.split(",")]; cfg.pf_rows = tuple(int(x) for x in a.pf_rows.split(","))
    cfg.stream = [int(x) for x in a.stream.split(",")]; cfg.deferred = [int(x) for x in a.deferred.split(",")]; cfg.def_plan = a.def_plan
    cfg.groups = a.groups; cfg.nprol = a.nprol; cfg.pfw_split = a.pfw_split; cfg.pfwb_after = a.pfwb_after; cfg.diag = a.diag; cfg.dma_pos = a.dma_pos; cfg.out_pos = a.out_pos; cfg.stepst = a.stepst; cfg.codepf2 = a.codepf2; cfg.codepf_all = a.codepf_all; cfg.codepf3 = a.codepf3; cfg.spin = (lambda p: (p[0], p[1], int(p[2])) )(a.spin.split("/")) if a.spin else None
    if cfg.spin: cfg.lst = True
    cfg.endwait = a.endwait; cfg.late_calc = not a.early_calc; cfg.dpre = a.dpre; cfg.look = a.look; cfg.early = a.early; cfg.wearly = a.wearly; cfg.codepf = not a.nocodepf
    e = build(cfg)
    print("lines", len(e.L), "LDS", LDS_BYTES, "code", e.code_size)
```

```python
import sys, argparse, re

class Cfg:
    nrows = 19
    RA = 8
    store_flags = ""
    lst = False
    loop = True
    look = 12
    early = 8
    wearly = 26
    codepf = True
    omajor = True
    skipdup = True
    dpre = 14
    late_calc = True
    endwait = False
    spin = None
    codepf2 = False
    codepf3 = False
    codepf_all = False
    stepst = False
    dma_pos = 18
    out_pos = 0
    diag = False
    groups = "x4,x5,w0|x6,x7|w1|w2"
    direct = [4, 5]
    pf_rows = (6, 2)
    stream = [4, 5, 6, 7]
    deferred = [3, 8, 2, 9, 1, 10, 0, 11]
    nprol = 4
    pfw_split = 15
    pfwb_after = 3
    def_plan = "11:3,8|12:2,9|14:1,10"
    align12 = True
    name = "standalone__fft_conv__vision.s"

H = W = 224
ROWB = W * 192
XBYTES = H * ROWB
WBYTES = 460800
SLOTB = 7168
NA = 12
XR = NA * SLOTB
X2 = 10 * SLOTB
WS = XR + 4 * SLOTB
WSLOT = 10240
NWS = 4
DUMMY = WS + NWS * WSLOT
LDS_BYTES = DUMMY + 1024

S_X, S_Wt, S_O = 8, 12, 16
S_WS = 20
S_WAVE = 22
S_X0, S_X1, S_XM = 23, 24, 25
S_XBASE, S_XROW, S_OROW, S_CNT = 26, 27, 28, 29
S_T0, S_T1, S_T2, S_T3 = 30, 31, 32, 33
S_WM, S_G, S_W0, S_WM2, S_WMM = 34, 35, 36, 37, 38
S_T4, S_T5 = 39, 40
S_PC = 44
S_CPO = 48
S_DUP = 49
S_LAST = 41
V_XAA = 2; V_XAR = 7
V_XD0, V_XD1 = 12, 13
V_WD, V_TR, V_OUT, V_PF = 14, 15, 16, 17
V_T = 18
V_O = 24
V_ST = 28
V_ACC = 32
V_B = 48
V_ACCA = 168
V_PFX = 200
V_PFD = 202
V_PF2 = 206
V_CPF = 207
V_WT = 212

def wreg(kh, f, lo=None):
    i = kh * 15 + f
    if i < 64: base, t = 4 * i, "a"
    else: base, t = V_WT + 4 * (i - 64), "v"
    if lo is None: return f"{t}[{base}:{base+3}]"
    return f"{t}[{base+lo}:{base+lo+1}]"
def breg(row, f):
    b = V_B + (row % 2) * 60 + 4 * f
    return f"v[{b}:{b+3}]"
def acc(o): return V_ACC + 4 * (o % 4)
def xlds(row): return row * SLOTB if row < NA else XR + ((row - NA) % 4) * SLOTB
def xslot(row):
    a = xlds(row)
    return ("A", a) if a < X2 else ("R", a - X2)

class Em:
    def __init__(self, cfg):
        self.cfg = cfg; self.L = []
        self.vm = []; self.vm_done = 0
        self.lg = []; self.lg_done = 0; self.lg_pos = []
        self.pos = 0
        self.nl = 0; self.lnames = []
    def A(self, s): self.L.append("  " + s)
    def raw(self, s): self.L.append(s)
    def mfma(self, s): self.A(s); self.pos += 1
    def vmem(self, s, tag): self.A(s); self.vm.append(tag)
    def lds(self, s, tag): self.A(s); self.lg.append(tag); self.lg_pos.append(self.pos)
    def vm_need(self, tags):
        idx = -1
        for tag in tags:
            assert tag in self.vm, (tag, self.vm)
            idx = max(idx, max(i for i, t in enumerate(self.vm) if t == tag))
        return idx
    def wait_vm(self, *tags, force=False):
        idx = self.vm_need(tags)
        if idx < self.vm_done and not force: return False
        n = min(len(self.vm) - 1 - idx, 63)
        self.A(f"s_waitcnt vmcnt({n})"); self.vm_done = max(self.vm_done, len(self.vm) - n)
        return True
    def wait_lg(self, *tags, age=None):
        idx = -1
        for tag in tags:
            assert tag in self.lg, tag
            idx = max(idx, max(i for i, t in enumerate(self.lg) if t == tag))
        if idx < self.lg_done: return False
        if age is not None:
            for i in range(idx + 1, len(self.lg)):
                if self.pos - self.lg_pos[i] >= age: idx = i
        n = min(len(self.lg) - 1 - idx, 15)
        self.A(f"s_waitcnt lgkmcnt({n})"); self.lg_done = len(self.lg) - n
        return True
    def lstamp(self, name=""):
        if not self.cfg.lst: return
        if self.cfg.stepst and not (name.startswith("step") or name in ("start", "rampend", "mfmaend", "drain")): return
        k = self.nl
        if k >= 18: return
        self.A(f"s_memtime s[{64+2*k}:{65+2*k}]")
        self.lnames.append(name); self.nl = k + 1

def x_ops(e, row, seq=False):
    base = xlds(row); ops = []
    I = lambda s: (lambda: e.A(s))
    if not seq:
        ops += [I(f"s_add_u32 s{S_T0}, s{S_XBASE}, {row*ROWB}"), I(f"s_sub_u32 s{S_T1}, s{S_T0}, {XBYTES}"),
                I(f"s_min_u32 s{S_XROW}, s{S_T0}, s{S_T1}")]
    ops += [I(f"s_add_u32 m0, s{S_X0}, {base}"),
            lambda: e.vmem(f"buffer_load_dwordx4 v{V_XD0}, s[{S_X}:{S_X+3}], s{S_XROW} offen lds", f"x{row}")]
    if base: ops += [I(f"s_and_b32 s{S_T2}, s{S_XM}, {base}"), I(f"s_add_u32 m0, s{S_X1}, s{S_T2}")]
    else: ops += [I(f"s_mov_b32 m0, s{S_X1}")]
    ops += [lambda: e.vmem(f"buffer_load_dwordx4 v{V_XD1}, s[{S_X}:{S_X+3}], s{S_XROW} offen lds", f"x{row}")]
    if seq:
        ops += [I(f"s_add_u32 s{S_XROW}, s{S_XROW}, {ROWB}"), I(f"s_sub_u32 s{S_T1}, s{S_XROW}, {XBYTES}"),
                I(f"s_min_u32 s{S_XROW}, s{S_XROW}, s{S_T1}")]
    return ops
def w_ops(e, s):
    ops = []
    I = lambda t: (lambda: e.A(t))
    for m in range(3):
        off = (s % NWS) * WSLOT
        ops.append(I(f"s_mov_b32 s{S_T3}, {(32*s + 960*m)*192}"))
        if m < 2: ops.append(I(f"s_add_u32 m0, s{S_WM}, {off + 4*m*1024}"))
        elif off: ops += [I(f"s_and_b32 s{S_T4}, s{S_WMM}, {off}"), I(f"s_add_u32 m0, s{S_WM2}, s{S_T4}")]
        else: ops.append(I(f"s_mov_b32 m0, s{S_WM2}"))
        ops.append(lambda m=m: e.vmem(f"buffer_load_dwordx4 v{V_WD}, s[{S_Wt}:{S_Wt+3}], s{S_T3} offen lds", f"w{s}"))
    return ops
def emit_now(e, ops):
    for op in ops:
        n0 = len(e.L)
        prev = e.L[-1]
        tmp = len(e.L); op()
        if " lds" in e.L[-1] and re.search(r"\bm0,", e.L[tmp-1]):
            e.L.insert(tmp, "  s_nop 0")

def prologue(e):
    c = e.cfg; A = e.A
    t0, t1, t2, t3 = V_T, V_T+1, V_T+2, V_T+3
    A("s_cmp_ge_u32 s2, 252")
    A("s_cbranch_scc1 L_end")
    A("s_load_dwordx4 s[4:7], s[0:1], 0")
    A(f"s_load_dwordx2 s[{S_O}:{S_O+1}], s[0:1], 16")
    e.lstamp("start")
    if c.lst: A("s_memrealtime s[60:61]")
    A("v_lshrrev_b32 v1, 6, v0")
    A("v_and_b32 v0, 63, v0")
    A(f"v_readfirstlane_b32 s{S_WAVE}, v1")
    A(f"s_lshr_b32 s{S_T0}, s2, 3")
    A(f"s_and_b32 s{S_T1}, s2, 7")
    A(f"s_mul_i32 s{S_T2}, s{S_T0}, 86")
    A(f"s_lshl_b32 s{S_T4}, s{S_T0}, 2")
    A(f"s_lshr_b32 s{S_T2}, s{S_T2}, 8")
    A(f"s_mul_i32 s{S_T1}, s{S_T1}, 10")
    A(f"s_mul_i32 s{S_T3}, s{S_T2}, 3")
    A(f"s_add_u32 s{S_T1}, s{S_T1}, s{S_T2}")
    A(f"s_sub_u32 s{S_G}, s{S_T0}, s{S_T3}")
    A("s_cmp_lt_u32 s2, 240")
    A("s_cbranch_scc1 L_map_done")
    A(f"s_sub_u32 s{S_T0}, s2, 240")
    A(f"s_mul_i32 s{S_T2}, s{S_T0}, 86")
    A(f"s_lshr_b32 s{S_T2}, s{S_T2}, 8")
    A(f"s_mul_i32 s{S_T3}, s{S_T2}, 3")
    A(f"s_sub_u32 s{S_G}, s{S_T0}, s{S_T3}")
    A(f"s_add_u32 s{S_T1}, s{S_T2}, 80")
    e.raw("L_map_done:")
    A(f"s_add_u32 s{S_T4}, s{S_T4}, s{S_WAVE}")
    A(f"s_mul_i32 s{S_T2}, s{S_T1}, 9363")
    A(f"s_lshl_b32 s{S_T5}, s{S_WAVE}, 6")
    A(f"s_lshr_b32 s{S_T2}, s{S_T2}, 16")
    A(f"v_add_u32 v{t0}, s{S_T5}, v0")
    A(f"s_mul_i32 s{S_T3}, s{S_T2}, 7")
    A(f"s_sub_u32 s{S_T3}, s{S_T1}, s{S_T3}")
    A(f"s_mul_i32 s{S_T0}, s{S_T3}, 86")
    A(f"s_lshl_b32 s{S_W0}, s{S_T3}, 5")
    A(f"s_lshr_b32 s{S_T0}, s{S_T0}, 8")
    A(f"s_mul_i32 s{S_T0}, s{S_T0}, 3")
    A(f"s_sub_u32 s{S_T0}, s{S_T3}, s{S_T0}")
    A(f"s_add_u32 s{S_T1}, s{S_T2}, s{S_T0}")
    A(f"s_add_u32 s{S_T3}, s{S_T1}, 2")
    A(f"s_mul_i32 s{S_T3}, s{S_T3}, 86")
    A(f"s_lshr_b32 s{S_T3}, s{S_T3}, 8")
    A(f"s_cmp_ge_u32 s{S_T0}, 1")
    A(f"s_cselect_b32 s{S_T0}, 1, 0")
    A(f"s_sub_u32 s{S_T3}, s{S_T3}, s{S_T0}")
    A(f"s_mul_i32 s{S_T0}, s{S_T2}, 19")
    A(f"s_sub_u32 s{S_T0}, s{S_T0}, s{S_T3}")
    A(f"s_mul_i32 s{S_OROW}, s{S_T0}, {ROWB}")
    A(f"s_add_u32 s{S_XBASE}, s{S_OROW}, {(H-4)*ROWB}")
    A(f"s_mul_i32 s{S_LAST}, s{S_T1}, 86")
    A(f"s_lshr_b32 s{S_LAST}, s{S_LAST}, 8")
    A(f"s_mul_i32 s{S_LAST}, s{S_LAST}, 3")
    A(f"s_cmp_eq_u32 s{S_LAST}, s{S_T1}")
    A(f"s_cselect_b32 s{S_DUP}, 0, -1")
    A(f"s_cselect_b32 s{S_LAST}, 0x40000000, 0")
    A(f"s_add_u32 s{S_T0}, s{S_W0}, {W-4}")
    for pi in range(2):
        dst = V_XD0 if pi == 0 else V_XD1
        if pi: A(f"v_add_u32 v{t0}, 256, v{t0}")
        A(f"v_mul_u32_u24 v{t1}, 5462, v{t0}")
        A(f"v_lshrrev_b32 v{t1}, 16, v{t1}")
        A(f"v_mul_u32_u24 v{t2}, 12, v{t1}")
        A(f"v_lshrrev_b32 v{t3}, 1, v{t1}")
        A(f"v_sub_u32 v{t2}, v{t0}, v{t2}")
        A(f"v_and_b32 v{t3}, 2, v{t3}")
        A(f"v_add_u32 v{t1}, s{S_T0}, v{t1}")
        A(f"v_xor_b32 v{t2}, v{t2}, v{t3}")
        A(f"v_subrev_u32 v{t3}, {W}, v{t1}")
        A(f"v_min_u32 v{t1}, v{t1}, v{t3}")
        if pi: A(f"v_cmp_gt_u32 vcc, 432, v{t0}")
        A(f"v_mul_u32_u24 v{t1}, 192, v{t1}")
        A(f"v_lshl_add_u32 v{dst}, v{t2}, 4, v{t1}")
        if pi:
            A(f"v_mov_b32 v{t1}, 0x40000000")
            A(f"v_cndmask_b32 v{dst}, v{t1}, v{dst}, vcc")
    A(f"s_lshl_b32 s{S_X0}, s{S_WAVE}, 10")
    A(f"s_add_u32 s{S_X1}, s{S_X0}, 4096")
    A(f"s_cmp_eq_u32 s{S_WAVE}, 3")
    A(f"s_cselect_b32 s{S_X1}, {DUMMY}, s{S_X1}")
    A(f"s_cselect_b32 s{S_XM}, 0, -1")
    A(f"s_mov_b32 s{S_X+2}, {XBYTES}"); A(f"s_mov_b32 s{S_X+3}, 0x20000")
    A(f"s_mov_b32 s{S_Wt+2}, {WBYTES}"); A(f"s_mov_b32 s{S_Wt+3}, 0x20000")
    items = [it for g in c.groups.split("|") for it in g.split(",")]
    assert items[:len(c.direct)] == [f"x{r}" for r in c.direct]
    r0, nr = c.pf_rows
    A(f"v_mov_b32 v{V_T+5}, 0x40000000")
    if nr:
        nl = -(-nr * 18 // 4)
        A(f"s_mul_i32 s{S_T0}, s{S_WAVE}, {nl}")
        A(f"v_add_u32 v{t0}, s{S_T0}, v0")
        A(f"v_mul_u32_u24 v{t1}, 3641, v{t0}")
        A(f"s_mul_i32 s{S_T0}, s{S_G}, 18")
        A(f"v_lshrrev_b32 v{t1}, 16, v{t1}")
        A(f"v_mul_u32_u24 v{t2}, 18, v{t1}")
        A(f"v_sub_u32 v{t2}, v{t0}, v{t2}")
        A(f"v_add_u32 v{t2}, s{S_T0}, v{t2}")
        A(f"s_add_u32 s{S_T0}, s{S_W0}, {W-4}")
        A(f"v_lshlrev_b32 v{t2}, 7, v{t2}")
        A(f"s_mul_i32 s{S_T0}, s{S_T0}, 192")
        A(f"s_mov_b32 s{S_T1}, {ROWB}")
        A(f"v_add_u32 v{t2}, s{S_T0}, v{t2}")
        A(f"v_subrev_u32 v{t3}, {ROWB}, v{t2}")
        A(f"v_min_u32 v{t2}, v{t2}, v{t3}")
        A(f"v_add_u32 v{t3}, {r0}, v{t1}")
        A(f"v_mul_lo_u32 v{t3}, v{t3}, s{S_T1}")
        A(f"s_mov_b32 s{S_T2}, {XBYTES}")
        A(f"v_cmp_gt_u32 vcc, {nr*18}, v{t0}")
        A(f"v_add_u32 v{t3}, s{S_XBASE}, v{t3}")
        A(f"v_subrev_u32 v{t1}, s{S_T2}, v{t3}")
        A(f"v_min_u32 v{t3}, v{t3}, v{t1}")
        A(f"v_add_u32 v{t3}, v{t3}, v{t2}")
        A(f"v_cndmask_b32 v{t3}, v{V_T+5}, v{t3}, vcc")
        A(f"v_cmp_gt_u32 vcc, {nl}, v0")
        A("s_nop 1")
        A(f"v_cndmask_b32 v{V_PFX}, v{V_T+5}, v{t3}, vcc")
    def wpf(dst, s0, s1):
        per = (s1 - s0) * 48; tot = 5 * per
        nl = -(-tot // 128)
        if s0 == 0 and s1 == 15:
            A(f"s_mul_i32 s{S_T0}, s{S_T4}, {nl}")
            A(f"v_cmp_gt_u32 vcc, {nl}, v0")
            A(f"v_add_u32 v{t0}, s{S_T0}, v0")
            A(f"v_lshlrev_b32 v{t0}, 7, v{t0}")
            A(f"v_cndmask_b32 v{dst}, v{V_T+5}, v{t0}, vcc")
            return
        A(f"s_mul_i32 s{S_T0}, s{S_T4}, {nl}")
        A(f"v_add_u32 v{t0}, s{S_T0}, v0")
        sh = next(b for b in range(12, 23) if all((n_ * (-(-(1 << b) // per))) >> b == n_ // per for n_ in range(128 * nl + 64)))
        mg = -(-(1 << sh) // per)
        A(f"s_mov_b32 s{S_T1}, {mg}")
        A(f"v_mul_lo_u32 v{t1}, v{t0}, s{S_T1}")
        A(f"v_lshrrev_b32 v{t1}, {sh}, v{t1}")
        A(f"v_mul_u32_u24 v{t2}, {per}, v{t1}")
        A(f"v_sub_u32 v{t2}, v{t0}, v{t2}")
        A(f"v_lshlrev_b32 v{t2}, 7, v{t2}")
        A(f"v_mul_u32_u24 v{t1}, {92160}, v{t1}")
        A(f"v_cmp_gt_u32 vcc, {nl}, v0")
        A(f"v_add_u32 v{t2}, v{t2}, v{t1}")
        if s0: A(f"v_add_u32 v{t2}, {s0*6144}, v{t2}")
        else: A("s_nop 0")
        A(f"v_cndmask_b32 v{dst}, v{V_T+5}, v{t2}, vcc")
    wpf(V_PF, 0, c.pfw_split)
    if c.codepf:
        A(f"s_getpc_b64 s[{S_PC}:{S_PC+1}]")
        e.raw("L_pc:")
        A(f"s_sub_u32 s{S_PC}, s{S_PC}, L_pc-standalone__fft_conv__vision_kernel")
        A(f"s_subb_u32 s{S_PC+1}, s{S_PC+1}, 0")
        A(f"s_and_b32 s{S_PC+1}, s{S_PC+1}, 0xffff")
        A(f"s_mov_b32 s{S_PC+2}, CODE_BYTES")
        A(f"s_mov_b32 s{S_PC+3}, 0x20000")
        if c.codepf_all:
            A(f"v_lshlrev_b32 v{V_CPF}, 7, v0")
            A(f"s_lshl_b32 s{S_CPO}, s{S_WAVE}, 13")
        else:
            A(f"v_cmp_gt_u32 vcc, 2, v0")
            A(f"v_lshlrev_b32 v{t0}, 7, v0")
            A(f"s_lshl_b32 s{S_CPO}, s{S_T4}, 8")
            A(f"v_cndmask_b32 v{V_CPF}, v{V_T+5}, v{t0}, vcc")
    A(f"s_add_u32 s{S_WM}, s{S_X0}, {WS}")
    A(f"s_add_u32 s{S_WM2}, s{S_WM}, 8192")
    A(f"s_cmp_ge_u32 s{S_WAVE}, 2")
    A(f"s_cselect_b32 s{S_WM2}, {DUMMY}, s{S_WM2}")
    A(f"s_cselect_b32 s{S_WMM}, 0, -1")
    A(f"v_lshrrev_b32 v{t0}, 4, v0")
    A(f"v_bfe_u32 v{t1}, v0, 2, 2")
    A(f"v_lshl_add_u32 v{t1}, v{t0}, 3, v{t1}")
    A(f"v_and_b32 v{t0}, 1, v{t0}")
    A(f"v_mul_u32_u24 v{t1}, 192, v{t1}")
    A(f"v_lshlrev_b32 v{t0}, 1, v{t0}")
    A(f"v_and_b32 v{t2}, 3, v0")
    A(f"s_lshr_b32 s{S_T0}, s{S_WAVE}, 1")
    A(f"v_xor_b32 v{t2}, v{t2}, v{t0}")
    A(f"s_mul_i32 s{S_T0}, s{S_T0}, {480*192}")
    A(f"v_lshl_add_u32 v{t1}, v{t2}, 4, v{t1}")
    A(f"s_and_b32 s{S_T1}, s{S_WAVE}, 1")
    A(f"s_mul_i32 s{S_T1}, s{S_T1}, {4*192}")
    A(f"s_add_u32 s{S_T0}, s{S_T0}, s{S_T1}")
    A(f"s_lshl_b32 s{S_T1}, s{S_G}, 6")
    A(f"s_add_u32 s{S_T0}, s{S_T0}, s{S_T1}")
    A(f"v_add_u32 v{V_WD}, s{S_T0}, v{t1}")
    late = c.late_calc
    def tail_calc():
        if c.pfw_split < 15: wpf(V_PF2, c.pfw_split, 15)
        A(f"s_mov_b32 s{S_O+2}, {XBYTES}")
        A(f"s_mov_b32 s{S_O+3}, 0x20000")
        A(f"v_and_b32 v{V_T}, 15, v0")
        A(f"v_lshrrev_b32 v{V_T+1}, 4, v0")
        A(f"s_lshr_b32 s{S_T0}, s{S_WAVE}, 1")
        A(f"s_lshl_b32 s{S_T0}, s{S_T0}, 4")
        A(f"v_add_u32 v{V_T+4}, s{S_T0}, v{V_T}")
        for kw in range(5):
            A(f"v_add_u32 v{V_T+2}, {4-kw}, v{V_T+4}")
            A(f"v_lshrrev_b32 v{V_T+3}, 1, v{V_T+2}")
            A(f"v_and_b32 v{V_T+3}, 2, v{V_T+3}")
            A(f"v_xor_b32 v{V_T+3}, v{V_T+3}, v{V_T+1}")
            A(f"v_mul_u32_u24 v{V_T+2}, 192, v{V_T+2}")
            A(f"v_lshl_add_u32 v{V_XAA+kw}, v{V_T+3}, 4, v{V_T+2}")
            A(f"v_add_u32 v{V_XAR+kw}, {X2}, v{V_XAA+kw}")
        A(f"s_and_b32 s{S_T1}, s{S_WAVE}, 1")
        A(f"v_and_b32 v{V_T+2}, 1, v{V_T+1}")
        A(f"v_xor_b32 v{V_T+2}, s{S_T1}, v{V_T+2}")
        A(f"v_lshlrev_b32 v{V_T+2}, 5, v{V_T+2}")
        A(f"v_lshrrev_b32 v{V_T+3}, 2, v0")
        A(f"v_lshl_add_u32 v{V_T+2}, v{V_T+3}, 6, v{V_T+2}")
        A(f"v_and_b32 v{V_T+3}, 3, v0")
        A(f"v_lshl_add_u32 v{V_T+2}, v{V_T+3}, 3, v{V_T+2}")
        A(f"v_add_u32 v{V_TR}, {WS}, v{V_T+2}")
        A(f"v_add_u32 v{V_T+2}, s{S_W0}, v{V_T+4}")
        A(f"v_mul_u32_u24 v{V_T+2}, 192, v{V_T+2}")
        A(f"v_lshl_add_u32 v{V_T+2}, v{V_T+1}, 3, v{V_T+2}")
        A(f"s_lshl_b32 s{S_T0}, s{S_G}, 1")
        A(f"s_add_u32 s{S_T0}, s{S_T0}, s{S_T1}")
        A(f"s_lshl_b32 s{S_T0}, s{S_T0}, 5")
        A(f"v_add_u32 v{V_OUT}, s{S_T0}, v{V_T+2}")
    if not late: tail_calc()
    A("s_waitcnt lgkmcnt(0)")
    A(f"s_mov_b32 s{S_X}, s4"); A(f"s_mov_b32 s{S_X+1}, s5")
    A(f"s_mov_b32 s{S_Wt}, s6"); A(f"s_mov_b32 s{S_Wt+1}, s7")
    e.lstamp("karg")
    for r in c.direct: emit_now(e, x_ops(e, r))
    if c.pf_rows[1]: e.vmem(f"buffer_load_dword v{V_PFD}, v{V_PFX}, s[{S_X}:{S_X+3}], 0 offen", "pf")
    e.vmem(f"buffer_load_dword v{V_PFD+1}, v{V_PF}, s[{S_Wt}:{S_Wt+3}], 0 offen", "pf")
    if c.codepf: e.vmem(f"buffer_load_dword v{V_PFD+3}, v{V_CPF}, s[{S_PC}:{S_PC+3}], s{S_CPO} offen", "pf")
    e.lstamp("pf")
    for it in items[len(c.direct):c.nprol]:
        emit_now(e, x_ops(e, int(it[1:])) if it[0] == "x" else w_ops(e, int(it[1:])))
    if c.diag:
        e.lstamp("issued")
        nv = len(e.vm)
        seen = []
        for idx_, tg in enumerate(e.vm):
            if idx_ + 1 < nv and e.vm[idx_ + 1] == tg and tg != "pf": continue
            A(f"s_waitcnt vmcnt({nv - 1 - idx_})"); e.lstamp(tg + "_back")
    if late: tail_calc()

def b_read_to(e, row, f, reg, tag):
    kw, cc = divmod(f, 3)
    kind, off = xslot(row)
    base = V_XAA if kind == "A" else V_XAR
    e.lds(f"ds_read_b128 {reg}, v{base+kw} offset:{off + cc*64}", tag)
def tr_read(e, s, kh, h):
    e.lds(f"ds_read_b64_tr_b16 {wreg(kh, s, 2*h)}, v{V_TR} offset:{(s % NWS)*WSLOT + (2*kh + h)*1024}", f"t{s}_{kh}")
def out_ops(e, a, pair, o):
    vo = V_O + 2 * pair
    pre = [lambda: e.A(f"s_add_u32 s{S_OROW}, s{S_OROW}, s{S_LAST}")] if o == e.cfg.nrows - 1 else []
    return pre + [lambda: e.A(f"v_cvt_pk_bf16_f32 v{vo}, v{a}, v{a+1}"),
            lambda: e.A(f"v_cvt_pk_bf16_f32 v{vo+1}, v{a+2}, v{a+3}"),
            lambda: e.vmem(f"buffer_store_dwordx2 v[{vo}:{vo+1}], v{V_OUT}, s[{S_O}:{S_O+3}], s{S_OROW} offen {e.cfg.store_flags}".rstrip(), f"o{o}"),
            lambda: e.A(f"s_add_u32 s{S_OROW}, s{S_OROW}, {ROWB}")]

class Gaps:
    def __init__(self, M, cap=1):
        self.M = M; self.g = [[] for _ in range(M)]; self.cap = cap
    def put(self, p, fn):
        self.g[min(max(p, 0), self.M - 1)].append(fn)
    def seq(self, ops, start, step=1, cap=None):
        cap = self.cap if cap is None else cap
        p = start
        for op in ops:
            while p < self.M - 1 and len(self.g[p]) >= cap: p += 1
            self.put(p, op); p = min(p + step, self.M - 1) if p < self.M - 1 else p
        return p

def block_a(e):
    c = e.cfg; RA = c.RA
    def khs(i): return [kh for kh in range(5) if 0 <= i - 4 + kh < RA]
    stream = list(c.stream)
    groups = [g.split(",") for g in c.groups.split("|")]
    nextw = 1 + max(int(it[1:]) for g in groups for it in g if it[0] == "w")
    groups += [[f"w{s}"] for s in range(nextw, 15)]
    order = []; rows_av = []; s_av = []; sched = set()
    mk_items = {}
    for gi, g in enumerate(groups):
        order.append(("M", gi)); mk_items[gi] = g
        for it in g:
            (rows_av if it[0] == "x" else s_av).append(int(it[1:]))
        for s in sorted(s_av):
            for r in sorted(rows_av, key=lambda r: (-len(khs(r)), r)):
                if (r, s) not in sched: sched.add((r, s)); order.append((r, s))
    assert len(sched) == len(stream) * 15
    w_marker = {int(it[1:]): gi for gi, g in mk_items.items() for it in g if it[0] == "w"}
    row_marker = {int(it[1:]): gi for gi, g in mk_items.items() for it in g if it[0] == "x"}
    nearly = len(c.groups.split("|"))
    mf = []; first = {}; mpos = {}
    def flush_group(grp, flip):
        if not c.omajor:
            for ent in grp:
                for kh in khs(ent[0]): mf.append((ent, kh))
            return
        for s_ in sorted(set(ent[1] for ent in grp)):
            lst = [(ent, kh) for ent in grp if ent[1] == s_ for kh in khs(ent[0])]
            lst.sort(key=lambda z: (z[0][0] - 4 + z[1], z[0][0]), reverse=flip[0])
            flip[0] = not flip[0]
            mf.extend(lst)
    grp = []; flip = [False]
    for ent in order + [("M", None)]:
        if ent[0] == "M":
            flush_group(grp, flip); grp = []
            if ent[1] is not None: mpos[ent[1]] = len(mf)
        else: grp.append(ent)
    for q_, (ent, kh) in enumerate(mf): first.setdefault(ent, q_)
    M = len(mf)
    mark_at = {}; prev = 0
    for p in sorted(mpos):
        q = mpos[p]
        if p >= nearly: q = max(prev, mpos[p] - c.wearly)
        elif p >= 1: q = max(prev, mpos[p] - c.early)
        mark_at[p] = q; prev = q
    tasks = []
    pairs = [ent for ent in order if ent[0] != "M"]
    last_use = {}
    for q, (ent, kh) in enumerate(mf): last_use[ent] = q
    for ent in pairs:
        tasks.append(dict(kind="b", ent=ent, ready=mark_at[row_marker[ent[0]]], due=first[ent], done=False))
    for s in range(15):
        for kh in range(5):
            due = min(q for q, (ent, k2) in enumerate(mf) if ent[1] == s and k2 == kh)
            for h in range(2):
                tasks.append(dict(kind="t", s=s, kh=kh, h=h, ready=mark_at[w_marker[s]], due=due, done=False))
    tasks.sort(key=lambda t: (t["due"], 0 if t["kind"] == "t" else 1))
    bslots = [None] * 15; bfree_at = [-1] * 15; bassign = {}
    def issue(t, q):
        if t["kind"] == "t": tr_read(e, t["s"], t["kh"], t["h"])
        else:
            k = min(range(15), key=lambda j: bfree_at[j])
            if bfree_at[k] >= q and bslots[k] is not None: return False
            ent = t["ent"]
            bslots[k] = ent; bfree_at[k] = last_use[ent]; bassign[ent] = k
            reg = V_B + 60 + 4 * k
            b_read_to(e, ent[0], ent[1], f"v[{reg}:{reg+3}]", f"pb{ent[0]}_{ent[1]}")
        t["done"] = True
        return True
    items = [it for g in c.groups.split("|") for it in g.split(",")]
    dplan = {}
    rest = [(it[0], int(it[1:])) for it in items[c.nprol:]]
    issued_w = [int(it[1:]) for it in items if it[0] == "w"]
    dplan[0] = list(rest)
    for s in range(max(issued_w) + 1, min(4, 15)): dplan[0].append(("w", s))
    for s in range(max(max(issued_w) + 1, 4), 15):
        dplan.setdefault(w_marker[s - 3], []).append(("w", s))
    if c.pfw_split < 15: dplan.setdefault(w_marker[c.pfwb_after], []).append(("pfw", 0))
    planned = []
    for part in c.def_plan.split("|"):
        wm, rows_ = part.split(":")
        rows_ = [int(r) for r in rows_.split(",")]
        dplan.setdefault(w_marker[int(wm)], []).extend([("x", r) for r in rows_]); planned += rows_
    late_rows = [r for r in c.deferred if r not in planned] + [12, 13]
    def ops_of(kind, a):
        if kind == "x": return x_ops(e, a)
        if kind == "w": return w_ops(e, a)
        return [lambda: e.vmem(f"buffer_load_dword v{V_PFD+2}, v{V_PF2}, s[{S_Wt}:{S_Wt+3}], 0 offen", "pf")]
    dq = []
    marks_sorted = sorted(mark_at)
    for p in marks_sorted:
        ops = []
        for kind, a in dplan.get(p, []): ops += ops_of(kind, a)
        if not ops: continue
        lo = mark_at[p]; hi = mark_at[p+1] if p + 1 in mark_at else M - 2
        span = 0 if p < nearly - 1 else max(hi - lo - len(ops) // 2, 0)
        for k, op in enumerate(ops): dq.append((lo + (k * span) // len(ops), op))
    dq.reverse()
    last_dma = [-10, False]
    def run_dma_op(force=False):
        _, op = dq.pop()
        n0 = len(e.L); op()
        if " lds" in e.L[-1] and re.search(r"\bm0,", e.L[n0-1]): e.L.insert(n0, "  s_nop 0")
    need = {p: list(mk_items[p]) for p in marks_sorted}
    prevw = {}
    for p in marks_sorted:
        ws = [int(it[1:]) for it in mk_items[p] if it[0] == "w"]
        if ws and ws[0] >= 1: prevw[p] = ws[0] - 1
    cnt = lambda tg: 3 if tg[0] == "w" else 2
    inited = set()
    deferred = list(c.deferred)
    par = len(deferred) % 2
    def setreg(k, f):
        b = V_B + ((k + par) % 2) * 60 + 4 * f
        return f"v[{b}:{b+3}]"
    vis = {}
    k0 = 0
    if par: vis[0] = [deferred[0]]; k0 = 1
    for k_ in range(k0, len(deferred), 2): vis[k_] = deferred[k_:k_+2]
    dpre = c.dpre if par == 0 else 0
    q_d = M - dpre if dpre else None
    d_issued = []
    pre = {}
    for p in marks_sorted:
        if p >= nearly:
            pre.setdefault(max(mark_at[p] - 2, mark_at[p-1] + 1), []).append(("vm", p))
            pre.setdefault(max(mark_at[p] - 1, mark_at[p-1] + 1), []).append(("lg", p))
    def do_vm(p):
        while not all(e.vm.count(tg) == cnt(tg) for tg in need[p]): run_dma_op()
        e.wait_vm(*need[p])
    def do_lg(p, q):
        if p not in prevw: return
        sp = prevw[p]
        for t in tasks:
            if t["kind"] == "t" and t["s"] == sp and not t["done"]: issue(t, q)
        idxs = [i_ for i_, tg in enumerate(e.lg) if tg.startswith(f"t{sp}_")]
        e.wait_lg(e.lg[max(idxs)])
    for q in range(M):
        for kind, p in pre.get(q, []):
            if mark_at[p] > q:
                (do_vm(p) if kind == "vm" else do_lg(p, q))
        for p in marks_sorted:
            if mark_at[p] == q:
                do_lg(p, q); do_vm(p)
                e.A("s_barrier")
                if p in (0, nearly - 1, w_marker[4], w_marker[9], w_marker[14]): e.lstamp(f"M{p}:" + ",".join(mk_items[p]))
        if q_d is not None and q == q_d:
            while not all(e.vm.count(f"x{r_}") == 2 for r_ in vis[0]): run_dma_op()
            e.wait_vm(*[f"x{r_}" for r_ in vis[0]]); e.A("s_barrier")
        ent, kh = mf[q]
        late = [t for t in tasks if not t["done"] and t["due"] <= q]
        if late:
            for t in late:
                assert t["ready"] <= q, (t, q)
                ok = issue(t, q); assert ok
            for t in tasks:
                if t["done"] or t["ready"] > q: continue
                if len(e.lg) - e.lg_done >= 13: break
                if t["kind"] == "b" and t["due"] - q > c.look: continue
                issue(t, q)
        n0 = len(e.L)
        e.wait_lg(f"t{ent[1]}_{kh}", f"pb{ent[0]}_{ent[1]}", age=5)
        o = ent[0] - 4 + kh; a = V_ACCA + 4 * o
        src = f"v[{a}:{a+3}]" if o in inited else "0"
        inited.add(o)
        reg = V_B + 60 + 4 * bassign[ent]
        e.mfma(f"v_mfma_f32_16x16x32_bf16 v[{a}:{a+3}], {wreg(kh, ent[1])}, v[{reg}:{reg+3}], {src}")
        budget = 2
        early_phase = q < mark_at[nearly - 1]
        if early_phase: budget = 4
        def try_lds():
            for t in tasks:
                if t["done"] or t["ready"] > q: continue
                if t["kind"] == "b" and t["due"] - q > c.look: continue
                if len(e.lg) - e.lg_done >= 14: return False
                if issue(t, q + 1): return True
            return False
        def try_dma():
            if dq and dq[-1][0] <= q: run_dma_op(); return True
            return False
        def try_d():
            if q_d is not None and q >= q_d and len(d_issued) < 15 and len(e.lg) - e.lg_done < 14:
                f = len(d_issued); d_issued.append(f)
                b_read_to(e, deferred[0], f, setreg(0, f), f"d0_{f}"); return True
            return False
        _lds = try_lds
        def try_lds(): return _lds() or try_d()
        turn = [try_lds, try_dma]
        k = 0
        while budget > 0:
            if turn[k % 2]() or turn[(k + 1) % 2](): budget -= 1; k += 1
            else: break
    while dq: run_dma_op()
    if c.codepf2: e.vmem(f"buffer_load_dword v{V_PFD+3}, v{V_CPF}, s[{S_PC}:{S_PC+3}], s{S_CPO} offen", "pf")
    e.lstamp("streamend")
    seq = deferred + [RA]
    if q_d is None:
        e.wait_vm(*[f"x{r_}" for r_ in vis[0]]); e.A("s_barrier")
    for f in range(len(d_issued), 15): b_read_to(e, seq[0], f, setreg(0, f), f"d0_{f}")
    for k, r in enumerate(deferred):
        mfs = []
        for kh in khs(r):
            o = r - 4 + kh; a = V_ACCA + 4 * o
            for f in range(15):
                src = f"v[{a}:{a+3}]" if o in inited else "0"
                inited.add(o)
                mfs.append((f, f"v_mfma_f32_16x16x32_bf16 v[{a}:{a+3}], {wreg(kh, f)}, {setreg(k, f)}, {src}"))
        Mk = len(mfs); nxt = seq[k + 1]
        G = Gaps(Mk)
        if (k + 1) in vis:
            e.wait_vm(*[f"x{r_}" for r_ in vis[k+1]]); e.A("s_barrier")
        span = max(Mk - 6, 15)
        for f in range(15): G.put(min((f * span) // 15, Mk - 1), (lambda f=f: b_read_to(e, nxt, f, setreg(k + 1, f), f"d{k+1}_{f}")))
        ntake = 2 if k < 1 else 1
        pos = 2
        for _ in range(ntake):
            if late_rows and Mk >= 30:
                pos = G.seq(x_ops(e, late_rows.pop(0)), pos, step=1, cap=2)
        for p_, (f, s_) in enumerate(mfs):
            if p_ < 15: e.wait_lg(f"d{k}_{f}", age=5)
            e.mfma(s_)
            for fn in G.g[p_]: fn()
    assert not late_rows, late_rows
    e.dtag = f"d{len(deferred)}"
    e.lstamp("defend")

def step(e, i, chains, last_row, extra_out=(), extra_dma=(), prev_tags=None, skip=None):
    c = e.cfg; RA = c.RA
    mf = []
    for kh in chains:
        o = i - 4 + kh; a = acc(o)
        for f in range(15):
            src = "0" if (kh == 4 and f == 0) else f"v[{a}:{a+3}]"
            mf.append((f, f"v_mfma_f32_16x16x32_bf16 v[{a}:{a+3}], {wreg(kh, f)}, {breg(i, f)}, {src}"))
    M = len(mf)
    U = M - 15 if skip else M
    G = Gaps(M)
    nxt = i + 1
    nn = i + 2
    did_bar = nxt <= last_row and nxt >= NA
    if did_bar: e.A("s_barrier")
    if nxt <= last_row:
        span = max(U - 9, 15) if U >= 15 else U
        for f in range(15): G.put(min((f * span) // 15, U - 1), (lambda f=f: b_read_to(e, nxt, f, breg(nxt, f), f"b{nxt}_{f}")))
    r4 = i + 4
    if i >= NA and r4 <= last_row: G.seq(x_ops(e, r4, seq=True), c.dma_pos, step=2)
    for r_ in extra_dma: G.seq(x_ops(e, r_), 1, step=1, cap=(2 if M <= 30 else 1))
    tail = []
    if 0 in chains and i - 4 >= RA:
        o = i - 4; endp = chains.index(0) * 15 + 14
        ops = out_ops(e, acc(o), 0, o)
        if endp + 14 < M: G.seq(ops, max(endp + 9, c.out_pos if M == 75 else 0), step=1)
        else: tail = ops
    for k, (a, o) in enumerate(extra_out):
        G.seq(out_ops(e, a, k % 2, o), (k * M) // max(len(extra_out), 1) + 1, step=1, cap=(2 if M <= 45 else 1))
    if nn <= last_row and nn >= NA:
        G.put(U - 3, lambda: e.wait_vm(f"x{nn}", force=(i >= NA)))
    short = U < 45
    lab = f"{i if i < NA or i >= c.nrows else 'l' + str((i - NA) % 4)}"
    for p, (f, s) in enumerate(mf):
        if skip and p == U:
            e.A(skip); e.A(f"s_cbranch_scc1 L_skip{lab}")
            mark = len(e.L)
        if prev_tags and p < 15: e.wait_lg(prev_tags(f), age=5)
        e.mfma(s)
        for fn in G.g[p]: fn()
        if p == U - 2 and nxt <= last_row and not short: e.wait_lg(f"b{nxt}_14")
    if skip:
        fill = [l for l in e.L[mark:] if "v_mfma" not in l]
        if fill:
            e.A(f"s_branch L_join{lab}")
            e.raw(f"L_skip{lab}:")
            if any("v_cvt" in l for l in fill): e.A("s_nop 7"); e.A("s_nop 1")
            e.L.extend(fill)
            e.raw(f"L_join{lab}:")
        else:
            e.raw(f"L_skip{lab}:")
    if tail:
        e.A("s_nop 7"); e.A("s_nop 1")
        for fn in tail: fn()
    if nxt <= last_row and short and (nn <= last_row and nn >= NA): e.wait_lg(f"b{nxt}_14")

def build(cfg):
    e = Em(cfg); n = cfg.nrows; RA = cfg.RA
    last_row = n + 3
    e.raw("; direct 5x5 circular convolution; weights stationary in registers; start block overlaps the weight arrival")
    e.raw(f"; @launch grid=(252,1,1) block=(256,1,1) lds={LDS_BYTES}")
    e.raw('.amdgcn_target "amdgcn-amd-amdhsa--gfx950"')
    e.raw(".text")
    e.raw(".globl standalone__fft_conv__vision_kernel")
    if cfg.align12: e.raw(".p2align 12")
    e.raw(".p2align 8")
    e.raw(".type standalone__fft_conv__vision_kernel,@function")
    e.raw("standalone__fft_conv__vision_kernel:")
    prologue(e)
    block_a(e)
    def chains_for(i): return [kh for kh in range(5) if RA <= i - 4 + kh < n]
    flush = {RA + 1: [0, 1], RA + 2: [2, 3, 4], RA + 3: [5, 6, 7]}
    predma = {RA: [14], RA + 1: [15]}
    i = RA
    while i < NA:
        ex = [(V_ACCA + 4 * o, o) for o in flush.get(i, [])]
        pt = (lambda f: f"{e.dtag}_{f}") if i == RA else (lambda f, i=i: f"b{i}_{f}")
        step(e, i, chains_for(i), last_row, ex, predma.get(i, []), pt); i += 1
    if cfg.codepf3: e.vmem(f"buffer_load_dword v{V_PFD+3}, v{V_CPF}, s[{S_PC}:{S_PC+3}], s{S_CPO} offen", "pf")
    e.lstamp("rampend")
    e.A(f"s_add_u32 s{S_T0}, s{S_XBASE}, {(NA+4)*ROWB}")
    e.A(f"s_sub_u32 s{S_T1}, s{S_T0}, {XBYTES}")
    e.A(f"s_min_u32 s{S_XROW}, s{S_T0}, s{S_T1}")
    def skip_of(ii):
        if not cfg.skipdup: return None
        if ii == n - 1 or (cfg.loop and NA <= ii < n and (ii - NA) % 4 == (n - 1 - NA) % 4):
            return f"s_cmp_eq_u32 s{S_CNT}, s{S_DUP}" if cfg.loop else f"s_cmp_eq_u32 s{S_DUP}, 0"
        if n <= ii < last_row: return f"s_cmp_eq_u32 s{S_DUP}, 0"
        return None
    def last_step(ii):
        if cfg.skipdup:
            e.A(f"s_cmp_eq_u32 s{S_DUP}, 0"); e.A("s_cbranch_scc1 L_done")
        step(e, ii, chains_for(ii), last_row, prev_tags=(lambda f, ii=ii: f"b{ii}_{f}"))
        if cfg.skipdup: e.raw("L_done:")
    if not cfg.loop:
        while i <= last_row:
            if i == last_row: last_step(i)
            else: step(e, i, chains_for(i), last_row, prev_tags=(lambda f, i=i: f"b{i}_{f}"), skip=skip_of(i))
            i += 1
            if i <= last_row: e.lstamp(f"step{i}")
    else:
        steady = list(range(NA, n)); nst = len(steady)
        start = len(e.L); seg = []
        for ii in steady:
            s0 = len(e.L)
            step(e, ii, chains_for(ii), last_row, prev_tags=(lambda f, ii=ii: f"b{ii}_{f}"), skip=skip_of(ii))
            seg.append(e.L[s0:])
        e.L = e.L[:start]
        for k in range(4, nst):
            a, b = seg[k % 4], seg[k]
            assert len(a) == len(b), f"non periodic step {steady[k]}"
            for j in range(len(a)):
                if a[j] != b[j]:
                    ma = re.fullmatch(r"  s_waitcnt vmcnt\((\d+)\)", a[j]); mb = re.fullmatch(r"  s_waitcnt vmcnt\((\d+)\)", b[j])
                    assert ma and mb, (a[j], b[j])
                    a[j] = f"  s_waitcnt vmcnt({min(int(ma.group(1)), int(mb.group(1)))})"
        full, rem = divmod(nst, 4)
        assert rem != 0 and full == 1
        e.A(f"s_mov_b32 s{S_CNT}, {full}")
        e.raw(".p2align 3")
        e.raw("L_loop:")
        for k in range(4):
            if k == rem:
                e.A(f"s_cmp_eq_u32 s{S_CNT}, 0")
                e.A("s_cbranch_scc1 L_down")
                e.A(f"s_sub_u32 s{S_CNT}, s{S_CNT}, 1")
            e.L.extend(seg[k])
        e.A("s_branch L_loop")
        e.raw("L_down:")
        e.lstamp("loopend")
        i = n
        while i <= last_row:
            if i == last_row: last_step(i)
            else: step(e, i, chains_for(i), last_row, prev_tags=(lambda f, i=i: f"b{i}_{f}"), skip=skip_of(i))
            i += 1
    if cfg.spin:
        e.lstamp("mfmaend"); e.A("s_waitcnt vmcnt(0) lgkmcnt(0)")
        ia, ib, K = e.lnames.index(cfg.spin[0]), e.lnames.index(cfg.spin[1]), cfg.spin[2]
        e.A(f"s_sub_u32 s50, s{64+2*ib}, s{64+2*ia}")
        e.A(f"s_mul_i32 s50, s50, {K}")
        e.A("s_memtime s[52:53]"); e.A("s_waitcnt lgkmcnt(0)")
        e.raw("L_spin:")
        e.A("s_memtime s[54:55]"); e.A("s_waitcnt lgkmcnt(0)")
        e.A("s_sub_u32 s51, s54, s52"); e.A("s_cmp_lt_u32 s51, s50"); e.A("s_cbranch_scc1 L_spin")
    elif cfg.lst:
        e.lstamp("mfmaend"); e.A("s_waitcnt vmcnt(0)"); e.lstamp("drain")
        e.A("s_memrealtime s[62:63]")
        e.A("s_waitcnt lgkmcnt(0)")
        e.A(f"s_load_dwordx2 s[{S_WS}:{S_WS+1}], s[0:1], 32")
        e.A(f"v_mov_b32 v{V_ST}, 0")
        for k in range(e.nl): e.A(f"v_writelane_b32 v{V_ST}, s{64+2*k}, {k}")
        e.A(f"v_writelane_b32 v{V_ST}, s60, 62"); e.A(f"v_writelane_b32 v{V_ST}, s62, 63")
        e.A("s_waitcnt lgkmcnt(0)")
        e.A(f"s_lshl_b32 s{S_T0}, s2, 2")
        e.A(f"s_add_u32 s{S_T0}, s{S_T0}, s{S_WAVE}")
        e.A(f"s_lshl_b32 s{S_T0}, s{S_T0}, 8")
        e.A(f"s_add_u32 s{S_WS}, s{S_WS}, s{S_T0}")
        e.A(f"s_addc_u32 s{S_WS+1}, s{S_WS+1}, 0")
        e.A("v_lshlrev_b32 v1, 2, v0")
        e.A(f"global_store_dword v1, v{V_ST}, s[{S_WS}:{S_WS+1}]")
        print("lstamps:", e.nl, e.lnames)
    if cfg.endwait: e.A("s_waitcnt vmcnt(0)")
    e.raw("L_end:")
    e.A("s_endpgm")
    e.raw("L_code_end:")
    e.raw('.section .rodata,"a"')
    e.raw(".p2align 6")
    e.raw(".amdhsa_kernel standalone__fft_conv__vision_kernel")
    for l in ("next_free_vgpr 512", "next_free_sgpr 100", "accum_offset 256", "group_segment_fixed_size 0", "kernarg_size 40",
              "user_sgpr_count 2", "user_sgpr_kernarg_segment_ptr 1", "system_sgpr_workgroup_id_x 1"):
        e.raw("  .amdhsa_" + l)
    e.raw(".end_amdhsa_kernel")
    out = []
    for l in e.L:
        if " lds" in l and "buffer_load" in l and out and re.search(r"\bm0,", out[-1]): out.append("  s_nop 0")
        out.append(l)
    e.L = out
    import subprocess, tempfile, os
    size = 0x7fff
    for _ in range(2):
        txt = "\n".join(l.replace("CODE_BYTES", str(size)) for l in e.L) + "\n"
        with tempfile.TemporaryDirectory() as td:
            open(td + "/k.s", "w").write(txt)
            subprocess.run(["clang", "-x", "assembler", "-target", "amdgcn-amd-amdhsa", "-mcpu=gfx950", "-c", td + "/k.s", "-o", td + "/k.o"], check=True)
            dis = subprocess.run(["llvm-objdump", "-d", "--mcpu=gfx950", td + "/k.o"], capture_output=True, text=True).stdout
        sym = {}
        for l in dis.splitlines():
            m_ = re.match(r"([0-9a-f]{16}) <(.*)>:", l)
            if m_: sym[m_.group(2)] = int(m_.group(1), 16)
        size = sym["L_end"] + 4 - sym["standalone__fft_conv__vision_kernel"]
        assert size - 4 > sym["L_pc"] - sym["standalone__fft_conv__vision_kernel"] if "L_pc" in sym else True
    e.code_size = size
    e.L = [l.replace("CODE_BYTES", str(size)) for l in e.L]
    open(cfg.name, "w").write("\n".join(e.L) + "\n")
    return e

if __name__ == "__main__":
    ap = argparse.ArgumentParser()
    ap.add_argument("-o", default=Cfg.name)
    ap.add_argument("--lst", action="store_true")
    ap.add_argument("--noloop", action="store_true")
    ap.add_argument("--store", default="")
    ap.add_argument("--look", type=int, default=12)
    ap.add_argument("--early", type=int, default=8)
    ap.add_argument("--wearly", type=int, default=26)
    ap.add_argument("--nocodepf", action="store_true")
    ap.add_argument("--no_omajor", action="store_true")
    ap.add_argument("--no_skipdup", action="store_true")
    ap.add_argument("--dpre", type=int, default=14)
    ap.add_argument("--early_calc", action="store_true")
    ap.add_argument("--endwait", action="store_true")
    ap.add_argument("--spin", default="")
    ap.add_argument("--codepf2", action="store_true")
    ap.add_argument("--codepf3", action="store_true")
    ap.add_argument("--codepf_all", action="store_true")
    ap.add_argument("--stepst", action="store_true")
    ap.add_argument("--dma_pos", type=int, default=18)
    ap.add_argument("--out_pos", type=int, default=0)
    ap.add_argument("--diag", action="store_true")
    ap.add_argument("--groups", default=Cfg.groups)
    ap.add_argument("--nprol", type=int, default=4)
    ap.add_argument("--direct", default="4,5")
    ap.add_argument("--pf_rows", default="6,2")
    ap.add_argument("--stream", default="4,5,6,7")
    ap.add_argument("--deferred", default="3,8,2,9,1,10,0,11")
    ap.add_argument("--def_plan", default=Cfg.def_plan)
    ap.add_argument("--pfw_split", type=int, default=15)
    ap.add_argument("--pfwb_after", type=int, default=3)
    a = ap.parse_args()
    cfg = Cfg()
    cfg.name = a.o; cfg.lst = a.lst; cfg.loop = not a.noloop; cfg.store_flags = a.store
    cfg.direct = [int(x) for x in a.direct.split(",")]; cfg.pf_rows = tuple(int(x) for x in a.pf_rows.split(","))
    cfg.stream = [int(x) for x in a.stream.split(",")]; cfg.deferred = [int(x) for x in a.deferred.split(",")]; cfg.def_plan = a.def_plan
    cfg.groups = a.groups; cfg.nprol = a.nprol; cfg.pfw_split = a.pfw_split; cfg.pfwb_after = a.pfwb_after; cfg.diag = a.diag; cfg.dma_pos = a.dma_pos; cfg.out_pos = a.out_pos; cfg.stepst = a.stepst; cfg.codepf2 = a.codepf2; cfg.codepf_all = a.codepf_all; cfg.codepf3 = a.codepf3; cfg.spin = (lambda p: (p[0], p[1], int(p[2])) )(a.spin.split("/")) if a.spin else None
    if cfg.spin: cfg.lst = True
    cfg.endwait = a.endwait; cfg.late_calc = not a.early_calc; cfg.dpre = a.dpre; cfg.omajor = not a.no_omajor; cfg.skipdup = not a.no_skipdup; cfg.look = a.look; cfg.early = a.early; cfg.wearly = a.wearly; cfg.codepf = not a.nocodepf
    e = build(cfg)
    print("lines", len(e.L), "LDS", LDS_BYTES, "code", e.code_size)
```

```python
import sys, argparse, re

class Cfg:
    nrows = 19
    RA = 8
    store_flags = ""
    lst = False
    loop = True
    look = 12
    early = 8
    wearly = 26
    codepf = True
    burst = 0
    merge = True
    omajor = True
    skipdup = True
    dpre = 14
    late_calc = True
    endwait = False
    spin = None
    codepf2 = False
    codepf3 = False
    codepf_all = False
    stepst = False
    dma_pos = 18
    out_pos = 0
    diag = False
    groups = "x4,x5,w0|x6,x7|w1|w2"
    direct = [4, 5]
    pf_rows = (6, 2)
    stream = [4, 5, 6, 7]
    deferred = [3, 8, 2, 9, 1, 10, 0, 11]
    nprol = 4
    pfw_split = 15
    pfwb_after = 3
    def_plan = "11:3,8|12:2,9|14:1,10"
    align12 = True
    name = "standalone__fft_conv__vision.s"

H = W = 224
ROWB = W * 192
XBYTES = H * ROWB
WBYTES = 460800
SLOTB = 7168
NA = 12
XR = NA * SLOTB
X2 = 10 * SLOTB
WS = XR + 4 * SLOTB
WSLOT = 10240
NWS = 4
DUMMY = WS + NWS * WSLOT
LDS_BYTES = DUMMY + 1024

S_X, S_Wt, S_O = 8, 12, 16
S_WS = 20
S_WAVE = 22
S_X0, S_X1, S_XM = 23, 24, 25
S_XBASE, S_XROW, S_OROW, S_CNT = 26, 27, 28, 29
S_T0, S_T1, S_T2, S_T3 = 30, 31, 32, 33
S_WM, S_G, S_W0, S_WM2, S_WMM = 34, 35, 36, 37, 38
S_T4, S_T5 = 39, 40
S_PC = 44
S_CPO = 48
S_DUP = 49
S_OB = 50
S_T6 = 51
S_LAST = 41
V_XAA = 2; V_XAR = 7
V_XD0, V_XD1 = 12, 13
V_WD, V_TR, V_OUT, V_PF = 14, 15, 16, 17
V_T = 18
V_O = 24
V_ST = 28
V_ACC = 32
V_B = 48
V_ACCA = 168
V_PFX = 200
V_PFD = 202
V_PF2 = 206
V_CPF = 207
V_WT = 212

def wreg(kh, f, lo=None):
    i = kh * 15 + f
    if i < 64: base, t = 4 * i, "a"
    else: base, t = V_WT + 4 * (i - 64), "v"
    if lo is None: return f"{t}[{base}:{base+3}]"
    return f"{t}[{base+lo}:{base+lo+1}]"
def breg(row, f):
    b = V_B + (row % 2) * 60 + 4 * f
    return f"v[{b}:{b+3}]"
RA_ACC = [0]
def acc(o): return V_ACCA + 4 * o if o < RA_ACC[0] else V_ACC + 4 * (o % 4)
def xlds(row): return row * SLOTB if row < NA else XR + ((row - NA) % 4) * SLOTB
def xslot(row):
    a = xlds(row)
    return ("A", a) if a < X2 else ("R", a - X2)

class Em:
    def __init__(self, cfg):
        self.cfg = cfg; self.L = []
        self.vm = []; self.vm_done = 0
        self.lg = []; self.lg_done = 0; self.lg_pos = []
        self.pos = 0
        self.nl = 0; self.lnames = []
    def A(self, s): self.L.append("  " + s)
    def raw(self, s): self.L.append(s)
    def mfma(self, s): self.A(s); self.pos += 1
    def vmem(self, s, tag): self.A(s); self.vm.append(tag)
    def lds(self, s, tag): self.A(s); self.lg.append(tag); self.lg_pos.append(self.pos)
    def vm_need(self, tags):
        idx = -1
        for tag in tags:
            assert tag in self.vm, (tag, self.vm)
            idx = max(idx, max(i for i, t in enumerate(self.vm) if t == tag))
        return idx
    def wait_vm(self, *tags, force=False):
        idx = self.vm_need(tags)
        if idx < self.vm_done and not force: return False
        n = min(len(self.vm) - 1 - idx, 63)
        self.A(f"s_waitcnt vmcnt({n})"); self.vm_done = max(self.vm_done, len(self.vm) - n)
        return True
    def wait_lg(self, *tags, age=None):
        idx = -1
        for tag in tags:
            assert tag in self.lg, tag
            idx = max(idx, max(i for i, t in enumerate(self.lg) if t == tag))
        if idx < self.lg_done: return False
        if age is not None:
            for i in range(idx + 1, len(self.lg)):
                if self.pos - self.lg_pos[i] >= age: idx = i
        n = min(len(self.lg) - 1 - idx, 15)
        self.A(f"s_waitcnt lgkmcnt({n})"); self.lg_done = len(self.lg) - n
        return True
    def lstamp(self, name=""):
        if not self.cfg.lst: return
        if self.cfg.stepst and not (name.startswith("step") or name in ("start", "rampend", "mfmaend", "drain")): return
        k = self.nl
        if k >= 18: return
        self.A(f"s_memtime s[{64+2*k}:{65+2*k}]")
        self.lnames.append(name); self.nl = k + 1

def x_ops(e, row, seq=False):
    base = xlds(row); ops = []
    I = lambda s: (lambda: e.A(s))
    if not seq:
        ops += [I(f"s_add_u32 s{S_T0}, s{S_XBASE}, {row*ROWB}"), I(f"s_sub_u32 s{S_T1}, s{S_T0}, {XBYTES}"),
                I(f"s_min_u32 s{S_XROW}, s{S_T0}, s{S_T1}")]
    ops += [I(f"s_add_u32 m0, s{S_X0}, {base}"),
            lambda: e.vmem(f"buffer_load_dwordx4 v{V_XD0}, s[{S_X}:{S_X+3}], s{S_XROW} offen lds", f"x{row}")]
    if base: ops += [I(f"s_and_b32 s{S_T2}, s{S_XM}, {base}"), I(f"s_add_u32 m0, s{S_X1}, s{S_T2}")]
    else: ops += [I(f"s_mov_b32 m0, s{S_X1}")]
    ops += [lambda: e.vmem(f"buffer_load_dwordx4 v{V_XD1}, s[{S_X}:{S_X+3}], s{S_XROW} offen lds", f"x{row}")]
    if seq:
        ops += [I(f"s_add_u32 s{S_XROW}, s{S_XROW}, {ROWB}"), I(f"s_sub_u32 s{S_T1}, s{S_XROW}, {XBYTES}"),
                I(f"s_min_u32 s{S_XROW}, s{S_XROW}, s{S_T1}")]
    return ops
def w_ops(e, s):
    ops = []
    I = lambda t: (lambda: e.A(t))
    for m in range(3):
        off = (s % NWS) * WSLOT
        ops.append(I(f"s_mov_b32 s{S_T3}, {(32*s + 960*m)*192}"))
        if m < 2: ops.append(I(f"s_add_u32 m0, s{S_WM}, {off + 4*m*1024}"))
        elif off: ops += [I(f"s_and_b32 s{S_T4}, s{S_WMM}, {off}"), I(f"s_add_u32 m0, s{S_WM2}, s{S_T4}")]
        else: ops.append(I(f"s_mov_b32 m0, s{S_WM2}"))
        ops.append(lambda m=m: e.vmem(f"buffer_load_dwordx4 v{V_WD}, s[{S_Wt}:{S_Wt+3}], s{S_T3} offen lds", f"w{s}"))
    return ops
def emit_now(e, ops):
    for op in ops:
        n0 = len(e.L)
        prev = e.L[-1]
        tmp = len(e.L); op()
        if " lds" in e.L[-1] and re.search(r"\bm0,", e.L[tmp-1]):
            e.L.insert(tmp, "  s_nop 0")

def prologue(e):
    c = e.cfg; A = e.A
    t0, t1, t2, t3 = V_T, V_T+1, V_T+2, V_T+3
    A("s_cmp_ge_u32 s2, 252")
    A("s_cbranch_scc1 L_end")
    A("s_load_dwordx4 s[4:7], s[0:1], 0")
    A(f"s_load_dwordx2 s[{S_O}:{S_O+1}], s[0:1], 16")
    e.lstamp("start")
    if c.lst: A("s_memrealtime s[60:61]")
    A("v_lshrrev_b32 v1, 6, v0")
    A("v_and_b32 v0, 63, v0")
    A(f"v_readfirstlane_b32 s{S_WAVE}, v1")
    A(f"s_lshr_b32 s{S_T0}, s2, 3")
    A(f"s_and_b32 s{S_T1}, s2, 7")
    A(f"s_mul_i32 s{S_T2}, s{S_T0}, 86")
    A(f"s_lshl_b32 s{S_T4}, s{S_T0}, 2")
    A(f"s_lshr_b32 s{S_T2}, s{S_T2}, 8")
    A(f"s_mul_i32 s{S_T1}, s{S_T1}, 10")
    A(f"s_mul_i32 s{S_T3}, s{S_T2}, 3")
    A(f"s_add_u32 s{S_T1}, s{S_T1}, s{S_T2}")
    A(f"s_sub_u32 s{S_G}, s{S_T0}, s{S_T3}")
    A("s_cmp_lt_u32 s2, 240")
    A("s_cbranch_scc1 L_map_done")
    A(f"s_sub_u32 s{S_T0}, s2, 240")
    A(f"s_mul_i32 s{S_T2}, s{S_T0}, 86")
    A(f"s_lshr_b32 s{S_T2}, s{S_T2}, 8")
    A(f"s_mul_i32 s{S_T3}, s{S_T2}, 3")
    A(f"s_sub_u32 s{S_G}, s{S_T0}, s{S_T3}")
    A(f"s_add_u32 s{S_T1}, s{S_T2}, 80")
    e.raw("L_map_done:")
    A(f"s_add_u32 s{S_T4}, s{S_T4}, s{S_WAVE}")
    A(f"s_mul_i32 s{S_T2}, s{S_T1}, 9363")
    A(f"s_lshl_b32 s{S_T5}, s{S_WAVE}, 6")
    A(f"s_lshr_b32 s{S_T2}, s{S_T2}, 16")
    A(f"v_add_u32 v{t0}, s{S_T5}, v0")
    A(f"s_mul_i32 s{S_T3}, s{S_T2}, 7")
    A(f"s_sub_u32 s{S_T3}, s{S_T1}, s{S_T3}")
    A(f"s_mul_i32 s{S_T0}, s{S_T3}, 86")
    A(f"s_lshl_b32 s{S_W0}, s{S_T3}, 5")
    A(f"s_lshr_b32 s{S_T0}, s{S_T0}, 8")
    A(f"s_mul_i32 s{S_T0}, s{S_T0}, 3")
    A(f"s_sub_u32 s{S_T0}, s{S_T3}, s{S_T0}")
    A(f"s_add_u32 s{S_T1}, s{S_T2}, s{S_T0}")
    A(f"s_add_u32 s{S_T3}, s{S_T1}, 2")
    A(f"s_mul_i32 s{S_T3}, s{S_T3}, 86")
    A(f"s_lshr_b32 s{S_T3}, s{S_T3}, 8")
    A(f"s_cmp_ge_u32 s{S_T0}, 1")
    A(f"s_cselect_b32 s{S_T0}, 1, 0")
    A(f"s_sub_u32 s{S_T3}, s{S_T3}, s{S_T0}")
    A(f"s_mul_i32 s{S_T0}, s{S_T2}, 19")
    A(f"s_sub_u32 s{S_T0}, s{S_T0}, s{S_T3}")
    A(f"s_mul_i32 s{S_OROW}, s{S_T0}, {ROWB}")
    A(f"s_add_u32 s{S_XBASE}, s{S_OROW}, {(H-4)*ROWB}")
    if c.merge:
        A(f"s_mov_b32 s{S_OB}, s{S_OROW}")
        A(f"s_add_u32 s{S_OROW}, s{S_OROW}, {4*ROWB}")
    A(f"s_mul_i32 s{S_LAST}, s{S_T1}, 86")
    A(f"s_lshr_b32 s{S_LAST}, s{S_LAST}, 8")
    A(f"s_mul_i32 s{S_LAST}, s{S_LAST}, 3")
    A(f"s_cmp_eq_u32 s{S_LAST}, s{S_T1}")
    A(f"s_cselect_b32 s{S_DUP}, 0, -1")
    A(f"s_cselect_b32 s{S_LAST}, 0x40000000, 0")
    A(f"s_add_u32 s{S_T0}, s{S_W0}, {W-4}")
    for pi in range(2):
        dst = V_XD0 if pi == 0 else V_XD1
        if pi: A(f"v_add_u32 v{t0}, 256, v{t0}")
        A(f"v_mul_u32_u24 v{t1}, 5462, v{t0}")
        A(f"v_lshrrev_b32 v{t1}, 16, v{t1}")
        A(f"v_mul_u32_u24 v{t2}, 12, v{t1}")
        A(f"v_lshrrev_b32 v{t3}, 1, v{t1}")
        A(f"v_sub_u32 v{t2}, v{t0}, v{t2}")
        A(f"v_and_b32 v{t3}, 2, v{t3}")
        A(f"v_add_u32 v{t1}, s{S_T0}, v{t1}")
        A(f"v_xor_b32 v{t2}, v{t2}, v{t3}")
        A(f"v_subrev_u32 v{t3}, {W}, v{t1}")
        A(f"v_min_u32 v{t1}, v{t1}, v{t3}")
        if pi: A(f"v_cmp_gt_u32 vcc, 432, v{t0}")
        A(f"v_mul_u32_u24 v{t1}, 192, v{t1}")
        A(f"v_lshl_add_u32 v{dst}, v{t2}, 4, v{t1}")
        if pi:
            A(f"v_mov_b32 v{t1}, 0x40000000")
            A(f"v_cndmask_b32 v{dst}, v{t1}, v{dst}, vcc")
    A(f"s_lshl_b32 s{S_X0}, s{S_WAVE}, 10")
    A(f"s_add_u32 s{S_X1}, s{S_X0}, 4096")
    A(f"s_cmp_eq_u32 s{S_WAVE}, 3")
    A(f"s_cselect_b32 s{S_X1}, {DUMMY}, s{S_X1}")
    A(f"s_cselect_b32 s{S_XM}, 0, -1")
    A(f"s_mov_b32 s{S_X+2}, {XBYTES}"); A(f"s_mov_b32 s{S_X+3}, 0x20000")
    A(f"s_mov_b32 s{S_Wt+2}, {WBYTES}"); A(f"s_mov_b32 s{S_Wt+3}, 0x20000")
    items = [it for g in c.groups.split("|") for it in g.split(",")]
    assert items[:len(c.direct)] == [f"x{r}" for r in c.direct]
    r0, nr = c.pf_rows
    A(f"v_mov_b32 v{V_T+5}, 0x40000000")
    if nr:
        nl = -(-nr * 18 // 4)
        A(f"s_mul_i32 s{S_T0}, s{S_WAVE}, {nl}")
        A(f"v_add_u32 v{t0}, s{S_T0}, v0")
        A(f"v_mul_u32_u24 v{t1}, 3641, v{t0}")
        A(f"s_mul_i32 s{S_T0}, s{S_G}, 18")
        A(f"v_lshrrev_b32 v{t1}, 16, v{t1}")
        A(f"v_mul_u32_u24 v{t2}, 18, v{t1}")
        A(f"v_sub_u32 v{t2}, v{t0}, v{t2}")
        A(f"v_add_u32 v{t2}, s{S_T0}, v{t2}")
        A(f"s_add_u32 s{S_T0}, s{S_W0}, {W-4}")
        A(f"v_lshlrev_b32 v{t2}, 7, v{t2}")
        A(f"s_mul_i32 s{S_T0}, s{S_T0}, 192")
        A(f"s_mov_b32 s{S_T1}, {ROWB}")
        A(f"v_add_u32 v{t2}, s{S_T0}, v{t2}")
        A(f"v_subrev_u32 v{t3}, {ROWB}, v{t2}")
        A(f"v_min_u32 v{t2}, v{t2}, v{t3}")
        A(f"v_add_u32 v{t3}, {r0}, v{t1}")
        A(f"v_mul_lo_u32 v{t3}, v{t3}, s{S_T1}")
        A(f"s_mov_b32 s{S_T2}, {XBYTES}")
        A(f"v_cmp_gt_u32 vcc, {nr*18}, v{t0}")
        A(f"v_add_u32 v{t3}, s{S_XBASE}, v{t3}")
        A(f"v_subrev_u32 v{t1}, s{S_T2}, v{t3}")
        A(f"v_min_u32 v{t3}, v{t3}, v{t1}")
        A(f"v_add_u32 v{t3}, v{t3}, v{t2}")
        A(f"v_cndmask_b32 v{t3}, v{V_T+5}, v{t3}, vcc")
        A(f"v_cmp_gt_u32 vcc, {nl}, v0")
        A("s_nop 1")
        A(f"v_cndmask_b32 v{V_PFX}, v{V_T+5}, v{t3}, vcc")
    def wpf(dst, s0, s1):
        per = (s1 - s0) * 48; tot = 5 * per
        nl = -(-tot // 128)
        if s0 == 0 and s1 == 15:
            A(f"s_mul_i32 s{S_T0}, s{S_T4}, {nl}")
            A(f"v_cmp_gt_u32 vcc, {nl}, v0")
            A(f"v_add_u32 v{t0}, s{S_T0}, v0")
            A(f"v_lshlrev_b32 v{t0}, 7, v{t0}")
            A(f"v_cndmask_b32 v{dst}, v{V_T+5}, v{t0}, vcc")
            return
        A(f"s_mul_i32 s{S_T0}, s{S_T4}, {nl}")
        A(f"v_add_u32 v{t0}, s{S_T0}, v0")
        sh = next(b for b in range(12, 23) if all((n_ * (-(-(1 << b) // per))) >> b == n_ // per for n_ in range(128 * nl + 64)))
        mg = -(-(1 << sh) // per)
        A(f"s_mov_b32 s{S_T1}, {mg}")
        A(f"v_mul_lo_u32 v{t1}, v{t0}, s{S_T1}")
        A(f"v_lshrrev_b32 v{t1}, {sh}, v{t1}")
        A(f"v_mul_u32_u24 v{t2}, {per}, v{t1}")
        A(f"v_sub_u32 v{t2}, v{t0}, v{t2}")
        A(f"v_lshlrev_b32 v{t2}, 7, v{t2}")
        A(f"v_mul_u32_u24 v{t1}, {92160}, v{t1}")
        A(f"v_cmp_gt_u32 vcc, {nl}, v0")
        A(f"v_add_u32 v{t2}, v{t2}, v{t1}")
        if s0: A(f"v_add_u32 v{t2}, {s0*6144}, v{t2}")
        else: A("s_nop 0")
        A(f"v_cndmask_b32 v{dst}, v{V_T+5}, v{t2}, vcc")
    wpf(V_PF, 0, c.pfw_split)
    if c.codepf:
        A(f"s_getpc_b64 s[{S_PC}:{S_PC+1}]")
        e.raw("L_pc:")
        A(f"s_sub_u32 s{S_PC}, s{S_PC}, L_pc-standalone__fft_conv__vision_kernel")
        A(f"s_subb_u32 s{S_PC+1}, s{S_PC+1}, 0")
        A(f"s_and_b32 s{S_PC+1}, s{S_PC+1}, 0xffff")
        A(f"s_mov_b32 s{S_PC+2}, CODE_BYTES")
        A(f"s_mov_b32 s{S_PC+3}, 0x20000")
        if c.codepf_all:
            A(f"v_lshlrev_b32 v{V_CPF}, 7, v0")
            A(f"s_lshl_b32 s{S_CPO}, s{S_WAVE}, 13")
        else:
            A(f"v_cmp_gt_u32 vcc, 2, v0")
            A(f"v_lshlrev_b32 v{t0}, 7, v0")
            A(f"s_lshl_b32 s{S_CPO}, s{S_T4}, 8")
            A(f"v_cndmask_b32 v{V_CPF}, v{V_T+5}, v{t0}, vcc")
    A(f"s_add_u32 s{S_WM}, s{S_X0}, {WS}")
    A(f"s_add_u32 s{S_WM2}, s{S_WM}, 8192")
    A(f"s_cmp_ge_u32 s{S_WAVE}, 2")
    A(f"s_cselect_b32 s{S_WM2}, {DUMMY}, s{S_WM2}")
    A(f"s_cselect_b32 s{S_WMM}, 0, -1")
    A(f"v_lshrrev_b32 v{t0}, 4, v0")
    A(f"v_bfe_u32 v{t1}, v0, 2, 2")
    A(f"v_lshl_add_u32 v{t1}, v{t0}, 3, v{t1}")
    A(f"v_and_b32 v{t0}, 1, v{t0}")
    A(f"v_mul_u32_u24 v{t1}, 192, v{t1}")
    A(f"v_lshlrev_b32 v{t0}, 1, v{t0}")
    A(f"v_and_b32 v{t2}, 3, v0")
    A(f"s_lshr_b32 s{S_T0}, s{S_WAVE}, 1")
    A(f"v_xor_b32 v{t2}, v{t2}, v{t0}")
    A(f"s_mul_i32 s{S_T0}, s{S_T0}, {480*192}")
    A(f"v_lshl_add_u32 v{t1}, v{t2}, 4, v{t1}")
    A(f"s_and_b32 s{S_T1}, s{S_WAVE}, 1")
    A(f"s_mul_i32 s{S_T1}, s{S_T1}, {4*192}")
    A(f"s_add_u32 s{S_T0}, s{S_T0}, s{S_T1}")
    A(f"s_lshl_b32 s{S_T1}, s{S_G}, 6")
    A(f"s_add_u32 s{S_T0}, s{S_T0}, s{S_T1}")
    A(f"v_add_u32 v{V_WD}, s{S_T0}, v{t1}")
    late = c.late_calc
    def tail_calc():
        if c.pfw_split < 15: wpf(V_PF2, c.pfw_split, 15)
        A(f"s_mov_b32 s{S_O+2}, {XBYTES}")
        A(f"s_mov_b32 s{S_O+3}, 0x20000")
        A(f"v_and_b32 v{V_T}, 15, v0")
        A(f"v_lshrrev_b32 v{V_T+1}, 4, v0")
        A(f"s_lshr_b32 s{S_T0}, s{S_WAVE}, 1")
        A(f"s_lshl_b32 s{S_T0}, s{S_T0}, 4")
        A(f"v_add_u32 v{V_T+4}, s{S_T0}, v{V_T}")
        for kw in range(5):
            A(f"v_add_u32 v{V_T+2}, {4-kw}, v{V_T+4}")
            A(f"v_lshrrev_b32 v{V_T+3}, 1, v{V_T+2}")
            A(f"v_and_b32 v{V_T+3}, 2, v{V_T+3}")
            A(f"v_xor_b32 v{V_T+3}, v{V_T+3}, v{V_T+1}")
            A(f"v_mul_u32_u24 v{V_T+2}, 192, v{V_T+2}")
            A(f"v_lshl_add_u32 v{V_XAA+kw}, v{V_T+3}, 4, v{V_T+2}")
            A(f"v_add_u32 v{V_XAR+kw}, {X2}, v{V_XAA+kw}")
        A(f"s_and_b32 s{S_T1}, s{S_WAVE}, 1")
        A(f"v_and_b32 v{V_T+2}, 1, v{V_T+1}")
        A(f"v_xor_b32 v{V_T+2}, s{S_T1}, v{V_T+2}")
        A(f"v_lshlrev_b32 v{V_T+2}, 5, v{V_T+2}")
        A(f"v_lshrrev_b32 v{V_T+3}, 2, v0")
        A(f"v_lshl_add_u32 v{V_T+2}, v{V_T+3}, 6, v{V_T+2}")
        A(f"v_and_b32 v{V_T+3}, 3, v0")
        A(f"v_lshl_add_u32 v{V_T+2}, v{V_T+3}, 3, v{V_T+2}")
        A(f"v_add_u32 v{V_TR}, {WS}, v{V_T+2}")
        A(f"v_add_u32 v{V_T+2}, s{S_W0}, v{V_T+4}")
        A(f"v_mul_u32_u24 v{V_T+2}, 192, v{V_T+2}")
        A(f"v_lshl_add_u32 v{V_T+2}, v{V_T+1}, 3, v{V_T+2}")
        A(f"s_lshl_b32 s{S_T0}, s{S_G}, 1")
        A(f"s_add_u32 s{S_T0}, s{S_T0}, s{S_T1}")
        A(f"s_lshl_b32 s{S_T0}, s{S_T0}, 5")
        A(f"v_add_u32 v{V_OUT}, s{S_T0}, v{V_T+2}")
    if not late: tail_calc()
    A("s_waitcnt lgkmcnt(0)")
    A(f"s_mov_b32 s{S_X}, s4"); A(f"s_mov_b32 s{S_X+1}, s5")
    A(f"s_mov_b32 s{S_Wt}, s6"); A(f"s_mov_b32 s{S_Wt+1}, s7")
    e.lstamp("karg")
    for r in c.direct: emit_now(e, x_ops(e, r))
    if c.pf_rows[1]: e.vmem(f"buffer_load_dword v{V_PFD}, v{V_PFX}, s[{S_X}:{S_X+3}], 0 offen", "pf")
    e.vmem(f"buffer_load_dword v{V_PFD+1}, v{V_PF}, s[{S_Wt}:{S_Wt+3}], 0 offen", "pf")
    if c.codepf: e.vmem(f"buffer_load_dword v{V_PFD+3}, v{V_CPF}, s[{S_PC}:{S_PC+3}], s{S_CPO} offen", "pf")
    e.lstamp("pf")
    for it in items[len(c.direct):c.nprol]:
        emit_now(e, x_ops(e, int(it[1:])) if it[0] == "x" else w_ops(e, int(it[1:])))
    if c.diag:
        e.lstamp("issued")
        nv = len(e.vm)
        seen = []
        for idx_, tg in enumerate(e.vm):
            if idx_ + 1 < nv and e.vm[idx_ + 1] == tg and tg != "pf": continue
            A(f"s_waitcnt vmcnt({nv - 1 - idx_})"); e.lstamp(tg + "_back")
    if late: tail_calc()

def b_read_to(e, row, f, reg, tag):
    kw, cc = divmod(f, 3)
    kind, off = xslot(row)
    base = V_XAA if kind == "A" else V_XAR
    e.lds(f"ds_read_b128 {reg}, v{base+kw} offset:{off + cc*64}", tag)
def tr_read(e, s, kh, h):
    e.lds(f"ds_read_b64_tr_b16 {wreg(kh, s, 2*h)}, v{V_TR} offset:{(s % NWS)*WSLOT + (2*kh + h)*1024}", f"t{s}_{kh}")
def out_ops(e, a, pair, o):
    vo = V_O + 2 * pair
    pre = [lambda: e.A(f"s_add_u32 s{S_OROW}, s{S_OROW}, s{S_LAST}")] if o == e.cfg.nrows - 1 else []
    return pre + [lambda: e.A(f"v_cvt_pk_bf16_f32 v{vo}, v{a}, v{a+1}"),
            lambda: e.A(f"v_cvt_pk_bf16_f32 v{vo+1}, v{a+2}, v{a+3}"),
            lambda: e.vmem(f"buffer_store_dwordx2 v[{vo}:{vo+1}], v{V_OUT}, s[{S_O}:{S_O+3}], s{S_OROW} offen {e.cfg.store_flags}".rstrip(), f"o{o}"),
            lambda: e.A(f"s_add_u32 s{S_OROW}, s{S_OROW}, {ROWB}")]

def out_ops_abs(e, a, pair, o):
    vo = V_O + 2 * pair
    return [lambda: e.A(f"s_add_u32 s{S_T6}, s{S_OB}, {o*ROWB}" if o else f"s_mov_b32 s{S_T6}, s{S_OB}"),
            lambda: e.A(f"v_cvt_pk_bf16_f32 v{vo}, v{a}, v{a+1}"),
            lambda: e.A(f"v_cvt_pk_bf16_f32 v{vo+1}, v{a+2}, v{a+3}"),
            lambda: e.vmem(f"buffer_store_dwordx2 v[{vo}:{vo+1}], v{V_OUT}, s[{S_O}:{S_O+3}], s{S_T6} offen {e.cfg.store_flags}".rstrip(), f"o{o}")]

class Gaps:
    def __init__(self, M, cap=1):
        self.M = M; self.g = [[] for _ in range(M)]; self.cap = cap
    def put(self, p, fn):
        self.g[min(max(p, 0), self.M - 1)].append(fn)
    def seq(self, ops, start, step=1, cap=None):
        cap = self.cap if cap is None else cap
        p = start
        for op in ops:
            while p < self.M - 1 and len(self.g[p]) >= cap: p += 1
            self.put(p, op); p = min(p + step, self.M - 1) if p < self.M - 1 else p
        return p

def block_a(e):
    c = e.cfg; RA = c.RA
    def khs(i): return [kh for kh in range(5) if 0 <= i - 4 + kh < RA]
    stream = list(c.stream)
    groups = [g.split(",") for g in c.groups.split("|")]
    nextw = 1 + max(int(it[1:]) for g in groups for it in g if it[0] == "w")
    groups += [[f"w{s}"] for s in range(nextw, 15)]
    order = []; rows_av = []; s_av = []; sched = set()
    mk_items = {}
    for gi, g in enumerate(groups):
        order.append(("M", gi)); mk_items[gi] = g
        for it in g:
            (rows_av if it[0] == "x" else s_av).append(int(it[1:]))
        for s in sorted(s_av):
            for r in sorted(rows_av, key=lambda r: (-len(khs(r)), r)):
                if (r, s) not in sched: sched.add((r, s)); order.append((r, s))
    assert len(sched) == len(stream) * 15
    w_marker = {int(it[1:]): gi for gi, g in mk_items.items() for it in g if it[0] == "w"}
    row_marker = {int(it[1:]): gi for gi, g in mk_items.items() for it in g if it[0] == "x"}
    nearly = len(c.groups.split("|"))
    mf = []; first = {}; mpos = {}
    def flush_group(grp, flip):
        if not c.omajor:
            for ent in grp:
                for kh in khs(ent[0]): mf.append((ent, kh))
            return
        for s_ in sorted(set(ent[1] for ent in grp)):
            lst = [(ent, kh) for ent in grp if ent[1] == s_ for kh in khs(ent[0])]
            lst.sort(key=lambda z: (z[0][0] - 4 + z[1], z[0][0]), reverse=flip[0])
            flip[0] = not flip[0]
            mf.extend(lst)
    grp = []; flip = [False]
    for ent in order + [("M", None)]:
        if ent[0] == "M":
            flush_group(grp, flip); grp = []
            if ent[1] is not None: mpos[ent[1]] = len(mf)
        else: grp.append(ent)
    for q_, (ent, kh) in enumerate(mf): first.setdefault(ent, q_)
    M = len(mf)
    mark_at = {}; prev = 0
    for p in sorted(mpos):
        q = mpos[p]
        if p >= nearly: q = max(prev, mpos[p] - c.wearly)
        elif p >= 1: q = max(prev, mpos[p] - c.early)
        mark_at[p] = q; prev = q
    tasks = []
    pairs = [ent for ent in order if ent[0] != "M"]
    last_use = {}
    for q, (ent, kh) in enumerate(mf): last_use[ent] = q
    for ent in pairs:
        tasks.append(dict(kind="b", ent=ent, ready=mark_at[row_marker[ent[0]]], due=first[ent], done=False))
    for s in range(15):
        for kh in range(5):
            due = min(q for q, (ent, k2) in enumerate(mf) if ent[1] == s and k2 == kh)
            for h in range(2):
                tasks.append(dict(kind="t", s=s, kh=kh, h=h, ready=mark_at[w_marker[s]], due=due, done=False))
    tasks.sort(key=lambda t: (t["due"], 0 if t["kind"] == "t" else 1))
    bslots = [None] * 15; bfree_at = [-1] * 15; bassign = {}
    def issue(t, q):
        if t["kind"] == "t": tr_read(e, t["s"], t["kh"], t["h"])
        else:
            k = min(range(15), key=lambda j: bfree_at[j])
            if bfree_at[k] >= q and bslots[k] is not None: return False
            ent = t["ent"]
            bslots[k] = ent; bfree_at[k] = last_use[ent]; bassign[ent] = k
            reg = V_B + 60 + 4 * k
            b_read_to(e, ent[0], ent[1], f"v[{reg}:{reg+3}]", f"pb{ent[0]}_{ent[1]}")
        t["done"] = True
        return True
    items = [it for g in c.groups.split("|") for it in g.split(",")]
    dplan = {}
    rest = [(it[0], int(it[1:])) for it in items[c.nprol:]]
    issued_w = [int(it[1:]) for it in items if it[0] == "w"]
    dplan[0] = list(rest)
    for s in range(max(issued_w) + 1, min(4, 15)): dplan[0].append(("w", s))
    for s in range(max(max(issued_w) + 1, 4), 15):
        dplan.setdefault(w_marker[s - 3], []).append(("w", s))
    if c.pfw_split < 15: dplan.setdefault(w_marker[c.pfwb_after], []).append(("pfw", 0))
    planned = []
    for part in c.def_plan.split("|"):
        wm, rows_ = part.split(":")
        rows_ = [int(r) for r in rows_.split(",")]
        dplan.setdefault(w_marker[int(wm)], []).extend([("x", r) for r in rows_]); planned += rows_
    late_rows = [r for r in c.deferred if r not in planned] + ([r for r in (8, 9, 10, 11, 12) if r not in planned and r not in c.stream] if c.merge else [12, 13])
    def ops_of(kind, a):
        if kind == "x": return x_ops(e, a)
        if kind == "w": return w_ops(e, a)
        return [lambda: e.vmem(f"buffer_load_dword v{V_PFD+2}, v{V_PF2}, s[{S_Wt}:{S_Wt+3}], 0 offen", "pf")]
    dq = []
    marks_sorted = sorted(mark_at)
    for p in marks_sorted:
        ops = []
        for kind, a in dplan.get(p, []): ops += ops_of(kind, a)
        if not ops: continue
        lo = mark_at[p]; hi = mark_at[p+1] if p + 1 in mark_at else M - 2
        span = 0 if p < nearly - 1 else max(hi - lo - len(ops) // 2, 0)
        for k, op in enumerate(ops): dq.append((lo + (k * span) // len(ops), op))
    dq.reverse()
    last_dma = [-10, False]
    def run_dma_op(force=False):
        _, op = dq.pop()
        n0 = len(e.L); op()
        if " lds" in e.L[-1] and re.search(r"\bm0,", e.L[n0-1]): e.L.insert(n0, "  s_nop 0")
    need = {p: list(mk_items[p]) for p in marks_sorted}
    prevw = {}
    for p in marks_sorted:
        ws = [int(it[1:]) for it in mk_items[p] if it[0] == "w"]
        if ws and ws[0] >= 1: prevw[p] = ws[0] - 1
    cnt = lambda tg: 3 if tg[0] == "w" else 2
    inited = set()
    deferred = list(c.deferred)
    par = len(deferred) % 2
    def setreg(k, f):
        b = V_B + ((k + par) % 2) * 60 + 4 * f
        return f"v[{b}:{b+3}]"
    vis = {}
    k0 = 0
    if par: vis[0] = [deferred[0]]; k0 = 1
    for k_ in range(k0, len(deferred), 2): vis[k_] = deferred[k_:k_+2]
    if c.merge: vis[len(deferred)] = [RA, RA + 1]
    dpre = c.dpre if par == 0 else 0
    q_d = M - dpre if dpre else None
    d_issued = []
    pre = {}
    for p in marks_sorted:
        if p >= nearly:
            pre.setdefault(max(mark_at[p] - 2, mark_at[p-1] + 1), []).append(("vm", p))
            pre.setdefault(max(mark_at[p] - 1, mark_at[p-1] + 1), []).append(("lg", p))
    def do_vm(p):
        while not all(e.vm.count(tg) == cnt(tg) for tg in need[p]): run_dma_op()
        e.wait_vm(*need[p])
    def do_lg(p, q):
        if p not in prevw: return
        sp = prevw[p]
        for t in tasks:
            if t["kind"] == "t" and t["s"] == sp and not t["done"]: issue(t, q)
        idxs = [i_ for i_, tg in enumerate(e.lg) if tg.startswith(f"t{sp}_")]
        e.wait_lg(e.lg[max(idxs)])
    for q in range(M):
        for kind, p in pre.get(q, []):
            if mark_at[p] > q:
                (do_vm(p) if kind == "vm" else do_lg(p, q))
        for p in marks_sorted:
            if mark_at[p] == q:
                do_lg(p, q); do_vm(p)
                e.A("s_barrier")
                if p == 0:
                    for _ in range(c.burst):
                        if dq: run_dma_op()
                if p in (0, nearly - 1, w_marker[4], w_marker[9], w_marker[14]): e.lstamp(f"M{p}:" + ",".join(mk_items[p]))
        if q_d is not None and q == q_d:
            while not all(e.vm.count(f"x{r_}") == 2 for r_ in vis[0]): run_dma_op()
            e.wait_vm(*[f"x{r_}" for r_ in vis[0]]); e.A("s_barrier")
        ent, kh = mf[q]
        late = [t for t in tasks if not t["done"] and t["due"] <= q]
        if late:
            for t in late:
                assert t["ready"] <= q, (t, q)
                ok = issue(t, q); assert ok
            for t in tasks:
                if t["done"] or t["ready"] > q: continue
                if len(e.lg) - e.lg_done >= 13: break
                if t["kind"] == "b" and t["due"] - q > c.look: continue
                issue(t, q)
        n0 = len(e.L)
        e.wait_lg(f"t{ent[1]}_{kh}", f"pb{ent[0]}_{ent[1]}", age=5)
        o = ent[0] - 4 + kh; a = V_ACCA + 4 * o
        src = f"v[{a}:{a+3}]" if o in inited else "0"
        inited.add(o)
        reg = V_B + 60 + 4 * bassign[ent]
        e.mfma(f"v_mfma_f32_16x16x32_bf16 v[{a}:{a+3}], {wreg(kh, ent[1])}, v[{reg}:{reg+3}], {src}")
        budget = 2
        early_phase = q < mark_at[nearly - 1]
        if early_phase: budget = 4
        def try_lds():
            for t in tasks:
                if t["done"] or t["ready"] > q: continue
                if t["kind"] == "b" and t["due"] - q > c.look: continue
                if len(e.lg) - e.lg_done >= 14: return False
                if issue(t, q + 1): return True
            return False
        def try_dma():
            if dq and dq[-1][0] <= q: run_dma_op(); return True
            return False
        def try_d():
            if q_d is not None and q >= q_d and len(d_issued) < 15 and len(e.lg) - e.lg_done < 14:
                f = len(d_issued); d_issued.append(f)
                b_read_to(e, deferred[0], f, setreg(0, f), f"d0_{f}"); return True
            return False
        _lds = try_lds
        def try_lds(): return _lds() or try_d()
        turn = [try_lds, try_dma]
        k = 0
        while budget > 0:
            if turn[k % 2]() or turn[(k + 1) % 2](): budget -= 1; k += 1
            else: break
    while dq: run_dma_op()
    if c.codepf2: e.vmem(f"buffer_load_dword v{V_PFD+3}, v{V_CPF}, s[{S_PC}:{S_PC+3}], s{S_CPO} offen", "pf")
    e.lstamp("streamend")
    seq = deferred + [RA]
    if q_d is None:
        e.wait_vm(*[f"x{r_}" for r_ in vis[0]]); e.A("s_barrier")
    for f in range(len(d_issued), 15): b_read_to(e, seq[0], f, setreg(0, f), f"d0_{f}")
    for k, r in enumerate(deferred):
        mfs = []
        for kh in khs(r):
            o = r - 4 + kh; a = V_ACCA + 4 * o
            for f in range(15):
                src = f"v[{a}:{a+3}]" if o in inited else "0"
                inited.add(o)
                mfs.append((f, f"v_mfma_f32_16x16x32_bf16 v[{a}:{a+3}], {wreg(kh, f)}, {setreg(k, f)}, {src}"))
        Mk = len(mfs); nxt = seq[k + 1]
        G = Gaps(Mk)
        if (k + 1) in vis:
            e.wait_vm(*[f"x{r_}" for r_ in vis[k+1]]); e.A("s_barrier")
        span = max(Mk - 6, 15)
        for f in range(15): G.put(min((f * span) // 15, Mk - 1), (lambda f=f: b_read_to(e, nxt, f, setreg(k + 1, f), f"d{k+1}_{f}")))
        if c.merge and k >= 1:
            op_ = deferred[k-1]
            assert op_ <= 3
            G.seq(out_ops_abs(e, V_ACCA + 4 * op_, 1, op_), min(9, Mk - 6), step=1, cap=2)
        ntake = 2 if (k < 1 or c.merge) else 1
        pos = 2
        for _ in range(ntake):
            if late_rows and (Mk >= 30 or (c.merge and Mk >= 15 and _ == 0)):
                pos = G.seq(x_ops(e, late_rows.pop(0)), pos, step=1, cap=2)
        for p_, (f, s_) in enumerate(mfs):
            if p_ < 15: e.wait_lg(f"d{k}_{f}", age=5)
            e.mfma(s_)
            for fn in G.g[p_]: fn()
    e.late_rows = late_rows
    e.dtag = f"d{len(deferred)}"
    e.lstamp("defend")

def step(e, i, chains, last_row, extra_out=(), extra_dma=(), prev_tags=None, skip=None):
    c = e.cfg; RA = c.RA
    mf = []
    for kh in chains:
        o = i - 4 + kh; a = acc(o)
        for f in range(15):
            src = "0" if (kh == 4 and f == 0) else f"v[{a}:{a+3}]"
            mf.append((f, f"v_mfma_f32_16x16x32_bf16 v[{a}:{a+3}], {wreg(kh, f)}, {breg(i, f)}, {src}"))
    M = len(mf)
    U = M - 15 if skip else M
    G = Gaps(M)
    nxt = i + 1
    nn = i + 2
    S0 = (RA + 2) if c.merge else NA
    did_bar = nxt <= last_row and nxt >= S0
    if did_bar: e.A("s_barrier")
    if nxt <= last_row:
        span = max(U - 9, 15) if U >= 15 else U
        for f in range(15): G.put(min((f * span) // 15, U - 1), (lambda f=f: b_read_to(e, nxt, f, breg(nxt, f), f"b{nxt}_{f}")))
    r4 = i + 4
    if i >= NA and r4 <= last_row: G.seq(x_ops(e, r4, seq=True), c.dma_pos, step=2)
    pos_ = 1
    for r_ in extra_dma: pos_ = G.seq(x_ops(e, r_), pos_ if c.merge else 1, step=1, cap=(2 if M <= 30 else 1))
    tail = []
    if 0 in chains and (i - 4 >= RA or c.merge):
        o = i - 4; endp = chains.index(0) * 15 + 14
        ops = out_ops(e, acc(o), 0, o)
        if endp + 14 < M: G.seq(ops, max(endp + 9, c.out_pos if M == 75 else 0), step=1)
        else: tail = ops
    for k, (a, o) in enumerate(extra_out):
        if c.merge: G.seq(out_ops_abs(e, a, 1, o), 9, step=1)
        else: G.seq(out_ops(e, a, k % 2, o), (k * M) // max(len(extra_out), 1) + 1, step=1, cap=(2 if M <= 45 else 1))
    if nn <= last_row and nn >= S0:
        G.put(U - 3, lambda: e.wait_vm(f"x{nn}", force=(i >= NA)))
    short = U < 45
    lab = f"{i if i < NA or i >= c.nrows else 'l' + str((i - NA) % 4)}"
    for p, (f, s) in enumerate(mf):
        if skip and p == U:
            e.A(skip); e.A(f"s_cbranch_scc1 L_skip{lab}")
            mark = len(e.L)
        if prev_tags and p < 15: e.wait_lg(prev_tags(f), age=5)
        e.mfma(s)
        for fn in G.g[p]: fn()
        if p == U - 2 and nxt <= last_row and not short: e.wait_lg(f"b{nxt}_14")
    if skip:
        fill = [l for l in e.L[mark:] if "v_mfma" not in l]
        if fill:
            e.A(f"s_branch L_join{lab}")
            e.raw(f"L_skip{lab}:")
            if any("v_cvt" in l for l in fill): e.A("s_nop 7"); e.A("s_nop 1")
            e.L.extend(fill)
            e.raw(f"L_join{lab}:")
        else:
            e.raw(f"L_skip{lab}:")
    if tail:
        e.A("s_nop 7"); e.A("s_nop 1")
        for fn in tail: fn()
    if nxt <= last_row and short and (nn <= last_row and nn >= S0): e.wait_lg(f"b{nxt}_14")

def build(cfg):
    e = Em(cfg); n = cfg.nrows; RA = cfg.RA
    last_row = n + 3
    e.raw("; direct 5x5 circular convolution; weights stationary in registers; start block overlaps the weight arrival")
    e.raw(f"; @launch grid=(252,1,1) block=(256,1,1) lds={LDS_BYTES}")
    e.raw('.amdgcn_target "amdgcn-amd-amdhsa--gfx950"')
    e.raw(".text")
    e.raw(".globl standalone__fft_conv__vision_kernel")
    if cfg.align12: e.raw(".p2align 12")
    e.raw(".p2align 8")
    e.raw(".type standalone__fft_conv__vision_kernel,@function")
    e.raw("standalone__fft_conv__vision_kernel:")
    prologue(e)
    block_a(e)
    if cfg.merge:
        RA_ACC[0] = RA
        def chains_for(i): return [kh for kh in range(5) if 0 <= i - 4 + kh < n]
        flush = {RA: [cfg.deferred[-1]]}
        lr = list(e.late_rows) + [13, 14, 15]
        predma = {RA: lr[:2], RA + 1: lr[2:4], RA + 2: lr[4:6], RA + 3: lr[6:]}
    else:
        assert not e.late_rows
        def chains_for(i): return [kh for kh in range(5) if RA <= i - 4 + kh < n]
        flush = {RA + 1: [0, 1], RA + 2: [2, 3, 4], RA + 3: [5, 6, 7]}
        predma = {RA: [14], RA + 1: [15]}
    i = RA
    while i < NA:
        ex = [(V_ACCA + 4 * o, o) for o in flush.get(i, [])]
        pt = (lambda f: f"{e.dtag}_{f}") if i == RA else (lambda f, i=i: f"b{i}_{f}")
        step(e, i, chains_for(i), last_row, ex, predma.get(i, []), pt); i += 1
    if cfg.codepf3: e.vmem(f"buffer_load_dword v{V_PFD+3}, v{V_CPF}, s[{S_PC}:{S_PC+3}], s{S_CPO} offen", "pf")
    e.lstamp("rampend")
    e.A(f"s_add_u32 s{S_T0}, s{S_XBASE}, {(NA+4)*ROWB}")
    e.A(f"s_sub_u32 s{S_T1}, s{S_T0}, {XBYTES}")
    e.A(f"s_min_u32 s{S_XROW}, s{S_T0}, s{S_T1}")
    def skip_of(ii):
        if not cfg.skipdup: return None
        if ii == n - 1 or (cfg.loop and NA <= ii < n and (ii - NA) % 4 == (n - 1 - NA) % 4):
            return f"s_cmp_eq_u32 s{S_CNT}, s{S_DUP}" if cfg.loop else f"s_cmp_eq_u32 s{S_DUP}, 0"
        if n <= ii < last_row: return f"s_cmp_eq_u32 s{S_DUP}, 0"
        return None
    def last_step(ii):
        if cfg.skipdup:
            e.A(f"s_cmp_eq_u32 s{S_DUP}, 0"); e.A("s_cbranch_scc1 L_done")
        step(e, ii, chains_for(ii), last_row, prev_tags=(lambda f, ii=ii: f"b{ii}_{f}"))
        if cfg.skipdup: e.raw("L_done:")
    if not cfg.loop:
        while i <= last_row:
            if i == last_row: last_step(i)
            else: step(e, i, chains_for(i), last_row, prev_tags=(lambda f, i=i: f"b{i}_{f}"), skip=skip_of(i))
            i += 1
            if i <= last_row: e.lstamp(f"step{i}")
    else:
        steady = list(range(NA, n)); nst = len(steady)
        start = len(e.L); seg = []
        for ii in steady:
            s0 = len(e.L)
            step(e, ii, chains_for(ii), last_row, prev_tags=(lambda f, ii=ii: f"b{ii}_{f}"), skip=skip_of(ii))
            seg.append(e.L[s0:])
        e.L = e.L[:start]
        for k in range(4, nst):
            a, b = seg[k % 4], seg[k]
            assert len(a) == len(b), f"non periodic step {steady[k]}"
            for j in range(len(a)):
                if a[j] != b[j]:
                    ma = re.fullmatch(r"  s_waitcnt vmcnt\((\d+)\)", a[j]); mb = re.fullmatch(r"  s_waitcnt vmcnt\((\d+)\)", b[j])
                    assert ma and mb, (a[j], b[j])
                    a[j] = f"  s_waitcnt vmcnt({min(int(ma.group(1)), int(mb.group(1)))})"
        full, rem = divmod(nst, 4)
        assert rem != 0 and full == 1
        e.A(f"s_mov_b32 s{S_CNT}, {full}")
        e.raw(".p2align 3")
        e.raw("L_loop:")
        for k in range(4):
            if k == rem:
                e.A(f"s_cmp_eq_u32 s{S_CNT}, 0")
                e.A("s_cbranch_scc1 L_down")
                e.A(f"s_sub_u32 s{S_CNT}, s{S_CNT}, 1")
            e.L.extend(seg[k])
        e.A("s_branch L_loop")
        e.raw("L_down:")
        e.lstamp("loopend")
        i = n
        while i <= last_row:
            if i == last_row: last_step(i)
            else: step(e, i, chains_for(i), last_row, prev_tags=(lambda f, i=i: f"b{i}_{f}"), skip=skip_of(i))
            i += 1
    if cfg.spin:
        e.lstamp("mfmaend"); e.A("s_waitcnt vmcnt(0) lgkmcnt(0)")
        ia, ib, K = e.lnames.index(cfg.spin[0]), e.lnames.index(cfg.spin[1]), cfg.spin[2]
        e.A(f"s_sub_u32 s50, s{64+2*ib}, s{64+2*ia}")
        e.A(f"s_mul_i32 s50, s50, {K}")
        e.A("s_memtime s[52:53]"); e.A("s_waitcnt lgkmcnt(0)")
        e.raw("L_spin:")
        e.A("s_memtime s[54:55]"); e.A("s_waitcnt lgkmcnt(0)")
        e.A("s_sub_u32 s51, s54, s52"); e.A("s_cmp_lt_u32 s51, s50"); e.A("s_cbranch_scc1 L_spin")
    elif cfg.lst:
        e.lstamp("mfmaend"); e.A("s_waitcnt vmcnt(0)"); e.lstamp("drain")
        e.A("s_memrealtime s[62:63]")
        e.A("s_waitcnt lgkmcnt(0)")
        e.A(f"s_load_dwordx2 s[{S_WS}:{S_WS+1}], s[0:1], 32")
        e.A(f"v_mov_b32 v{V_ST}, 0")
        for k in range(e.nl): e.A(f"v_writelane_b32 v{V_ST}, s{64+2*k}, {k}")
        e.A(f"v_writelane_b32 v{V_ST}, s60, 62"); e.A(f"v_writelane_b32 v{V_ST}, s62, 63")
        e.A("s_waitcnt lgkmcnt(0)")
        e.A(f"s_lshl_b32 s{S_T0}, s2, 2")
        e.A(f"s_add_u32 s{S_T0}, s{S_T0}, s{S_WAVE}")
        e.A(f"s_lshl_b32 s{S_T0}, s{S_T0}, 8")
        e.A(f"s_add_u32 s{S_WS}, s{S_WS}, s{S_T0}")
        e.A(f"s_addc_u32 s{S_WS+1}, s{S_WS+1}, 0")
        e.A("v_lshlrev_b32 v1, 2, v0")
        e.A(f"global_store_dword v1, v{V_ST}, s[{S_WS}:{S_WS+1}]")
        print("lstamps:", e.nl, e.lnames)
    if cfg.endwait: e.A("s_waitcnt vmcnt(0)")
    e.raw("L_end:")
    e.A("s_endpgm")
    e.raw("L_code_end:")
    e.raw('.section .rodata,"a"')
    e.raw(".p2align 6")
    e.raw(".amdhsa_kernel standalone__fft_conv__vision_kernel")
    for l in ("next_free_vgpr 512", "next_free_sgpr 100", "accum_offset 256", "group_segment_fixed_size 0", "kernarg_size 40",
              "user_sgpr_count 2", "user_sgpr_kernarg_segment_ptr 1", "system_sgpr_workgroup_id_x 1"):
        e.raw("  .amdhsa_" + l)
    e.raw(".end_amdhsa_kernel")
    out = []
    for l in e.L:
        if " lds" in l and "buffer_load" in l and out and re.search(r"\bm0,", out[-1]): out.append("  s_nop 0")
        out.append(l)
    e.L = out
    import subprocess, tempfile, os
    size = 0x7fff
    for _ in range(2):
        txt = "\n".join(l.replace("CODE_BYTES", str(size)) for l in e.L) + "\n"
        with tempfile.TemporaryDirectory() as td:
            open(td + "/k.s", "w").write(txt)
            subprocess.run(["clang", "-x", "assembler", "-target", "amdgcn-amd-amdhsa", "-mcpu=gfx950", "-c", td + "/k.s", "-o", td + "/k.o"], check=True)
            dis = subprocess.run(["llvm-objdump", "-d", "--mcpu=gfx950", td + "/k.o"], capture_output=True, text=True).stdout
        sym = {}
        for l in dis.splitlines():
            m_ = re.match(r"([0-9a-f]{16}) <(.*)>:", l)
            if m_: sym[m_.group(2)] = int(m_.group(1), 16)
        size = sym["L_end"] + 4 - sym["standalone__fft_conv__vision_kernel"]
        assert size - 4 > sym["L_pc"] - sym["standalone__fft_conv__vision_kernel"] if "L_pc" in sym else True
    e.code_size = size
    e.L = [l.replace("CODE_BYTES", str(size)) for l in e.L]
    open(cfg.name, "w").write("\n".join(e.L) + "\n")
    return e

if __name__ == "__main__":
    ap = argparse.ArgumentParser()
    ap.add_argument("-o", default=Cfg.name)
    ap.add_argument("--lst", action="store_true")
    ap.add_argument("--noloop", action="store_true")
    ap.add_argument("--store", default="")
    ap.add_argument("--look", type=int, default=12)
    ap.add_argument("--early", type=int, default=8)
    ap.add_argument("--wearly", type=int, default=26)
    ap.add_argument("--nocodepf", action="store_true")
    ap.add_argument("--burst", type=int, default=0)
    ap.add_argument("--no_merge", action="store_true")
    ap.add_argument("--no_omajor", action="store_true")
    ap.add_argument("--no_skipdup", action="store_true")
    ap.add_argument("--dpre", type=int, default=14)
    ap.add_argument("--early_calc", action="store_true")
    ap.add_argument("--endwait", action="store_true")
    ap.add_argument("--spin", default="")
    ap.add_argument("--codepf2", action="store_true")
    ap.add_argument("--codepf3", action="store_true")
    ap.add_argument("--codepf_all", action="store_true")
    ap.add_argument("--stepst", action="store_true")
    ap.add_argument("--dma_pos", type=int, default=18)
    ap.add_argument("--out_pos", type=int, default=0)
    ap.add_argument("--diag", action="store_true")
    ap.add_argument("--groups", default=Cfg.groups)
    ap.add_argument("--nprol", type=int, default=4)
    ap.add_argument("--direct", default="4,5")
    ap.add_argument("--pf_rows", default="6,2")
    ap.add_argument("--stream", default="4,5,6,7")
    ap.add_argument("--deferred", default="3,8,2,9,1,10,0,11")
    ap.add_argument("--def_plan", default=Cfg.def_plan)
    ap.add_argument("--pfw_split", type=int, default=15)
    ap.add_argument("--pfwb_after", type=int, default=3)
    a = ap.parse_args()
    cfg = Cfg()
    cfg.name = a.o; cfg.lst = a.lst; cfg.loop = not a.noloop; cfg.store_flags = a.store
    cfg.direct = [int(x) for x in a.direct.split(",")]; cfg.pf_rows = tuple(int(x) for x in a.pf_rows.split(","))
    cfg.stream = [int(x) for x in a.stream.split(",")]; cfg.deferred = [int(x) for x in a.deferred.split(",")]; cfg.def_plan = a.def_plan
    cfg.groups = a.groups; cfg.nprol = a.nprol; cfg.pfw_split = a.pfw_split; cfg.pfwb_after = a.pfwb_after; cfg.diag = a.diag; cfg.dma_pos = a.dma_pos; cfg.out_pos = a.out_pos; cfg.stepst = a.stepst; cfg.codepf2 = a.codepf2; cfg.codepf_all = a.codepf_all; cfg.codepf3 = a.codepf3; cfg.spin = (lambda p: (p[0], p[1], int(p[2])) )(a.spin.split("/")) if a.spin else None
    if cfg.spin: cfg.lst = True
    cfg.endwait = a.endwait; cfg.late_calc = not a.early_calc; cfg.dpre = a.dpre; cfg.omajor = not a.no_omajor; cfg.skipdup = not a.no_skipdup; cfg.merge = not a.no_merge; cfg.burst = a.burst; cfg.look = a.look; cfg.early = a.early; cfg.wearly = a.wearly; cfg.codepf = not a.nocodepf
    e = build(cfg)
    print("lines", len(e.L), "LDS", LDS_BYTES, "code", e.code_size)
```

```python
import sys, argparse, re

class Cfg:
    nrows = 19
    RA = 8
    store_flags = ""
    lst = False
    loop = True
    look = 12
    early = 8
    wearly = 26
    codepf = True
    outpf = False
    wbl2 = ''
    burst = 0
    merge = True
    omajor = True
    skipdup = True
    dpre = 14
    late_calc = True
    endwait = False
    spin = None
    codepf2 = False
    codepf3 = False
    codepf_all = False
    stepst = False
    dma_pos = 18
    out_pos = 0
    diag = False
    groups = "x4,x5,w0|x6,x7|w1|w2"
    direct = [4, 5]
    pf_rows = (6, 2)
    stream = [4, 5, 6, 7]
    deferred = [3, 8, 2, 9, 1, 10, 0, 11]
    nprol = 4
    pfw_split = 15
    pfwb_after = 3
    def_plan = "11:3,8|12:2,9|14:1,10"
    align12 = True
    name = "standalone__fft_conv__vision.s"

H = W = 224
ROWB = W * 192
XBYTES = H * ROWB
WBYTES = 460800
SLOTB = 7168
NA = 12
XR = NA * SLOTB
X2 = 10 * SLOTB
WS = XR + 4 * SLOTB
WSLOT = 10240
NWS = 4
DUMMY = WS + NWS * WSLOT
LDS_BYTES = DUMMY + 1024

S_X, S_Wt, S_O = 8, 12, 16
S_WS = 20
S_WAVE = 22
S_X0, S_X1, S_XM = 23, 24, 25
S_XBASE, S_XROW, S_OROW, S_CNT = 26, 27, 28, 29
S_T0, S_T1, S_T2, S_T3 = 30, 31, 32, 33
S_WM, S_G, S_W0, S_WM2, S_WMM = 34, 35, 36, 37, 38
S_T4, S_T5 = 39, 40
S_PC = 44
S_CPO = 48
S_DUP = 49
S_OB = 50
S_T6 = 51
S_LAST = 41
V_XAA = 2; V_XAR = 7
V_XD0, V_XD1 = 12, 13
V_WD, V_TR, V_OUT, V_PF = 14, 15, 16, 17
V_T = 18
V_O = 24
V_ST = 28
V_ACC = 32
V_B = 48
V_ACCA = 168
V_PFX = 200
V_PFD = 202
V_PF2 = 206
V_CPF = 207
V_WT = 212

def wreg(kh, f, lo=None):
    i = kh * 15 + f
    if i < 64: base, t = 4 * i, "a"
    else: base, t = V_WT + 4 * (i - 64), "v"
    if lo is None: return f"{t}[{base}:{base+3}]"
    return f"{t}[{base+lo}:{base+lo+1}]"
def breg(row, f):
    b = V_B + (row % 2) * 60 + 4 * f
    return f"v[{b}:{b+3}]"
RA_ACC = [0]
def acc(o): return V_ACCA + 4 * o if o < RA_ACC[0] else V_ACC + 4 * (o % 4)
def xlds(row): return row * SLOTB if row < NA else XR + ((row - NA) % 4) * SLOTB
def xslot(row):
    a = xlds(row)
    return ("A", a) if a < X2 else ("R", a - X2)

class Em:
    def __init__(self, cfg):
        self.cfg = cfg; self.L = []
        self.vm = []; self.vm_done = 0
        self.lg = []; self.lg_done = 0; self.lg_pos = []
        self.pos = 0
        self.nl = 0; self.lnames = []
    def A(self, s): self.L.append("  " + s)
    def raw(self, s): self.L.append(s)
    def mfma(self, s): self.A(s); self.pos += 1
    def vmem(self, s, tag): self.A(s); self.vm.append(tag)
    def lds(self, s, tag): self.A(s); self.lg.append(tag); self.lg_pos.append(self.pos)
    def vm_need(self, tags):
        idx = -1
        for tag in tags:
            assert tag in self.vm, (tag, self.vm)
            idx = max(idx, max(i for i, t in enumerate(self.vm) if t == tag))
        return idx
    def wait_vm(self, *tags, force=False):
        idx = self.vm_need(tags)
        if idx < self.vm_done and not force: return False
        n = min(len(self.vm) - 1 - idx, 63)
        self.A(f"s_waitcnt vmcnt({n})"); self.vm_done = max(self.vm_done, len(self.vm) - n)
        return True
    def wait_lg(self, *tags, age=None):
        idx = -1
        for tag in tags:
            assert tag in self.lg, tag
            idx = max(idx, max(i for i, t in enumerate(self.lg) if t == tag))
        if idx < self.lg_done: return False
        if age is not None:
            for i in range(idx + 1, len(self.lg)):
                if self.pos - self.lg_pos[i] >= age: idx = i
        n = min(len(self.lg) - 1 - idx, 15)
        self.A(f"s_waitcnt lgkmcnt({n})"); self.lg_done = len(self.lg) - n
        return True
    def lstamp(self, name=""):
        if not self.cfg.lst: return
        if self.cfg.stepst and not (name.startswith("step") or name in ("start", "rampend", "mfmaend", "drain")): return
        k = self.nl
        if k >= 18: return
        self.A(f"s_memtime s[{64+2*k}:{65+2*k}]")
        self.lnames.append(name); self.nl = k + 1

def x_ops(e, row, seq=False):
    base = xlds(row); ops = []
    I = lambda s: (lambda: e.A(s))
    if not seq:
        ops += [I(f"s_add_u32 s{S_T0}, s{S_XBASE}, {row*ROWB}"), I(f"s_sub_u32 s{S_T1}, s{S_T0}, {XBYTES}"),
                I(f"s_min_u32 s{S_XROW}, s{S_T0}, s{S_T1}")]
    ops += [I(f"s_add_u32 m0, s{S_X0}, {base}"),
            lambda: e.vmem(f"buffer_load_dwordx4 v{V_XD0}, s[{S_X}:{S_X+3}], s{S_XROW} offen lds", f"x{row}")]
    if base: ops += [I(f"s_and_b32 s{S_T2}, s{S_XM}, {base}"), I(f"s_add_u32 m0, s{S_X1}, s{S_T2}")]
    else: ops += [I(f"s_mov_b32 m0, s{S_X1}")]
    ops += [lambda: e.vmem(f"buffer_load_dwordx4 v{V_XD1}, s[{S_X}:{S_X+3}], s{S_XROW} offen lds", f"x{row}")]
    if seq:
        ops += [I(f"s_add_u32 s{S_XROW}, s{S_XROW}, {ROWB}"), I(f"s_sub_u32 s{S_T1}, s{S_XROW}, {XBYTES}"),
                I(f"s_min_u32 s{S_XROW}, s{S_XROW}, s{S_T1}")]
    return ops
def w_ops(e, s):
    ops = []
    I = lambda t: (lambda: e.A(t))
    for m in range(3):
        off = (s % NWS) * WSLOT
        ops.append(I(f"s_mov_b32 s{S_T3}, {(32*s + 960*m)*192}"))
        if m < 2: ops.append(I(f"s_add_u32 m0, s{S_WM}, {off + 4*m*1024}"))
        elif off: ops += [I(f"s_and_b32 s{S_T4}, s{S_WMM}, {off}"), I(f"s_add_u32 m0, s{S_WM2}, s{S_T4}")]
        else: ops.append(I(f"s_mov_b32 m0, s{S_WM2}"))
        ops.append(lambda m=m: e.vmem(f"buffer_load_dwordx4 v{V_WD}, s[{S_Wt}:{S_Wt+3}], s{S_T3} offen lds", f"w{s}"))
    return ops
def emit_now(e, ops):
    for op in ops:
        n0 = len(e.L)
        prev = e.L[-1]
        tmp = len(e.L); op()
        if " lds" in e.L[-1] and re.search(r"\bm0,", e.L[tmp-1]):
            e.L.insert(tmp, "  s_nop 0")

def prologue(e):
    c = e.cfg; A = e.A
    t0, t1, t2, t3 = V_T, V_T+1, V_T+2, V_T+3
    A("s_cmp_ge_u32 s2, 252")
    A("s_cbranch_scc1 L_end")
    A("s_load_dwordx4 s[4:7], s[0:1], 0")
    A(f"s_load_dwordx2 s[{S_O}:{S_O+1}], s[0:1], 16")
    e.lstamp("start")
    if c.lst: A("s_memrealtime s[60:61]")
    A("v_lshrrev_b32 v1, 6, v0")
    A("v_and_b32 v0, 63, v0")
    A(f"v_readfirstlane_b32 s{S_WAVE}, v1")
    A(f"s_lshr_b32 s{S_T0}, s2, 3")
    A(f"s_and_b32 s{S_T1}, s2, 7")
    A(f"s_mul_i32 s{S_T2}, s{S_T0}, 86")
    A(f"s_lshl_b32 s{S_T4}, s{S_T0}, 2")
    A(f"s_lshr_b32 s{S_T2}, s{S_T2}, 8")
    A(f"s_mul_i32 s{S_T1}, s{S_T1}, 10")
    A(f"s_mul_i32 s{S_T3}, s{S_T2}, 3")
    A(f"s_add_u32 s{S_T1}, s{S_T1}, s{S_T2}")
    A(f"s_sub_u32 s{S_G}, s{S_T0}, s{S_T3}")
    A("s_cmp_lt_u32 s2, 240")
    A("s_cbranch_scc1 L_map_done")
    A(f"s_sub_u32 s{S_T0}, s2, 240")
    A(f"s_mul_i32 s{S_T2}, s{S_T0}, 86")
    A(f"s_lshr_b32 s{S_T2}, s{S_T2}, 8")
    A(f"s_mul_i32 s{S_T3}, s{S_T2}, 3")
    A(f"s_sub_u32 s{S_G}, s{S_T0}, s{S_T3}")
    A(f"s_add_u32 s{S_T1}, s{S_T2}, 80")
    e.raw("L_map_done:")
    A(f"s_add_u32 s{S_T4}, s{S_T4}, s{S_WAVE}")
    A(f"s_mul_i32 s{S_T2}, s{S_T1}, 9363")
    A(f"s_lshl_b32 s{S_T5}, s{S_WAVE}, 6")
    A(f"s_lshr_b32 s{S_T2}, s{S_T2}, 16")
    A(f"v_add_u32 v{t0}, s{S_T5}, v0")
    A(f"s_mul_i32 s{S_T3}, s{S_T2}, 7")
    A(f"s_sub_u32 s{S_T3}, s{S_T1}, s{S_T3}")
    A(f"s_mul_i32 s{S_T0}, s{S_T3}, 86")
    A(f"s_lshl_b32 s{S_W0}, s{S_T3}, 5")
    A(f"s_lshr_b32 s{S_T0}, s{S_T0}, 8")
    A(f"s_mul_i32 s{S_T0}, s{S_T0}, 3")
    A(f"s_sub_u32 s{S_T0}, s{S_T3}, s{S_T0}")
    A(f"s_add_u32 s{S_T1}, s{S_T2}, s{S_T0}")
    A(f"s_add_u32 s{S_T3}, s{S_T1}, 2")
    A(f"s_mul_i32 s{S_T3}, s{S_T3}, 86")
    A(f"s_lshr_b32 s{S_T3}, s{S_T3}, 8")
    A(f"s_cmp_ge_u32 s{S_T0}, 1")
    A(f"s_cselect_b32 s{S_T0}, 1, 0")
    A(f"s_sub_u32 s{S_T3}, s{S_T3}, s{S_T0}")
    A(f"s_mul_i32 s{S_T0}, s{S_T2}, 19")
    A(f"s_sub_u32 s{S_T0}, s{S_T0}, s{S_T3}")
    A(f"s_mul_i32 s{S_OROW}, s{S_T0}, {ROWB}")
    A(f"s_add_u32 s{S_XBASE}, s{S_OROW}, {(H-4)*ROWB}")
    if c.merge:
        A(f"s_mov_b32 s{S_OB}, s{S_OROW}")
        A(f"s_add_u32 s{S_OROW}, s{S_OROW}, {4*ROWB}")
    A(f"s_mul_i32 s{S_LAST}, s{S_T1}, 86")
    A(f"s_lshr_b32 s{S_LAST}, s{S_LAST}, 8")
    A(f"s_mul_i32 s{S_LAST}, s{S_LAST}, 3")
    A(f"s_cmp_eq_u32 s{S_LAST}, s{S_T1}")
    A(f"s_cselect_b32 s{S_DUP}, 0, -1")
    A(f"s_cselect_b32 s{S_LAST}, 0x40000000, 0")
    A(f"s_add_u32 s{S_T0}, s{S_W0}, {W-4}")
    for pi in range(2):
        dst = V_XD0 if pi == 0 else V_XD1
        if pi: A(f"v_add_u32 v{t0}, 256, v{t0}")
        A(f"v_mul_u32_u24 v{t1}, 5462, v{t0}")
        A(f"v_lshrrev_b32 v{t1}, 16, v{t1}")
        A(f"v_mul_u32_u24 v{t2}, 12, v{t1}")
        A(f"v_lshrrev_b32 v{t3}, 1, v{t1}")
        A(f"v_sub_u32 v{t2}, v{t0}, v{t2}")
        A(f"v_and_b32 v{t3}, 2, v{t3}")
        A(f"v_add_u32 v{t1}, s{S_T0}, v{t1}")
        A(f"v_xor_b32 v{t2}, v{t2}, v{t3}")
        A(f"v_subrev_u32 v{t3}, {W}, v{t1}")
        A(f"v_min_u32 v{t1}, v{t1}, v{t3}")
        if pi: A(f"v_cmp_gt_u32 vcc, 432, v{t0}")
        A(f"v_mul_u32_u24 v{t1}, 192, v{t1}")
        A(f"v_lshl_add_u32 v{dst}, v{t2}, 4, v{t1}")
        if pi:
            A(f"v_mov_b32 v{t1}, 0x40000000")
            A(f"v_cndmask_b32 v{dst}, v{t1}, v{dst}, vcc")
    A(f"s_lshl_b32 s{S_X0}, s{S_WAVE}, 10")
    A(f"s_add_u32 s{S_X1}, s{S_X0}, 4096")
    A(f"s_cmp_eq_u32 s{S_WAVE}, 3")
    A(f"s_cselect_b32 s{S_X1}, {DUMMY}, s{S_X1}")
    A(f"s_cselect_b32 s{S_XM}, 0, -1")
    A(f"s_mov_b32 s{S_X+2}, {XBYTES}"); A(f"s_mov_b32 s{S_X+3}, 0x20000")
    A(f"s_mov_b32 s{S_Wt+2}, {WBYTES}"); A(f"s_mov_b32 s{S_Wt+3}, 0x20000")
    items = [it for g in c.groups.split("|") for it in g.split(",")]
    assert items[:len(c.direct)] == [f"x{r}" for r in c.direct]
    r0, nr = c.pf_rows
    A(f"v_mov_b32 v{V_T+5}, 0x40000000")
    if nr:
        nl = -(-nr * 18 // 4)
        A(f"s_mul_i32 s{S_T0}, s{S_WAVE}, {nl}")
        A(f"v_add_u32 v{t0}, s{S_T0}, v0")
        A(f"v_mul_u32_u24 v{t1}, 3641, v{t0}")
        A(f"s_mul_i32 s{S_T0}, s{S_G}, 18")
        A(f"v_lshrrev_b32 v{t1}, 16, v{t1}")
        A(f"v_mul_u32_u24 v{t2}, 18, v{t1}")
        A(f"v_sub_u32 v{t2}, v{t0}, v{t2}")
        A(f"v_add_u32 v{t2}, s{S_T0}, v{t2}")
        A(f"s_add_u32 s{S_T0}, s{S_W0}, {W-4}")
        A(f"v_lshlrev_b32 v{t2}, 7, v{t2}")
        A(f"s_mul_i32 s{S_T0}, s{S_T0}, 192")
        A(f"s_mov_b32 s{S_T1}, {ROWB}")
        A(f"v_add_u32 v{t2}, s{S_T0}, v{t2}")
        A(f"v_subrev_u32 v{t3}, {ROWB}, v{t2}")
        A(f"v_min_u32 v{t2}, v{t2}, v{t3}")
        A(f"v_add_u32 v{t3}, {r0}, v{t1}")
        A(f"v_mul_lo_u32 v{t3}, v{t3}, s{S_T1}")
        A(f"s_mov_b32 s{S_T2}, {XBYTES}")
        A(f"v_cmp_gt_u32 vcc, {nr*18}, v{t0}")
        A(f"v_add_u32 v{t3}, s{S_XBASE}, v{t3}")
        A(f"v_subrev_u32 v{t1}, s{S_T2}, v{t3}")
        A(f"v_min_u32 v{t3}, v{t3}, v{t1}")
        A(f"v_add_u32 v{t3}, v{t3}, v{t2}")
        A(f"v_cndmask_b32 v{t3}, v{V_T+5}, v{t3}, vcc")
        A(f"v_cmp_gt_u32 vcc, {nl}, v0")
        A("s_nop 1")
        A(f"v_cndmask_b32 v{V_PFX}, v{V_T+5}, v{t3}, vcc")
    def wpf(dst, s0, s1):
        per = (s1 - s0) * 48; tot = 5 * per
        nl = -(-tot // 128)
        if s0 == 0 and s1 == 15:
            A(f"s_mul_i32 s{S_T0}, s{S_T4}, {nl}")
            A(f"v_cmp_gt_u32 vcc, {nl}, v0")
            A(f"v_add_u32 v{t0}, s{S_T0}, v0")
            A(f"v_lshlrev_b32 v{t0}, 7, v{t0}")
            A(f"v_cndmask_b32 v{dst}, v{V_T+5}, v{t0}, vcc")
            return
        A(f"s_mul_i32 s{S_T0}, s{S_T4}, {nl}")
        A(f"v_add_u32 v{t0}, s{S_T0}, v0")
        sh = next(b for b in range(12, 23) if all((n_ * (-(-(1 << b) // per))) >> b == n_ // per for n_ in range(128 * nl + 64)))
        mg = -(-(1 << sh) // per)
        A(f"s_mov_b32 s{S_T1}, {mg}")
        A(f"v_mul_lo_u32 v{t1}, v{t0}, s{S_T1}")
        A(f"v_lshrrev_b32 v{t1}, {sh}, v{t1}")
        A(f"v_mul_u32_u24 v{t2}, {per}, v{t1}")
        A(f"v_sub_u32 v{t2}, v{t0}, v{t2}")
        A(f"v_lshlrev_b32 v{t2}, 7, v{t2}")
        A(f"v_mul_u32_u24 v{t1}, {92160}, v{t1}")
        A(f"v_cmp_gt_u32 vcc, {nl}, v0")
        A(f"v_add_u32 v{t2}, v{t2}, v{t1}")
        if s0: A(f"v_add_u32 v{t2}, {s0*6144}, v{t2}")
        else: A("s_nop 0")
        A(f"v_cndmask_b32 v{dst}, v{V_T+5}, v{t2}, vcc")
    wpf(V_PF, 0, c.pfw_split)
    if c.codepf:
        A(f"s_getpc_b64 s[{S_PC}:{S_PC+1}]")
        e.raw("L_pc:")
        A(f"s_sub_u32 s{S_PC}, s{S_PC}, L_pc-standalone__fft_conv__vision_kernel")
        A(f"s_subb_u32 s{S_PC+1}, s{S_PC+1}, 0")
        A(f"s_and_b32 s{S_PC+1}, s{S_PC+1}, 0xffff")
        A(f"s_mov_b32 s{S_PC+2}, CODE_BYTES")
        A(f"s_mov_b32 s{S_PC+3}, 0x20000")
        if c.codepf_all:
            A(f"v_lshlrev_b32 v{V_CPF}, 7, v0")
            A(f"s_lshl_b32 s{S_CPO}, s{S_WAVE}, 13")
        else:
            A(f"v_cmp_gt_u32 vcc, 2, v0")
            A(f"v_lshlrev_b32 v{t0}, 7, v0")
            A(f"s_lshl_b32 s{S_CPO}, s{S_T4}, 8")
            A(f"v_cndmask_b32 v{V_CPF}, v{V_T+5}, v{t0}, vcc")
    A(f"s_add_u32 s{S_WM}, s{S_X0}, {WS}")
    A(f"s_add_u32 s{S_WM2}, s{S_WM}, 8192")
    A(f"s_cmp_ge_u32 s{S_WAVE}, 2")
    A(f"s_cselect_b32 s{S_WM2}, {DUMMY}, s{S_WM2}")
    A(f"s_cselect_b32 s{S_WMM}, 0, -1")
    A(f"v_lshrrev_b32 v{t0}, 4, v0")
    A(f"v_bfe_u32 v{t1}, v0, 2, 2")
    A(f"v_lshl_add_u32 v{t1}, v{t0}, 3, v{t1}")
    A(f"v_and_b32 v{t0}, 1, v{t0}")
    A(f"v_mul_u32_u24 v{t1}, 192, v{t1}")
    A(f"v_lshlrev_b32 v{t0}, 1, v{t0}")
    A(f"v_and_b32 v{t2}, 3, v0")
    A(f"s_lshr_b32 s{S_T0}, s{S_WAVE}, 1")
    A(f"v_xor_b32 v{t2}, v{t2}, v{t0}")
    A(f"s_mul_i32 s{S_T0}, s{S_T0}, {480*192}")
    A(f"v_lshl_add_u32 v{t1}, v{t2}, 4, v{t1}")
    A(f"s_and_b32 s{S_T1}, s{S_WAVE}, 1")
    A(f"s_mul_i32 s{S_T1}, s{S_T1}, {4*192}")
    A(f"s_add_u32 s{S_T0}, s{S_T0}, s{S_T1}")
    A(f"s_lshl_b32 s{S_T1}, s{S_G}, 6")
    A(f"s_add_u32 s{S_T0}, s{S_T0}, s{S_T1}")
    A(f"v_add_u32 v{V_WD}, s{S_T0}, v{t1}")
    late = c.late_calc
    def tail_calc():
        if c.pfw_split < 15: wpf(V_PF2, c.pfw_split, 15)
        A(f"s_mov_b32 s{S_O+2}, {XBYTES}")
        A(f"s_mov_b32 s{S_O+3}, 0x20000")
        A(f"v_and_b32 v{V_T}, 15, v0")
        A(f"v_lshrrev_b32 v{V_T+1}, 4, v0")
        A(f"s_lshr_b32 s{S_T0}, s{S_WAVE}, 1")
        A(f"s_lshl_b32 s{S_T0}, s{S_T0}, 4")
        A(f"v_add_u32 v{V_T+4}, s{S_T0}, v{V_T}")
        for kw in range(5):
            A(f"v_add_u32 v{V_T+2}, {4-kw}, v{V_T+4}")
            A(f"v_lshrrev_b32 v{V_T+3}, 1, v{V_T+2}")
            A(f"v_and_b32 v{V_T+3}, 2, v{V_T+3}")
            A(f"v_xor_b32 v{V_T+3}, v{V_T+3}, v{V_T+1}")
            A(f"v_mul_u32_u24 v{V_T+2}, 192, v{V_T+2}")
            A(f"v_lshl_add_u32 v{V_XAA+kw}, v{V_T+3}, 4, v{V_T+2}")
            A(f"v_add_u32 v{V_XAR+kw}, {X2}, v{V_XAA+kw}")
        A(f"s_and_b32 s{S_T1}, s{S_WAVE}, 1")
        A(f"v_and_b32 v{V_T+2}, 1, v{V_T+1}")
        A(f"v_xor_b32 v{V_T+2}, s{S_T1}, v{V_T+2}")
        A(f"v_lshlrev_b32 v{V_T+2}, 5, v{V_T+2}")
        A(f"v_lshrrev_b32 v{V_T+3}, 2, v0")
        A(f"v_lshl_add_u32 v{V_T+2}, v{V_T+3}, 6, v{V_T+2}")
        A(f"v_and_b32 v{V_T+3}, 3, v0")
        A(f"v_lshl_add_u32 v{V_T+2}, v{V_T+3}, 3, v{V_T+2}")
        A(f"v_add_u32 v{V_TR}, {WS}, v{V_T+2}")
        A(f"v_add_u32 v{V_T+2}, s{S_W0}, v{V_T+4}")
        A(f"v_mul_u32_u24 v{V_T+2}, 192, v{V_T+2}")
        A(f"v_lshl_add_u32 v{V_T+2}, v{V_T+1}, 3, v{V_T+2}")
        A(f"s_lshl_b32 s{S_T0}, s{S_G}, 1")
        A(f"s_add_u32 s{S_T0}, s{S_T0}, s{S_T1}")
        A(f"s_lshl_b32 s{S_T0}, s{S_T0}, 5")
        A(f"v_add_u32 v{V_OUT}, s{S_T0}, v{V_T+2}")
    if not late: tail_calc()
    A("s_waitcnt lgkmcnt(0)")
    A(f"s_mov_b32 s{S_X}, s4"); A(f"s_mov_b32 s{S_X+1}, s5")
    A(f"s_mov_b32 s{S_Wt}, s6"); A(f"s_mov_b32 s{S_Wt+1}, s7")
    e.lstamp("karg")
    for r in c.direct: emit_now(e, x_ops(e, r))
    if c.pf_rows[1]: e.vmem(f"buffer_load_dword v{V_PFD}, v{V_PFX}, s[{S_X}:{S_X+3}], 0 offen", "pf")
    e.vmem(f"buffer_load_dword v{V_PFD+1}, v{V_PF}, s[{S_Wt}:{S_Wt+3}], 0 offen", "pf")
    if c.codepf: e.vmem(f"buffer_load_dword v{V_PFD+3}, v{V_CPF}, s[{S_PC}:{S_PC+3}], s{S_CPO} offen", "pf")
    if c.outpf:
        A(f"s_mov_b32 s{S_O+2}, {XBYTES}"); A(f"s_mov_b32 s{S_O+3}, 0x20000")
        A(f"v_cmp_gt_u32 vcc, 2, v0")
        A(f"v_mul_u32_u24 v{t0}, {14*ROWB}, v0")
        A("s_nop 0")
        A(f"v_cndmask_b32 v{t0}, v{V_T+5}, v{t0}, vcc")
        e.vmem(f"buffer_load_dword v{V_PFD+2}, v{t0}, s[{S_O}:{S_O+3}], s{S_OB} offen", "pf")
    e.lstamp("pf")
    for it in items[len(c.direct):c.nprol]:
        emit_now(e, x_ops(e, int(it[1:])) if it[0] == "x" else w_ops(e, int(it[1:])))
    if c.diag:
        e.lstamp("issued")
        nv = len(e.vm)
        seen = []
        for idx_, tg in enumerate(e.vm):
            if idx_ + 1 < nv and e.vm[idx_ + 1] == tg and tg != "pf": continue
            A(f"s_waitcnt vmcnt({nv - 1 - idx_})"); e.lstamp(tg + "_back")
    if late: tail_calc()

def b_read_to(e, row, f, reg, tag):
    kw, cc = divmod(f, 3)
    kind, off = xslot(row)
    base = V_XAA if kind == "A" else V_XAR
    e.lds(f"ds_read_b128 {reg}, v{base+kw} offset:{off + cc*64}", tag)
def tr_read(e, s, kh, h):
    e.lds(f"ds_read_b64_tr_b16 {wreg(kh, s, 2*h)}, v{V_TR} offset:{(s % NWS)*WSLOT + (2*kh + h)*1024}", f"t{s}_{kh}")
def out_ops(e, a, pair, o):
    vo = V_O + 2 * pair
    pre = [lambda: e.A(f"s_add_u32 s{S_OROW}, s{S_OROW}, s{S_LAST}")] if o == e.cfg.nrows - 1 else []
    return pre + [lambda: e.A(f"v_cvt_pk_bf16_f32 v{vo}, v{a}, v{a+1}"),
            lambda: e.A(f"v_cvt_pk_bf16_f32 v{vo+1}, v{a+2}, v{a+3}"),
            lambda: e.vmem(f"buffer_store_dwordx2 v[{vo}:{vo+1}], v{V_OUT}, s[{S_O}:{S_O+3}], s{S_OROW} offen {e.cfg.store_flags}".rstrip(), f"o{o}"),
            lambda: e.A(f"s_add_u32 s{S_OROW}, s{S_OROW}, {ROWB}")]

def out_ops_abs(e, a, pair, o):
    vo = V_O + 2 * pair
    return [lambda: e.A(f"s_add_u32 s{S_T6}, s{S_OB}, {o*ROWB}" if o else f"s_mov_b32 s{S_T6}, s{S_OB}"),
            lambda: e.A(f"v_cvt_pk_bf16_f32 v{vo}, v{a}, v{a+1}"),
            lambda: e.A(f"v_cvt_pk_bf16_f32 v{vo+1}, v{a+2}, v{a+3}"),
            lambda: e.vmem(f"buffer_store_dwordx2 v[{vo}:{vo+1}], v{V_OUT}, s[{S_O}:{S_O+3}], s{S_T6} offen {e.cfg.store_flags}".rstrip(), f"o{o}")]

class Gaps:
    def __init__(self, M, cap=1):
        self.M = M; self.g = [[] for _ in range(M)]; self.cap = cap
    def put(self, p, fn):
        self.g[min(max(p, 0), self.M - 1)].append(fn)
    def seq(self, ops, start, step=1, cap=None):
        cap = self.cap if cap is None else cap
        p = start
        for op in ops:
            while p < self.M - 1 and len(self.g[p]) >= cap: p += 1
            self.put(p, op); p = min(p + step, self.M - 1) if p < self.M - 1 else p
        return p

def block_a(e):
    c = e.cfg; RA = c.RA
    def khs(i): return [kh for kh in range(5) if 0 <= i - 4 + kh < RA]
    stream = list(c.stream)
    groups = [g.split(",") for g in c.groups.split("|")]
    nextw = 1 + max(int(it[1:]) for g in groups for it in g if it[0] == "w")
    groups += [[f"w{s}"] for s in range(nextw, 15)]
    order = []; rows_av = []; s_av = []; sched = set()
    mk_items = {}
    for gi, g in enumerate(groups):
        order.append(("M", gi)); mk_items[gi] = g
        for it in g:
            (rows_av if it[0] == "x" else s_av).append(int(it[1:]))
        for s in sorted(s_av):
            for r in sorted(rows_av, key=lambda r: (-len(khs(r)), r)):
                if (r, s) not in sched: sched.add((r, s)); order.append((r, s))
    assert len(sched) == len(stream) * 15
    w_marker = {int(it[1:]): gi for gi, g in mk_items.items() for it in g if it[0] == "w"}
    row_marker = {int(it[1:]): gi for gi, g in mk_items.items() for it in g if it[0] == "x"}
    nearly = len(c.groups.split("|"))
    mf = []; first = {}; mpos = {}
    def flush_group(grp, flip):
        if not c.omajor:
            for ent in grp:
                for kh in khs(ent[0]): mf.append((ent, kh))
            return
        for s_ in sorted(set(ent[1] for ent in grp)):
            lst = [(ent, kh) for ent in grp if ent[1] == s_ for kh in khs(ent[0])]
            lst.sort(key=lambda z: (z[0][0] - 4 + z[1], z[0][0]), reverse=flip[0])
            flip[0] = not flip[0]
            mf.extend(lst)
    grp = []; flip = [False]
    for ent in order + [("M", None)]:
        if ent[0] == "M":
            flush_group(grp, flip); grp = []
            if ent[1] is not None: mpos[ent[1]] = len(mf)
        else: grp.append(ent)
    for q_, (ent, kh) in enumerate(mf): first.setdefault(ent, q_)
    M = len(mf)
    mark_at = {}; prev = 0
    for p in sorted(mpos):
        q = mpos[p]
        if p >= nearly: q = max(prev, mpos[p] - c.wearly)
        elif p >= 1: q = max(prev, mpos[p] - c.early)
        mark_at[p] = q; prev = q
    tasks = []
    pairs = [ent for ent in order if ent[0] != "M"]
    last_use = {}
    for q, (ent, kh) in enumerate(mf): last_use[ent] = q
    for ent in pairs:
        tasks.append(dict(kind="b", ent=ent, ready=mark_at[row_marker[ent[0]]], due=first[ent], done=False))
    for s in range(15):
        for kh in range(5):
            due = min(q for q, (ent, k2) in enumerate(mf) if ent[1] == s and k2 == kh)
            for h in range(2):
                tasks.append(dict(kind="t", s=s, kh=kh, h=h, ready=mark_at[w_marker[s]], due=due, done=False))
    tasks.sort(key=lambda t: (t["due"], 0 if t["kind"] == "t" else 1))
    bslots = [None] * 15; bfree_at = [-1] * 15; bassign = {}
    def issue(t, q):
        if t["kind"] == "t": tr_read(e, t["s"], t["kh"], t["h"])
        else:
            k = min(range(15), key=lambda j: bfree_at[j])
            if bfree_at[k] >= q and bslots[k] is not None: return False
            ent = t["ent"]
            bslots[k] = ent; bfree_at[k] = last_use[ent]; bassign[ent] = k
            reg = V_B + 60 + 4 * k
            b_read_to(e, ent[0], ent[1], f"v[{reg}:{reg+3}]", f"pb{ent[0]}_{ent[1]}")
        t["done"] = True
        return True
    items = [it for g in c.groups.split("|") for it in g.split(",")]
    dplan = {}
    rest = [(it[0], int(it[1:])) for it in items[c.nprol:]]
    issued_w = [int(it[1:]) for it in items if it[0] == "w"]
    dplan[0] = list(rest)
    for s in range(max(issued_w) + 1, min(4, 15)): dplan[0].append(("w", s))
    for s in range(max(max(issued_w) + 1, 4), 15):
        dplan.setdefault(w_marker[s - 3], []).append(("w", s))
    if c.pfw_split < 15: dplan.setdefault(w_marker[c.pfwb_after], []).append(("pfw", 0))
    planned = []
    for part in c.def_plan.split("|"):
        wm, rows_ = part.split(":")
        rows_ = [int(r) for r in rows_.split(",")]
        dplan.setdefault(w_marker[int(wm)], []).extend([("x", r) for r in rows_]); planned += rows_
    late_rows = [r for r in c.deferred if r not in planned] + ([r for r in (8, 9, 10, 11, 12) if r not in planned and r not in c.stream] if c.merge else [12, 13])
    def ops_of(kind, a):
        if kind == "x": return x_ops(e, a)
        if kind == "w": return w_ops(e, a)
        return [lambda: e.vmem(f"buffer_load_dword v{V_PFD+2}, v{V_PF2}, s[{S_Wt}:{S_Wt+3}], 0 offen", "pf")]
    dq = []
    marks_sorted = sorted(mark_at)
    for p in marks_sorted:
        ops = []
        for kind, a in dplan.get(p, []): ops += ops_of(kind, a)
        if not ops: continue
        lo = mark_at[p]; hi = mark_at[p+1] if p + 1 in mark_at else M - 2
        span = 0 if p < nearly - 1 else max(hi - lo - len(ops) // 2, 0)
        for k, op in enumerate(ops): dq.append((lo + (k * span) // len(ops), op))
    dq.reverse()
    last_dma = [-10, False]
    def run_dma_op(force=False):
        _, op = dq.pop()
        n0 = len(e.L); op()
        if " lds" in e.L[-1] and re.search(r"\bm0,", e.L[n0-1]): e.L.insert(n0, "  s_nop 0")
    need = {p: list(mk_items[p]) for p in marks_sorted}
    prevw = {}
    for p in marks_sorted:
        ws = [int(it[1:]) for it in mk_items[p] if it[0] == "w"]
        if ws and ws[0] >= 1: prevw[p] = ws[0] - 1
    cnt = lambda tg: 3 if tg[0] == "w" else 2
    inited = set()
    deferred = list(c.deferred)
    par = len(deferred) % 2
    def setreg(k, f):
        b = V_B + ((k + par) % 2) * 60 + 4 * f
        return f"v[{b}:{b+3}]"
    vis = {}
    k0 = 0
    if par: vis[0] = [deferred[0]]; k0 = 1
    for k_ in range(k0, len(deferred), 2): vis[k_] = deferred[k_:k_+2]
    if c.merge: vis[len(deferred)] = [RA, RA + 1]
    dpre = c.dpre if par == 0 else 0
    q_d = M - dpre if dpre else None
    d_issued = []
    pre = {}
    for p in marks_sorted:
        if p >= nearly:
            pre.setdefault(max(mark_at[p] - 2, mark_at[p-1] + 1), []).append(("vm", p))
            pre.setdefault(max(mark_at[p] - 1, mark_at[p-1] + 1), []).append(("lg", p))
    def do_vm(p):
        while not all(e.vm.count(tg) == cnt(tg) for tg in need[p]): run_dma_op()
        e.wait_vm(*need[p])
    def do_lg(p, q):
        if p not in prevw: return
        sp = prevw[p]
        for t in tasks:
            if t["kind"] == "t" and t["s"] == sp and not t["done"]: issue(t, q)
        idxs = [i_ for i_, tg in enumerate(e.lg) if tg.startswith(f"t{sp}_")]
        e.wait_lg(e.lg[max(idxs)])
    for q in range(M):
        for kind, p in pre.get(q, []):
            if mark_at[p] > q:
                (do_vm(p) if kind == "vm" else do_lg(p, q))
        for p in marks_sorted:
            if mark_at[p] == q:
                do_lg(p, q); do_vm(p)
                e.A("s_barrier")
                if p == 0:
                    for _ in range(c.burst):
                        if dq: run_dma_op()
                if p in (0, nearly - 1, w_marker[4], w_marker[9], w_marker[14]): e.lstamp(f"M{p}:" + ",".join(mk_items[p]))
        if q_d is not None and q == q_d:
            while not all(e.vm.count(f"x{r_}") == 2 for r_ in vis[0]): run_dma_op()
            e.wait_vm(*[f"x{r_}" for r_ in vis[0]]); e.A("s_barrier")
        ent, kh = mf[q]
        late = [t for t in tasks if not t["done"] and t["due"] <= q]
        if late:
            for t in late:
                assert t["ready"] <= q, (t, q)
                ok = issue(t, q); assert ok
            for t in tasks:
                if t["done"] or t["ready"] > q: continue
                if len(e.lg) - e.lg_done >= 13: break
                if t["kind"] == "b" and t["due"] - q > c.look: continue
                issue(t, q)
        n0 = len(e.L)
        e.wait_lg(f"t{ent[1]}_{kh}", f"pb{ent[0]}_{ent[1]}", age=5)
        o = ent[0] - 4 + kh; a = V_ACCA + 4 * o
        src = f"v[{a}:{a+3}]" if o in inited else "0"
        inited.add(o)
        reg = V_B + 60 + 4 * bassign[ent]
        e.mfma(f"v_mfma_f32_16x16x32_bf16 v[{a}:{a+3}], {wreg(kh, ent[1])}, v[{reg}:{reg+3}], {src}")
        budget = 2
        early_phase = q < mark_at[nearly - 1]
        if early_phase: budget = 4
        def try_lds():
            for t in tasks:
                if t["done"] or t["ready"] > q: continue
                if t["kind"] == "b" and t["due"] - q > c.look: continue
                if len(e.lg) - e.lg_done >= 14: return False
                if issue(t, q + 1): return True
            return False
        def try_dma():
            if dq and dq[-1][0] <= q: run_dma_op(); return True
            return False
        def try_d():
            if q_d is not None and q >= q_d and len(d_issued) < 15 and len(e.lg) - e.lg_done < 14:
                f = len(d_issued); d_issued.append(f)
                b_read_to(e, deferred[0], f, setreg(0, f), f"d0_{f}"); return True
            return False
        _lds = try_lds
        def try_lds(): return _lds() or try_d()
        turn = [try_lds, try_dma]
        k = 0
        while budget > 0:
            if turn[k % 2]() or turn[(k + 1) % 2](): budget -= 1; k += 1
            else: break
    while dq: run_dma_op()
    if c.codepf2: e.vmem(f"buffer_load_dword v{V_PFD+3}, v{V_CPF}, s[{S_PC}:{S_PC+3}], s{S_CPO} offen", "pf")
    e.lstamp("streamend")
    seq = deferred + [RA]
    if q_d is None:
        e.wait_vm(*[f"x{r_}" for r_ in vis[0]]); e.A("s_barrier")
    for f in range(len(d_issued), 15): b_read_to(e, seq[0], f, setreg(0, f), f"d0_{f}")
    for k, r in enumerate(deferred):
        mfs = []
        for kh in khs(r):
            o = r - 4 + kh; a = V_ACCA + 4 * o
            for f in range(15):
                src = f"v[{a}:{a+3}]" if o in inited else "0"
                inited.add(o)
                mfs.append((f, f"v_mfma_f32_16x16x32_bf16 v[{a}:{a+3}], {wreg(kh, f)}, {setreg(k, f)}, {src}"))
        Mk = len(mfs); nxt = seq[k + 1]
        G = Gaps(Mk)
        if (k + 1) in vis:
            e.wait_vm(*[f"x{r_}" for r_ in vis[k+1]]); e.A("s_barrier")
        span = max(Mk - 6, 15)
        for f in range(15): G.put(min((f * span) // 15, Mk - 1), (lambda f=f: b_read_to(e, nxt, f, setreg(k + 1, f), f"d{k+1}_{f}")))
        if c.merge and k >= 1:
            op_ = deferred[k-1]
            assert op_ <= 3
            G.seq(out_ops_abs(e, V_ACCA + 4 * op_, 1, op_), min(9, Mk - 6), step=1, cap=2)
        ntake = 2 if (k < 1 or c.merge) else 1
        pos = 2
        for _ in range(ntake):
            if late_rows and (Mk >= 30 or (c.merge and Mk >= 15 and _ == 0)):
                pos = G.seq(x_ops(e, late_rows.pop(0)), pos, step=1, cap=2)
        for p_, (f, s_) in enumerate(mfs):
            if p_ < 15: e.wait_lg(f"d{k}_{f}", age=5)
            e.mfma(s_)
            for fn in G.g[p_]: fn()
    e.late_rows = late_rows
    e.dtag = f"d{len(deferred)}"
    e.lstamp("defend")

def step(e, i, chains, last_row, extra_out=(), extra_dma=(), prev_tags=None, skip=None):
    c = e.cfg; RA = c.RA
    mf = []
    for kh in chains:
        o = i - 4 + kh; a = acc(o)
        for f in range(15):
            src = "0" if (kh == 4 and f == 0) else f"v[{a}:{a+3}]"
            mf.append((f, f"v_mfma_f32_16x16x32_bf16 v[{a}:{a+3}], {wreg(kh, f)}, {breg(i, f)}, {src}"))
    M = len(mf)
    U = M - 15 if skip else M
    G = Gaps(M)
    nxt = i + 1
    nn = i + 2
    S0 = (RA + 2) if c.merge else NA
    did_bar = nxt <= last_row and nxt >= S0
    if did_bar: e.A("s_barrier")
    if nxt <= last_row:
        span = max(U - 9, 15) if U >= 15 else U
        for f in range(15): G.put(min((f * span) // 15, U - 1), (lambda f=f: b_read_to(e, nxt, f, breg(nxt, f), f"b{nxt}_{f}")))
    r4 = i + 4
    if i >= NA and r4 <= last_row: G.seq(x_ops(e, r4, seq=True), c.dma_pos, step=2)
    pos_ = 1
    for r_ in extra_dma: pos_ = G.seq(x_ops(e, r_), pos_ if c.merge else 1, step=1, cap=(2 if M <= 30 else 1))
    tail = []
    if 0 in chains and (i - 4 >= RA or c.merge):
        o = i - 4; endp = chains.index(0) * 15 + 14
        ops = out_ops(e, acc(o), 0, o)
        if endp + 14 < M: G.seq(ops, max(endp + 9, c.out_pos if M == 75 else 0), step=1)
        else: tail = ops
    for k, (a, o) in enumerate(extra_out):
        if c.merge: G.seq(out_ops_abs(e, a, 1, o), 9, step=1)
        else: G.seq(out_ops(e, a, k % 2, o), (k * M) // max(len(extra_out), 1) + 1, step=1, cap=(2 if M <= 45 else 1))
    if nn <= last_row and nn >= S0:
        G.put(U - 3, lambda: e.wait_vm(f"x{nn}", force=(i >= NA)))
    short = U < 45
    lab = f"{i if i < NA or i >= c.nrows else 'l' + str((i - NA) % 4)}"
    for p, (f, s) in enumerate(mf):
        if skip and p == U:
            e.A(skip); e.A(f"s_cbranch_scc1 L_skip{lab}")
            mark = len(e.L)
        if prev_tags and p < 15: e.wait_lg(prev_tags(f), age=5)
        e.mfma(s)
        for fn in G.g[p]: fn()
        if p == U - 2 and nxt <= last_row and not short: e.wait_lg(f"b{nxt}_14")
    if skip:
        fill = [l for l in e.L[mark:] if "v_mfma" not in l]
        if fill:
            e.A(f"s_branch L_join{lab}")
            e.raw(f"L_skip{lab}:")
            if any("v_cvt" in l for l in fill): e.A("s_nop 7"); e.A("s_nop 1")
            e.L.extend(fill)
            e.raw(f"L_join{lab}:")
        else:
            e.raw(f"L_skip{lab}:")
    if tail:
        e.A("s_nop 7"); e.A("s_nop 1")
        for fn in tail: fn()
    if nxt <= last_row and short and (nn <= last_row and nn >= S0): e.wait_lg(f"b{nxt}_14")

def build(cfg):
    e = Em(cfg); n = cfg.nrows; RA = cfg.RA
    last_row = n + 3
    e.raw("; direct 5x5 circular convolution; weights stationary in registers; start block overlaps the weight arrival")
    e.raw(f"; @launch grid=(252,1,1) block=(256,1,1) lds={LDS_BYTES}")
    e.raw('.amdgcn_target "amdgcn-amd-amdhsa--gfx950"')
    e.raw(".text")
    e.raw(".globl standalone__fft_conv__vision_kernel")
    if cfg.align12: e.raw(".p2align 12")
    e.raw(".p2align 8")
    e.raw(".type standalone__fft_conv__vision_kernel,@function")
    e.raw("standalone__fft_conv__vision_kernel:")
    prologue(e)
    block_a(e)
    if cfg.merge:
        RA_ACC[0] = RA
        def chains_for(i): return [kh for kh in range(5) if 0 <= i - 4 + kh < n]
        flush = {RA: [cfg.deferred[-1]]}
        lr = list(e.late_rows) + [13, 14, 15]
        predma = {RA: lr[:2], RA + 1: lr[2:4], RA + 2: lr[4:6], RA + 3: lr[6:]}
    else:
        assert not e.late_rows
        def chains_for(i): return [kh for kh in range(5) if RA <= i - 4 + kh < n]
        flush = {RA + 1: [0, 1], RA + 2: [2, 3, 4], RA + 3: [5, 6, 7]}
        predma = {RA: [14], RA + 1: [15]}
    i = RA
    while i < NA:
        ex = [(V_ACCA + 4 * o, o) for o in flush.get(i, [])]
        pt = (lambda f: f"{e.dtag}_{f}") if i == RA else (lambda f, i=i: f"b{i}_{f}")
        step(e, i, chains_for(i), last_row, ex, predma.get(i, []), pt); i += 1
    if cfg.codepf3: e.vmem(f"buffer_load_dword v{V_PFD+3}, v{V_CPF}, s[{S_PC}:{S_PC+3}], s{S_CPO} offen", "pf")
    e.lstamp("rampend")
    e.A(f"s_add_u32 s{S_T0}, s{S_XBASE}, {(NA+4)*ROWB}")
    e.A(f"s_sub_u32 s{S_T1}, s{S_T0}, {XBYTES}")
    e.A(f"s_min_u32 s{S_XROW}, s{S_T0}, s{S_T1}")
    def skip_of(ii):
        if not cfg.skipdup: return None
        if ii == n - 1 or (cfg.loop and NA <= ii < n and (ii - NA) % 4 == (n - 1 - NA) % 4):
            return f"s_cmp_eq_u32 s{S_CNT}, s{S_DUP}" if cfg.loop else f"s_cmp_eq_u32 s{S_DUP}, 0"
        if n <= ii < last_row: return f"s_cmp_eq_u32 s{S_DUP}, 0"
        return None
    def last_step(ii):
        if cfg.skipdup:
            e.A(f"s_cmp_eq_u32 s{S_DUP}, 0"); e.A("s_cbranch_scc1 L_done")
        step(e, ii, chains_for(ii), last_row, prev_tags=(lambda f, ii=ii: f"b{ii}_{f}"))
        if cfg.skipdup: e.raw("L_done:")
    if not cfg.loop:
        while i <= last_row:
            if i == last_row: last_step(i)
            else: step(e, i, chains_for(i), last_row, prev_tags=(lambda f, i=i: f"b{i}_{f}"), skip=skip_of(i))
            i += 1
            if i <= last_row: e.lstamp(f"step{i}")
    else:
        steady = list(range(NA, n)); nst = len(steady)
        start = len(e.L); seg = []
        for ii in steady:
            s0 = len(e.L)
            step(e, ii, chains_for(ii), last_row, prev_tags=(lambda f, ii=ii: f"b{ii}_{f}"), skip=skip_of(ii))
            seg.append(e.L[s0:])
        e.L = e.L[:start]
        for k in range(4, nst):
            a, b = seg[k % 4], seg[k]
            assert len(a) == len(b), f"non periodic step {steady[k]}"
            for j in range(len(a)):
                if a[j] != b[j]:
                    ma = re.fullmatch(r"  s_waitcnt vmcnt\((\d+)\)", a[j]); mb = re.fullmatch(r"  s_waitcnt vmcnt\((\d+)\)", b[j])
                    assert ma and mb, (a[j], b[j])
                    a[j] = f"  s_waitcnt vmcnt({min(int(ma.group(1)), int(mb.group(1)))})"
        full, rem = divmod(nst, 4)
        assert rem != 0 and full == 1
        e.A(f"s_mov_b32 s{S_CNT}, {full}")
        e.raw(".p2align 3")
        e.raw("L_loop:")
        for k in range(4):
            if k == rem:
                e.A(f"s_cmp_eq_u32 s{S_CNT}, 0")
                e.A("s_cbranch_scc1 L_down")
                e.A(f"s_sub_u32 s{S_CNT}, s{S_CNT}, 1")
            e.L.extend(seg[k])
        e.A("s_branch L_loop")
        e.raw("L_down:")
        if cfg.wbl2:
            e.A(f"s_lshr_b32 s{S_T6}, s2, 3"); e.A(f"s_add_u32 s{S_T6}, s{S_T6}, s{S_WAVE}")
            e.A(f"s_cmp_lg_u32 s{S_T6}, 0"); e.A("s_cbranch_scc1 L_nowb")
            e.A(f"buffer_wbl2 {cfg.wbl2}")
            e.raw("L_nowb:")
        e.lstamp("loopend")
        i = n
        while i <= last_row:
            if i == last_row: last_step(i)
            else: step(e, i, chains_for(i), last_row, prev_tags=(lambda f, i=i: f"b{i}_{f}"), skip=skip_of(i))
            i += 1
    if cfg.spin:
        e.lstamp("mfmaend"); e.A("s_waitcnt vmcnt(0) lgkmcnt(0)")
        ia, ib, K = e.lnames.index(cfg.spin[0]), e.lnames.index(cfg.spin[1]), cfg.spin[2]
        e.A(f"s_sub_u32 s50, s{64+2*ib}, s{64+2*ia}")
        e.A(f"s_mul_i32 s50, s50, {K}")
        e.A("s_memtime s[52:53]"); e.A("s_waitcnt lgkmcnt(0)")
        e.raw("L_spin:")
        e.A("s_memtime s[54:55]"); e.A("s_waitcnt lgkmcnt(0)")
        e.A("s_sub_u32 s51, s54, s52"); e.A("s_cmp_lt_u32 s51, s50"); e.A("s_cbranch_scc1 L_spin")
    elif cfg.lst:
        e.lstamp("mfmaend"); e.A("s_waitcnt vmcnt(0)"); e.lstamp("drain")
        e.A("s_memrealtime s[62:63]")
        e.A("s_waitcnt lgkmcnt(0)")
        e.A(f"s_load_dwordx2 s[{S_WS}:{S_WS+1}], s[0:1], 32")
        e.A(f"v_mov_b32 v{V_ST}, 0")
        for k in range(e.nl): e.A(f"v_writelane_b32 v{V_ST}, s{64+2*k}, {k}")
        e.A(f"v_writelane_b32 v{V_ST}, s60, 62"); e.A(f"v_writelane_b32 v{V_ST}, s62, 63")
        e.A("s_waitcnt lgkmcnt(0)")
        e.A(f"s_lshl_b32 s{S_T0}, s2, 2")
        e.A(f"s_add_u32 s{S_T0}, s{S_T0}, s{S_WAVE}")
        e.A(f"s_lshl_b32 s{S_T0}, s{S_T0}, 8")
        e.A(f"s_add_u32 s{S_WS}, s{S_WS}, s{S_T0}")
        e.A(f"s_addc_u32 s{S_WS+1}, s{S_WS+1}, 0")
        e.A("v_lshlrev_b32 v1, 2, v0")
        e.A(f"global_store_dword v1, v{V_ST}, s[{S_WS}:{S_WS+1}]")
        print("lstamps:", e.nl, e.lnames)
    if cfg.endwait: e.A("s_waitcnt vmcnt(0)")
    e.raw("L_end:")
    e.A("s_endpgm")
    e.raw("L_code_end:")
    e.raw('.section .rodata,"a"')
    e.raw(".p2align 6")
    e.raw(".amdhsa_kernel standalone__fft_conv__vision_kernel")
    for l in ("next_free_vgpr 512", "next_free_sgpr 100", "accum_offset 256", "group_segment_fixed_size 0", "kernarg_size 40",
              "user_sgpr_count 2", "user_sgpr_kernarg_segment_ptr 1", "system_sgpr_workgroup_id_x 1"):
        e.raw("  .amdhsa_" + l)
    e.raw(".end_amdhsa_kernel")
    out = []
    for l in e.L:
        if " lds" in l and "buffer_load" in l and out and re.search(r"\bm0,", out[-1]): out.append("  s_nop 0")
        out.append(l)
    e.L = out
    import subprocess, tempfile, os
    size = 0x7fff
    for _ in range(2):
        txt = "\n".join(l.replace("CODE_BYTES", str(size)) for l in e.L) + "\n"
        with tempfile.TemporaryDirectory() as td:
            open(td + "/k.s", "w").write(txt)
            subprocess.run(["clang", "-x", "assembler", "-target", "amdgcn-amd-amdhsa", "-mcpu=gfx950", "-c", td + "/k.s", "-o", td + "/k.o"], check=True)
            dis = subprocess.run(["llvm-objdump", "-d", "--mcpu=gfx950", td + "/k.o"], capture_output=True, text=True).stdout
        sym = {}
        for l in dis.splitlines():
            m_ = re.match(r"([0-9a-f]{16}) <(.*)>:", l)
            if m_: sym[m_.group(2)] = int(m_.group(1), 16)
        size = sym["L_end"] + 4 - sym["standalone__fft_conv__vision_kernel"]
        assert size - 4 > sym["L_pc"] - sym["standalone__fft_conv__vision_kernel"] if "L_pc" in sym else True
    e.code_size = size
    e.L = [l.replace("CODE_BYTES", str(size)) for l in e.L]
    open(cfg.name, "w").write("\n".join(e.L) + "\n")
    return e

if __name__ == "__main__":
    ap = argparse.ArgumentParser()
    ap.add_argument("-o", default=Cfg.name)
    ap.add_argument("--lst", action="store_true")
    ap.add_argument("--noloop", action="store_true")
    ap.add_argument("--store", default="")
    ap.add_argument("--look", type=int, default=12)
    ap.add_argument("--early", type=int, default=8)
    ap.add_argument("--wearly", type=int, default=26)
    ap.add_argument("--nocodepf", action="store_true")
    ap.add_argument("--outpf", action="store_true")
    ap.add_argument("--wbl2", default="")
    ap.add_argument("--burst", type=int, default=0)
    ap.add_argument("--no_merge", action="store_true")
    ap.add_argument("--no_omajor", action="store_true")
    ap.add_argument("--no_skipdup", action="store_true")
    ap.add_argument("--dpre", type=int, default=14)
    ap.add_argument("--early_calc", action="store_true")
    ap.add_argument("--endwait", action="store_true")
    ap.add_argument("--spin", default="")
    ap.add_argument("--codepf2", action="store_true")
    ap.add_argument("--codepf3", action="store_true")
    ap.add_argument("--codepf_all", action="store_true")
    ap.add_argument("--stepst", action="store_true")
    ap.add_argument("--dma_pos", type=int, default=18)
    ap.add_argument("--out_pos", type=int, default=0)
    ap.add_argument("--diag", action="store_true")
    ap.add_argument("--groups", default=Cfg.groups)
    ap.add_argument("--nprol", type=int, default=4)
    ap.add_argument("--direct", default="4,5")
    ap.add_argument("--pf_rows", default="6,2")
    ap.add_argument("--stream", default="4,5,6,7")
    ap.add_argument("--deferred", default="3,8,2,9,1,10,0,11")
    ap.add_argument("--def_plan", default=Cfg.def_plan)
    ap.add_argument("--pfw_split", type=int, default=15)
    ap.add_argument("--pfwb_after", type=int, default=3)
    a = ap.parse_args()
    cfg = Cfg()
    cfg.name = a.o; cfg.lst = a.lst; cfg.loop = not a.noloop; cfg.store_flags = a.store
    cfg.direct = [int(x) for x in a.direct.split(",")]; cfg.pf_rows = tuple(int(x) for x in a.pf_rows.split(","))
    cfg.stream = [int(x) for x in a.stream.split(",")]; cfg.deferred = [int(x) for x in a.deferred.split(",")]; cfg.def_plan = a.def_plan
    cfg.groups = a.groups; cfg.nprol = a.nprol; cfg.pfw_split = a.pfw_split; cfg.pfwb_after = a.pfwb_after; cfg.diag = a.diag; cfg.dma_pos = a.dma_pos; cfg.out_pos = a.out_pos; cfg.stepst = a.stepst; cfg.codepf2 = a.codepf2; cfg.codepf_all = a.codepf_all; cfg.codepf3 = a.codepf3; cfg.spin = (lambda p: (p[0], p[1], int(p[2])) )(a.spin.split("/")) if a.spin else None
    if cfg.spin: cfg.lst = True
    cfg.endwait = a.endwait; cfg.late_calc = not a.early_calc; cfg.dpre = a.dpre; cfg.omajor = not a.no_omajor; cfg.skipdup = not a.no_skipdup; cfg.merge = not a.no_merge; cfg.burst = a.burst; cfg.wbl2 = a.wbl2; cfg.outpf = a.outpf; cfg.look = a.look; cfg.early = a.early; cfg.wearly = a.wearly; cfg.codepf = not a.nocodepf
    e = build(cfg)
    print("lines", len(e.L), "LDS", LDS_BYTES, "code", e.code_size)
```

```python
import sys, argparse, re

class Cfg:
    nrows = 19
    RA = 8
    store_flags = ""
    lst = False
    loop = True
    look = 12
    early = 8
    wearly = 26
    codepf = True
    kwait0 = False
    warm = 0
    rtstamp = False
    outpf = False
    wbl2 = ''
    burst = 0
    merge = True
    omajor = True
    skipdup = True
    dpre = 14
    late_calc = True
    endwait = False
    spin = None
    codepf2 = False
    codepf3 = False
    codepf_all = False
    stepst = False
    dma_pos = 18
    out_pos = 0
    diag = False
    groups = "x4,x5,w0|x6,x7|w1|w2"
    direct = [4, 5]
    pf_rows = (6, 2)
    stream = [4, 5, 6, 7]
    deferred = [3, 8, 2, 9, 1, 10, 0, 11]
    nprol = 4
    pfw_split = 15
    pfwb_after = 3
    def_plan = "11:3,8|12:2,9|14:1,10"
    align12 = True
    name = "standalone__fft_conv__vision.s"

H = W = 224
ROWB = W * 192
XBYTES = H * ROWB
WBYTES = 460800
SLOTB = 7168
NA = 12
XR = NA * SLOTB
X2 = 10 * SLOTB
WS = XR + 4 * SLOTB
WSLOT = 10240
NWS = 4
DUMMY = WS + NWS * WSLOT
LDS_BYTES = DUMMY + 1024

S_X, S_Wt, S_O = 8, 12, 16
S_WS = 20
S_WAVE = 22
S_X0, S_X1, S_XM = 23, 24, 25
S_XBASE, S_XROW, S_OROW, S_CNT = 26, 27, 28, 29
S_T0, S_T1, S_T2, S_T3 = 30, 31, 32, 33
S_WM, S_G, S_W0, S_WM2, S_WMM = 34, 35, 36, 37, 38
S_T4, S_T5 = 39, 40
S_PC = 44
S_CPO = 48
S_DUP = 49
S_OB = 50
S_T6 = 51
S_LAST = 41
V_XAA = 2; V_XAR = 7
V_XD0, V_XD1 = 12, 13
V_WD, V_TR, V_OUT, V_PF = 14, 15, 16, 17
V_T = 18
V_O = 24
V_ST = 28
V_ACC = 32
V_B = 48
V_ACCA = 168
V_PFX = 200
V_PFD = 202
V_PF2 = 206
V_CPF = 207
V_WT = 212

def wreg(kh, f, lo=None):
    i = kh * 15 + f
    if i < 64: base, t = 4 * i, "a"
    else: base, t = V_WT + 4 * (i - 64), "v"
    if lo is None: return f"{t}[{base}:{base+3}]"
    return f"{t}[{base+lo}:{base+lo+1}]"
def breg(row, f):
    b = V_B + (row % 2) * 60 + 4 * f
    return f"v[{b}:{b+3}]"
RA_ACC = [0]
def acc(o): return V_ACCA + 4 * o if o < RA_ACC[0] else V_ACC + 4 * (o % 4)
def xlds(row): return row * SLOTB if row < NA else XR + ((row - NA) % 4) * SLOTB
def xslot(row):
    a = xlds(row)
    return ("A", a) if a < X2 else ("R", a - X2)

class Em:
    def __init__(self, cfg):
        self.cfg = cfg; self.L = []
        self.vm = []; self.vm_done = 0
        self.lg = []; self.lg_done = 0; self.lg_pos = []
        self.pos = 0
        self.nl = 0; self.lnames = []
    def A(self, s): self.L.append("  " + s)
    def raw(self, s): self.L.append(s)
    def mfma(self, s): self.A(s); self.pos += 1
    def vmem(self, s, tag): self.A(s); self.vm.append(tag)
    def lds(self, s, tag): self.A(s); self.lg.append(tag); self.lg_pos.append(self.pos)
    def vm_need(self, tags):
        idx = -1
        for tag in tags:
            assert tag in self.vm, (tag, self.vm)
            idx = max(idx, max(i for i, t in enumerate(self.vm) if t == tag))
        return idx
    def wait_vm(self, *tags, force=False):
        idx = self.vm_need(tags)
        if idx < self.vm_done and not force: return False
        n = min(len(self.vm) - 1 - idx, 63)
        self.A(f"s_waitcnt vmcnt({n})"); self.vm_done = max(self.vm_done, len(self.vm) - n)
        return True
    def wait_lg(self, *tags, age=None):
        idx = -1
        for tag in tags:
            assert tag in self.lg, tag
            idx = max(idx, max(i for i, t in enumerate(self.lg) if t == tag))
        if idx < self.lg_done: return False
        if age is not None:
            for i in range(idx + 1, len(self.lg)):
                if self.pos - self.lg_pos[i] >= age: idx = i
        n = min(len(self.lg) - 1 - idx, 15)
        self.A(f"s_waitcnt lgkmcnt({n})"); self.lg_done = len(self.lg) - n
        return True
    def lstamp(self, name=""):
        if not self.cfg.lst: return
        if self.cfg.stepst and not (name.startswith("step") or name in ("start", "M0:x4,w0", "M5:w4", "M10:w9", "streamend", "defend", "rampend", "mfmaend", "drain")): return
        if self.cfg.stepst and name in ("step14", "step16", "step18", "step21", "step22"): return
        k = self.nl
        if k >= 18: return
        self.A(f"{'s_memrealtime' if self.cfg.rtstamp else 's_memtime'} s[{64+2*k}:{65+2*k}]")
        self.lnames.append(name); self.nl = k + 1

def x_ops(e, row, seq=False):
    base = xlds(row); ops = []
    I = lambda s: (lambda: e.A(s))
    if not seq:
        ops += [I(f"s_add_u32 s{S_T0}, s{S_XBASE}, {row*ROWB}"), I(f"s_sub_u32 s{S_T1}, s{S_T0}, {XBYTES}"),
                I(f"s_min_u32 s{S_XROW}, s{S_T0}, s{S_T1}")]
    ops += [I(f"s_add_u32 m0, s{S_X0}, {base}"),
            lambda: e.vmem(f"buffer_load_dwordx4 v{V_XD0}, s[{S_X}:{S_X+3}], s{S_XROW} offen lds", f"x{row}")]
    if base: ops += [I(f"s_and_b32 s{S_T2}, s{S_XM}, {base}"), I(f"s_add_u32 m0, s{S_X1}, s{S_T2}")]
    else: ops += [I(f"s_mov_b32 m0, s{S_X1}")]
    ops += [lambda: e.vmem(f"buffer_load_dwordx4 v{V_XD1}, s[{S_X}:{S_X+3}], s{S_XROW} offen lds", f"x{row}")]
    if seq:
        ops += [I(f"s_add_u32 s{S_XROW}, s{S_XROW}, {ROWB}"), I(f"s_sub_u32 s{S_T1}, s{S_XROW}, {XBYTES}"),
                I(f"s_min_u32 s{S_XROW}, s{S_XROW}, s{S_T1}")]
    return ops
def w_ops(e, s):
    ops = []
    I = lambda t: (lambda: e.A(t))
    for m in range(3):
        off = (s % NWS) * WSLOT
        ops.append(I(f"s_mov_b32 s{S_T3}, {(32*s + 960*m)*192}"))
        if m < 2: ops.append(I(f"s_add_u32 m0, s{S_WM}, {off + 4*m*1024}"))
        elif off: ops += [I(f"s_and_b32 s{S_T4}, s{S_WMM}, {off}"), I(f"s_add_u32 m0, s{S_WM2}, s{S_T4}")]
        else: ops.append(I(f"s_mov_b32 m0, s{S_WM2}"))
        ops.append(lambda m=m: e.vmem(f"buffer_load_dwordx4 v{V_WD}, s[{S_Wt}:{S_Wt+3}], s{S_T3} offen lds", f"w{s}"))
    return ops
def emit_now(e, ops):
    for op in ops:
        n0 = len(e.L)
        prev = e.L[-1]
        tmp = len(e.L); op()
        if " lds" in e.L[-1] and re.search(r"\bm0,", e.L[tmp-1]):
            e.L.insert(tmp, "  s_nop 0")

def prologue(e):
    c = e.cfg; A = e.A
    t0, t1, t2, t3 = V_T, V_T+1, V_T+2, V_T+3
    A("s_cmp_ge_u32 s2, 252")
    A("s_cbranch_scc1 L_end")
    A("s_load_dwordx4 s[4:7], s[0:1], 0")
    A(f"s_load_dwordx2 s[{S_O}:{S_O+1}], s[0:1], 16")
    e.lstamp("start")
    if c.lst: A("s_memrealtime s[60:61]")
    if c.kwait0:
        A("s_waitcnt lgkmcnt(0)"); e.lstamp("k0")
    A("v_lshrrev_b32 v1, 6, v0")
    A("v_and_b32 v0, 63, v0")
    A(f"v_readfirstlane_b32 s{S_WAVE}, v1")
    A(f"s_lshr_b32 s{S_T0}, s2, 3")
    A(f"s_and_b32 s{S_T1}, s2, 7")
    A(f"s_mul_i32 s{S_T2}, s{S_T0}, 86")
    A(f"s_lshl_b32 s{S_T4}, s{S_T0}, 2")
    A(f"s_lshr_b32 s{S_T2}, s{S_T2}, 8")
    A(f"s_mul_i32 s{S_T1}, s{S_T1}, 10")
    A(f"s_mul_i32 s{S_T3}, s{S_T2}, 3")
    A(f"s_add_u32 s{S_T1}, s{S_T1}, s{S_T2}")
    A(f"s_sub_u32 s{S_G}, s{S_T0}, s{S_T3}")
    A("s_cmp_lt_u32 s2, 240")
    A("s_cbranch_scc1 L_map_done")
    A(f"s_sub_u32 s{S_T0}, s2, 240")
    A(f"s_mul_i32 s{S_T2}, s{S_T0}, 86")
    A(f"s_lshr_b32 s{S_T2}, s{S_T2}, 8")
    A(f"s_mul_i32 s{S_T3}, s{S_T2}, 3")
    A(f"s_sub_u32 s{S_G}, s{S_T0}, s{S_T3}")
    A(f"s_add_u32 s{S_T1}, s{S_T2}, 80")
    e.raw("L_map_done:")
    A(f"s_add_u32 s{S_T4}, s{S_T4}, s{S_WAVE}")
    A(f"s_mul_i32 s{S_T2}, s{S_T1}, 9363")
    A(f"s_lshl_b32 s{S_T5}, s{S_WAVE}, 6")
    A(f"s_lshr_b32 s{S_T2}, s{S_T2}, 16")
    A(f"v_add_u32 v{t0}, s{S_T5}, v0")
    A(f"s_mul_i32 s{S_T3}, s{S_T2}, 7")
    A(f"s_sub_u32 s{S_T3}, s{S_T1}, s{S_T3}")
    A(f"s_mul_i32 s{S_T0}, s{S_T3}, 86")
    A(f"s_lshl_b32 s{S_W0}, s{S_T3}, 5")
    A(f"s_lshr_b32 s{S_T0}, s{S_T0}, 8")
    A(f"s_mul_i32 s{S_T0}, s{S_T0}, 3")
    A(f"s_sub_u32 s{S_T0}, s{S_T3}, s{S_T0}")
    A(f"s_add_u32 s{S_T1}, s{S_T2}, s{S_T0}")
    A(f"s_add_u32 s{S_T3}, s{S_T1}, 2")
    A(f"s_mul_i32 s{S_T3}, s{S_T3}, 86")
    A(f"s_lshr_b32 s{S_T3}, s{S_T3}, 8")
    A(f"s_cmp_ge_u32 s{S_T0}, 1")
    A(f"s_cselect_b32 s{S_T0}, 1, 0")
    A(f"s_sub_u32 s{S_T3}, s{S_T3}, s{S_T0}")
    A(f"s_mul_i32 s{S_T0}, s{S_T2}, 19")
    A(f"s_sub_u32 s{S_T0}, s{S_T0}, s{S_T3}")
    A(f"s_mul_i32 s{S_OROW}, s{S_T0}, {ROWB}")
    A(f"s_add_u32 s{S_XBASE}, s{S_OROW}, {(H-4)*ROWB}")
    if c.merge:
        A(f"s_mov_b32 s{S_OB}, s{S_OROW}")
        A(f"s_add_u32 s{S_OROW}, s{S_OROW}, {4*ROWB}")
    A(f"s_mul_i32 s{S_LAST}, s{S_T1}, 86")
    A(f"s_lshr_b32 s{S_LAST}, s{S_LAST}, 8")
    A(f"s_mul_i32 s{S_LAST}, s{S_LAST}, 3")
    A(f"s_cmp_eq_u32 s{S_LAST}, s{S_T1}")
    A(f"s_cselect_b32 s{S_DUP}, 0, -1")
    A(f"s_cselect_b32 s{S_LAST}, 0x40000000, 0")
    A(f"s_add_u32 s{S_T0}, s{S_W0}, {W-4}")
    for pi in range(2):
        dst = V_XD0 if pi == 0 else V_XD1
        if pi: A(f"v_add_u32 v{t0}, 256, v{t0}")
        A(f"v_mul_u32_u24 v{t1}, 5462, v{t0}")
        A(f"v_lshrrev_b32 v{t1}, 16, v{t1}")
        A(f"v_mul_u32_u24 v{t2}, 12, v{t1}")
        A(f"v_lshrrev_b32 v{t3}, 1, v{t1}")
        A(f"v_sub_u32 v{t2}, v{t0}, v{t2}")
        A(f"v_and_b32 v{t3}, 2, v{t3}")
        A(f"v_add_u32 v{t1}, s{S_T0}, v{t1}")
        A(f"v_xor_b32 v{t2}, v{t2}, v{t3}")
        A(f"v_subrev_u32 v{t3}, {W}, v{t1}")
        A(f"v_min_u32 v{t1}, v{t1}, v{t3}")
        if pi: A(f"v_cmp_gt_u32 vcc, 432, v{t0}")
        A(f"v_mul_u32_u24 v{t1}, 192, v{t1}")
        A(f"v_lshl_add_u32 v{dst}, v{t2}, 4, v{t1}")
        if pi:
            A(f"v_mov_b32 v{t1}, 0x40000000")
            A(f"v_cndmask_b32 v{dst}, v{t1}, v{dst}, vcc")
    A(f"s_lshl_b32 s{S_X0}, s{S_WAVE}, 10")
    A(f"s_add_u32 s{S_X1}, s{S_X0}, 4096")
    A(f"s_cmp_eq_u32 s{S_WAVE}, 3")
    A(f"s_cselect_b32 s{S_X1}, {DUMMY}, s{S_X1}")
    A(f"s_cselect_b32 s{S_XM}, 0, -1")
    A(f"s_mov_b32 s{S_X+2}, {XBYTES}"); A(f"s_mov_b32 s{S_X+3}, 0x20000")
    A(f"s_mov_b32 s{S_Wt+2}, {WBYTES}"); A(f"s_mov_b32 s{S_Wt+3}, 0x20000")
    items = [it for g in c.groups.split("|") for it in g.split(",")]
    assert items[:len(c.direct)] == [f"x{r}" for r in c.direct]
    r0, nr = c.pf_rows
    A(f"v_mov_b32 v{V_T+5}, 0x40000000")
    if nr:
        nl = -(-nr * 18 // 4)
        A(f"s_mul_i32 s{S_T0}, s{S_WAVE}, {nl}")
        A(f"v_add_u32 v{t0}, s{S_T0}, v0")
        A(f"v_mul_u32_u24 v{t1}, 3641, v{t0}")
        A(f"s_mul_i32 s{S_T0}, s{S_G}, 18")
        A(f"v_lshrrev_b32 v{t1}, 16, v{t1}")
        A(f"v_mul_u32_u24 v{t2}, 18, v{t1}")
        A(f"v_sub_u32 v{t2}, v{t0}, v{t2}")
        A(f"v_add_u32 v{t2}, s{S_T0}, v{t2}")
        A(f"s_add_u32 s{S_T0}, s{S_W0}, {W-4}")
        A(f"v_lshlrev_b32 v{t2}, 7, v{t2}")
        A(f"s_mul_i32 s{S_T0}, s{S_T0}, 192")
        A(f"s_mov_b32 s{S_T1}, {ROWB}")
        A(f"v_add_u32 v{t2}, s{S_T0}, v{t2}")
        A(f"v_subrev_u32 v{t3}, {ROWB}, v{t2}")
        A(f"v_min_u32 v{t2}, v{t2}, v{t3}")
        A(f"v_add_u32 v{t3}, {r0}, v{t1}")
        A(f"v_mul_lo_u32 v{t3}, v{t3}, s{S_T1}")
        A(f"s_mov_b32 s{S_T2}, {XBYTES}")
        A(f"v_cmp_gt_u32 vcc, {nr*18}, v{t0}")
        A(f"v_add_u32 v{t3}, s{S_XBASE}, v{t3}")
        A(f"v_subrev_u32 v{t1}, s{S_T2}, v{t3}")
        A(f"v_min_u32 v{t3}, v{t3}, v{t1}")
        A(f"v_add_u32 v{t3}, v{t3}, v{t2}")
        A(f"v_cndmask_b32 v{t3}, v{V_T+5}, v{t3}, vcc")
        A(f"v_cmp_gt_u32 vcc, {nl}, v0")
        A("s_nop 1")
        A(f"v_cndmask_b32 v{V_PFX}, v{V_T+5}, v{t3}, vcc")
    def wpf(dst, s0, s1):
        per = (s1 - s0) * 48; tot = 5 * per
        nl = -(-tot // 128)
        if s0 == 0 and s1 == 15:
            A(f"s_mul_i32 s{S_T0}, s{S_T4}, {nl}")
            A(f"v_cmp_gt_u32 vcc, {nl}, v0")
            A(f"v_add_u32 v{t0}, s{S_T0}, v0")
            A(f"v_lshlrev_b32 v{t0}, 7, v{t0}")
            A(f"v_cndmask_b32 v{dst}, v{V_T+5}, v{t0}, vcc")
            return
        A(f"s_mul_i32 s{S_T0}, s{S_T4}, {nl}")
        A(f"v_add_u32 v{t0}, s{S_T0}, v0")
        sh = next(b for b in range(12, 23) if all((n_ * (-(-(1 << b) // per))) >> b == n_ // per for n_ in range(128 * nl + 64)))
        mg = -(-(1 << sh) // per)
        A(f"s_mov_b32 s{S_T1}, {mg}")
        A(f"v_mul_lo_u32 v{t1}, v{t0}, s{S_T1}")
        A(f"v_lshrrev_b32 v{t1}, {sh}, v{t1}")
        A(f"v_mul_u32_u24 v{t2}, {per}, v{t1}")
        A(f"v_sub_u32 v{t2}, v{t0}, v{t2}")
        A(f"v_lshlrev_b32 v{t2}, 7, v{t2}")
        A(f"v_mul_u32_u24 v{t1}, {92160}, v{t1}")
        A(f"v_cmp_gt_u32 vcc, {nl}, v0")
        A(f"v_add_u32 v{t2}, v{t2}, v{t1}")
        if s0: A(f"v_add_u32 v{t2}, {s0*6144}, v{t2}")
        else: A("s_nop 0")
        A(f"v_cndmask_b32 v{dst}, v{V_T+5}, v{t2}, vcc")
    wpf(V_PF, 0, c.pfw_split)
    if c.codepf:
        A(f"s_getpc_b64 s[{S_PC}:{S_PC+1}]")
        e.raw("L_pc:")
        A(f"s_sub_u32 s{S_PC}, s{S_PC}, L_pc-standalone__fft_conv__vision_kernel")
        A(f"s_subb_u32 s{S_PC+1}, s{S_PC+1}, 0")
        A(f"s_and_b32 s{S_PC+1}, s{S_PC+1}, 0xffff")
        A(f"s_mov_b32 s{S_PC+2}, CODE_BYTES")
        A(f"s_mov_b32 s{S_PC+3}, 0x20000")
        if c.codepf_all:
            A(f"v_lshlrev_b32 v{V_CPF}, 7, v0")
            A(f"s_lshl_b32 s{S_CPO}, s{S_WAVE}, 13")
        else:
            A(f"v_cmp_gt_u32 vcc, 2, v0")
            A(f"v_lshlrev_b32 v{t0}, 7, v0")
            A(f"s_lshl_b32 s{S_CPO}, s{S_T4}, 8")
            A(f"v_cndmask_b32 v{V_CPF}, v{V_T+5}, v{t0}, vcc")
    A(f"s_add_u32 s{S_WM}, s{S_X0}, {WS}")
    A(f"s_add_u32 s{S_WM2}, s{S_WM}, 8192")
    A(f"s_cmp_ge_u32 s{S_WAVE}, 2")
    A(f"s_cselect_b32 s{S_WM2}, {DUMMY}, s{S_WM2}")
    A(f"s_cselect_b32 s{S_WMM}, 0, -1")
    A(f"v_lshrrev_b32 v{t0}, 4, v0")
    A(f"v_bfe_u32 v{t1}, v0, 2, 2")
    A(f"v_lshl_add_u32 v{t1}, v{t0}, 3, v{t1}")
    A(f"v_and_b32 v{t0}, 1, v{t0}")
    A(f"v_mul_u32_u24 v{t1}, 192, v{t1}")
    A(f"v_lshlrev_b32 v{t0}, 1, v{t0}")
    A(f"v_and_b32 v{t2}, 3, v0")
    A(f"s_lshr_b32 s{S_T0}, s{S_WAVE}, 1")
    A(f"v_xor_b32 v{t2}, v{t2}, v{t0}")
    A(f"s_mul_i32 s{S_T0}, s{S_T0}, {480*192}")
    A(f"v_lshl_add_u32 v{t1}, v{t2}, 4, v{t1}")
    A(f"s_and_b32 s{S_T1}, s{S_WAVE}, 1")
    A(f"s_mul_i32 s{S_T1}, s{S_T1}, {4*192}")
    A(f"s_add_u32 s{S_T0}, s{S_T0}, s{S_T1}")
    A(f"s_lshl_b32 s{S_T1}, s{S_G}, 6")
    A(f"s_add_u32 s{S_T0}, s{S_T0}, s{S_T1}")
    A(f"v_add_u32 v{V_WD}, s{S_T0}, v{t1}")
    late = c.late_calc
    def tail_calc():
        if c.pfw_split < 15: wpf(V_PF2, c.pfw_split, 15)
        A(f"s_mov_b32 s{S_O+2}, {XBYTES}")
        A(f"s_mov_b32 s{S_O+3}, 0x20000")
        A(f"v_and_b32 v{V_T}, 15, v0")
        A(f"v_lshrrev_b32 v{V_T+1}, 4, v0")
        A(f"s_lshr_b32 s{S_T0}, s{S_WAVE}, 1")
        A(f"s_lshl_b32 s{S_T0}, s{S_T0}, 4")
        A(f"v_add_u32 v{V_T+4}, s{S_T0}, v{V_T}")
        for kw in range(5):
            A(f"v_add_u32 v{V_T+2}, {4-kw}, v{V_T+4}")
            A(f"v_lshrrev_b32 v{V_T+3}, 1, v{V_T+2}")
            A(f"v_and_b32 v{V_T+3}, 2, v{V_T+3}")
            A(f"v_xor_b32 v{V_T+3}, v{V_T+3}, v{V_T+1}")
            A(f"v_mul_u32_u24 v{V_T+2}, 192, v{V_T+2}")
            A(f"v_lshl_add_u32 v{V_XAA+kw}, v{V_T+3}, 4, v{V_T+2}")
            A(f"v_add_u32 v{V_XAR+kw}, {X2}, v{V_XAA+kw}")
        A(f"s_and_b32 s{S_T1}, s{S_WAVE}, 1")
        A(f"v_and_b32 v{V_T+2}, 1, v{V_T+1}")
        A(f"v_xor_b32 v{V_T+2}, s{S_T1}, v{V_T+2}")
        A(f"v_lshlrev_b32 v{V_T+2}, 5, v{V_T+2}")
        A(f"v_lshrrev_b32 v{V_T+3}, 2, v0")
        A(f"v_lshl_add_u32 v{V_T+2}, v{V_T+3}, 6, v{V_T+2}")
        A(f"v_and_b32 v{V_T+3}, 3, v0")
        A(f"v_lshl_add_u32 v{V_T+2}, v{V_T+3}, 3, v{V_T+2}")
        A(f"v_add_u32 v{V_TR}, {WS}, v{V_T+2}")
        A(f"v_add_u32 v{V_T+2}, s{S_W0}, v{V_T+4}")
        A(f"v_mul_u32_u24 v{V_T+2}, 192, v{V_T+2}")
        A(f"v_lshl_add_u32 v{V_T+2}, v{V_T+1}, 3, v{V_T+2}")
        A(f"s_lshl_b32 s{S_T0}, s{S_G}, 1")
        A(f"s_add_u32 s{S_T0}, s{S_T0}, s{S_T1}")
        A(f"s_lshl_b32 s{S_T0}, s{S_T0}, 5")
        A(f"v_add_u32 v{V_OUT}, s{S_T0}, v{V_T+2}")
    if not late: tail_calc()
    A("s_waitcnt lgkmcnt(0)")
    A(f"s_mov_b32 s{S_X}, s4"); A(f"s_mov_b32 s{S_X+1}, s5")
    A(f"s_mov_b32 s{S_Wt}, s6"); A(f"s_mov_b32 s{S_Wt+1}, s7")
    e.lstamp("karg")
    for r in c.direct: emit_now(e, x_ops(e, r))
    if c.pf_rows[1]: e.vmem(f"buffer_load_dword v{V_PFD}, v{V_PFX}, s[{S_X}:{S_X+3}], 0 offen", "pf")
    e.vmem(f"buffer_load_dword v{V_PFD+1}, v{V_PF}, s[{S_Wt}:{S_Wt+3}], 0 offen", "pf")
    if c.codepf: e.vmem(f"buffer_load_dword v{V_PFD+3}, v{V_CPF}, s[{S_PC}:{S_PC+3}], s{S_CPO} offen", "pf")
    if c.outpf:
        A(f"s_mov_b32 s{S_O+2}, {XBYTES}"); A(f"s_mov_b32 s{S_O+3}, 0x20000")
        A(f"v_cmp_gt_u32 vcc, 2, v0")
        A(f"v_mul_u32_u24 v{t0}, {14*ROWB}, v0")
        A("s_nop 0")
        A(f"v_cndmask_b32 v{t0}, v{V_T+5}, v{t0}, vcc")
        e.vmem(f"buffer_load_dword v{V_PFD+2}, v{t0}, s[{S_O}:{S_O+3}], s{S_OB} offen", "pf")
    e.lstamp("pf")
    if c.warm:
        A(f"v_mul_u32_u24 v48, 0x9e37, v0")
        A(f"v_add_u32 v48, 0x3c6ef372, v48")
        for r in range(49, 80):
            A(f"v_mul_u32_u24 v{r}, 0x5bd1, v{r-1}")
            A(f"v_xor_b32 v{r}, v{r}, v{r-1}")
        for r in range(48, 80):
            A(f"v_and_b32 v{r}, 0x807f807f, v{r}")
            A(f"v_or_b32 v{r}, 0x3d003d00, v{r}")
        A("s_nop 1")
        for k in range(c.warm):
            a_ = 48 + 4 * (k % 4); b_ = 64 + 4 * ((k // 4 + k) % 4)
            A(f"v_mfma_f32_16x16x32_bf16 v[168:171], v[{a_}:{a_+3}], v[{b_}:{b_+3}], " + ("0" if k == 0 else "v[168:171]"))
    for it in items[len(c.direct):c.nprol]:
        emit_now(e, x_ops(e, int(it[1:])) if it[0] == "x" else w_ops(e, int(it[1:])))
    if c.diag:
        e.lstamp("issued")
        nv = len(e.vm)
        seen = []
        for idx_, tg in enumerate(e.vm):
            if idx_ + 1 < nv and e.vm[idx_ + 1] == tg and tg != "pf": continue
            A(f"s_waitcnt vmcnt({nv - 1 - idx_})"); e.lstamp(tg + "_back")
    if late: tail_calc()

def b_read_to(e, row, f, reg, tag):
    kw, cc = divmod(f, 3)
    kind, off = xslot(row)
    base = V_XAA if kind == "A" else V_XAR
    e.lds(f"ds_read_b128 {reg}, v{base+kw} offset:{off + cc*64}", tag)
def tr_read(e, s, kh, h):
    e.lds(f"ds_read_b64_tr_b16 {wreg(kh, s, 2*h)}, v{V_TR} offset:{(s % NWS)*WSLOT + (2*kh + h)*1024}", f"t{s}_{kh}")
def out_ops(e, a, pair, o):
    vo = V_O + 2 * pair
    pre = [lambda: e.A(f"s_add_u32 s{S_OROW}, s{S_OROW}, s{S_LAST}")] if o == e.cfg.nrows - 1 else []
    return pre + [lambda: e.A(f"v_cvt_pk_bf16_f32 v{vo}, v{a}, v{a+1}"),
            lambda: e.A(f"v_cvt_pk_bf16_f32 v{vo+1}, v{a+2}, v{a+3}"),
            lambda: e.vmem(f"buffer_store_dwordx2 v[{vo}:{vo+1}], v{V_OUT}, s[{S_O}:{S_O+3}], s{S_OROW} offen {e.cfg.store_flags}".rstrip(), f"o{o}"),
            lambda: e.A(f"s_add_u32 s{S_OROW}, s{S_OROW}, {ROWB}")]

def out_ops_abs(e, a, pair, o):
    vo = V_O + 2 * pair
    return [lambda: e.A(f"s_add_u32 s{S_T6}, s{S_OB}, {o*ROWB}" if o else f"s_mov_b32 s{S_T6}, s{S_OB}"),
            lambda: e.A(f"v_cvt_pk_bf16_f32 v{vo}, v{a}, v{a+1}"),
            lambda: e.A(f"v_cvt_pk_bf16_f32 v{vo+1}, v{a+2}, v{a+3}"),
            lambda: e.vmem(f"buffer_store_dwordx2 v[{vo}:{vo+1}], v{V_OUT}, s[{S_O}:{S_O+3}], s{S_T6} offen {e.cfg.store_flags}".rstrip(), f"o{o}")]

class Gaps:
    def __init__(self, M, cap=1):
        self.M = M; self.g = [[] for _ in range(M)]; self.cap = cap
    def put(self, p, fn):
        self.g[min(max(p, 0), self.M - 1)].append(fn)
    def seq(self, ops, start, step=1, cap=None):
        cap = self.cap if cap is None else cap
        p = start
        for op in ops:
            while p < self.M - 1 and len(self.g[p]) >= cap: p += 1
            self.put(p, op); p = min(p + step, self.M - 1) if p < self.M - 1 else p
        return p

def block_a(e):
    c = e.cfg; RA = c.RA
    def khs(i): return [kh for kh in range(5) if 0 <= i - 4 + kh < RA]
    stream = list(c.stream)
    groups = [g.split(",") for g in c.groups.split("|")]
    nextw = 1 + max(int(it[1:]) for g in groups for it in g if it[0] == "w")
    groups += [[f"w{s}"] for s in range(nextw, 15)]
    order = []; rows_av = []; s_av = []; sched = set()
    mk_items = {}
    for gi, g in enumerate(groups):
        order.append(("M", gi)); mk_items[gi] = g
        for it in g:
            (rows_av if it[0] == "x" else s_av).append(int(it[1:]))
        for s in sorted(s_av):
            for r in sorted(rows_av, key=lambda r: (-len(khs(r)), r)):
                if (r, s) not in sched: sched.add((r, s)); order.append((r, s))
    assert len(sched) == len(stream) * 15
    w_marker = {int(it[1:]): gi for gi, g in mk_items.items() for it in g if it[0] == "w"}
    row_marker = {int(it[1:]): gi for gi, g in mk_items.items() for it in g if it[0] == "x"}
    nearly = len(c.groups.split("|"))
    mf = []; first = {}; mpos = {}
    def flush_group(grp, flip):
        if not c.omajor:
            for ent in grp:
                for kh in khs(ent[0]): mf.append((ent, kh))
            return
        for s_ in sorted(set(ent[1] for ent in grp)):
            lst = [(ent, kh) for ent in grp if ent[1] == s_ for kh in khs(ent[0])]
            lst.sort(key=lambda z: (z[0][0] - 4 + z[1], z[0][0]), reverse=flip[0])
            flip[0] = not flip[0]
            mf.extend(lst)
    grp = []; flip = [False]
    for ent in order + [("M", None)]:
        if ent[0] == "M":
            flush_group(grp, flip); grp = []
            if ent[1] is not None: mpos[ent[1]] = len(mf)
        else: grp.append(ent)
    for q_, (ent, kh) in enumerate(mf): first.setdefault(ent, q_)
    M = len(mf)
    mark_at = {}; prev = 0
    for p in sorted(mpos):
        q = mpos[p]
        if p >= nearly: q = max(prev, mpos[p] - c.wearly)
        elif p >= 1: q = max(prev, mpos[p] - c.early)
        mark_at[p] = q; prev = q
    tasks = []
    pairs = [ent for ent in order if ent[0] != "M"]
    last_use = {}
    for q, (ent, kh) in enumerate(mf): last_use[ent] = q
    for ent in pairs:
        tasks.append(dict(kind="b", ent=ent, ready=mark_at[row_marker[ent[0]]], due=first[ent], done=False))
    for s in range(15):
        for kh in range(5):
            due = min(q for q, (ent, k2) in enumerate(mf) if ent[1] == s and k2 == kh)
            for h in range(2):
                tasks.append(dict(kind="t", s=s, kh=kh, h=h, ready=mark_at[w_marker[s]], due=due, done=False))
    tasks.sort(key=lambda t: (t["due"], 0 if t["kind"] == "t" else 1))
    bslots = [None] * 15; bfree_at = [-1] * 15; bassign = {}
    def issue(t, q):
        if t["kind"] == "t": tr_read(e, t["s"], t["kh"], t["h"])
        else:
            k = min(range(15), key=lambda j: bfree_at[j])
            if bfree_at[k] >= q and bslots[k] is not None: return False
            ent = t["ent"]
            bslots[k] = ent; bfree_at[k] = last_use[ent]; bassign[ent] = k
            reg = V_B + 60 + 4 * k
            b_read_to(e, ent[0], ent[1], f"v[{reg}:{reg+3}]", f"pb{ent[0]}_{ent[1]}")
        t["done"] = True
        return True
    items = [it for g in c.groups.split("|") for it in g.split(",")]
    dplan = {}
    rest = [(it[0], int(it[1:])) for it in items[c.nprol:]]
    issued_w = [int(it[1:]) for it in items if it[0] == "w"]
    dplan[0] = list(rest)
    for s in range(max(issued_w) + 1, min(4, 15)): dplan[0].append(("w", s))
    for s in range(max(max(issued_w) + 1, 4), 15):
        dplan.setdefault(w_marker[s - 3], []).append(("w", s))
    if c.pfw_split < 15: dplan.setdefault(w_marker[c.pfwb_after], []).append(("pfw", 0))
    planned = []
    for part in c.def_plan.split("|"):
        wm, rows_ = part.split(":")
        rows_ = [int(r) for r in rows_.split(",")]
        dplan.setdefault(w_marker[int(wm)], []).extend([("x", r) for r in rows_]); planned += rows_
    late_rows = [r for r in c.deferred if r not in planned] + ([r for r in (8, 9, 10, 11, 12) if r not in planned and r not in c.stream] if c.merge else [12, 13])
    def ops_of(kind, a):
        if kind == "x": return x_ops(e, a)
        if kind == "w": return w_ops(e, a)
        return [lambda: e.vmem(f"buffer_load_dword v{V_PFD+2}, v{V_PF2}, s[{S_Wt}:{S_Wt+3}], 0 offen", "pf")]
    dq = []
    marks_sorted = sorted(mark_at)
    for p in marks_sorted:
        ops = []
        for kind, a in dplan.get(p, []): ops += ops_of(kind, a)
        if not ops: continue
        lo = mark_at[p]; hi = mark_at[p+1] if p + 1 in mark_at else M - 2
        span = 0 if p < nearly - 1 else max(hi - lo - len(ops) // 2, 0)
        for k, op in enumerate(ops): dq.append((lo + (k * span) // len(ops), op))
    dq.reverse()
    last_dma = [-10, False]
    def run_dma_op(force=False):
        _, op = dq.pop()
        n0 = len(e.L); op()
        if " lds" in e.L[-1] and re.search(r"\bm0,", e.L[n0-1]): e.L.insert(n0, "  s_nop 0")
    need = {p: list(mk_items[p]) for p in marks_sorted}
    prevw = {}
    for p in marks_sorted:
        ws = [int(it[1:]) for it in mk_items[p] if it[0] == "w"]
        if ws and ws[0] >= 1: prevw[p] = ws[0] - 1
    cnt = lambda tg: 3 if tg[0] == "w" else 2
    inited = set()
    deferred = list(c.deferred)
    par = len(deferred) % 2
    def setreg(k, f):
        b = V_B + ((k + par) % 2) * 60 + 4 * f
        return f"v[{b}:{b+3}]"
    vis = {}
    k0 = 0
    if par: vis[0] = [deferred[0]]; k0 = 1
    for k_ in range(k0, len(deferred), 2): vis[k_] = deferred[k_:k_+2]
    if c.merge: vis[len(deferred)] = [RA, RA + 1]
    dpre = c.dpre if par == 0 else 0
    q_d = M - dpre if dpre else None
    d_issued = []
    pre = {}
    for p in marks_sorted:
        if p >= nearly:
            pre.setdefault(max(mark_at[p] - 2, mark_at[p-1] + 1), []).append(("vm", p))
            pre.setdefault(max(mark_at[p] - 1, mark_at[p-1] + 1), []).append(("lg", p))
    def do_vm(p):
        while not all(e.vm.count(tg) == cnt(tg) for tg in need[p]): run_dma_op()
        e.wait_vm(*need[p])
    def do_lg(p, q):
        if p not in prevw: return
        sp = prevw[p]
        for t in tasks:
            if t["kind"] == "t" and t["s"] == sp and not t["done"]: issue(t, q)
        idxs = [i_ for i_, tg in enumerate(e.lg) if tg.startswith(f"t{sp}_")]
        e.wait_lg(e.lg[max(idxs)])
    for q in range(M):
        for kind, p in pre.get(q, []):
            if mark_at[p] > q:
                (do_vm(p) if kind == "vm" else do_lg(p, q))
        for p in marks_sorted:
            if mark_at[p] == q:
                do_lg(p, q); do_vm(p)
                e.A("s_barrier")
                if p == 0:
                    for _ in range(c.burst):
                        if dq: run_dma_op()
                if p in (0, nearly - 1, w_marker[4], w_marker[9], w_marker[14]): e.lstamp(f"M{p}:" + ",".join(mk_items[p]))
        if q_d is not None and q == q_d:
            while not all(e.vm.count(f"x{r_}") == 2 for r_ in vis[0]): run_dma_op()
            e.wait_vm(*[f"x{r_}" for r_ in vis[0]]); e.A("s_barrier")
        ent, kh = mf[q]
        late = [t for t in tasks if not t["done"] and t["due"] <= q]
        if late:
            for t in late:
                assert t["ready"] <= q, (t, q)
                ok = issue(t, q); assert ok
            for t in tasks:
                if t["done"] or t["ready"] > q: continue
                if len(e.lg) - e.lg_done >= 13: break
                if t["kind"] == "b" and t["due"] - q > c.look: continue
                issue(t, q)
        n0 = len(e.L)
        e.wait_lg(f"t{ent[1]}_{kh}", f"pb{ent[0]}_{ent[1]}", age=5)
        o = ent[0] - 4 + kh; a = V_ACCA + 4 * o
        src = f"v[{a}:{a+3}]" if o in inited else "0"
        inited.add(o)
        reg = V_B + 60 + 4 * bassign[ent]
        e.mfma(f"v_mfma_f32_16x16x32_bf16 v[{a}:{a+3}], {wreg(kh, ent[1])}, v[{reg}:{reg+3}], {src}")
        budget = 2
        early_phase = q < mark_at[nearly - 1]
        if early_phase: budget = 4
        def try_lds():
            for t in tasks:
                if t["done"] or t["ready"] > q: continue
                if t["kind"] == "b" and t["due"] - q > c.look: continue
                if len(e.lg) - e.lg_done >= 14: return False
                if issue(t, q + 1): return True
            return False
        def try_dma():
            if dq and dq[-1][0] <= q: run_dma_op(); return True
            return False
        def try_d():
            if q_d is not None and q >= q_d and len(d_issued) < 15 and len(e.lg) - e.lg_done < 14:
                f = len(d_issued); d_issued.append(f)
                b_read_to(e, deferred[0], f, setreg(0, f), f"d0_{f}"); return True
            return False
        _lds = try_lds
        def try_lds(): return _lds() or try_d()
        turn = [try_lds, try_dma]
        k = 0
        while budget > 0:
            if turn[k % 2]() or turn[(k + 1) % 2](): budget -= 1; k += 1
            else: break
    while dq: run_dma_op()
    if c.codepf2: e.vmem(f"buffer_load_dword v{V_PFD+3}, v{V_CPF}, s[{S_PC}:{S_PC+3}], s{S_CPO} offen", "pf")
    e.lstamp("streamend")
    seq = deferred + [RA]
    if q_d is None:
        e.wait_vm(*[f"x{r_}" for r_ in vis[0]]); e.A("s_barrier")
    for f in range(len(d_issued), 15): b_read_to(e, seq[0], f, setreg(0, f), f"d0_{f}")
    for k, r in enumerate(deferred):
        mfs = []
        for kh in khs(r):
            o = r - 4 + kh; a = V_ACCA + 4 * o
            for f in range(15):
                src = f"v[{a}:{a+3}]" if o in inited else "0"
                inited.add(o)
                mfs.append((f, f"v_mfma_f32_16x16x32_bf16 v[{a}:{a+3}], {wreg(kh, f)}, {setreg(k, f)}, {src}"))
        Mk = len(mfs); nxt = seq[k + 1]
        G = Gaps(Mk)
        if (k + 1) in vis:
            e.wait_vm(*[f"x{r_}" for r_ in vis[k+1]]); e.A("s_barrier")
        span = max(Mk - 6, 15)
        for f in range(15): G.put(min((f * span) // 15, Mk - 1), (lambda f=f: b_read_to(e, nxt, f, setreg(k + 1, f), f"d{k+1}_{f}")))
        if c.merge and k >= 1:
            op_ = deferred[k-1]
            assert op_ <= 3
            G.seq(out_ops_abs(e, V_ACCA + 4 * op_, 1, op_), min(9, Mk - 6), step=1, cap=2)
        ntake = 2 if (k < 1 or c.merge) else 1
        pos = 2
        for _ in range(ntake):
            if late_rows and (Mk >= 30 or (c.merge and Mk >= 15 and _ == 0)):
                pos = G.seq(x_ops(e, late_rows.pop(0)), pos, step=1, cap=2)
        for p_, (f, s_) in enumerate(mfs):
            if p_ < 15: e.wait_lg(f"d{k}_{f}", age=5)
            e.mfma(s_)
            for fn in G.g[p_]: fn()
    e.late_rows = late_rows
    e.dtag = f"d{len(deferred)}"
    e.lstamp("defend")

def step(e, i, chains, last_row, extra_out=(), extra_dma=(), prev_tags=None, skip=None):
    c = e.cfg; RA = c.RA
    mf = []
    for kh in chains:
        o = i - 4 + kh; a = acc(o)
        for f in range(15):
            src = "0" if (kh == 4 and f == 0) else f"v[{a}:{a+3}]"
            mf.append((f, f"v_mfma_f32_16x16x32_bf16 v[{a}:{a+3}], {wreg(kh, f)}, {breg(i, f)}, {src}"))
    M = len(mf)
    U = M - 15 if skip else M
    G = Gaps(M)
    nxt = i + 1
    nn = i + 2
    S0 = (RA + 2) if c.merge else NA
    did_bar = nxt <= last_row and nxt >= S0
    if did_bar: e.A("s_barrier")
    if nxt <= last_row:
        span = max(U - 9, 15) if U >= 15 else U
        for f in range(15): G.put(min((f * span) // 15, U - 1), (lambda f=f: b_read_to(e, nxt, f, breg(nxt, f), f"b{nxt}_{f}")))
    r4 = i + 4
    if i >= NA and r4 <= last_row: G.seq(x_ops(e, r4, seq=True), c.dma_pos, step=2)
    pos_ = 1
    for r_ in extra_dma: pos_ = G.seq(x_ops(e, r_), pos_ if c.merge else 1, step=1, cap=(2 if M <= 30 else 1))
    tail = []
    if 0 in chains and (i - 4 >= RA or c.merge):
        o = i - 4; endp = chains.index(0) * 15 + 14
        ops = out_ops(e, acc(o), 0, o)
        if endp + 14 < M: G.seq(ops, max(endp + 9, c.out_pos if M == 75 else 0), step=1)
        else: tail = ops
    for k, (a, o) in enumerate(extra_out):
        if c.merge: G.seq(out_ops_abs(e, a, 1, o), 9, step=1)
        else: G.seq(out_ops(e, a, k % 2, o), (k * M) // max(len(extra_out), 1) + 1, step=1, cap=(2 if M <= 45 else 1))
    if nn <= last_row and nn >= S0:
        G.put(U - 3, lambda: e.wait_vm(f"x{nn}", force=(i >= NA)))
    short = U < 45
    lab = f"{i if i < NA or i >= c.nrows else 'l' + str((i - NA) % 4)}"
    for p, (f, s) in enumerate(mf):
        if skip and p == U:
            e.A(skip); e.A(f"s_cbranch_scc1 L_skip{lab}")
            mark = len(e.L)
        if prev_tags and p < 15: e.wait_lg(prev_tags(f), age=5)
        e.mfma(s)
        for fn in G.g[p]: fn()
        if p == U - 2 and nxt <= last_row and not short: e.wait_lg(f"b{nxt}_14")
    if skip:
        fill = [l for l in e.L[mark:] if "v_mfma" not in l]
        if fill:
            e.A(f"s_branch L_join{lab}")
            e.raw(f"L_skip{lab}:")
            if any("v_cvt" in l for l in fill): e.A("s_nop 7"); e.A("s_nop 1")
            e.L.extend(fill)
            e.raw(f"L_join{lab}:")
        else:
            e.raw(f"L_skip{lab}:")
    if tail:
        e.A("s_nop 7"); e.A("s_nop 1")
        for fn in tail: fn()
    if nxt <= last_row and short and (nn <= last_row and nn >= S0): e.wait_lg(f"b{nxt}_14")

def build(cfg):
    e = Em(cfg); n = cfg.nrows; RA = cfg.RA
    last_row = n + 3
    e.raw("; direct 5x5 circular convolution; weights stationary in registers; start block overlaps the weight arrival")
    e.raw(f"; @launch grid=(252,1,1) block=(256,1,1) lds={LDS_BYTES}")
    e.raw('.amdgcn_target "amdgcn-amd-amdhsa--gfx950"')
    e.raw(".text")
    e.raw(".globl standalone__fft_conv__vision_kernel")
    if cfg.align12: e.raw(".p2align 12")
    e.raw(".p2align 8")
    e.raw(".type standalone__fft_conv__vision_kernel,@function")
    e.raw("standalone__fft_conv__vision_kernel:")
    prologue(e)
    block_a(e)
    if cfg.merge:
        RA_ACC[0] = RA
        def chains_for(i): return [kh for kh in range(5) if 0 <= i - 4 + kh < n]
        flush = {RA: [cfg.deferred[-1]]}
        lr = list(e.late_rows) + [13, 14, 15]
        predma = {RA: lr[:2], RA + 1: lr[2:4], RA + 2: lr[4:6], RA + 3: lr[6:]}
    else:
        assert not e.late_rows
        def chains_for(i): return [kh for kh in range(5) if RA <= i - 4 + kh < n]
        flush = {RA + 1: [0, 1], RA + 2: [2, 3, 4], RA + 3: [5, 6, 7]}
        predma = {RA: [14], RA + 1: [15]}
    i = RA
    while i < NA:
        ex = [(V_ACCA + 4 * o, o) for o in flush.get(i, [])]
        pt = (lambda f: f"{e.dtag}_{f}") if i == RA else (lambda f, i=i: f"b{i}_{f}")
        step(e, i, chains_for(i), last_row, ex, predma.get(i, []), pt); i += 1
    if cfg.codepf3: e.vmem(f"buffer_load_dword v{V_PFD+3}, v{V_CPF}, s[{S_PC}:{S_PC+3}], s{S_CPO} offen", "pf")
    e.lstamp("rampend")
    e.A(f"s_add_u32 s{S_T0}, s{S_XBASE}, {(NA+4)*ROWB}")
    e.A(f"s_sub_u32 s{S_T1}, s{S_T0}, {XBYTES}")
    e.A(f"s_min_u32 s{S_XROW}, s{S_T0}, s{S_T1}")
    def skip_of(ii):
        if not cfg.skipdup: return None
        if ii == n - 1 or (cfg.loop and NA <= ii < n and (ii - NA) % 4 == (n - 1 - NA) % 4):
            return f"s_cmp_eq_u32 s{S_CNT}, s{S_DUP}" if cfg.loop else f"s_cmp_eq_u32 s{S_DUP}, 0"
        if n <= ii < last_row: return f"s_cmp_eq_u32 s{S_DUP}, 0"
        return None
    def last_step(ii):
        if cfg.skipdup:
            e.A(f"s_cmp_eq_u32 s{S_DUP}, 0"); e.A("s_cbranch_scc1 L_done")
        step(e, ii, chains_for(ii), last_row, prev_tags=(lambda f, ii=ii: f"b{ii}_{f}"))
        if cfg.skipdup: e.raw("L_done:")
    if not cfg.loop:
        while i <= last_row:
            if i == last_row: last_step(i)
            else: step(e, i, chains_for(i), last_row, prev_tags=(lambda f, i=i: f"b{i}_{f}"), skip=skip_of(i))
            i += 1
            if i <= last_row: e.lstamp(f"step{i}")
    else:
        steady = list(range(NA, n)); nst = len(steady)
        start = len(e.L); seg = []
        for ii in steady:
            s0 = len(e.L)
            step(e, ii, chains_for(ii), last_row, prev_tags=(lambda f, ii=ii: f"b{ii}_{f}"), skip=skip_of(ii))
            seg.append(e.L[s0:])
        e.L = e.L[:start]
        for k in range(4, nst):
            a, b = seg[k % 4], seg[k]
            assert len(a) == len(b), f"non periodic step {steady[k]}"
            for j in range(len(a)):
                if a[j] != b[j]:
                    ma = re.fullmatch(r"  s_waitcnt vmcnt\((\d+)\)", a[j]); mb = re.fullmatch(r"  s_waitcnt vmcnt\((\d+)\)", b[j])
                    assert ma and mb, (a[j], b[j])
                    a[j] = f"  s_waitcnt vmcnt({min(int(ma.group(1)), int(mb.group(1)))})"
        full, rem = divmod(nst, 4)
        assert rem != 0 and full == 1
        e.A(f"s_mov_b32 s{S_CNT}, {full}")
        e.raw(".p2align 3")
        e.raw("L_loop:")
        for k in range(4):
            if k == rem:
                e.A(f"s_cmp_eq_u32 s{S_CNT}, 0")
                e.A("s_cbranch_scc1 L_down")
                e.A(f"s_sub_u32 s{S_CNT}, s{S_CNT}, 1")
            e.L.extend(seg[k])
        e.A("s_branch L_loop")
        e.raw("L_down:")
        if cfg.wbl2:
            e.A(f"s_lshr_b32 s{S_T6}, s2, 3"); e.A(f"s_add_u32 s{S_T6}, s{S_T6}, s{S_WAVE}")
            e.A(f"s_cmp_lg_u32 s{S_T6}, 0"); e.A("s_cbranch_scc1 L_nowb")
            e.A(f"buffer_wbl2 {cfg.wbl2}")
            e.raw("L_nowb:")
        e.lstamp("loopend")
        i = n
        while i <= last_row:
            if i == last_row: last_step(i)
            else: step(e, i, chains_for(i), last_row, prev_tags=(lambda f, i=i: f"b{i}_{f}"), skip=skip_of(i))
            i += 1
    if cfg.spin:
        e.lstamp("mfmaend"); e.A("s_waitcnt vmcnt(0) lgkmcnt(0)")
        ia, ib, K = e.lnames.index(cfg.spin[0]), e.lnames.index(cfg.spin[1]), cfg.spin[2]
        e.A(f"s_sub_u32 s50, s{64+2*ib}, s{64+2*ia}")
        e.A(f"s_mul_i32 s50, s50, {K}")
        e.A("s_memtime s[52:53]"); e.A("s_waitcnt lgkmcnt(0)")
        e.raw("L_spin:")
        e.A("s_memtime s[54:55]"); e.A("s_waitcnt lgkmcnt(0)")
        e.A("s_sub_u32 s51, s54, s52"); e.A("s_cmp_lt_u32 s51, s50"); e.A("s_cbranch_scc1 L_spin")
    elif cfg.lst:
        e.lstamp("mfmaend"); e.A("s_waitcnt vmcnt(0)"); e.lstamp("drain")
        e.A("s_memrealtime s[62:63]")
        e.A("s_waitcnt lgkmcnt(0)")
        e.A(f"s_load_dwordx2 s[{S_WS}:{S_WS+1}], s[0:1], 32")
        e.A(f"v_mov_b32 v{V_ST}, 0")
        for k in range(e.nl): e.A(f"v_writelane_b32 v{V_ST}, s{64+2*k}, {k}")
        e.A(f"v_writelane_b32 v{V_ST}, s60, 62"); e.A(f"v_writelane_b32 v{V_ST}, s62, 63")
        e.A("s_waitcnt lgkmcnt(0)")
        e.A(f"s_lshl_b32 s{S_T0}, s2, 2")
        e.A(f"s_add_u32 s{S_T0}, s{S_T0}, s{S_WAVE}")
        e.A(f"s_lshl_b32 s{S_T0}, s{S_T0}, 8")
        e.A(f"s_add_u32 s{S_WS}, s{S_WS}, s{S_T0}")
        e.A(f"s_addc_u32 s{S_WS+1}, s{S_WS+1}, 0")
        e.A("v_lshlrev_b32 v1, 2, v0")
        e.A(f"global_store_dword v1, v{V_ST}, s[{S_WS}:{S_WS+1}]")
        print("lstamps:", e.nl, e.lnames)
    if cfg.endwait: e.A("s_waitcnt vmcnt(0)")
    e.raw("L_end:")
    e.A("s_endpgm")
    e.raw("L_code_end:")
    e.raw('.section .rodata,"a"')
    e.raw(".p2align 6")
    e.raw(".amdhsa_kernel standalone__fft_conv__vision_kernel")
    for l in ("next_free_vgpr 512", "next_free_sgpr 100", "accum_offset 256", "group_segment_fixed_size 0", "kernarg_size 40",
              "user_sgpr_count 2", "user_sgpr_kernarg_segment_ptr 1", "system_sgpr_workgroup_id_x 1"):
        e.raw("  .amdhsa_" + l)
    e.raw(".end_amdhsa_kernel")
    out = []
    for l in e.L:
        if " lds" in l and "buffer_load" in l and out and re.search(r"\bm0,", out[-1]): out.append("  s_nop 0")
        out.append(l)
    e.L = out
    import subprocess, tempfile, os
    size = 0x7fff
    for _ in range(2):
        txt = "\n".join(l.replace("CODE_BYTES", str(size)) for l in e.L) + "\n"
        with tempfile.TemporaryDirectory() as td:
            open(td + "/k.s", "w").write(txt)
            subprocess.run(["clang", "-x", "assembler", "-target", "amdgcn-amd-amdhsa", "-mcpu=gfx950", "-c", td + "/k.s", "-o", td + "/k.o"], check=True)
            dis = subprocess.run(["llvm-objdump", "-d", "--mcpu=gfx950", td + "/k.o"], capture_output=True, text=True).stdout
        sym = {}
        for l in dis.splitlines():
            m_ = re.match(r"([0-9a-f]{16}) <(.*)>:", l)
            if m_: sym[m_.group(2)] = int(m_.group(1), 16)
        size = sym["L_end"] + 4 - sym["standalone__fft_conv__vision_kernel"]
        assert size - 4 > sym["L_pc"] - sym["standalone__fft_conv__vision_kernel"] if "L_pc" in sym else True
    e.code_size = size
    e.L = [l.replace("CODE_BYTES", str(size)) for l in e.L]
    open(cfg.name, "w").write("\n".join(e.L) + "\n")
    return e

if __name__ == "__main__":
    ap = argparse.ArgumentParser()
    ap.add_argument("-o", default=Cfg.name)
    ap.add_argument("--lst", action="store_true")
    ap.add_argument("--noloop", action="store_true")
    ap.add_argument("--store", default="")
    ap.add_argument("--look", type=int, default=12)
    ap.add_argument("--early", type=int, default=8)
    ap.add_argument("--wearly", type=int, default=26)
    ap.add_argument("--nocodepf", action="store_true")
    ap.add_argument("--kwait0", action="store_true")
    ap.add_argument("--warm", type=int, default=0)
    ap.add_argument("--rtstamp", action="store_true")
    ap.add_argument("--outpf", action="store_true")
    ap.add_argument("--wbl2", default="")
    ap.add_argument("--burst", type=int, default=0)
    ap.add_argument("--no_merge", action="store_true")
    ap.add_argument("--no_omajor", action="store_true")
    ap.add_argument("--no_skipdup", action="store_true")
    ap.add_argument("--dpre", type=int, default=14)
    ap.add_argument("--early_calc", action="store_true")
    ap.add_argument("--endwait", action="store_true")
    ap.add_argument("--spin", default="")
    ap.add_argument("--codepf2", action="store_true")
    ap.add_argument("--codepf3", action="store_true")
    ap.add_argument("--codepf_all", action="store_true")
    ap.add_argument("--stepst", action="store_true")
    ap.add_argument("--dma_pos", type=int, default=18)
    ap.add_argument("--out_pos", type=int, default=0)
    ap.add_argument("--diag", action="store_true")
    ap.add_argument("--groups", default=Cfg.groups)
    ap.add_argument("--nprol", type=int, default=4)
    ap.add_argument("--direct", default="4,5")
    ap.add_argument("--pf_rows", default="6,2")
    ap.add_argument("--stream", default="4,5,6,7")
    ap.add_argument("--deferred", default="3,8,2,9,1,10,0,11")
    ap.add_argument("--def_plan", default=Cfg.def_plan)
    ap.add_argument("--pfw_split", type=int, default=15)
    ap.add_argument("--pfwb_after", type=int, default=3)
    a = ap.parse_args()
    cfg = Cfg()
    cfg.name = a.o; cfg.lst = a.lst; cfg.loop = not a.noloop; cfg.store_flags = a.store
    cfg.direct = [int(x) for x in a.direct.split(",")]; cfg.pf_rows = tuple(int(x) for x in a.pf_rows.split(","))
    cfg.stream = [int(x) for x in a.stream.split(",")]; cfg.deferred = [int(x) for x in a.deferred.split(",")]; cfg.def_plan = a.def_plan
    cfg.groups = a.groups; cfg.nprol = a.nprol; cfg.pfw_split = a.pfw_split; cfg.pfwb_after = a.pfwb_after; cfg.diag = a.diag; cfg.dma_pos = a.dma_pos; cfg.out_pos = a.out_pos; cfg.stepst = a.stepst; cfg.codepf2 = a.codepf2; cfg.codepf_all = a.codepf_all; cfg.codepf3 = a.codepf3; cfg.spin = (lambda p: (p[0], p[1], int(p[2])) )(a.spin.split("/")) if a.spin else None
    if cfg.spin: cfg.lst = True
    cfg.endwait = a.endwait; cfg.late_calc = not a.early_calc; cfg.dpre = a.dpre; cfg.omajor = not a.no_omajor; cfg.skipdup = not a.no_skipdup; cfg.merge = not a.no_merge; cfg.burst = a.burst; cfg.wbl2 = a.wbl2; cfg.outpf = a.outpf; cfg.rtstamp = a.rtstamp; cfg.warm = a.warm; cfg.kwait0 = a.kwait0; cfg.look = a.look; cfg.early = a.early; cfg.wearly = a.wearly; cfg.codepf = not a.nocodepf
    e = build(cfg)
    print("lines", len(e.L), "LDS", LDS_BYTES, "code", e.code_size)
```

```python
import sys, argparse, re

class Cfg:
    nrows = 19
    RA = 8
    store_flags = ""
    lst = False
    loop = True
    look = 12
    early = 8
    wearly = 26
    codepf = True
    xspin = None
    kwait0 = False
    warm = 0
    rtstamp = False
    outpf = False
    wbl2 = ''
    burst = 0
    merge = True
    omajor = True
    skipdup = True
    dpre = 14
    late_calc = True
    endwait = False
    spin = None
    codepf2 = False
    codepf3 = False
    codepf_all = False
    stepst = False
    dma_pos = 18
    out_pos = 0
    diag = False
    groups = "x4,x5,w0|x6,x7|w1|w2"
    direct = [4, 5]
    pf_rows = (6, 2)
    stream = [4, 5, 6, 7]
    deferred = [3, 8, 2, 9, 1, 10, 0, 11]
    nprol = 4
    pfw_split = 15
    pfwb_after = 3
    def_plan = "11:3,8|12:2,9|14:1,10"
    align12 = True
    name = "standalone__fft_conv__vision.s"

H = W = 224
ROWB = W * 192
XBYTES = H * ROWB
WBYTES = 460800
SLOTB = 7168
NA = 12
XR = NA * SLOTB
X2 = 10 * SLOTB
WS = XR + 4 * SLOTB
WSLOT = 10240
NWS = 4
DUMMY = WS + NWS * WSLOT
LDS_BYTES = DUMMY + 1024

S_X, S_Wt, S_O = 8, 12, 16
S_WS = 20
S_WAVE = 22
S_X0, S_X1, S_XM = 23, 24, 25
S_XBASE, S_XROW, S_OROW, S_CNT = 26, 27, 28, 29
S_T0, S_T1, S_T2, S_T3 = 30, 31, 32, 33
S_WM, S_G, S_W0, S_WM2, S_WMM = 34, 35, 36, 37, 38
S_T4, S_T5 = 39, 40
S_PC = 44
S_CPO = 48
S_DUP = 49
S_OB = 50
S_T6 = 51
S_LAST = 41
V_XAA = 2; V_XAR = 7
V_XD0, V_XD1 = 12, 13
V_WD, V_TR, V_OUT, V_PF = 14, 15, 16, 17
V_T = 18
V_O = 24
V_ST = 28
V_ACC = 32
V_B = 48
V_ACCA = 168
V_PFX = 200
V_PFD = 202
V_PF2 = 206
V_CPF = 207
V_WT = 212

def wreg(kh, f, lo=None):
    i = kh * 15 + f
    if i < 64: base, t = 4 * i, "a"
    else: base, t = V_WT + 4 * (i - 64), "v"
    if lo is None: return f"{t}[{base}:{base+3}]"
    return f"{t}[{base+lo}:{base+lo+1}]"
def breg(row, f):
    b = V_B + (row % 2) * 60 + 4 * f
    return f"v[{b}:{b+3}]"
RA_ACC = [0]
def acc(o): return V_ACCA + 4 * o if o < RA_ACC[0] else V_ACC + 4 * (o % 4)
def xlds(row): return row * SLOTB if row < NA else XR + ((row - NA) % 4) * SLOTB
def xslot(row):
    a = xlds(row)
    return ("A", a) if a < X2 else ("R", a - X2)

class Em:
    def __init__(self, cfg):
        self.cfg = cfg; self.L = []
        self.vm = []; self.vm_done = 0
        self.lg = []; self.lg_done = 0; self.lg_pos = []
        self.pos = 0
        self.nl = 0; self.lnames = []
    def A(self, s): self.L.append("  " + s)
    def raw(self, s): self.L.append(s)
    def mfma(self, s): self.A(s); self.pos += 1
    def vmem(self, s, tag): self.A(s); self.vm.append(tag)
    def lds(self, s, tag): self.A(s); self.lg.append(tag); self.lg_pos.append(self.pos)
    def vm_need(self, tags):
        idx = -1
        for tag in tags:
            assert tag in self.vm, (tag, self.vm)
            idx = max(idx, max(i for i, t in enumerate(self.vm) if t == tag))
        return idx
    def wait_vm(self, *tags, force=False):
        idx = self.vm_need(tags)
        if idx < self.vm_done and not force: return False
        n = min(len(self.vm) - 1 - idx, 63)
        self.A(f"s_waitcnt vmcnt({n})"); self.vm_done = max(self.vm_done, len(self.vm) - n)
        return True
    def wait_lg(self, *tags, age=None):
        idx = -1
        for tag in tags:
            assert tag in self.lg, tag
            idx = max(idx, max(i for i, t in enumerate(self.lg) if t == tag))
        if idx < self.lg_done: return False
        if age is not None:
            for i in range(idx + 1, len(self.lg)):
                if self.pos - self.lg_pos[i] >= age: idx = i
        n = min(len(self.lg) - 1 - idx, 15)
        self.A(f"s_waitcnt lgkmcnt({n})"); self.lg_done = len(self.lg) - n
        return True
    def lstamp(self, name=""):
        if not self.cfg.lst: return
        if self.cfg.stepst and not (name.startswith("step") or name in ("start", "M0:x4,w0", "M5:w4", "M10:w9", "streamend", "defend", "rampend", "mfmaend", "drain")): return
        if self.cfg.stepst and name in ("step14", "step16", "step18", "step21", "step22"): return
        k = self.nl
        if k >= 18: return
        self.A(f"{'s_memrealtime' if self.cfg.rtstamp else 's_memtime'} s[{64+2*k}:{65+2*k}]")
        self.lnames.append(name); self.nl = k + 1

def x_ops(e, row, seq=False):
    base = xlds(row); ops = []
    I = lambda s: (lambda: e.A(s))
    if not seq:
        ops += [I(f"s_add_u32 s{S_T0}, s{S_XBASE}, {row*ROWB}"), I(f"s_sub_u32 s{S_T1}, s{S_T0}, {XBYTES}"),
                I(f"s_min_u32 s{S_XROW}, s{S_T0}, s{S_T1}")]
    ops += [I(f"s_add_u32 m0, s{S_X0}, {base}"),
            lambda: e.vmem(f"buffer_load_dwordx4 v{V_XD0}, s[{S_X}:{S_X+3}], s{S_XROW} offen lds", f"x{row}")]
    if base: ops += [I(f"s_and_b32 s{S_T2}, s{S_XM}, {base}"), I(f"s_add_u32 m0, s{S_X1}, s{S_T2}")]
    else: ops += [I(f"s_mov_b32 m0, s{S_X1}")]
    ops += [lambda: e.vmem(f"buffer_load_dwordx4 v{V_XD1}, s[{S_X}:{S_X+3}], s{S_XROW} offen lds", f"x{row}")]
    if seq:
        ops += [I(f"s_add_u32 s{S_XROW}, s{S_XROW}, {ROWB}"), I(f"s_sub_u32 s{S_T1}, s{S_XROW}, {XBYTES}"),
                I(f"s_min_u32 s{S_XROW}, s{S_XROW}, s{S_T1}")]
    return ops
def w_ops(e, s):
    ops = []
    I = lambda t: (lambda: e.A(t))
    for m in range(3):
        off = (s % NWS) * WSLOT
        ops.append(I(f"s_mov_b32 s{S_T3}, {(32*s + 960*m)*192}"))
        if m < 2: ops.append(I(f"s_add_u32 m0, s{S_WM}, {off + 4*m*1024}"))
        elif off: ops += [I(f"s_and_b32 s{S_T4}, s{S_WMM}, {off}"), I(f"s_add_u32 m0, s{S_WM2}, s{S_T4}")]
        else: ops.append(I(f"s_mov_b32 m0, s{S_WM2}"))
        ops.append(lambda m=m: e.vmem(f"buffer_load_dwordx4 v{V_WD}, s[{S_Wt}:{S_Wt+3}], s{S_T3} offen lds", f"w{s}"))
    return ops
def emit_now(e, ops):
    for op in ops:
        n0 = len(e.L)
        prev = e.L[-1]
        tmp = len(e.L); op()
        if " lds" in e.L[-1] and re.search(r"\bm0,", e.L[tmp-1]):
            e.L.insert(tmp, "  s_nop 0")

def prologue(e):
    c = e.cfg; A = e.A
    t0, t1, t2, t3 = V_T, V_T+1, V_T+2, V_T+3
    A("s_load_dwordx4 s[4:7], s[0:1], 0")
    A(f"s_load_dwordx2 s[{S_O}:{S_O+1}], s[0:1], 16")
    A("s_cmp_ge_u32 s2, 252")
    A("s_cbranch_scc1 L_end")
    e.lstamp("start")
    if c.lst: A("s_memrealtime s[60:61]")
    if c.kwait0:
        A("s_waitcnt lgkmcnt(0)"); e.lstamp("k0")
    A("v_lshrrev_b32 v1, 6, v0")
    A("v_and_b32 v0, 63, v0")
    A(f"v_readfirstlane_b32 s{S_WAVE}, v1")
    A(f"s_lshr_b32 s{S_T0}, s2, 3")
    A(f"s_and_b32 s{S_T1}, s2, 7")
    A(f"s_mul_i32 s{S_T2}, s{S_T0}, 86")
    A(f"s_lshl_b32 s{S_T4}, s{S_T0}, 2")
    A(f"s_lshr_b32 s{S_T2}, s{S_T2}, 8")
    A(f"s_mul_i32 s{S_T1}, s{S_T1}, 10")
    A(f"s_mul_i32 s{S_T3}, s{S_T2}, 3")
    A(f"s_add_u32 s{S_T1}, s{S_T1}, s{S_T2}")
    A(f"s_sub_u32 s{S_G}, s{S_T0}, s{S_T3}")
    A("s_cmp_lt_u32 s2, 240")
    A("s_cbranch_scc1 L_map_done")
    A(f"s_sub_u32 s{S_T0}, s2, 240")
    A(f"s_mul_i32 s{S_T2}, s{S_T0}, 86")
    A(f"s_lshr_b32 s{S_T2}, s{S_T2}, 8")
    A(f"s_mul_i32 s{S_T3}, s{S_T2}, 3")
    A(f"s_sub_u32 s{S_G}, s{S_T0}, s{S_T3}")
    A(f"s_add_u32 s{S_T1}, s{S_T2}, 80")
    e.raw("L_map_done:")
    A(f"s_add_u32 s{S_T4}, s{S_T4}, s{S_WAVE}")
    A(f"s_mul_i32 s{S_T2}, s{S_T1}, 9363")
    A(f"s_lshl_b32 s{S_T5}, s{S_WAVE}, 6")
    A(f"s_lshr_b32 s{S_T2}, s{S_T2}, 16")
    A(f"v_add_u32 v{t0}, s{S_T5}, v0")
    A(f"s_mul_i32 s{S_T3}, s{S_T2}, 7")
    A(f"s_sub_u32 s{S_T3}, s{S_T1}, s{S_T3}")
    A(f"s_mul_i32 s{S_T0}, s{S_T3}, 86")
    A(f"s_lshl_b32 s{S_W0}, s{S_T3}, 5")
    A(f"s_lshr_b32 s{S_T0}, s{S_T0}, 8")
    A(f"s_mul_i32 s{S_T0}, s{S_T0}, 3")
    A(f"s_sub_u32 s{S_T0}, s{S_T3}, s{S_T0}")
    A(f"s_add_u32 s{S_T1}, s{S_T2}, s{S_T0}")
    A(f"s_add_u32 s{S_T3}, s{S_T1}, 2")
    A(f"s_mul_i32 s{S_T3}, s{S_T3}, 86")
    A(f"s_lshr_b32 s{S_T3}, s{S_T3}, 8")
    A(f"s_cmp_ge_u32 s{S_T0}, 1")
    A(f"s_cselect_b32 s{S_T0}, 1, 0")
    A(f"s_sub_u32 s{S_T3}, s{S_T3}, s{S_T0}")
    A(f"s_mul_i32 s{S_T0}, s{S_T2}, 19")
    A(f"s_sub_u32 s{S_T0}, s{S_T0}, s{S_T3}")
    A(f"s_mul_i32 s{S_OROW}, s{S_T0}, {ROWB}")
    A(f"s_add_u32 s{S_XBASE}, s{S_OROW}, {(H-4)*ROWB}")
    if c.merge:
        A(f"s_mov_b32 s{S_OB}, s{S_OROW}")
        A(f"s_add_u32 s{S_OROW}, s{S_OROW}, {4*ROWB}")
    A(f"s_mul_i32 s{S_LAST}, s{S_T1}, 86")
    A(f"s_lshr_b32 s{S_LAST}, s{S_LAST}, 8")
    A(f"s_mul_i32 s{S_LAST}, s{S_LAST}, 3")
    A(f"s_cmp_eq_u32 s{S_LAST}, s{S_T1}")
    A(f"s_cselect_b32 s{S_DUP}, 0, -1")
    A(f"s_cselect_b32 s{S_LAST}, 0x40000000, 0")
    A(f"s_add_u32 s{S_T0}, s{S_W0}, {W-4}")
    for pi in range(2):
        dst = V_XD0 if pi == 0 else V_XD1
        if pi: A(f"v_add_u32 v{t0}, 256, v{t0}")
        A(f"v_mul_u32_u24 v{t1}, 5462, v{t0}")
        A(f"v_lshrrev_b32 v{t1}, 16, v{t1}")
        A(f"v_mul_u32_u24 v{t2}, 12, v{t1}")
        A(f"v_lshrrev_b32 v{t3}, 1, v{t1}")
        A(f"v_sub_u32 v{t2}, v{t0}, v{t2}")
        A(f"v_and_b32 v{t3}, 2, v{t3}")
        A(f"v_add_u32 v{t1}, s{S_T0}, v{t1}")
        A(f"v_xor_b32 v{t2}, v{t2}, v{t3}")
        A(f"v_subrev_u32 v{t3}, {W}, v{t1}")
        A(f"v_min_u32 v{t1}, v{t1}, v{t3}")
        if pi: A(f"v_cmp_gt_u32 vcc, 432, v{t0}")
        A(f"v_mul_u32_u24 v{t1}, 192, v{t1}")
        A(f"v_lshl_add_u32 v{dst}, v{t2}, 4, v{t1}")
        if pi:
            A(f"v_mov_b32 v{t1}, 0x40000000")
            A(f"v_cndmask_b32 v{dst}, v{t1}, v{dst}, vcc")
    A(f"s_lshl_b32 s{S_X0}, s{S_WAVE}, 10")
    A(f"s_add_u32 s{S_X1}, s{S_X0}, 4096")
    A(f"s_cmp_eq_u32 s{S_WAVE}, 3")
    A(f"s_cselect_b32 s{S_X1}, {DUMMY}, s{S_X1}")
    A(f"s_cselect_b32 s{S_XM}, 0, -1")
    A(f"s_mov_b32 s{S_X+2}, {XBYTES}"); A(f"s_mov_b32 s{S_X+3}, 0x20000")
    A(f"s_mov_b32 s{S_Wt+2}, {WBYTES}"); A(f"s_mov_b32 s{S_Wt+3}, 0x20000")
    items = [it for g in c.groups.split("|") for it in g.split(",")]
    assert items[:len(c.direct)] == [f"x{r}" for r in c.direct]
    r0, nr = c.pf_rows
    A(f"v_mov_b32 v{V_T+5}, 0x40000000")
    if nr:
        nl = -(-nr * 18 // 4)
        A(f"s_mul_i32 s{S_T0}, s{S_WAVE}, {nl}")
        A(f"v_add_u32 v{t0}, s{S_T0}, v0")
        A(f"v_mul_u32_u24 v{t1}, 3641, v{t0}")
        A(f"s_mul_i32 s{S_T0}, s{S_G}, 18")
        A(f"v_lshrrev_b32 v{t1}, 16, v{t1}")
        A(f"v_mul_u32_u24 v{t2}, 18, v{t1}")
        A(f"v_sub_u32 v{t2}, v{t0}, v{t2}")
        A(f"v_add_u32 v{t2}, s{S_T0}, v{t2}")
        A(f"s_add_u32 s{S_T0}, s{S_W0}, {W-4}")
        A(f"v_lshlrev_b32 v{t2}, 7, v{t2}")
        A(f"s_mul_i32 s{S_T0}, s{S_T0}, 192")
        A(f"s_mov_b32 s{S_T1}, {ROWB}")
        A(f"v_add_u32 v{t2}, s{S_T0}, v{t2}")
        A(f"v_subrev_u32 v{t3}, {ROWB}, v{t2}")
        A(f"v_min_u32 v{t2}, v{t2}, v{t3}")
        A(f"v_add_u32 v{t3}, {r0}, v{t1}")
        A(f"v_mul_lo_u32 v{t3}, v{t3}, s{S_T1}")
        A(f"s_mov_b32 s{S_T2}, {XBYTES}")
        A(f"v_cmp_gt_u32 vcc, {nr*18}, v{t0}")
        A(f"v_add_u32 v{t3}, s{S_XBASE}, v{t3}")
        A(f"v_subrev_u32 v{t1}, s{S_T2}, v{t3}")
        A(f"v_min_u32 v{t3}, v{t3}, v{t1}")
        A(f"v_add_u32 v{t3}, v{t3}, v{t2}")
        A(f"v_cndmask_b32 v{t3}, v{V_T+5}, v{t3}, vcc")
        A(f"v_cmp_gt_u32 vcc, {nl}, v0")
        A("s_nop 1")
        A(f"v_cndmask_b32 v{V_PFX}, v{V_T+5}, v{t3}, vcc")
    def wpf(dst, s0, s1):
        per = (s1 - s0) * 48; tot = 5 * per
        nl = -(-tot // 128)
        if s0 == 0 and s1 == 15:
            A(f"s_mul_i32 s{S_T0}, s{S_T4}, {nl}")
            A(f"v_cmp_gt_u32 vcc, {nl}, v0")
            A(f"v_add_u32 v{t0}, s{S_T0}, v0")
            A(f"v_lshlrev_b32 v{t0}, 7, v{t0}")
            A(f"v_cndmask_b32 v{dst}, v{V_T+5}, v{t0}, vcc")
            return
        A(f"s_mul_i32 s{S_T0}, s{S_T4}, {nl}")
        A(f"v_add_u32 v{t0}, s{S_T0}, v0")
        sh = next(b for b in range(12, 23) if all((n_ * (-(-(1 << b) // per))) >> b == n_ // per for n_ in range(128 * nl + 64)))
        mg = -(-(1 << sh) // per)
        A(f"s_mov_b32 s{S_T1}, {mg}")
        A(f"v_mul_lo_u32 v{t1}, v{t0}, s{S_T1}")
        A(f"v_lshrrev_b32 v{t1}, {sh}, v{t1}")
        A(f"v_mul_u32_u24 v{t2}, {per}, v{t1}")
        A(f"v_sub_u32 v{t2}, v{t0}, v{t2}")
        A(f"v_lshlrev_b32 v{t2}, 7, v{t2}")
        A(f"v_mul_u32_u24 v{t1}, {92160}, v{t1}")
        A(f"v_cmp_gt_u32 vcc, {nl}, v0")
        A(f"v_add_u32 v{t2}, v{t2}, v{t1}")
        if s0: A(f"v_add_u32 v{t2}, {s0*6144}, v{t2}")
        else: A("s_nop 0")
        A(f"v_cndmask_b32 v{dst}, v{V_T+5}, v{t2}, vcc")
    wpf(V_PF, 0, c.pfw_split)
    if c.codepf:
        A(f"s_getpc_b64 s[{S_PC}:{S_PC+1}]")
        e.raw("L_pc:")
        A(f"s_sub_u32 s{S_PC}, s{S_PC}, L_pc-standalone__fft_conv__vision_kernel")
        A(f"s_subb_u32 s{S_PC+1}, s{S_PC+1}, 0")
        A(f"s_and_b32 s{S_PC+1}, s{S_PC+1}, 0xffff")
        A(f"s_mov_b32 s{S_PC+2}, CODE_BYTES")
        A(f"s_mov_b32 s{S_PC+3}, 0x20000")
        if c.codepf_all:
            A(f"v_lshlrev_b32 v{V_CPF}, 7, v0")
            A(f"s_lshl_b32 s{S_CPO}, s{S_WAVE}, 13")
        else:
            A(f"v_cmp_gt_u32 vcc, 2, v0")
            A(f"v_lshlrev_b32 v{t0}, 7, v0")
            A(f"s_lshl_b32 s{S_CPO}, s{S_T4}, 8")
            A(f"v_cndmask_b32 v{V_CPF}, v{V_T+5}, v{t0}, vcc")
    A(f"s_add_u32 s{S_WM}, s{S_X0}, {WS}")
    A(f"s_add_u32 s{S_WM2}, s{S_WM}, 8192")
    A(f"s_cmp_ge_u32 s{S_WAVE}, 2")
    A(f"s_cselect_b32 s{S_WM2}, {DUMMY}, s{S_WM2}")
    A(f"s_cselect_b32 s{S_WMM}, 0, -1")
    A(f"v_lshrrev_b32 v{t0}, 4, v0")
    A(f"v_bfe_u32 v{t1}, v0, 2, 2")
    A(f"v_lshl_add_u32 v{t1}, v{t0}, 3, v{t1}")
    A(f"v_and_b32 v{t0}, 1, v{t0}")
    A(f"v_mul_u32_u24 v{t1}, 192, v{t1}")
    A(f"v_lshlrev_b32 v{t0}, 1, v{t0}")
    A(f"v_and_b32 v{t2}, 3, v0")
    A(f"s_lshr_b32 s{S_T0}, s{S_WAVE}, 1")
    A(f"v_xor_b32 v{t2}, v{t2}, v{t0}")
    A(f"s_mul_i32 s{S_T0}, s{S_T0}, {480*192}")
    A(f"v_lshl_add_u32 v{t1}, v{t2}, 4, v{t1}")
    A(f"s_and_b32 s{S_T1}, s{S_WAVE}, 1")
    A(f"s_mul_i32 s{S_T1}, s{S_T1}, {4*192}")
    A(f"s_add_u32 s{S_T0}, s{S_T0}, s{S_T1}")
    A(f"s_lshl_b32 s{S_T1}, s{S_G}, 6")
    A(f"s_add_u32 s{S_T0}, s{S_T0}, s{S_T1}")
    A(f"v_add_u32 v{V_WD}, s{S_T0}, v{t1}")
    late = c.late_calc
    def tail_calc():
        if c.pfw_split < 15: wpf(V_PF2, c.pfw_split, 15)
        A(f"s_mov_b32 s{S_O+2}, {XBYTES}")
        A(f"s_mov_b32 s{S_O+3}, 0x20000")
        A(f"v_and_b32 v{V_T}, 15, v0")
        A(f"v_lshrrev_b32 v{V_T+1}, 4, v0")
        A(f"s_lshr_b32 s{S_T0}, s{S_WAVE}, 1")
        A(f"s_lshl_b32 s{S_T0}, s{S_T0}, 4")
        A(f"v_add_u32 v{V_T+4}, s{S_T0}, v{V_T}")
        for kw in range(5):
            A(f"v_add_u32 v{V_T+2}, {4-kw}, v{V_T+4}")
            A(f"v_lshrrev_b32 v{V_T+3}, 1, v{V_T+2}")
            A(f"v_and_b32 v{V_T+3}, 2, v{V_T+3}")
            A(f"v_xor_b32 v{V_T+3}, v{V_T+3}, v{V_T+1}")
            A(f"v_mul_u32_u24 v{V_T+2}, 192, v{V_T+2}")
            A(f"v_lshl_add_u32 v{V_XAA+kw}, v{V_T+3}, 4, v{V_T+2}")
            A(f"v_add_u32 v{V_XAR+kw}, {X2}, v{V_XAA+kw}")
        A(f"s_and_b32 s{S_T1}, s{S_WAVE}, 1")
        A(f"v_and_b32 v{V_T+2}, 1, v{V_T+1}")
        A(f"v_xor_b32 v{V_T+2}, s{S_T1}, v{V_T+2}")
        A(f"v_lshlrev_b32 v{V_T+2}, 5, v{V_T+2}")
        A(f"v_lshrrev_b32 v{V_T+3}, 2, v0")
        A(f"v_lshl_add_u32 v{V_T+2}, v{V_T+3}, 6, v{V_T+2}")
        A(f"v_and_b32 v{V_T+3}, 3, v0")
        A(f"v_lshl_add_u32 v{V_T+2}, v{V_T+3}, 3, v{V_T+2}")
        A(f"v_add_u32 v{V_TR}, {WS}, v{V_T+2}")
        A(f"v_add_u32 v{V_T+2}, s{S_W0}, v{V_T+4}")
        A(f"v_mul_u32_u24 v{V_T+2}, 192, v{V_T+2}")
        A(f"v_lshl_add_u32 v{V_T+2}, v{V_T+1}, 3, v{V_T+2}")
        A(f"s_lshl_b32 s{S_T0}, s{S_G}, 1")
        A(f"s_add_u32 s{S_T0}, s{S_T0}, s{S_T1}")
        A(f"s_lshl_b32 s{S_T0}, s{S_T0}, 5")
        A(f"v_add_u32 v{V_OUT}, s{S_T0}, v{V_T+2}")
    if not late: tail_calc()
    A("s_waitcnt lgkmcnt(0)")
    A(f"s_mov_b32 s{S_X}, s4"); A(f"s_mov_b32 s{S_X+1}, s5")
    A(f"s_mov_b32 s{S_Wt}, s6"); A(f"s_mov_b32 s{S_Wt+1}, s7")
    e.lstamp("karg")
    for r in c.direct: emit_now(e, x_ops(e, r))
    if c.pf_rows[1]: e.vmem(f"buffer_load_dword v{V_PFD}, v{V_PFX}, s[{S_X}:{S_X+3}], 0 offen", "pf")
    e.vmem(f"buffer_load_dword v{V_PFD+1}, v{V_PF}, s[{S_Wt}:{S_Wt+3}], 0 offen", "pf")
    if c.codepf: e.vmem(f"buffer_load_dword v{V_PFD+3}, v{V_CPF}, s[{S_PC}:{S_PC+3}], s{S_CPO} offen", "pf")
    if c.outpf:
        A(f"s_mov_b32 s{S_O+2}, {XBYTES}"); A(f"s_mov_b32 s{S_O+3}, 0x20000")
        A(f"v_cmp_gt_u32 vcc, 2, v0")
        A(f"v_mul_u32_u24 v{t0}, {14*ROWB}, v0")
        A("s_nop 0")
        A(f"v_cndmask_b32 v{t0}, v{V_T+5}, v{t0}, vcc")
        e.vmem(f"buffer_load_dword v{V_PFD+2}, v{t0}, s[{S_O}:{S_O+3}], s{S_OB} offen", "pf")
    e.lstamp("pf")
    if c.warm:
        A(f"v_mul_u32_u24 v48, 0x9e37, v0")
        A(f"v_add_u32 v48, 0x3c6ef372, v48")
        for r in range(49, 80):
            A(f"v_mul_u32_u24 v{r}, 0x5bd1, v{r-1}")
            A(f"v_xor_b32 v{r}, v{r}, v{r-1}")
        for r in range(48, 80):
            A(f"v_and_b32 v{r}, 0x807f807f, v{r}")
            A(f"v_or_b32 v{r}, 0x3d003d00, v{r}")
        A("s_nop 1")
        for k in range(c.warm):
            a_ = 48 + 4 * (k % 4); b_ = 64 + 4 * ((k // 4 + k) % 4)
            A(f"v_mfma_f32_16x16x32_bf16 v[168:171], v[{a_}:{a_+3}], v[{b_}:{b_+3}], " + ("0" if k == 0 else "v[168:171]"))
    for it in items[len(c.direct):c.nprol]:
        emit_now(e, x_ops(e, int(it[1:])) if it[0] == "x" else w_ops(e, int(it[1:])))
    if c.diag:
        e.lstamp("issued")
        nv = len(e.vm)
        seen = []
        for idx_, tg in enumerate(e.vm):
            if idx_ + 1 < nv and e.vm[idx_ + 1] == tg and tg != "pf": continue
            A(f"s_waitcnt vmcnt({nv - 1 - idx_})"); e.lstamp(tg + "_back")
    if late: tail_calc()

def b_read_to(e, row, f, reg, tag):
    kw, cc = divmod(f, 3)
    kind, off = xslot(row)
    base = V_XAA if kind == "A" else V_XAR
    e.lds(f"ds_read_b128 {reg}, v{base+kw} offset:{off + cc*64}", tag)
def tr_read(e, s, kh, h):
    e.lds(f"ds_read_b64_tr_b16 {wreg(kh, s, 2*h)}, v{V_TR} offset:{(s % NWS)*WSLOT + (2*kh + h)*1024}", f"t{s}_{kh}")
def out_ops(e, a, pair, o):
    vo = V_O + 2 * pair
    pre = [lambda: e.A(f"s_add_u32 s{S_OROW}, s{S_OROW}, s{S_LAST}")] if o == e.cfg.nrows - 1 else []
    return pre + [lambda: e.A(f"v_cvt_pk_bf16_f32 v{vo}, v{a}, v{a+1}"),
            lambda: e.A(f"v_cvt_pk_bf16_f32 v{vo+1}, v{a+2}, v{a+3}"),
            lambda: e.vmem(f"buffer_store_dwordx2 v[{vo}:{vo+1}], v{V_OUT}, s[{S_O}:{S_O+3}], s{S_OROW} offen {e.cfg.store_flags}".rstrip(), f"o{o}"),
            lambda: e.A(f"s_add_u32 s{S_OROW}, s{S_OROW}, {ROWB}")]

def out_ops_abs(e, a, pair, o):
    vo = V_O + 2 * pair
    return [lambda: e.A(f"s_add_u32 s{S_T6}, s{S_OB}, {o*ROWB}" if o else f"s_mov_b32 s{S_T6}, s{S_OB}"),
            lambda: e.A(f"v_cvt_pk_bf16_f32 v{vo}, v{a}, v{a+1}"),
            lambda: e.A(f"v_cvt_pk_bf16_f32 v{vo+1}, v{a+2}, v{a+3}"),
            lambda: e.vmem(f"buffer_store_dwordx2 v[{vo}:{vo+1}], v{V_OUT}, s[{S_O}:{S_O+3}], s{S_T6} offen {e.cfg.store_flags}".rstrip(), f"o{o}")]

class Gaps:
    def __init__(self, M, cap=1):
        self.M = M; self.g = [[] for _ in range(M)]; self.cap = cap
    def put(self, p, fn):
        self.g[min(max(p, 0), self.M - 1)].append(fn)
    def seq(self, ops, start, step=1, cap=None):
        cap = self.cap if cap is None else cap
        p = start
        for op in ops:
            while p < self.M - 1 and len(self.g[p]) >= cap: p += 1
            self.put(p, op); p = min(p + step, self.M - 1) if p < self.M - 1 else p
        return p

def block_a(e):
    c = e.cfg; RA = c.RA
    def khs(i): return [kh for kh in range(5) if 0 <= i - 4 + kh < RA]
    stream = list(c.stream)
    groups = [g.split(",") for g in c.groups.split("|")]
    nextw = 1 + max(int(it[1:]) for g in groups for it in g if it[0] == "w")
    groups += [[f"w{s}"] for s in range(nextw, 15)]
    order = []; rows_av = []; s_av = []; sched = set()
    mk_items = {}
    for gi, g in enumerate(groups):
        order.append(("M", gi)); mk_items[gi] = g
        for it in g:
            (rows_av if it[0] == "x" else s_av).append(int(it[1:]))
        for s in sorted(s_av):
            for r in sorted(rows_av, key=lambda r: (-len(khs(r)), r)):
                if (r, s) not in sched: sched.add((r, s)); order.append((r, s))
    assert len(sched) == len(stream) * 15
    w_marker = {int(it[1:]): gi for gi, g in mk_items.items() for it in g if it[0] == "w"}
    row_marker = {int(it[1:]): gi for gi, g in mk_items.items() for it in g if it[0] == "x"}
    nearly = len(c.groups.split("|"))
    mf = []; first = {}; mpos = {}
    def flush_group(grp, flip):
        if not c.omajor:
            for ent in grp:
                for kh in khs(ent[0]): mf.append((ent, kh))
            return
        for s_ in sorted(set(ent[1] for ent in grp)):
            lst = [(ent, kh) for ent in grp if ent[1] == s_ for kh in khs(ent[0])]
            lst.sort(key=lambda z: (z[0][0] - 4 + z[1], z[0][0]), reverse=flip[0])
            flip[0] = not flip[0]
            mf.extend(lst)
    grp = []; flip = [False]
    for ent in order + [("M", None)]:
        if ent[0] == "M":
            flush_group(grp, flip); grp = []
            if ent[1] is not None: mpos[ent[1]] = len(mf)
        else: grp.append(ent)
    for q_, (ent, kh) in enumerate(mf): first.setdefault(ent, q_)
    M = len(mf)
    mark_at = {}; prev = 0
    for p in sorted(mpos):
        q = mpos[p]
        if p >= nearly: q = max(prev, mpos[p] - c.wearly)
        elif p >= 1: q = max(prev, mpos[p] - c.early)
        mark_at[p] = q; prev = q
    tasks = []
    pairs = [ent for ent in order if ent[0] != "M"]
    last_use = {}
    for q, (ent, kh) in enumerate(mf): last_use[ent] = q
    for ent in pairs:
        tasks.append(dict(kind="b", ent=ent, ready=mark_at[row_marker[ent[0]]], due=first[ent], done=False))
    for s in range(15):
        for kh in range(5):
            due = min(q for q, (ent, k2) in enumerate(mf) if ent[1] == s and k2 == kh)
            for h in range(2):
                tasks.append(dict(kind="t", s=s, kh=kh, h=h, ready=mark_at[w_marker[s]], due=due, done=False))
    tasks.sort(key=lambda t: (t["due"], 0 if t["kind"] == "t" else 1))
    bslots = [None] * 15; bfree_at = [-1] * 15; bassign = {}
    def issue(t, q):
        if t["kind"] == "t": tr_read(e, t["s"], t["kh"], t["h"])
        else:
            k = min(range(15), key=lambda j: bfree_at[j])
            if bfree_at[k] >= q and bslots[k] is not None: return False
            ent = t["ent"]
            bslots[k] = ent; bfree_at[k] = last_use[ent]; bassign[ent] = k
            reg = V_B + 60 + 4 * k
            b_read_to(e, ent[0], ent[1], f"v[{reg}:{reg+3}]", f"pb{ent[0]}_{ent[1]}")
        t["done"] = True
        return True
    items = [it for g in c.groups.split("|") for it in g.split(",")]
    dplan = {}
    rest = [(it[0], int(it[1:])) for it in items[c.nprol:]]
    issued_w = [int(it[1:]) for it in items if it[0] == "w"]
    dplan[0] = list(rest)
    for s in range(max(issued_w) + 1, min(4, 15)): dplan[0].append(("w", s))
    for s in range(max(max(issued_w) + 1, 4), 15):
        dplan.setdefault(w_marker[s - 3], []).append(("w", s))
    if c.pfw_split < 15: dplan.setdefault(w_marker[c.pfwb_after], []).append(("pfw", 0))
    planned = []
    for part in c.def_plan.split("|"):
        wm, rows_ = part.split(":")
        rows_ = [int(r) for r in rows_.split(",")]
        dplan.setdefault(w_marker[int(wm)], []).extend([("x", r) for r in rows_]); planned += rows_
    late_rows = [r for r in c.deferred if r not in planned] + ([r for r in (8, 9, 10, 11, 12) if r not in planned and r not in c.stream] if c.merge else [12, 13])
    def ops_of(kind, a):
        if kind == "x": return x_ops(e, a)
        if kind == "w": return w_ops(e, a)
        return [lambda: e.vmem(f"buffer_load_dword v{V_PFD+2}, v{V_PF2}, s[{S_Wt}:{S_Wt+3}], 0 offen", "pf")]
    dq = []
    marks_sorted = sorted(mark_at)
    for p in marks_sorted:
        ops = []
        for kind, a in dplan.get(p, []): ops += ops_of(kind, a)
        if not ops: continue
        lo = mark_at[p]; hi = mark_at[p+1] if p + 1 in mark_at else M - 2
        span = 0 if p < nearly - 1 else max(hi - lo - len(ops) // 2, 0)
        for k, op in enumerate(ops): dq.append((lo + (k * span) // len(ops), op))
    dq.reverse()
    last_dma = [-10, False]
    def run_dma_op(force=False):
        _, op = dq.pop()
        n0 = len(e.L); op()
        if " lds" in e.L[-1] and re.search(r"\bm0,", e.L[n0-1]): e.L.insert(n0, "  s_nop 0")
    need = {p: list(mk_items[p]) for p in marks_sorted}
    prevw = {}
    for p in marks_sorted:
        ws = [int(it[1:]) for it in mk_items[p] if it[0] == "w"]
        if ws and ws[0] >= 1: prevw[p] = ws[0] - 1
    cnt = lambda tg: 3 if tg[0] == "w" else 2
    inited = set()
    deferred = list(c.deferred)
    par = len(deferred) % 2
    def setreg(k, f):
        b = V_B + ((k + par) % 2) * 60 + 4 * f
        return f"v[{b}:{b+3}]"
    vis = {}
    k0 = 0
    if par: vis[0] = [deferred[0]]; k0 = 1
    for k_ in range(k0, len(deferred), 2): vis[k_] = deferred[k_:k_+2]
    if c.merge: vis[len(deferred)] = [RA, RA + 1]
    dpre = c.dpre if par == 0 else 0
    q_d = M - dpre if dpre else None
    d_issued = []
    pre = {}
    for p in marks_sorted:
        if p >= nearly:
            pre.setdefault(max(mark_at[p] - 2, mark_at[p-1] + 1), []).append(("vm", p))
            pre.setdefault(max(mark_at[p] - 1, mark_at[p-1] + 1), []).append(("lg", p))
    def do_vm(p):
        while not all(e.vm.count(tg) == cnt(tg) for tg in need[p]): run_dma_op()
        e.wait_vm(*need[p])
    def do_lg(p, q):
        if p not in prevw: return
        sp = prevw[p]
        for t in tasks:
            if t["kind"] == "t" and t["s"] == sp and not t["done"]: issue(t, q)
        idxs = [i_ for i_, tg in enumerate(e.lg) if tg.startswith(f"t{sp}_")]
        e.wait_lg(e.lg[max(idxs)])
    for q in range(M):
        for kind, p in pre.get(q, []):
            if mark_at[p] > q:
                (do_vm(p) if kind == "vm" else do_lg(p, q))
        for p in marks_sorted:
            if mark_at[p] == q:
                do_lg(p, q); do_vm(p)
                e.A("s_barrier")
                if p == 0:
                    for _ in range(c.burst):
                        if dq: run_dma_op()
                if p in (0, nearly - 1, w_marker[4], w_marker[9], w_marker[14]): e.lstamp(f"M{p}:" + ",".join(mk_items[p]))
        if q_d is not None and q == q_d:
            while not all(e.vm.count(f"x{r_}") == 2 for r_ in vis[0]): run_dma_op()
            e.wait_vm(*[f"x{r_}" for r_ in vis[0]]); e.A("s_barrier")
        ent, kh = mf[q]
        late = [t for t in tasks if not t["done"] and t["due"] <= q]
        if late:
            for t in late:
                assert t["ready"] <= q, (t, q)
                ok = issue(t, q); assert ok
            for t in tasks:
                if t["done"] or t["ready"] > q: continue
                if len(e.lg) - e.lg_done >= 13: break
                if t["kind"] == "b" and t["due"] - q > c.look: continue
                issue(t, q)
        n0 = len(e.L)
        e.wait_lg(f"t{ent[1]}_{kh}", f"pb{ent[0]}_{ent[1]}", age=5)
        o = ent[0] - 4 + kh; a = V_ACCA + 4 * o
        src = f"v[{a}:{a+3}]" if o in inited else "0"
        inited.add(o)
        reg = V_B + 60 + 4 * bassign[ent]
        e.mfma(f"v_mfma_f32_16x16x32_bf16 v[{a}:{a+3}], {wreg(kh, ent[1])}, v[{reg}:{reg+3}], {src}")
        budget = 2
        early_phase = q < mark_at[nearly - 1]
        if early_phase: budget = 4
        def try_lds():
            for t in tasks:
                if t["done"] or t["ready"] > q: continue
                if t["kind"] == "b" and t["due"] - q > c.look: continue
                if len(e.lg) - e.lg_done >= 14: return False
                if issue(t, q + 1): return True
            return False
        def try_dma():
            if dq and dq[-1][0] <= q: run_dma_op(); return True
            return False
        def try_d():
            if q_d is not None and q >= q_d and len(d_issued) < 15 and len(e.lg) - e.lg_done < 14:
                f = len(d_issued); d_issued.append(f)
                b_read_to(e, deferred[0], f, setreg(0, f), f"d0_{f}"); return True
            return False
        _lds = try_lds
        def try_lds(): return _lds() or try_d()
        turn = [try_lds, try_dma]
        k = 0
        while budget > 0:
            if turn[k % 2]() or turn[(k + 1) % 2](): budget -= 1; k += 1
            else: break
    while dq: run_dma_op()
    if c.codepf2: e.vmem(f"buffer_load_dword v{V_PFD+3}, v{V_CPF}, s[{S_PC}:{S_PC+3}], s{S_CPO} offen", "pf")
    e.lstamp("streamend")
    seq = deferred + [RA]
    if q_d is None:
        e.wait_vm(*[f"x{r_}" for r_ in vis[0]]); e.A("s_barrier")
    for f in range(len(d_issued), 15): b_read_to(e, seq[0], f, setreg(0, f), f"d0_{f}")
    for k, r in enumerate(deferred):
        mfs = []
        for kh in khs(r):
            o = r - 4 + kh; a = V_ACCA + 4 * o
            for f in range(15):
                src = f"v[{a}:{a+3}]" if o in inited else "0"
                inited.add(o)
                mfs.append((f, f"v_mfma_f32_16x16x32_bf16 v[{a}:{a+3}], {wreg(kh, f)}, {setreg(k, f)}, {src}"))
        Mk = len(mfs); nxt = seq[k + 1]
        G = Gaps(Mk)
        if (k + 1) in vis:
            e.wait_vm(*[f"x{r_}" for r_ in vis[k+1]]); e.A("s_barrier")
        span = max(Mk - 6, 15)
        for f in range(15): G.put(min((f * span) // 15, Mk - 1), (lambda f=f: b_read_to(e, nxt, f, setreg(k + 1, f), f"d{k+1}_{f}")))
        if c.merge and k >= 1:
            op_ = deferred[k-1]
            assert op_ <= 3
            G.seq(out_ops_abs(e, V_ACCA + 4 * op_, 1, op_), min(9, Mk - 6), step=1, cap=2)
        ntake = 2 if (k < 1 or c.merge) else 1
        pos = 2
        for _ in range(ntake):
            if late_rows and (Mk >= 30 or (c.merge and Mk >= 15 and _ == 0)):
                pos = G.seq(x_ops(e, late_rows.pop(0)), pos, step=1, cap=2)
        for p_, (f, s_) in enumerate(mfs):
            if p_ < 15: e.wait_lg(f"d{k}_{f}", age=5)
            e.mfma(s_)
            for fn in G.g[p_]: fn()
    e.late_rows = late_rows
    e.dtag = f"d{len(deferred)}"
    e.lstamp("defend")

def step(e, i, chains, last_row, extra_out=(), extra_dma=(), prev_tags=None, skip=None):
    c = e.cfg; RA = c.RA
    mf = []
    for kh in chains:
        o = i - 4 + kh; a = acc(o)
        for f in range(15):
            src = "0" if (kh == 4 and f == 0) else f"v[{a}:{a+3}]"
            mf.append((f, f"v_mfma_f32_16x16x32_bf16 v[{a}:{a+3}], {wreg(kh, f)}, {breg(i, f)}, {src}"))
    M = len(mf)
    U = M - 15 if skip else M
    G = Gaps(M)
    nxt = i + 1
    nn = i + 2
    S0 = (RA + 2) if c.merge else NA
    did_bar = nxt <= last_row and nxt >= S0
    if did_bar: e.A("s_barrier")
    if nxt <= last_row:
        span = max(U - 9, 15) if U >= 15 else U
        for f in range(15): G.put(min((f * span) // 15, U - 1), (lambda f=f: b_read_to(e, nxt, f, breg(nxt, f), f"b{nxt}_{f}")))
    r4 = i + 4
    if i >= NA and r4 <= last_row: G.seq(x_ops(e, r4, seq=True), c.dma_pos, step=2)
    pos_ = 1
    for r_ in extra_dma: pos_ = G.seq(x_ops(e, r_), pos_ if c.merge else 1, step=1, cap=(2 if M <= 30 else 1))
    tail = []
    if 0 in chains and (i - 4 >= RA or c.merge):
        o = i - 4; endp = chains.index(0) * 15 + 14
        ops = out_ops(e, acc(o), 0, o)
        if endp + 14 < M: G.seq(ops, max(endp + 9, c.out_pos if M == 75 else 0), step=1)
        else: tail = ops
    for k, (a, o) in enumerate(extra_out):
        if c.merge: G.seq(out_ops_abs(e, a, 1, o), 9, step=1)
        else: G.seq(out_ops(e, a, k % 2, o), (k * M) // max(len(extra_out), 1) + 1, step=1, cap=(2 if M <= 45 else 1))
    if nn <= last_row and nn >= S0:
        G.put(U - 3, lambda: e.wait_vm(f"x{nn}", force=(i >= NA)))
    short = U < 45
    lab = f"{i if i < NA or i >= c.nrows else 'l' + str((i - NA) % 4)}"
    for p, (f, s) in enumerate(mf):
        if skip and p == U:
            e.A(skip); e.A(f"s_cbranch_scc1 L_skip{lab}")
            mark = len(e.L)
        if prev_tags and p < 15: e.wait_lg(prev_tags(f), age=5)
        e.mfma(s)
        for fn in G.g[p]: fn()
        if p == U - 2 and nxt <= last_row and not short: e.wait_lg(f"b{nxt}_14")
    if skip:
        fill = [l for l in e.L[mark:] if "v_mfma" not in l]
        if fill:
            e.A(f"s_branch L_join{lab}")
            e.raw(f"L_skip{lab}:")
            if any("v_cvt" in l for l in fill): e.A("s_nop 7"); e.A("s_nop 1")
            e.L.extend(fill)
            e.raw(f"L_join{lab}:")
        else:
            e.raw(f"L_skip{lab}:")
    if tail:
        e.A("s_nop 7"); e.A("s_nop 1")
        for fn in tail: fn()
    if nxt <= last_row and short and (nn <= last_row and nn >= S0): e.wait_lg(f"b{nxt}_14")

def build(cfg):
    e = Em(cfg); n = cfg.nrows; RA = cfg.RA
    last_row = n + 3
    e.raw("; direct 5x5 circular convolution; weights stationary in registers; start block overlaps the weight arrival")
    e.raw(f"; @launch grid=(252,1,1) block=(256,1,1) lds={LDS_BYTES}")
    e.raw('.amdgcn_target "amdgcn-amd-amdhsa--gfx950"')
    e.raw(".text")
    e.raw(".globl standalone__fft_conv__vision_kernel")
    if cfg.align12: e.raw(".p2align 12")
    e.raw(".p2align 8")
    e.raw(".type standalone__fft_conv__vision_kernel,@function")
    e.raw("standalone__fft_conv__vision_kernel:")
    prologue(e)
    block_a(e)
    if cfg.merge:
        RA_ACC[0] = RA
        def chains_for(i): return [kh for kh in range(5) if 0 <= i - 4 + kh < n]
        flush = {RA: [cfg.deferred[-1]]}
        lr = list(e.late_rows) + [13, 14, 15]
        predma = {RA: lr[:2], RA + 1: lr[2:4], RA + 2: lr[4:6], RA + 3: lr[6:]}
    else:
        assert not e.late_rows
        def chains_for(i): return [kh for kh in range(5) if RA <= i - 4 + kh < n]
        flush = {RA + 1: [0, 1], RA + 2: [2, 3, 4], RA + 3: [5, 6, 7]}
        predma = {RA: [14], RA + 1: [15]}
    i = RA
    while i < NA:
        ex = [(V_ACCA + 4 * o, o) for o in flush.get(i, [])]
        pt = (lambda f: f"{e.dtag}_{f}") if i == RA else (lambda f, i=i: f"b{i}_{f}")
        step(e, i, chains_for(i), last_row, ex, predma.get(i, []), pt); i += 1
    if cfg.codepf3: e.vmem(f"buffer_load_dword v{V_PFD+3}, v{V_CPF}, s[{S_PC}:{S_PC+3}], s{S_CPO} offen", "pf")
    e.lstamp("rampend")
    e.A(f"s_add_u32 s{S_T0}, s{S_XBASE}, {(NA+4)*ROWB}")
    e.A(f"s_sub_u32 s{S_T1}, s{S_T0}, {XBYTES}")
    e.A(f"s_min_u32 s{S_XROW}, s{S_T0}, s{S_T1}")
    def skip_of(ii):
        if not cfg.skipdup: return None
        if ii == n - 1 or (cfg.loop and NA <= ii < n and (ii - NA) % 4 == (n - 1 - NA) % 4):
            return f"s_cmp_eq_u32 s{S_CNT}, s{S_DUP}" if cfg.loop else f"s_cmp_eq_u32 s{S_DUP}, 0"
        if n <= ii < last_row: return f"s_cmp_eq_u32 s{S_DUP}, 0"
        return None
    def last_step(ii):
        if cfg.skipdup:
            e.A(f"s_cmp_eq_u32 s{S_DUP}, 0"); e.A("s_cbranch_scc1 L_done")
        step(e, ii, chains_for(ii), last_row, prev_tags=(lambda f, ii=ii: f"b{ii}_{f}"))
        if cfg.skipdup: e.raw("L_done:")
    if not cfg.loop:
        while i <= last_row:
            if i == last_row: last_step(i)
            else: step(e, i, chains_for(i), last_row, prev_tags=(lambda f, i=i: f"b{i}_{f}"), skip=skip_of(i))
            i += 1
            if i <= last_row: e.lstamp(f"step{i}")
    else:
        steady = list(range(NA, n)); nst = len(steady)
        start = len(e.L); seg = []
        for ii in steady:
            s0 = len(e.L)
            step(e, ii, chains_for(ii), last_row, prev_tags=(lambda f, ii=ii: f"b{ii}_{f}"), skip=skip_of(ii))
            seg.append(e.L[s0:])
        e.L = e.L[:start]
        for k in range(4, nst):
            a, b = seg[k % 4], seg[k]
            assert len(a) == len(b), f"non periodic step {steady[k]}"
            for j in range(len(a)):
                if a[j] != b[j]:
                    ma = re.fullmatch(r"  s_waitcnt vmcnt\((\d+)\)", a[j]); mb = re.fullmatch(r"  s_waitcnt vmcnt\((\d+)\)", b[j])
                    assert ma and mb, (a[j], b[j])
                    a[j] = f"  s_waitcnt vmcnt({min(int(ma.group(1)), int(mb.group(1)))})"
        full, rem = divmod(nst, 4)
        assert rem != 0 and full == 1
        e.A(f"s_mov_b32 s{S_CNT}, {full}")
        e.raw(".p2align 3")
        e.raw("L_loop:")
        for k in range(4):
            if k == rem:
                e.A(f"s_cmp_eq_u32 s{S_CNT}, 0")
                e.A("s_cbranch_scc1 L_down")
                e.A(f"s_sub_u32 s{S_CNT}, s{S_CNT}, 1")
            e.L.extend(seg[k])
        e.A("s_branch L_loop")
        e.raw("L_down:")
        if cfg.wbl2:
            e.A(f"s_lshr_b32 s{S_T6}, s2, 3"); e.A(f"s_add_u32 s{S_T6}, s{S_T6}, s{S_WAVE}")
            e.A(f"s_cmp_lg_u32 s{S_T6}, 0"); e.A("s_cbranch_scc1 L_nowb")
            e.A(f"buffer_wbl2 {cfg.wbl2}")
            e.raw("L_nowb:")
        e.lstamp("loopend")
        i = n
        while i <= last_row:
            if i == last_row: last_step(i)
            else: step(e, i, chains_for(i), last_row, prev_tags=(lambda f, i=i: f"b{i}_{f}"), skip=skip_of(i))
            i += 1
    if cfg.spin:
        e.lstamp("mfmaend"); e.A("s_waitcnt vmcnt(0) lgkmcnt(0)")
        ia, ib, K = e.lnames.index(cfg.spin[0]), e.lnames.index(cfg.spin[1]), cfg.spin[2]
        e.A(f"s_sub_u32 s50, s{64+2*ib}, s{64+2*ia}")
        e.A(f"s_mul_i32 s50, s50, {K}")
        e.A("s_memtime s[52:53]"); e.A("s_waitcnt lgkmcnt(0)")
        e.raw("L_spin:")
        e.A("s_memtime s[54:55]"); e.A("s_waitcnt lgkmcnt(0)")
        e.A("s_sub_u32 s51, s54, s52"); e.A("s_cmp_lt_u32 s51, s50"); e.A("s_cbranch_scc1 L_spin")
    elif cfg.lst:
        e.lstamp("mfmaend"); e.A("s_waitcnt vmcnt(0)"); e.lstamp("drain")
        e.A("s_memrealtime s[62:63]")
        e.A("s_waitcnt lgkmcnt(0)")
        e.A(f"s_load_dwordx2 s[{S_WS}:{S_WS+1}], s[0:1], 32")
        e.A(f"v_mov_b32 v{V_ST}, 0")
        for k in range(e.nl): e.A(f"v_writelane_b32 v{V_ST}, s{64+2*k}, {k}")
        e.A(f"v_writelane_b32 v{V_ST}, s60, 62"); e.A(f"v_writelane_b32 v{V_ST}, s62, 63")
        e.A("s_waitcnt lgkmcnt(0)")
        e.A(f"s_lshl_b32 s{S_T0}, s2, 2")
        e.A(f"s_add_u32 s{S_T0}, s{S_T0}, s{S_WAVE}")
        e.A(f"s_lshl_b32 s{S_T0}, s{S_T0}, 8")
        e.A(f"s_add_u32 s{S_WS}, s{S_WS}, s{S_T0}")
        e.A(f"s_addc_u32 s{S_WS+1}, s{S_WS+1}, 0")
        e.A("v_lshlrev_b32 v1, 2, v0")
        e.A(f"global_store_dword v1, v{V_ST}, s[{S_WS}:{S_WS+1}]")
        print("lstamps:", e.nl, e.lnames)
    if cfg.xspin is not None:
        e.A("s_waitcnt vmcnt(0) lgkmcnt(0)")
        mask = sum(1 << k for k in cfg.xspin)
        e.A("s_and_b32 s52, s2, 7"); e.A(f"s_lshr_b32 s52, {mask}, s52"); e.A("s_and_b32 s52, s52, 1")
        e.A("s_cmp_eq_u32 s52, 0"); e.A("s_cbranch_scc1 L_nospin")
        e.A("s_memrealtime s[54:55]"); e.A("s_waitcnt lgkmcnt(0)")
        e.raw("L_xs:")
        e.A("s_memrealtime s[56:57]"); e.A("s_waitcnt lgkmcnt(0)")
        e.A("s_sub_u32 s53, s56, s54"); e.A("s_cmp_lt_u32 s53, 1000"); e.A("s_cbranch_scc1 L_xs")
        e.raw("L_nospin:")
    if cfg.endwait: e.A("s_waitcnt vmcnt(0)")
    e.raw("L_end:")
    e.A("s_endpgm")
    e.raw("L_code_end:")
    e.raw('.section .rodata,"a"')
    e.raw(".p2align 6")
    e.raw(".amdhsa_kernel standalone__fft_conv__vision_kernel")
    for l in ("next_free_vgpr 512", "next_free_sgpr " + ("100" if (cfg.lst or cfg.spin) else "64"), "accum_offset 256", "group_segment_fixed_size 0", "kernarg_size 40",
              "user_sgpr_count 2", "user_sgpr_kernarg_segment_ptr 1", "system_sgpr_workgroup_id_x 1"):
        e.raw("  .amdhsa_" + l)
    e.raw(".end_amdhsa_kernel")
    out = []
    for l in e.L:
        if " lds" in l and "buffer_load" in l and out and re.search(r"\bm0,", out[-1]): out.append("  s_nop 0")
        out.append(l)
    e.L = out
    import subprocess, tempfile, os
    size = 0x7fff
    for _ in range(2):
        txt = "\n".join(l.replace("CODE_BYTES", str(size)) for l in e.L) + "\n"
        with tempfile.TemporaryDirectory() as td:
            open(td + "/k.s", "w").write(txt)
            subprocess.run(["clang", "-x", "assembler", "-target", "amdgcn-amd-amdhsa", "-mcpu=gfx950", "-c", td + "/k.s", "-o", td + "/k.o"], check=True)
            dis = subprocess.run(["llvm-objdump", "-d", "--mcpu=gfx950", td + "/k.o"], capture_output=True, text=True).stdout
        sym = {}
        for l in dis.splitlines():
            m_ = re.match(r"([0-9a-f]{16}) <(.*)>:", l)
            if m_: sym[m_.group(2)] = int(m_.group(1), 16)
        size = sym["L_end"] + 4 - sym["standalone__fft_conv__vision_kernel"]
        assert size - 4 > sym["L_pc"] - sym["standalone__fft_conv__vision_kernel"] if "L_pc" in sym else True
    e.code_size = size
    e.L = [l.replace("CODE_BYTES", str(size)) for l in e.L]
    open(cfg.name, "w").write("\n".join(e.L) + "\n")
    return e

if __name__ == "__main__":
    ap = argparse.ArgumentParser()
    ap.add_argument("-o", default=Cfg.name)
    ap.add_argument("--lst", action="store_true")
    ap.add_argument("--noloop", action="store_true")
    ap.add_argument("--store", default="")
    ap.add_argument("--look", type=int, default=12)
    ap.add_argument("--early", type=int, default=8)
    ap.add_argument("--wearly", type=int, default=26)
    ap.add_argument("--nocodepf", action="store_true")
    ap.add_argument("--xspin", default="")
    ap.add_argument("--kwait0", action="store_true")
    ap.add_argument("--warm", type=int, default=0)
    ap.add_argument("--rtstamp", action="store_true")
    ap.add_argument("--outpf", action="store_true")
    ap.add_argument("--wbl2", default="")
    ap.add_argument("--burst", type=int, default=0)
    ap.add_argument("--no_merge", action="store_true")
    ap.add_argument("--no_omajor", action="store_true")
    ap.add_argument("--no_skipdup", action="store_true")
    ap.add_argument("--dpre", type=int, default=14)
    ap.add_argument("--early_calc", action="store_true")
    ap.add_argument("--endwait", action="store_true")
    ap.add_argument("--spin", default="")
    ap.add_argument("--codepf2", action="store_true")
    ap.add_argument("--codepf3", action="store_true")
    ap.add_argument("--codepf_all", action="store_true")
    ap.add_argument("--stepst", action="store_true")
    ap.add_argument("--dma_pos", type=int, default=18)
    ap.add_argument("--out_pos", type=int, default=0)
    ap.add_argument("--diag", action="store_true")
    ap.add_argument("--groups", default=Cfg.groups)
    ap.add_argument("--nprol", type=int, default=4)
    ap.add_argument("--direct", default="4,5")
    ap.add_argument("--pf_rows", default="6,2")
    ap.add_argument("--stream", default="4,5,6,7")
    ap.add_argument("--deferred", default="3,8,2,9,1,10,0,11")
    ap.add_argument("--def_plan", default=Cfg.def_plan)
    ap.add_argument("--pfw_split", type=int, default=15)
    ap.add_argument("--pfwb_after", type=int, default=3)
    a = ap.parse_args()
    cfg = Cfg()
    cfg.name = a.o; cfg.lst = a.lst; cfg.loop = not a.noloop; cfg.store_flags = a.store
    cfg.direct = [int(x) for x in a.direct.split(",")]; cfg.pf_rows = tuple(int(x) for x in a.pf_rows.split(","))
    cfg.stream = [int(x) for x in a.stream.split(",")]; cfg.deferred = [int(x) for x in a.deferred.split(",")]; cfg.def_plan = a.def_plan
    cfg.groups = a.groups; cfg.nprol = a.nprol; cfg.pfw_split = a.pfw_split; cfg.pfwb_after = a.pfwb_after; cfg.diag = a.diag; cfg.dma_pos = a.dma_pos; cfg.out_pos = a.out_pos; cfg.stepst = a.stepst; cfg.codepf2 = a.codepf2; cfg.codepf_all = a.codepf_all; cfg.codepf3 = a.codepf3; cfg.spin = (lambda p: (p[0], p[1], int(p[2])) )(a.spin.split("/")) if a.spin else None
    if cfg.spin: cfg.lst = True
    cfg.endwait = a.endwait; cfg.late_calc = not a.early_calc; cfg.dpre = a.dpre; cfg.omajor = not a.no_omajor; cfg.skipdup = not a.no_skipdup; cfg.merge = not a.no_merge; cfg.burst = a.burst; cfg.wbl2 = a.wbl2; cfg.outpf = a.outpf; cfg.rtstamp = a.rtstamp; cfg.warm = a.warm; cfg.kwait0 = a.kwait0; cfg.xspin = [int(x) for x in a.xspin.split(',')] if a.xspin else None; cfg.look = a.look; cfg.early = a.early; cfg.wearly = a.wearly; cfg.codepf = not a.nocodepf
    e = build(cfg)
    print("lines", len(e.L), "LDS", LDS_BYTES, "code", e.code_size)
```

```python
import sys, argparse, re

class Cfg:
    nrows = 19
    RA = 8
    store_flags = ""
    lst = False
    loop = True
    look = 12
    early = 8
    wearly = 26
    codepf = True
    last_flags = None
    xspin = None
    kwait0 = False
    warm = 0
    rtstamp = False
    outpf = False
    wbl2 = ''
    burst = 0
    merge = True
    omajor = True
    skipdup = True
    dpre = 14
    late_calc = True
    endwait = False
    spin = None
    codepf2 = False
    codepf3 = False
    codepf_all = False
    stepst = False
    dma_pos = 18
    out_pos = 0
    diag = False
    groups = "x4,x5,w0|x6,x7|w1|w2"
    direct = [4, 5]
    pf_rows = (6, 2)
    stream = [4, 5, 6, 7]
    deferred = [3, 8, 2, 9, 1, 10, 0, 11]
    nprol = 4
    pfw_split = 15
    pfwb_after = 3
    def_plan = "11:3,8|12:2,9|14:1,10"
    align12 = True
    name = "standalone__fft_conv__vision.s"

H = W = 224
ROWB = W * 192
XBYTES = H * ROWB
WBYTES = 460800
SLOTB = 7168
NA = 12
XR = NA * SLOTB
X2 = 10 * SLOTB
WS = XR + 4 * SLOTB
WSLOT = 10240
NWS = 4
DUMMY = WS + NWS * WSLOT
LDS_BYTES = DUMMY + 1024

S_X, S_Wt, S_O = 8, 12, 16
S_WS = 20
S_WAVE = 22
S_X0, S_X1, S_XM = 23, 24, 25
S_XBASE, S_XROW, S_OROW, S_CNT = 26, 27, 28, 29
S_T0, S_T1, S_T2, S_T3 = 30, 31, 32, 33
S_WM, S_G, S_W0, S_WM2, S_WMM = 34, 35, 36, 37, 38
S_T4, S_T5 = 39, 40
S_PC = 44
S_CPO = 48
S_DUP = 49
S_OB = 50
S_T6 = 51
S_LAST = 41
V_XAA = 2; V_XAR = 7
V_XD0, V_XD1 = 12, 13
V_WD, V_TR, V_OUT, V_PF = 14, 15, 16, 17
V_T = 18
V_O = 24
V_ST = 28
V_ACC = 32
V_B = 48
V_ACCA = 168
V_PFX = 200
V_PFD = 202
V_PF2 = 206
V_CPF = 207
V_WT = 212

def wreg(kh, f, lo=None):
    i = kh * 15 + f
    if i < 64: base, t = 4 * i, "a"
    else: base, t = V_WT + 4 * (i - 64), "v"
    if lo is None: return f"{t}[{base}:{base+3}]"
    return f"{t}[{base+lo}:{base+lo+1}]"
def breg(row, f):
    b = V_B + (row % 2) * 60 + 4 * f
    return f"v[{b}:{b+3}]"
RA_ACC = [0]
def acc(o): return V_ACCA + 4 * o if o < RA_ACC[0] else V_ACC + 4 * (o % 4)
def xlds(row): return row * SLOTB if row < NA else XR + ((row - NA) % 4) * SLOTB
def xslot(row):
    a = xlds(row)
    return ("A", a) if a < X2 else ("R", a - X2)

class Em:
    def __init__(self, cfg):
        self.cfg = cfg; self.L = []
        self.vm = []; self.vm_done = 0
        self.lg = []; self.lg_done = 0; self.lg_pos = []
        self.pos = 0
        self.nl = 0; self.lnames = []
    def A(self, s): self.L.append("  " + s)
    def raw(self, s): self.L.append(s)
    def mfma(self, s): self.A(s); self.pos += 1
    def vmem(self, s, tag): self.A(s); self.vm.append(tag)
    def lds(self, s, tag): self.A(s); self.lg.append(tag); self.lg_pos.append(self.pos)
    def vm_need(self, tags):
        idx = -1
        for tag in tags:
            assert tag in self.vm, (tag, self.vm)
            idx = max(idx, max(i for i, t in enumerate(self.vm) if t == tag))
        return idx
    def wait_vm(self, *tags, force=False):
        idx = self.vm_need(tags)
        if idx < self.vm_done and not force: return False
        n = min(len(self.vm) - 1 - idx, 63)
        self.A(f"s_waitcnt vmcnt({n})"); self.vm_done = max(self.vm_done, len(self.vm) - n)
        return True
    def wait_lg(self, *tags, age=None):
        idx = -1
        for tag in tags:
            assert tag in self.lg, tag
            idx = max(idx, max(i for i, t in enumerate(self.lg) if t == tag))
        if idx < self.lg_done: return False
        if age is not None:
            for i in range(idx + 1, len(self.lg)):
                if self.pos - self.lg_pos[i] >= age: idx = i
        n = min(len(self.lg) - 1 - idx, 15)
        self.A(f"s_waitcnt lgkmcnt({n})"); self.lg_done = len(self.lg) - n
        return True
    def lstamp(self, name=""):
        if not self.cfg.lst: return
        if self.cfg.stepst and not (name.startswith("step") or name in ("start", "M0:x4,w0", "M5:w4", "M10:w9", "streamend", "defend", "rampend", "mfmaend", "drain")): return
        if self.cfg.stepst and name in ("step14", "step16", "step18", "step21", "step22"): return
        k = self.nl
        if k >= 18: return
        self.A(f"{'s_memrealtime' if self.cfg.rtstamp else 's_memtime'} s[{64+2*k}:{65+2*k}]")
        self.lnames.append(name); self.nl = k + 1

def x_ops(e, row, seq=False):
    base = xlds(row); ops = []
    I = lambda s: (lambda: e.A(s))
    if not seq:
        ops += [I(f"s_add_u32 s{S_T0}, s{S_XBASE}, {row*ROWB}"), I(f"s_sub_u32 s{S_T1}, s{S_T0}, {XBYTES}"),
                I(f"s_min_u32 s{S_XROW}, s{S_T0}, s{S_T1}")]
    ops += [I(f"s_add_u32 m0, s{S_X0}, {base}"),
            lambda: e.vmem(f"buffer_load_dwordx4 v{V_XD0}, s[{S_X}:{S_X+3}], s{S_XROW} offen lds", f"x{row}")]
    if base: ops += [I(f"s_and_b32 s{S_T2}, s{S_XM}, {base}"), I(f"s_add_u32 m0, s{S_X1}, s{S_T2}")]
    else: ops += [I(f"s_mov_b32 m0, s{S_X1}")]
    ops += [lambda: e.vmem(f"buffer_load_dwordx4 v{V_XD1}, s[{S_X}:{S_X+3}], s{S_XROW} offen lds", f"x{row}")]
    if seq:
        ops += [I(f"s_add_u32 s{S_XROW}, s{S_XROW}, {ROWB}"), I(f"s_sub_u32 s{S_T1}, s{S_XROW}, {XBYTES}"),
                I(f"s_min_u32 s{S_XROW}, s{S_XROW}, s{S_T1}")]
    return ops
def w_ops(e, s):
    ops = []
    I = lambda t: (lambda: e.A(t))
    for m in range(3):
        off = (s % NWS) * WSLOT
        ops.append(I(f"s_mov_b32 s{S_T3}, {(32*s + 960*m)*192}"))
        if m < 2: ops.append(I(f"s_add_u32 m0, s{S_WM}, {off + 4*m*1024}"))
        elif off: ops += [I(f"s_and_b32 s{S_T4}, s{S_WMM}, {off}"), I(f"s_add_u32 m0, s{S_WM2}, s{S_T4}")]
        else: ops.append(I(f"s_mov_b32 m0, s{S_WM2}"))
        ops.append(lambda m=m: e.vmem(f"buffer_load_dwordx4 v{V_WD}, s[{S_Wt}:{S_Wt+3}], s{S_T3} offen lds", f"w{s}"))
    return ops
def emit_now(e, ops):
    for op in ops:
        n0 = len(e.L)
        prev = e.L[-1]
        tmp = len(e.L); op()
        if " lds" in e.L[-1] and re.search(r"\bm0,", e.L[tmp-1]):
            e.L.insert(tmp, "  s_nop 0")

def prologue(e):
    c = e.cfg; A = e.A
    t0, t1, t2, t3 = V_T, V_T+1, V_T+2, V_T+3
    A("s_load_dwordx4 s[4:7], s[0:1], 0")
    A(f"s_load_dwordx2 s[{S_O}:{S_O+1}], s[0:1], 16")
    A("s_cmp_ge_u32 s2, 252")
    A("s_cbranch_scc1 L_end")
    e.lstamp("start")
    if c.lst: A("s_memrealtime s[60:61]")
    if c.kwait0:
        A("s_waitcnt lgkmcnt(0)"); e.lstamp("k0")
    A("v_lshrrev_b32 v1, 6, v0")
    A("v_and_b32 v0, 63, v0")
    A(f"v_readfirstlane_b32 s{S_WAVE}, v1")
    A(f"s_lshr_b32 s{S_T0}, s2, 3")
    A(f"s_and_b32 s{S_T1}, s2, 7")
    A(f"s_mul_i32 s{S_T2}, s{S_T0}, 86")
    A(f"s_lshl_b32 s{S_T4}, s{S_T0}, 2")
    A(f"s_lshr_b32 s{S_T2}, s{S_T2}, 8")
    A(f"s_mul_i32 s{S_T1}, s{S_T1}, 10")
    A(f"s_mul_i32 s{S_T3}, s{S_T2}, 3")
    A(f"s_add_u32 s{S_T1}, s{S_T1}, s{S_T2}")
    A(f"s_sub_u32 s{S_G}, s{S_T0}, s{S_T3}")
    A("s_cmp_lt_u32 s2, 240")
    A("s_cbranch_scc1 L_map_done")
    A(f"s_sub_u32 s{S_T0}, s2, 240")
    A(f"s_mul_i32 s{S_T2}, s{S_T0}, 86")
    A(f"s_lshr_b32 s{S_T2}, s{S_T2}, 8")
    A(f"s_mul_i32 s{S_T3}, s{S_T2}, 3")
    A(f"s_sub_u32 s{S_G}, s{S_T0}, s{S_T3}")
    A(f"s_add_u32 s{S_T1}, s{S_T2}, 80")
    e.raw("L_map_done:")
    A(f"s_add_u32 s{S_T4}, s{S_T4}, s{S_WAVE}")
    A(f"s_mul_i32 s{S_T2}, s{S_T1}, 9363")
    A(f"s_lshl_b32 s{S_T5}, s{S_WAVE}, 6")
    A(f"s_lshr_b32 s{S_T2}, s{S_T2}, 16")
    A(f"v_add_u32 v{t0}, s{S_T5}, v0")
    A(f"s_mul_i32 s{S_T3}, s{S_T2}, 7")
    A(f"s_sub_u32 s{S_T3}, s{S_T1}, s{S_T3}")
    A(f"s_mul_i32 s{S_T0}, s{S_T3}, 86")
    A(f"s_lshl_b32 s{S_W0}, s{S_T3}, 5")
    A(f"s_lshr_b32 s{S_T0}, s{S_T0}, 8")
    A(f"s_mul_i32 s{S_T0}, s{S_T0}, 3")
    A(f"s_sub_u32 s{S_T0}, s{S_T3}, s{S_T0}")
    A(f"s_add_u32 s{S_T1}, s{S_T2}, s{S_T0}")
    A(f"s_add_u32 s{S_T3}, s{S_T1}, 2")
    A(f"s_mul_i32 s{S_T3}, s{S_T3}, 86")
    A(f"s_lshr_b32 s{S_T3}, s{S_T3}, 8")
    A(f"s_cmp_ge_u32 s{S_T0}, 1")
    A(f"s_cselect_b32 s{S_T0}, 1, 0")
    A(f"s_sub_u32 s{S_T3}, s{S_T3}, s{S_T0}")
    A(f"s_mul_i32 s{S_T0}, s{S_T2}, 19")
    A(f"s_sub_u32 s{S_T0}, s{S_T0}, s{S_T3}")
    A(f"s_mul_i32 s{S_OROW}, s{S_T0}, {ROWB}")
    A(f"s_add_u32 s{S_XBASE}, s{S_OROW}, {(H-4)*ROWB}")
    if c.merge:
        A(f"s_mov_b32 s{S_OB}, s{S_OROW}")
        A(f"s_add_u32 s{S_OROW}, s{S_OROW}, {4*ROWB}")
    A(f"s_mul_i32 s{S_LAST}, s{S_T1}, 86")
    A(f"s_lshr_b32 s{S_LAST}, s{S_LAST}, 8")
    A(f"s_mul_i32 s{S_LAST}, s{S_LAST}, 3")
    A(f"s_cmp_eq_u32 s{S_LAST}, s{S_T1}")
    A(f"s_cselect_b32 s{S_DUP}, 0, -1")
    A(f"s_cselect_b32 s{S_LAST}, 0x40000000, 0")
    A(f"s_add_u32 s{S_T0}, s{S_W0}, {W-4}")
    for pi in range(2):
        dst = V_XD0 if pi == 0 else V_XD1
        if pi: A(f"v_add_u32 v{t0}, 256, v{t0}")
        A(f"v_mul_u32_u24 v{t1}, 5462, v{t0}")
        A(f"v_lshrrev_b32 v{t1}, 16, v{t1}")
        A(f"v_mul_u32_u24 v{t2}, 12, v{t1}")
        A(f"v_lshrrev_b32 v{t3}, 1, v{t1}")
        A(f"v_sub_u32 v{t2}, v{t0}, v{t2}")
        A(f"v_and_b32 v{t3}, 2, v{t3}")
        A(f"v_add_u32 v{t1}, s{S_T0}, v{t1}")
        A(f"v_xor_b32 v{t2}, v{t2}, v{t3}")
        A(f"v_subrev_u32 v{t3}, {W}, v{t1}")
        A(f"v_min_u32 v{t1}, v{t1}, v{t3}")
        if pi: A(f"v_cmp_gt_u32 vcc, 432, v{t0}")
        A(f"v_mul_u32_u24 v{t1}, 192, v{t1}")
        A(f"v_lshl_add_u32 v{dst}, v{t2}, 4, v{t1}")
        if pi:
            A(f"v_mov_b32 v{t1}, 0x40000000")
            A(f"v_cndmask_b32 v{dst}, v{t1}, v{dst}, vcc")
    A(f"s_lshl_b32 s{S_X0}, s{S_WAVE}, 10")
    A(f"s_add_u32 s{S_X1}, s{S_X0}, 4096")
    A(f"s_cmp_eq_u32 s{S_WAVE}, 3")
    A(f"s_cselect_b32 s{S_X1}, {DUMMY}, s{S_X1}")
    A(f"s_cselect_b32 s{S_XM}, 0, -1")
    A(f"s_mov_b32 s{S_X+2}, {XBYTES}"); A(f"s_mov_b32 s{S_X+3}, 0x20000")
    A(f"s_mov_b32 s{S_Wt+2}, {WBYTES}"); A(f"s_mov_b32 s{S_Wt+3}, 0x20000")
    items = [it for g in c.groups.split("|") for it in g.split(",")]
    assert items[:len(c.direct)] == [f"x{r}" for r in c.direct]
    r0, nr = c.pf_rows
    A(f"v_mov_b32 v{V_T+5}, 0x40000000")
    if nr:
        nl = -(-nr * 18 // 4)
        A(f"s_mul_i32 s{S_T0}, s{S_WAVE}, {nl}")
        A(f"v_add_u32 v{t0}, s{S_T0}, v0")
        A(f"v_mul_u32_u24 v{t1}, 3641, v{t0}")
        A(f"s_mul_i32 s{S_T0}, s{S_G}, 18")
        A(f"v_lshrrev_b32 v{t1}, 16, v{t1}")
        A(f"v_mul_u32_u24 v{t2}, 18, v{t1}")
        A(f"v_sub_u32 v{t2}, v{t0}, v{t2}")
        A(f"v_add_u32 v{t2}, s{S_T0}, v{t2}")
        A(f"s_add_u32 s{S_T0}, s{S_W0}, {W-4}")
        A(f"v_lshlrev_b32 v{t2}, 7, v{t2}")
        A(f"s_mul_i32 s{S_T0}, s{S_T0}, 192")
        A(f"s_mov_b32 s{S_T1}, {ROWB}")
        A(f"v_add_u32 v{t2}, s{S_T0}, v{t2}")
        A(f"v_subrev_u32 v{t3}, {ROWB}, v{t2}")
        A(f"v_min_u32 v{t2}, v{t2}, v{t3}")
        A(f"v_add_u32 v{t3}, {r0}, v{t1}")
        A(f"v_mul_lo_u32 v{t3}, v{t3}, s{S_T1}")
        A(f"s_mov_b32 s{S_T2}, {XBYTES}")
        A(f"v_cmp_gt_u32 vcc, {nr*18}, v{t0}")
        A(f"v_add_u32 v{t3}, s{S_XBASE}, v{t3}")
        A(f"v_subrev_u32 v{t1}, s{S_T2}, v{t3}")
        A(f"v_min_u32 v{t3}, v{t3}, v{t1}")
        A(f"v_add_u32 v{t3}, v{t3}, v{t2}")
        A(f"v_cndmask_b32 v{t3}, v{V_T+5}, v{t3}, vcc")
        A(f"v_cmp_gt_u32 vcc, {nl}, v0")
        A("s_nop 1")
        A(f"v_cndmask_b32 v{V_PFX}, v{V_T+5}, v{t3}, vcc")
    def wpf(dst, s0, s1):
        per = (s1 - s0) * 48; tot = 5 * per
        nl = -(-tot // 128)
        if s0 == 0 and s1 == 15:
            A(f"s_mul_i32 s{S_T0}, s{S_T4}, {nl}")
            A(f"v_cmp_gt_u32 vcc, {nl}, v0")
            A(f"v_add_u32 v{t0}, s{S_T0}, v0")
            A(f"v_lshlrev_b32 v{t0}, 7, v{t0}")
            A(f"v_cndmask_b32 v{dst}, v{V_T+5}, v{t0}, vcc")
            return
        A(f"s_mul_i32 s{S_T0}, s{S_T4}, {nl}")
        A(f"v_add_u32 v{t0}, s{S_T0}, v0")
        sh = next(b for b in range(12, 23) if all((n_ * (-(-(1 << b) // per))) >> b == n_ // per for n_ in range(128 * nl + 64)))
        mg = -(-(1 << sh) // per)
        A(f"s_mov_b32 s{S_T1}, {mg}")
        A(f"v_mul_lo_u32 v{t1}, v{t0}, s{S_T1}")
        A(f"v_lshrrev_b32 v{t1}, {sh}, v{t1}")
        A(f"v_mul_u32_u24 v{t2}, {per}, v{t1}")
        A(f"v_sub_u32 v{t2}, v{t0}, v{t2}")
        A(f"v_lshlrev_b32 v{t2}, 7, v{t2}")
        A(f"v_mul_u32_u24 v{t1}, {92160}, v{t1}")
        A(f"v_cmp_gt_u32 vcc, {nl}, v0")
        A(f"v_add_u32 v{t2}, v{t2}, v{t1}")
        if s0: A(f"v_add_u32 v{t2}, {s0*6144}, v{t2}")
        else: A("s_nop 0")
        A(f"v_cndmask_b32 v{dst}, v{V_T+5}, v{t2}, vcc")
    wpf(V_PF, 0, c.pfw_split)
    if c.codepf:
        A(f"s_getpc_b64 s[{S_PC}:{S_PC+1}]")
        e.raw("L_pc:")
        A(f"s_sub_u32 s{S_PC}, s{S_PC}, L_pc-standalone__fft_conv__vision_kernel")
        A(f"s_subb_u32 s{S_PC+1}, s{S_PC+1}, 0")
        A(f"s_and_b32 s{S_PC+1}, s{S_PC+1}, 0xffff")
        A(f"s_mov_b32 s{S_PC+2}, CODE_BYTES")
        A(f"s_mov_b32 s{S_PC+3}, 0x20000")
        if c.codepf_all:
            A(f"v_lshlrev_b32 v{V_CPF}, 7, v0")
            A(f"s_lshl_b32 s{S_CPO}, s{S_WAVE}, 13")
        else:
            A(f"v_cmp_gt_u32 vcc, 2, v0")
            A(f"v_lshlrev_b32 v{t0}, 7, v0")
            A(f"s_lshl_b32 s{S_CPO}, s{S_T4}, 8")
            A(f"v_cndmask_b32 v{V_CPF}, v{V_T+5}, v{t0}, vcc")
    A(f"s_add_u32 s{S_WM}, s{S_X0}, {WS}")
    A(f"s_add_u32 s{S_WM2}, s{S_WM}, 8192")
    A(f"s_cmp_ge_u32 s{S_WAVE}, 2")
    A(f"s_cselect_b32 s{S_WM2}, {DUMMY}, s{S_WM2}")
    A(f"s_cselect_b32 s{S_WMM}, 0, -1")
    A(f"v_lshrrev_b32 v{t0}, 4, v0")
    A(f"v_bfe_u32 v{t1}, v0, 2, 2")
    A(f"v_lshl_add_u32 v{t1}, v{t0}, 3, v{t1}")
    A(f"v_and_b32 v{t0}, 1, v{t0}")
    A(f"v_mul_u32_u24 v{t1}, 192, v{t1}")
    A(f"v_lshlrev_b32 v{t0}, 1, v{t0}")
    A(f"v_and_b32 v{t2}, 3, v0")
    A(f"s_lshr_b32 s{S_T0}, s{S_WAVE}, 1")
    A(f"v_xor_b32 v{t2}, v{t2}, v{t0}")
    A(f"s_mul_i32 s{S_T0}, s{S_T0}, {480*192}")
    A(f"v_lshl_add_u32 v{t1}, v{t2}, 4, v{t1}")
    A(f"s_and_b32 s{S_T1}, s{S_WAVE}, 1")
    A(f"s_mul_i32 s{S_T1}, s{S_T1}, {4*192}")
    A(f"s_add_u32 s{S_T0}, s{S_T0}, s{S_T1}")
    A(f"s_lshl_b32 s{S_T1}, s{S_G}, 6")
    A(f"s_add_u32 s{S_T0}, s{S_T0}, s{S_T1}")
    A(f"v_add_u32 v{V_WD}, s{S_T0}, v{t1}")
    late = c.late_calc
    def tail_calc():
        if c.pfw_split < 15: wpf(V_PF2, c.pfw_split, 15)
        A(f"s_mov_b32 s{S_O+2}, {XBYTES}")
        A(f"s_mov_b32 s{S_O+3}, 0x20000")
        A(f"v_and_b32 v{V_T}, 15, v0")
        A(f"v_lshrrev_b32 v{V_T+1}, 4, v0")
        A(f"s_lshr_b32 s{S_T0}, s{S_WAVE}, 1")
        A(f"s_lshl_b32 s{S_T0}, s{S_T0}, 4")
        A(f"v_add_u32 v{V_T+4}, s{S_T0}, v{V_T}")
        for kw in range(5):
            A(f"v_add_u32 v{V_T+2}, {4-kw}, v{V_T+4}")
            A(f"v_lshrrev_b32 v{V_T+3}, 1, v{V_T+2}")
            A(f"v_and_b32 v{V_T+3}, 2, v{V_T+3}")
            A(f"v_xor_b32 v{V_T+3}, v{V_T+3}, v{V_T+1}")
            A(f"v_mul_u32_u24 v{V_T+2}, 192, v{V_T+2}")
            A(f"v_lshl_add_u32 v{V_XAA+kw}, v{V_T+3}, 4, v{V_T+2}")
            A(f"v_add_u32 v{V_XAR+kw}, {X2}, v{V_XAA+kw}")
        A(f"s_and_b32 s{S_T1}, s{S_WAVE}, 1")
        A(f"v_and_b32 v{V_T+2}, 1, v{V_T+1}")
        A(f"v_xor_b32 v{V_T+2}, s{S_T1}, v{V_T+2}")
        A(f"v_lshlrev_b32 v{V_T+2}, 5, v{V_T+2}")
        A(f"v_lshrrev_b32 v{V_T+3}, 2, v0")
        A(f"v_lshl_add_u32 v{V_T+2}, v{V_T+3}, 6, v{V_T+2}")
        A(f"v_and_b32 v{V_T+3}, 3, v0")
        A(f"v_lshl_add_u32 v{V_T+2}, v{V_T+3}, 3, v{V_T+2}")
        A(f"v_add_u32 v{V_TR}, {WS}, v{V_T+2}")
        A(f"v_add_u32 v{V_T+2}, s{S_W0}, v{V_T+4}")
        A(f"v_mul_u32_u24 v{V_T+2}, 192, v{V_T+2}")
        A(f"v_lshl_add_u32 v{V_T+2}, v{V_T+1}, 3, v{V_T+2}")
        A(f"s_lshl_b32 s{S_T0}, s{S_G}, 1")
        A(f"s_add_u32 s{S_T0}, s{S_T0}, s{S_T1}")
        A(f"s_lshl_b32 s{S_T0}, s{S_T0}, 5")
        A(f"v_add_u32 v{V_OUT}, s{S_T0}, v{V_T+2}")
    if not late: tail_calc()
    A("s_waitcnt lgkmcnt(0)")
    A(f"s_mov_b32 s{S_X}, s4"); A(f"s_mov_b32 s{S_X+1}, s5")
    A(f"s_mov_b32 s{S_Wt}, s6"); A(f"s_mov_b32 s{S_Wt+1}, s7")
    e.lstamp("karg")
    for r in c.direct: emit_now(e, x_ops(e, r))
    if c.pf_rows[1]: e.vmem(f"buffer_load_dword v{V_PFD}, v{V_PFX}, s[{S_X}:{S_X+3}], 0 offen", "pf")
    e.vmem(f"buffer_load_dword v{V_PFD+1}, v{V_PF}, s[{S_Wt}:{S_Wt+3}], 0 offen", "pf")
    if c.codepf: e.vmem(f"buffer_load_dword v{V_PFD+3}, v{V_CPF}, s[{S_PC}:{S_PC+3}], s{S_CPO} offen", "pf")
    if c.outpf:
        A(f"s_mov_b32 s{S_O+2}, {XBYTES}"); A(f"s_mov_b32 s{S_O+3}, 0x20000")
        A(f"v_cmp_gt_u32 vcc, 2, v0")
        A(f"v_mul_u32_u24 v{t0}, {14*ROWB}, v0")
        A("s_nop 0")
        A(f"v_cndmask_b32 v{t0}, v{V_T+5}, v{t0}, vcc")
        e.vmem(f"buffer_load_dword v{V_PFD+2}, v{t0}, s[{S_O}:{S_O+3}], s{S_OB} offen", "pf")
    e.lstamp("pf")
    if c.warm:
        A(f"v_mul_u32_u24 v48, 0x9e37, v0")
        A(f"v_add_u32 v48, 0x3c6ef372, v48")
        for r in range(49, 80):
            A(f"v_mul_u32_u24 v{r}, 0x5bd1, v{r-1}")
            A(f"v_xor_b32 v{r}, v{r}, v{r-1}")
        for r in range(48, 80):
            A(f"v_and_b32 v{r}, 0x807f807f, v{r}")
            A(f"v_or_b32 v{r}, 0x3d003d00, v{r}")
        A("s_nop 1")
        for k in range(c.warm):
            a_ = 48 + 4 * (k % 4); b_ = 64 + 4 * ((k // 4 + k) % 4)
            A(f"v_mfma_f32_16x16x32_bf16 v[168:171], v[{a_}:{a_+3}], v[{b_}:{b_+3}], " + ("0" if k == 0 else "v[168:171]"))
    for it in items[len(c.direct):c.nprol]:
        emit_now(e, x_ops(e, int(it[1:])) if it[0] == "x" else w_ops(e, int(it[1:])))
    if c.diag:
        e.lstamp("issued")
        nv = len(e.vm)
        seen = []
        for idx_, tg in enumerate(e.vm):
            if idx_ + 1 < nv and e.vm[idx_ + 1] == tg and tg != "pf": continue
            A(f"s_waitcnt vmcnt({nv - 1 - idx_})"); e.lstamp(tg + "_back")
    if late: tail_calc()

def b_read_to(e, row, f, reg, tag):
    kw, cc = divmod(f, 3)
    kind, off = xslot(row)
    base = V_XAA if kind == "A" else V_XAR
    e.lds(f"ds_read_b128 {reg}, v{base+kw} offset:{off + cc*64}", tag)
def tr_read(e, s, kh, h):
    e.lds(f"ds_read_b64_tr_b16 {wreg(kh, s, 2*h)}, v{V_TR} offset:{(s % NWS)*WSLOT + (2*kh + h)*1024}", f"t{s}_{kh}")
def out_ops(e, a, pair, o):
    vo = V_O + 2 * pair
    pre = [lambda: e.A(f"s_add_u32 s{S_OROW}, s{S_OROW}, s{S_LAST}")] if o == e.cfg.nrows - 1 else []
    return pre + [lambda: e.A(f"v_cvt_pk_bf16_f32 v{vo}, v{a}, v{a+1}"),
            lambda: e.A(f"v_cvt_pk_bf16_f32 v{vo+1}, v{a+2}, v{a+3}"),
            lambda: e.vmem(f"buffer_store_dwordx2 v[{vo}:{vo+1}], v{V_OUT}, s[{S_O}:{S_O+3}], s{S_OROW} offen {(e.cfg.last_flags[1] if e.cfg.last_flags and o >= e.cfg.last_flags[0] else e.cfg.store_flags)}".rstrip(), f"o{o}"),
            lambda: e.A(f"s_add_u32 s{S_OROW}, s{S_OROW}, {ROWB}")]

def out_ops_abs(e, a, pair, o):
    vo = V_O + 2 * pair
    return [lambda: e.A(f"s_add_u32 s{S_T6}, s{S_OB}, {o*ROWB}" if o else f"s_mov_b32 s{S_T6}, s{S_OB}"),
            lambda: e.A(f"v_cvt_pk_bf16_f32 v{vo}, v{a}, v{a+1}"),
            lambda: e.A(f"v_cvt_pk_bf16_f32 v{vo+1}, v{a+2}, v{a+3}"),
            lambda: e.vmem(f"buffer_store_dwordx2 v[{vo}:{vo+1}], v{V_OUT}, s[{S_O}:{S_O+3}], s{S_T6} offen {e.cfg.store_flags}".rstrip(), f"o{o}")]

class Gaps:
    def __init__(self, M, cap=1):
        self.M = M; self.g = [[] for _ in range(M)]; self.cap = cap
    def put(self, p, fn):
        self.g[min(max(p, 0), self.M - 1)].append(fn)
    def seq(self, ops, start, step=1, cap=None):
        cap = self.cap if cap is None else cap
        p = start
        for op in ops:
            while p < self.M - 1 and len(self.g[p]) >= cap: p += 1
            self.put(p, op); p = min(p + step, self.M - 1) if p < self.M - 1 else p
        return p

def block_a(e):
    c = e.cfg; RA = c.RA
    def khs(i): return [kh for kh in range(5) if 0 <= i - 4 + kh < RA]
    stream = list(c.stream)
    groups = [g.split(",") for g in c.groups.split("|")]
    nextw = 1 + max(int(it[1:]) for g in groups for it in g if it[0] == "w")
    groups += [[f"w{s}"] for s in range(nextw, 15)]
    order = []; rows_av = []; s_av = []; sched = set()
    mk_items = {}
    for gi, g in enumerate(groups):
        order.append(("M", gi)); mk_items[gi] = g
        for it in g:
            (rows_av if it[0] == "x" else s_av).append(int(it[1:]))
        for s in sorted(s_av):
            for r in sorted(rows_av, key=lambda r: (-len(khs(r)), r)):
                if (r, s) not in sched: sched.add((r, s)); order.append((r, s))
    assert len(sched) == len(stream) * 15
    w_marker = {int(it[1:]): gi for gi, g in mk_items.items() for it in g if it[0] == "w"}
    row_marker = {int(it[1:]): gi for gi, g in mk_items.items() for it in g if it[0] == "x"}
    nearly = len(c.groups.split("|"))
    mf = []; first = {}; mpos = {}
    def flush_group(grp, flip):
        if not c.omajor:
            for ent in grp:
                for kh in khs(ent[0]): mf.append((ent, kh))
            return
        for s_ in sorted(set(ent[1] for ent in grp)):
            lst = [(ent, kh) for ent in grp if ent[1] == s_ for kh in khs(ent[0])]
            lst.sort(key=lambda z: (z[0][0] - 4 + z[1], z[0][0]), reverse=flip[0])
            flip[0] = not flip[0]
            mf.extend(lst)
    grp = []; flip = [False]
    for ent in order + [("M", None)]:
        if ent[0] == "M":
            flush_group(grp, flip); grp = []
            if ent[1] is not None: mpos[ent[1]] = len(mf)
        else: grp.append(ent)
    for q_, (ent, kh) in enumerate(mf): first.setdefault(ent, q_)
    M = len(mf)
    mark_at = {}; prev = 0
    for p in sorted(mpos):
        q = mpos[p]
        if p >= nearly: q = max(prev, mpos[p] - c.wearly)
        elif p >= 1: q = max(prev, mpos[p] - c.early)
        mark_at[p] = q; prev = q
    tasks = []
    pairs = [ent for ent in order if ent[0] != "M"]
    last_use = {}
    for q, (ent, kh) in enumerate(mf): last_use[ent] = q
    for ent in pairs:
        tasks.append(dict(kind="b", ent=ent, ready=mark_at[row_marker[ent[0]]], due=first[ent], done=False))
    for s in range(15):
        for kh in range(5):
            due = min(q for q, (ent, k2) in enumerate(mf) if ent[1] == s and k2 == kh)
            for h in range(2):
                tasks.append(dict(kind="t", s=s, kh=kh, h=h, ready=mark_at[w_marker[s]], due=due, done=False))
    tasks.sort(key=lambda t: (t["due"], 0 if t["kind"] == "t" else 1))
    bslots = [None] * 15; bfree_at = [-1] * 15; bassign = {}
    def issue(t, q):
        if t["kind"] == "t": tr_read(e, t["s"], t["kh"], t["h"])
        else:
            k = min(range(15), key=lambda j: bfree_at[j])
            if bfree_at[k] >= q and bslots[k] is not None: return False
            ent = t["ent"]
            bslots[k] = ent; bfree_at[k] = last_use[ent]; bassign[ent] = k
            reg = V_B + 60 + 4 * k
            b_read_to(e, ent[0], ent[1], f"v[{reg}:{reg+3}]", f"pb{ent[0]}_{ent[1]}")
        t["done"] = True
        return True
    items = [it for g in c.groups.split("|") for it in g.split(",")]
    dplan = {}
    rest = [(it[0], int(it[1:])) for it in items[c.nprol:]]
    issued_w = [int(it[1:]) for it in items if it[0] == "w"]
    dplan[0] = list(rest)
    for s in range(max(issued_w) + 1, min(4, 15)): dplan[0].append(("w", s))
    for s in range(max(max(issued_w) + 1, 4), 15):
        dplan.setdefault(w_marker[s - 3], []).append(("w", s))
    if c.pfw_split < 15: dplan.setdefault(w_marker[c.pfwb_after], []).append(("pfw", 0))
    planned = []
    for part in c.def_plan.split("|"):
        wm, rows_ = part.split(":")
        rows_ = [int(r) for r in rows_.split(",")]
        dplan.setdefault(w_marker[int(wm)], []).extend([("x", r) for r in rows_]); planned += rows_
    late_rows = [r for r in c.deferred if r not in planned] + ([r for r in (8, 9, 10, 11, 12) if r not in planned and r not in c.stream] if c.merge else [12, 13])
    def ops_of(kind, a):
        if kind == "x": return x_ops(e, a)
        if kind == "w": return w_ops(e, a)
        return [lambda: e.vmem(f"buffer_load_dword v{V_PFD+2}, v{V_PF2}, s[{S_Wt}:{S_Wt+3}], 0 offen", "pf")]
    dq = []
    marks_sorted = sorted(mark_at)
    for p in marks_sorted:
        ops = []
        for kind, a in dplan.get(p, []): ops += ops_of(kind, a)
        if not ops: continue
        lo = mark_at[p]; hi = mark_at[p+1] if p + 1 in mark_at else M - 2
        span = 0 if p < nearly - 1 else max(hi - lo - len(ops) // 2, 0)
        for k, op in enumerate(ops): dq.append((lo + (k * span) // len(ops), op))
    dq.reverse()
    last_dma = [-10, False]
    def run_dma_op(force=False):
        _, op = dq.pop()
        n0 = len(e.L); op()
        if " lds" in e.L[-1] and re.search(r"\bm0,", e.L[n0-1]): e.L.insert(n0, "  s_nop 0")
    need = {p: list(mk_items[p]) for p in marks_sorted}
    prevw = {}
    for p in marks_sorted:
        ws = [int(it[1:]) for it in mk_items[p] if it[0] == "w"]
        if ws and ws[0] >= 1: prevw[p] = ws[0] - 1
    cnt = lambda tg: 3 if tg[0] == "w" else 2
    inited = set()
    deferred = list(c.deferred)
    par = len(deferred) % 2
    def setreg(k, f):
        b = V_B + ((k + par) % 2) * 60 + 4 * f
        return f"v[{b}:{b+3}]"
    vis = {}
    k0 = 0
    if par: vis[0] = [deferred[0]]; k0 = 1
    for k_ in range(k0, len(deferred), 2): vis[k_] = deferred[k_:k_+2]
    if c.merge: vis[len(deferred)] = [RA, RA + 1]
    dpre = c.dpre if par == 0 else 0
    q_d = M - dpre if dpre else None
    d_issued = []
    pre = {}
    for p in marks_sorted:
        if p >= nearly:
            pre.setdefault(max(mark_at[p] - 2, mark_at[p-1] + 1), []).append(("vm", p))
            pre.setdefault(max(mark_at[p] - 1, mark_at[p-1] + 1), []).append(("lg", p))
    def do_vm(p):
        while not all(e.vm.count(tg) == cnt(tg) for tg in need[p]): run_dma_op()
        e.wait_vm(*need[p])
    def do_lg(p, q):
        if p not in prevw: return
        sp = prevw[p]
        for t in tasks:
            if t["kind"] == "t" and t["s"] == sp and not t["done"]: issue(t, q)
        idxs = [i_ for i_, tg in enumerate(e.lg) if tg.startswith(f"t{sp}_")]
        e.wait_lg(e.lg[max(idxs)])
    for q in range(M):
        for kind, p in pre.get(q, []):
            if mark_at[p] > q:
                (do_vm(p) if kind == "vm" else do_lg(p, q))
        for p in marks_sorted:
            if mark_at[p] == q:
                do_lg(p, q); do_vm(p)
                e.A("s_barrier")
                if p == 0:
                    for _ in range(c.burst):
                        if dq: run_dma_op()
                if p in (0, nearly - 1, w_marker[4], w_marker[9], w_marker[14]): e.lstamp(f"M{p}:" + ",".join(mk_items[p]))
        if q_d is not None and q == q_d:
            while not all(e.vm.count(f"x{r_}") == 2 for r_ in vis[0]): run_dma_op()
            e.wait_vm(*[f"x{r_}" for r_ in vis[0]]); e.A("s_barrier")
        ent, kh = mf[q]
        late = [t for t in tasks if not t["done"] and t["due"] <= q]
        if late:
            for t in late:
                assert t["ready"] <= q, (t, q)
                ok = issue(t, q); assert ok
            for t in tasks:
                if t["done"] or t["ready"] > q: continue
                if len(e.lg) - e.lg_done >= 13: break
                if t["kind"] == "b" and t["due"] - q > c.look: continue
                issue(t, q)
        n0 = len(e.L)
        e.wait_lg(f"t{ent[1]}_{kh}", f"pb{ent[0]}_{ent[1]}", age=5)
        o = ent[0] - 4 + kh; a = V_ACCA + 4 * o
        src = f"v[{a}:{a+3}]" if o in inited else "0"
        inited.add(o)
        reg = V_B + 60 + 4 * bassign[ent]
        e.mfma(f"v_mfma_f32_16x16x32_bf16 v[{a}:{a+3}], {wreg(kh, ent[1])}, v[{reg}:{reg+3}], {src}")
        budget = 2
        early_phase = q < mark_at[nearly - 1]
        if early_phase: budget = 4
        def try_lds():
            for t in tasks:
                if t["done"] or t["ready"] > q: continue
                if t["kind"] == "b" and t["due"] - q > c.look: continue
                if len(e.lg) - e.lg_done >= 14: return False
                if issue(t, q + 1): return True
            return False
        def try_dma():
            if dq and dq[-1][0] <= q: run_dma_op(); return True
            return False
        def try_d():
            if q_d is not None and q >= q_d and len(d_issued) < 15 and len(e.lg) - e.lg_done < 14:
                f = len(d_issued); d_issued.append(f)
                b_read_to(e, deferred[0], f, setreg(0, f), f"d0_{f}"); return True
            return False
        _lds = try_lds
        def try_lds(): return _lds() or try_d()
        turn = [try_lds, try_dma]
        k = 0
        while budget > 0:
            if turn[k % 2]() or turn[(k + 1) % 2](): budget -= 1; k += 1
            else: break
    while dq: run_dma_op()
    if c.codepf2: e.vmem(f"buffer_load_dword v{V_PFD+3}, v{V_CPF}, s[{S_PC}:{S_PC+3}], s{S_CPO} offen", "pf")
    e.lstamp("streamend")
    seq = deferred + [RA]
    if q_d is None:
        e.wait_vm(*[f"x{r_}" for r_ in vis[0]]); e.A("s_barrier")
    for f in range(len(d_issued), 15): b_read_to(e, seq[0], f, setreg(0, f), f"d0_{f}")
    for k, r in enumerate(deferred):
        mfs = []
        for kh in khs(r):
            o = r - 4 + kh; a = V_ACCA + 4 * o
            for f in range(15):
                src = f"v[{a}:{a+3}]" if o in inited else "0"
                inited.add(o)
                mfs.append((f, f"v_mfma_f32_16x16x32_bf16 v[{a}:{a+3}], {wreg(kh, f)}, {setreg(k, f)}, {src}"))
        Mk = len(mfs); nxt = seq[k + 1]
        G = Gaps(Mk)
        if (k + 1) in vis:
            e.wait_vm(*[f"x{r_}" for r_ in vis[k+1]]); e.A("s_barrier")
        span = max(Mk - 6, 15)
        for f in range(15): G.put(min((f * span) // 15, Mk - 1), (lambda f=f: b_read_to(e, nxt, f, setreg(k + 1, f), f"d{k+1}_{f}")))
        if c.merge and k >= 1:
            op_ = deferred[k-1]
            assert op_ <= 3
            G.seq(out_ops_abs(e, V_ACCA + 4 * op_, 1, op_), min(9, Mk - 6), step=1, cap=2)
        ntake = 2 if (k < 1 or c.merge) else 1
        pos = 2
        for _ in range(ntake):
            if late_rows and (Mk >= 30 or (c.merge and Mk >= 15 and _ == 0)):
                pos = G.seq(x_ops(e, late_rows.pop(0)), pos, step=1, cap=2)
        for p_, (f, s_) in enumerate(mfs):
            if p_ < 15: e.wait_lg(f"d{k}_{f}", age=5)
            e.mfma(s_)
            for fn in G.g[p_]: fn()
    e.late_rows = late_rows
    e.dtag = f"d{len(deferred)}"
    e.lstamp("defend")

def step(e, i, chains, last_row, extra_out=(), extra_dma=(), prev_tags=None, skip=None):
    c = e.cfg; RA = c.RA
    mf = []
    for kh in chains:
        o = i - 4 + kh; a = acc(o)
        for f in range(15):
            src = "0" if (kh == 4 and f == 0) else f"v[{a}:{a+3}]"
            mf.append((f, f"v_mfma_f32_16x16x32_bf16 v[{a}:{a+3}], {wreg(kh, f)}, {breg(i, f)}, {src}"))
    M = len(mf)
    U = M - 15 if skip else M
    G = Gaps(M)
    nxt = i + 1
    nn = i + 2
    S0 = (RA + 2) if c.merge else NA
    did_bar = nxt <= last_row and nxt >= S0
    if did_bar: e.A("s_barrier")
    if nxt <= last_row:
        span = max(U - 9, 15) if U >= 15 else U
        for f in range(15): G.put(min((f * span) // 15, U - 1), (lambda f=f: b_read_to(e, nxt, f, breg(nxt, f), f"b{nxt}_{f}")))
    r4 = i + 4
    if i >= NA and r4 <= last_row: G.seq(x_ops(e, r4, seq=True), c.dma_pos, step=2)
    pos_ = 1
    for r_ in extra_dma: pos_ = G.seq(x_ops(e, r_), pos_ if c.merge else 1, step=1, cap=(2 if M <= 30 else 1))
    tail = []
    if 0 in chains and (i - 4 >= RA or c.merge):
        o = i - 4; endp = chains.index(0) * 15 + 14
        ops = out_ops(e, acc(o), 0, o)
        if endp + 14 < M: G.seq(ops, max(endp + 9, c.out_pos if M == 75 else 0), step=1)
        else: tail = ops
    for k, (a, o) in enumerate(extra_out):
        if c.merge: G.seq(out_ops_abs(e, a, 1, o), 9, step=1)
        else: G.seq(out_ops(e, a, k % 2, o), (k * M) // max(len(extra_out), 1) + 1, step=1, cap=(2 if M <= 45 else 1))
    if nn <= last_row and nn >= S0:
        G.put(U - 3, lambda: e.wait_vm(f"x{nn}", force=(i >= NA)))
    short = U < 45
    lab = f"{i if i < NA or i >= c.nrows else 'l' + str((i - NA) % 4)}"
    for p, (f, s) in enumerate(mf):
        if skip and p == U:
            e.A(skip); e.A(f"s_cbranch_scc1 L_skip{lab}")
            mark = len(e.L)
        if prev_tags and p < 15: e.wait_lg(prev_tags(f), age=5)
        e.mfma(s)
        for fn in G.g[p]: fn()
        if p == U - 2 and nxt <= last_row and not short: e.wait_lg(f"b{nxt}_14")
    if skip:
        fill = [l for l in e.L[mark:] if "v_mfma" not in l]
        if fill:
            e.A(f"s_branch L_join{lab}")
            e.raw(f"L_skip{lab}:")
            if any("v_cvt" in l for l in fill): e.A("s_nop 7"); e.A("s_nop 1")
            e.L.extend(fill)
            e.raw(f"L_join{lab}:")
        else:
            e.raw(f"L_skip{lab}:")
    if tail:
        e.A("s_nop 7"); e.A("s_nop 1")
        for fn in tail: fn()
    if nxt <= last_row and short and (nn <= last_row and nn >= S0): e.wait_lg(f"b{nxt}_14")

def build(cfg):
    e = Em(cfg); n = cfg.nrows; RA = cfg.RA
    last_row = n + 3
    e.raw("; direct 5x5 circular convolution; weights stationary in registers; start block overlaps the weight arrival")
    e.raw(f"; @launch grid=(252,1,1) block=(256,1,1) lds={LDS_BYTES}")
    e.raw('.amdgcn_target "amdgcn-amd-amdhsa--gfx950"')
    e.raw(".text")
    e.raw(".globl standalone__fft_conv__vision_kernel")
    if cfg.align12: e.raw(".p2align 12")
    e.raw(".p2align 8")
    e.raw(".type standalone__fft_conv__vision_kernel,@function")
    e.raw("standalone__fft_conv__vision_kernel:")
    prologue(e)
    block_a(e)
    if cfg.merge:
        RA_ACC[0] = RA
        def chains_for(i): return [kh for kh in range(5) if 0 <= i - 4 + kh < n]
        flush = {RA: [cfg.deferred[-1]]}
        lr = list(e.late_rows) + [13, 14, 15]
        predma = {RA: lr[:2], RA + 1: lr[2:4], RA + 2: lr[4:6], RA + 3: lr[6:]}
    else:
        assert not e.late_rows
        def chains_for(i): return [kh for kh in range(5) if RA <= i - 4 + kh < n]
        flush = {RA + 1: [0, 1], RA + 2: [2, 3, 4], RA + 3: [5, 6, 7]}
        predma = {RA: [14], RA + 1: [15]}
    i = RA
    while i < NA:
        ex = [(V_ACCA + 4 * o, o) for o in flush.get(i, [])]
        pt = (lambda f: f"{e.dtag}_{f}") if i == RA else (lambda f, i=i: f"b{i}_{f}")
        step(e, i, chains_for(i), last_row, ex, predma.get(i, []), pt); i += 1
    if cfg.codepf3: e.vmem(f"buffer_load_dword v{V_PFD+3}, v{V_CPF}, s[{S_PC}:{S_PC+3}], s{S_CPO} offen", "pf")
    e.lstamp("rampend")
    e.A(f"s_add_u32 s{S_T0}, s{S_XBASE}, {(NA+4)*ROWB}")
    e.A(f"s_sub_u32 s{S_T1}, s{S_T0}, {XBYTES}")
    e.A(f"s_min_u32 s{S_XROW}, s{S_T0}, s{S_T1}")
    def skip_of(ii):
        if not cfg.skipdup: return None
        if ii == n - 1 or (cfg.loop and NA <= ii < n and (ii - NA) % 4 == (n - 1 - NA) % 4):
            return f"s_cmp_eq_u32 s{S_CNT}, s{S_DUP}" if cfg.loop else f"s_cmp_eq_u32 s{S_DUP}, 0"
        if n <= ii < last_row: return f"s_cmp_eq_u32 s{S_DUP}, 0"
        return None
    def last_step(ii):
        if cfg.skipdup:
            e.A(f"s_cmp_eq_u32 s{S_DUP}, 0"); e.A("s_cbranch_scc1 L_done")
        step(e, ii, chains_for(ii), last_row, prev_tags=(lambda f, ii=ii: f"b{ii}_{f}"))
        if cfg.skipdup: e.raw("L_done:")
    if not cfg.loop:
        while i <= last_row:
            if i == last_row: last_step(i)
            else: step(e, i, chains_for(i), last_row, prev_tags=(lambda f, i=i: f"b{i}_{f}"), skip=skip_of(i))
            i += 1
            if i <= last_row: e.lstamp(f"step{i}")
    else:
        steady = list(range(NA, n)); nst = len(steady)
        start = len(e.L); seg = []
        for ii in steady:
            s0 = len(e.L)
            step(e, ii, chains_for(ii), last_row, prev_tags=(lambda f, ii=ii: f"b{ii}_{f}"), skip=skip_of(ii))
            seg.append(e.L[s0:])
        e.L = e.L[:start]
        for k in range(4, nst):
            a, b = seg[k % 4], seg[k]
            assert len(a) == len(b), f"non periodic step {steady[k]}"
            for j in range(len(a)):
                if a[j] != b[j]:
                    ma = re.fullmatch(r"  s_waitcnt vmcnt\((\d+)\)", a[j]); mb = re.fullmatch(r"  s_waitcnt vmcnt\((\d+)\)", b[j])
                    assert ma and mb, (a[j], b[j])
                    a[j] = f"  s_waitcnt vmcnt({min(int(ma.group(1)), int(mb.group(1)))})"
        full, rem = divmod(nst, 4)
        assert rem != 0 and full == 1
        e.A(f"s_mov_b32 s{S_CNT}, {full}")
        e.raw(".p2align 3")
        e.raw("L_loop:")
        for k in range(4):
            if k == rem:
                e.A(f"s_cmp_eq_u32 s{S_CNT}, 0")
                e.A("s_cbranch_scc1 L_down")
                e.A(f"s_sub_u32 s{S_CNT}, s{S_CNT}, 1")
            e.L.extend(seg[k])
        e.A("s_branch L_loop")
        e.raw("L_down:")
        if cfg.wbl2:
            e.A(f"s_lshr_b32 s{S_T6}, s2, 3"); e.A(f"s_add_u32 s{S_T6}, s{S_T6}, s{S_WAVE}")
            e.A(f"s_cmp_lg_u32 s{S_T6}, 0"); e.A("s_cbranch_scc1 L_nowb")
            e.A(f"buffer_wbl2 {cfg.wbl2}")
            e.raw("L_nowb:")
        e.lstamp("loopend")
        i = n
        while i <= last_row:
            if i == last_row: last_step(i)
            else: step(e, i, chains_for(i), last_row, prev_tags=(lambda f, i=i: f"b{i}_{f}"), skip=skip_of(i))
            i += 1
    if cfg.spin:
        e.lstamp("mfmaend"); e.A("s_waitcnt vmcnt(0) lgkmcnt(0)")
        ia, ib, K = e.lnames.index(cfg.spin[0]), e.lnames.index(cfg.spin[1]), cfg.spin[2]
        e.A(f"s_sub_u32 s50, s{64+2*ib}, s{64+2*ia}")
        e.A(f"s_mul_i32 s50, s50, {K}")
        e.A("s_memtime s[52:53]"); e.A("s_waitcnt lgkmcnt(0)")
        e.raw("L_spin:")
        e.A("s_memtime s[54:55]"); e.A("s_waitcnt lgkmcnt(0)")
        e.A("s_sub_u32 s51, s54, s52"); e.A("s_cmp_lt_u32 s51, s50"); e.A("s_cbranch_scc1 L_spin")
    elif cfg.lst:
        e.lstamp("mfmaend"); e.A("s_waitcnt vmcnt(0)"); e.lstamp("drain")
        e.A("s_memrealtime s[62:63]")
        e.A("s_waitcnt lgkmcnt(0)")
        e.A(f"s_load_dwordx2 s[{S_WS}:{S_WS+1}], s[0:1], 32")
        e.A(f"v_mov_b32 v{V_ST}, 0")
        for k in range(e.nl): e.A(f"v_writelane_b32 v{V_ST}, s{64+2*k}, {k}")
        e.A(f"v_writelane_b32 v{V_ST}, s60, 62"); e.A(f"v_writelane_b32 v{V_ST}, s62, 63")
        e.A("s_waitcnt lgkmcnt(0)")
        e.A(f"s_lshl_b32 s{S_T0}, s2, 2")
        e.A(f"s_add_u32 s{S_T0}, s{S_T0}, s{S_WAVE}")
        e.A(f"s_lshl_b32 s{S_T0}, s{S_T0}, 8")
        e.A(f"s_add_u32 s{S_WS}, s{S_WS}, s{S_T0}")
        e.A(f"s_addc_u32 s{S_WS+1}, s{S_WS+1}, 0")
        e.A("v_lshlrev_b32 v1, 2, v0")
        e.A(f"global_store_dword v1, v{V_ST}, s[{S_WS}:{S_WS+1}]")
        print("lstamps:", e.nl, e.lnames)
    if cfg.xspin is not None:
        e.A("s_waitcnt vmcnt(0) lgkmcnt(0)")
        mask = sum(1 << k for k in cfg.xspin)
        e.A("s_and_b32 s52, s2, 7"); e.A(f"s_lshr_b32 s52, {mask}, s52"); e.A("s_and_b32 s52, s52, 1")
        e.A("s_cmp_eq_u32 s52, 0"); e.A("s_cbranch_scc1 L_nospin")
        e.A("s_memrealtime s[54:55]"); e.A("s_waitcnt lgkmcnt(0)")
        e.raw("L_xs:")
        e.A("s_memrealtime s[56:57]"); e.A("s_waitcnt lgkmcnt(0)")
        e.A("s_sub_u32 s53, s56, s54"); e.A("s_cmp_lt_u32 s53, 1000"); e.A("s_cbranch_scc1 L_xs")
        e.raw("L_nospin:")
    if cfg.endwait: e.A("s_waitcnt vmcnt(0)")
    e.raw("L_end:")
    e.A("s_endpgm")
    e.raw("L_code_end:")
    e.raw('.section .rodata,"a"')
    e.raw(".p2align 6")
    e.raw(".amdhsa_kernel standalone__fft_conv__vision_kernel")
    for l in ("next_free_vgpr 512", "next_free_sgpr " + ("100" if (cfg.lst or cfg.spin) else "64"), "accum_offset 256", "group_segment_fixed_size 0", "kernarg_size 40",
              "user_sgpr_count 2", "user_sgpr_kernarg_segment_ptr 1", "system_sgpr_workgroup_id_x 1"):
        e.raw("  .amdhsa_" + l)
    e.raw(".end_amdhsa_kernel")
    out = []
    for l in e.L:
        if " lds" in l and "buffer_load" in l and out and re.search(r"\bm0,", out[-1]): out.append("  s_nop 0")
        out.append(l)
    e.L = out
    import subprocess, tempfile, os
    size = 0x7fff
    for _ in range(2):
        txt = "\n".join(l.replace("CODE_BYTES", str(size)) for l in e.L) + "\n"
        with tempfile.TemporaryDirectory() as td:
            open(td + "/k.s", "w").write(txt)
            subprocess.run(["clang", "-x", "assembler", "-target", "amdgcn-amd-amdhsa", "-mcpu=gfx950", "-c", td + "/k.s", "-o", td + "/k.o"], check=True)
            dis = subprocess.run(["llvm-objdump", "-d", "--mcpu=gfx950", td + "/k.o"], capture_output=True, text=True).stdout
        sym = {}
        for l in dis.splitlines():
            m_ = re.match(r"([0-9a-f]{16}) <(.*)>:", l)
            if m_: sym[m_.group(2)] = int(m_.group(1), 16)
        size = sym["L_end"] + 4 - sym["standalone__fft_conv__vision_kernel"]
        assert size - 4 > sym["L_pc"] - sym["standalone__fft_conv__vision_kernel"] if "L_pc" in sym else True
    e.code_size = size
    e.L = [l.replace("CODE_BYTES", str(size)) for l in e.L]
    open(cfg.name, "w").write("\n".join(e.L) + "\n")
    return e

if __name__ == "__main__":
    ap = argparse.ArgumentParser()
    ap.add_argument("-o", default=Cfg.name)
    ap.add_argument("--lst", action="store_true")
    ap.add_argument("--noloop", action="store_true")
    ap.add_argument("--store", default="")
    ap.add_argument("--look", type=int, default=12)
    ap.add_argument("--early", type=int, default=8)
    ap.add_argument("--wearly", type=int, default=26)
    ap.add_argument("--nocodepf", action="store_true")
    ap.add_argument("--last_flags", default="")
    ap.add_argument("--xspin", default="")
    ap.add_argument("--kwait0", action="store_true")
    ap.add_argument("--warm", type=int, default=0)
    ap.add_argument("--rtstamp", action="store_true")
    ap.add_argument("--outpf", action="store_true")
    ap.add_argument("--wbl2", default="")
    ap.add_argument("--burst", type=int, default=0)
    ap.add_argument("--no_merge", action="store_true")
    ap.add_argument("--no_omajor", action="store_true")
    ap.add_argument("--no_skipdup", action="store_true")
    ap.add_argument("--dpre", type=int, default=14)
    ap.add_argument("--early_calc", action="store_true")
    ap.add_argument("--endwait", action="store_true")
    ap.add_argument("--spin", default="")
    ap.add_argument("--codepf2", action="store_true")
    ap.add_argument("--codepf3", action="store_true")
    ap.add_argument("--codepf_all", action="store_true")
    ap.add_argument("--stepst", action="store_true")
    ap.add_argument("--dma_pos", type=int, default=18)
    ap.add_argument("--out_pos", type=int, default=0)
    ap.add_argument("--diag", action="store_true")
    ap.add_argument("--groups", default=Cfg.groups)
    ap.add_argument("--nprol", type=int, default=4)
    ap.add_argument("--direct", default="4,5")
    ap.add_argument("--pf_rows", default="6,2")
    ap.add_argument("--stream", default="4,5,6,7")
    ap.add_argument("--deferred", default="3,8,2,9,1,10,0,11")
    ap.add_argument("--def_plan", default=Cfg.def_plan)
    ap.add_argument("--pfw_split", type=int, default=15)
    ap.add_argument("--pfwb_after", type=int, default=3)
    a = ap.parse_args()
    cfg = Cfg()
    cfg.name = a.o; cfg.lst = a.lst; cfg.loop = not a.noloop; cfg.store_flags = a.store
    cfg.direct = [int(x) for x in a.direct.split(",")]; cfg.pf_rows = tuple(int(x) for x in a.pf_rows.split(","))
    cfg.stream = [int(x) for x in a.stream.split(",")]; cfg.deferred = [int(x) for x in a.deferred.split(",")]; cfg.def_plan = a.def_plan
    cfg.groups = a.groups; cfg.nprol = a.nprol; cfg.pfw_split = a.pfw_split; cfg.pfwb_after = a.pfwb_after; cfg.diag = a.diag; cfg.dma_pos = a.dma_pos; cfg.out_pos = a.out_pos; cfg.stepst = a.stepst; cfg.codepf2 = a.codepf2; cfg.codepf_all = a.codepf_all; cfg.codepf3 = a.codepf3; cfg.spin = (lambda p: (p[0], p[1], int(p[2])) )(a.spin.split("/")) if a.spin else None
    if cfg.spin: cfg.lst = True
    cfg.endwait = a.endwait; cfg.late_calc = not a.early_calc; cfg.dpre = a.dpre; cfg.omajor = not a.no_omajor; cfg.skipdup = not a.no_skipdup; cfg.merge = not a.no_merge; cfg.burst = a.burst; cfg.wbl2 = a.wbl2; cfg.outpf = a.outpf; cfg.rtstamp = a.rtstamp; cfg.warm = a.warm; cfg.kwait0 = a.kwait0; cfg.xspin = [int(x) for x in a.xspin.split(',')] if a.xspin else None; cfg.last_flags = (int(a.last_flags.split(':')[0]), a.last_flags.split(':')[1]) if a.last_flags else None; cfg.look = a.look; cfg.early = a.early; cfg.wearly = a.wearly; cfg.codepf = not a.nocodepf
    e = build(cfg)
    print("lines", len(e.L), "LDS", LDS_BYTES, "code", e.code_size)
```

```python
import sys, argparse, re

class Cfg:
    nrows = 19
    RA = 8
    store_flags = ""
    lst = False
    loop = True
    look = 12
    early = 8
    wearly = 26
    codepf = True
    kwait0 = False
    warm = 0
    rtstamp = False
    outpf = False
    wbl2 = ''
    burst = 0
    merge = True
    omajor = True
    skipdup = True
    dpre = 14
    late_calc = True
    endwait = False
    spin = None
    codepf2 = False
    codepf3 = False
    codepf_all = False
    stepst = False
    dma_pos = 18
    out_pos = 0
    diag = False
    groups = "x4,x5,w0|x6,x7|w1|w2"
    direct = [4, 5]
    pf_rows = (6, 2)
    stream = [4, 5, 6, 7]
    deferred = [3, 8, 2, 9, 1, 10, 0, 11]
    nprol = 4
    pfw_split = 15
    pfwb_after = 3
    def_plan = "11:3,8|12:2,9|14:1,10"
    align12 = True
    name = "standalone__fft_conv__vision.s"

H = W = 224
ROWB = W * 192
XBYTES = H * ROWB
WBYTES = 460800
SLOTB = 7168
NA = 12
XR = NA * SLOTB
X2 = 10 * SLOTB
WS = XR + 4 * SLOTB
WSLOT = 10240
NWS = 4
DUMMY = WS + NWS * WSLOT
LDS_BYTES = DUMMY + 1024

S_X, S_Wt, S_O = 8, 12, 16
S_WS = 20
S_WAVE = 22
S_X0, S_X1, S_XM = 23, 24, 25
S_XBASE, S_XROW, S_OROW, S_CNT = 26, 27, 28, 29
S_T0, S_T1, S_T2, S_T3 = 30, 31, 32, 33
S_WM, S_G, S_W0, S_WM2, S_WMM = 34, 35, 36, 37, 38
S_T4, S_T5 = 39, 40
S_PC = 44
S_CPO = 48
S_DUP = 49
S_OB = 50
S_T6 = 51
S_LAST = 41
V_XAA = 2; V_XAR = 7
V_XD0, V_XD1 = 12, 13
V_WD, V_TR, V_OUT, V_PF = 14, 15, 16, 17
V_T = 18
V_O = 24
V_ST = 28
V_ACC = 32
V_B = 48
V_ACCA = 168
V_PFX = 200
V_PFD = 202
V_PF2 = 206
V_CPF = 207
V_WT = 212

def wreg(kh, f, lo=None):
    i = kh * 15 + f
    if i < 64: base, t = 4 * i, "a"
    else: base, t = V_WT + 4 * (i - 64), "v"
    if lo is None: return f"{t}[{base}:{base+3}]"
    return f"{t}[{base+lo}:{base+lo+1}]"
def breg(row, f):
    b = V_B + (row % 2) * 60 + 4 * f
    return f"v[{b}:{b+3}]"
RA_ACC = [0]
def acc(o): return V_ACCA + 4 * o if o < RA_ACC[0] else V_ACC + 4 * (o % 4)
def xlds(row): return row * SLOTB if row < NA else XR + ((row - NA) % 4) * SLOTB
def xslot(row):
    a = xlds(row)
    return ("A", a) if a < X2 else ("R", a - X2)

class Em:
    def __init__(self, cfg):
        self.cfg = cfg; self.L = []
        self.vm = []; self.vm_done = 0
        self.lg = []; self.lg_done = 0; self.lg_pos = []
        self.pos = 0
        self.nl = 0; self.lnames = []
    def A(self, s): self.L.append("  " + s)
    def raw(self, s): self.L.append(s)
    def mfma(self, s): self.A(s); self.pos += 1
    def vmem(self, s, tag): self.A(s); self.vm.append(tag)
    def lds(self, s, tag): self.A(s); self.lg.append(tag); self.lg_pos.append(self.pos)
    def vm_need(self, tags):
        idx = -1
        for tag in tags:
            assert tag in self.vm, (tag, self.vm)
            idx = max(idx, max(i for i, t in enumerate(self.vm) if t == tag))
        return idx
    def wait_vm(self, *tags, force=False):
        idx = self.vm_need(tags)
        if idx < self.vm_done and not force: return False
        n = min(len(self.vm) - 1 - idx, 63)
        self.A(f"s_waitcnt vmcnt({n})"); self.vm_done = max(self.vm_done, len(self.vm) - n)
        return True
    def wait_lg(self, *tags, age=None):
        idx = -1
        for tag in tags:
            assert tag in self.lg, tag
            idx = max(idx, max(i for i, t in enumerate(self.lg) if t == tag))
        if idx < self.lg_done: return False
        if age is not None:
            for i in range(idx + 1, len(self.lg)):
                if self.pos - self.lg_pos[i] >= age: idx = i
        n = min(len(self.lg) - 1 - idx, 15)
        self.A(f"s_waitcnt lgkmcnt({n})"); self.lg_done = len(self.lg) - n
        return True
    def lstamp(self, name=""):
        if not self.cfg.lst: return
        if self.cfg.stepst and not (name.startswith("step") or name in ("start", "M0:x4,w0", "M5:w4", "M10:w9", "streamend", "defend", "rampend", "mfmaend", "drain")): return
        if self.cfg.stepst and name in ("step14", "step16", "step18", "step21", "step22"): return
        k = self.nl
        if k >= 18: return
        self.A(f"{'s_memrealtime' if self.cfg.rtstamp else 's_memtime'} s[{64+2*k}:{65+2*k}]")
        self.lnames.append(name); self.nl = k + 1

def x_ops(e, row, seq=False):
    base = xlds(row); ops = []
    I = lambda s: (lambda: e.A(s))
    if not seq:
        ops += [I(f"s_add_u32 s{S_T0}, s{S_XBASE}, {row*ROWB}"), I(f"s_sub_u32 s{S_T1}, s{S_T0}, {XBYTES}"),
                I(f"s_min_u32 s{S_XROW}, s{S_T0}, s{S_T1}")]
    ops += [I(f"s_add_u32 m0, s{S_X0}, {base}"),
            lambda: e.vmem(f"buffer_load_dwordx4 v{V_XD0}, s[{S_X}:{S_X+3}], s{S_XROW} offen lds", f"x{row}")]
    if base: ops += [I(f"s_and_b32 s{S_T2}, s{S_XM}, {base}"), I(f"s_add_u32 m0, s{S_X1}, s{S_T2}")]
    else: ops += [I(f"s_mov_b32 m0, s{S_X1}")]
    ops += [lambda: e.vmem(f"buffer_load_dwordx4 v{V_XD1}, s[{S_X}:{S_X+3}], s{S_XROW} offen lds", f"x{row}")]
    if seq:
        ops += [I(f"s_add_u32 s{S_XROW}, s{S_XROW}, {ROWB}"), I(f"s_sub_u32 s{S_T1}, s{S_XROW}, {XBYTES}"),
                I(f"s_min_u32 s{S_XROW}, s{S_XROW}, s{S_T1}")]
    return ops
def w_ops(e, s):
    ops = []
    I = lambda t: (lambda: e.A(t))
    for m in range(3):
        off = (s % NWS) * WSLOT
        ops.append(I(f"s_mov_b32 s{S_T3}, {(32*s + 960*m)*192}"))
        if m < 2: ops.append(I(f"s_add_u32 m0, s{S_WM}, {off + 4*m*1024}"))
        elif off: ops += [I(f"s_and_b32 s{S_T4}, s{S_WMM}, {off}"), I(f"s_add_u32 m0, s{S_WM2}, s{S_T4}")]
        else: ops.append(I(f"s_mov_b32 m0, s{S_WM2}"))
        ops.append(lambda m=m: e.vmem(f"buffer_load_dwordx4 v{V_WD}, s[{S_Wt}:{S_Wt+3}], s{S_T3} offen lds", f"w{s}"))
    return ops
def emit_now(e, ops):
    for op in ops:
        n0 = len(e.L)
        prev = e.L[-1]
        tmp = len(e.L); op()
        if " lds" in e.L[-1] and re.search(r"\bm0,", e.L[tmp-1]):
            e.L.insert(tmp, "  s_nop 0")

def prologue(e):
    c = e.cfg; A = e.A
    t0, t1, t2, t3 = V_T, V_T+1, V_T+2, V_T+3
    A("s_load_dwordx4 s[4:7], s[0:1], 0")
    A(f"s_load_dwordx2 s[{S_O}:{S_O+1}], s[0:1], 16")
    A("s_cmp_ge_u32 s2, 252")
    A("s_cbranch_scc1 L_end")
    e.lstamp("start")
    if c.lst: A("s_memrealtime s[60:61]")
    if c.kwait0:
        A("s_waitcnt lgkmcnt(0)"); e.lstamp("k0")
    A("v_lshrrev_b32 v1, 6, v0")
    A("v_and_b32 v0, 63, v0")
    A(f"v_readfirstlane_b32 s{S_WAVE}, v1")
    A(f"s_lshr_b32 s{S_T0}, s2, 3")
    A(f"s_and_b32 s{S_T1}, s2, 7")
    A(f"s_mul_i32 s{S_T2}, s{S_T0}, 86")
    A(f"s_lshl_b32 s{S_T4}, s{S_T0}, 2")
    A(f"s_lshr_b32 s{S_T2}, s{S_T2}, 8")
    A(f"s_mul_i32 s{S_T1}, s{S_T1}, 10")
    A(f"s_mul_i32 s{S_T3}, s{S_T2}, 3")
    A(f"s_add_u32 s{S_T1}, s{S_T1}, s{S_T2}")
    A(f"s_sub_u32 s{S_G}, s{S_T0}, s{S_T3}")
    A("s_cmp_lt_u32 s2, 240")
    A("s_cbranch_scc1 L_map_done")
    A(f"s_sub_u32 s{S_T0}, s2, 240")
    A(f"s_mul_i32 s{S_T2}, s{S_T0}, 86")
    A(f"s_lshr_b32 s{S_T2}, s{S_T2}, 8")
    A(f"s_mul_i32 s{S_T3}, s{S_T2}, 3")
    A(f"s_sub_u32 s{S_G}, s{S_T0}, s{S_T3}")
    A(f"s_add_u32 s{S_T1}, s{S_T2}, 80")
    e.raw("L_map_done:")
    A(f"s_add_u32 s{S_T4}, s{S_T4}, s{S_WAVE}")
    A(f"s_mul_i32 s{S_T2}, s{S_T1}, 9363")
    A(f"s_lshl_b32 s{S_T5}, s{S_WAVE}, 6")
    A(f"s_lshr_b32 s{S_T2}, s{S_T2}, 16")
    A(f"v_add_u32 v{t0}, s{S_T5}, v0")
    A(f"s_mul_i32 s{S_T3}, s{S_T2}, 7")
    A(f"s_sub_u32 s{S_T3}, s{S_T1}, s{S_T3}")
    A(f"s_mul_i32 s{S_T0}, s{S_T3}, 86")
    A(f"s_lshl_b32 s{S_W0}, s{S_T3}, 5")
    A(f"s_lshr_b32 s{S_T0}, s{S_T0}, 8")
    A(f"s_mul_i32 s{S_T0}, s{S_T0}, 3")
    A(f"s_sub_u32 s{S_T0}, s{S_T3}, s{S_T0}")
    A(f"s_add_u32 s{S_T1}, s{S_T2}, s{S_T0}")
    A(f"s_add_u32 s{S_T3}, s{S_T1}, 2")
    A(f"s_mul_i32 s{S_T3}, s{S_T3}, 86")
    A(f"s_lshr_b32 s{S_T3}, s{S_T3}, 8")
    A(f"s_cmp_ge_u32 s{S_T0}, 1")
    A(f"s_cselect_b32 s{S_T0}, 1, 0")
    A(f"s_sub_u32 s{S_T3}, s{S_T3}, s{S_T0}")
    A(f"s_mul_i32 s{S_T0}, s{S_T2}, 19")
    A(f"s_sub_u32 s{S_T0}, s{S_T0}, s{S_T3}")
    A(f"s_mul_i32 s{S_OROW}, s{S_T0}, {ROWB}")
    A(f"s_add_u32 s{S_XBASE}, s{S_OROW}, {(H-4)*ROWB}")
    if c.merge:
        A(f"s_mov_b32 s{S_OB}, s{S_OROW}")
        A(f"s_add_u32 s{S_OROW}, s{S_OROW}, {4*ROWB}")
    A(f"s_mul_i32 s{S_LAST}, s{S_T1}, 86")
    A(f"s_lshr_b32 s{S_LAST}, s{S_LAST}, 8")
    A(f"s_mul_i32 s{S_LAST}, s{S_LAST}, 3")
    A(f"s_cmp_eq_u32 s{S_LAST}, s{S_T1}")
    A(f"s_cselect_b32 s{S_DUP}, 0, -1")
    A(f"s_cselect_b32 s{S_LAST}, 0x40000000, 0")
    A(f"s_add_u32 s{S_T0}, s{S_W0}, {W-4}")
    for pi in range(2):
        dst = V_XD0 if pi == 0 else V_XD1
        if pi: A(f"v_add_u32 v{t0}, 256, v{t0}")
        A(f"v_mul_u32_u24 v{t1}, 5462, v{t0}")
        A(f"v_lshrrev_b32 v{t1}, 16, v{t1}")
        A(f"v_mul_u32_u24 v{t2}, 12, v{t1}")
        A(f"v_lshrrev_b32 v{t3}, 1, v{t1}")
        A(f"v_sub_u32 v{t2}, v{t0}, v{t2}")
        A(f"v_and_b32 v{t3}, 2, v{t3}")
        A(f"v_add_u32 v{t1}, s{S_T0}, v{t1}")
        A(f"v_xor_b32 v{t2}, v{t2}, v{t3}")
        A(f"v_subrev_u32 v{t3}, {W}, v{t1}")
        A(f"v_min_u32 v{t1}, v{t1}, v{t3}")
        if pi: A(f"v_cmp_gt_u32 vcc, 432, v{t0}")
        A(f"v_mul_u32_u24 v{t1}, 192, v{t1}")
        A(f"v_lshl_add_u32 v{dst}, v{t2}, 4, v{t1}")
        if pi:
            A(f"v_mov_b32 v{t1}, 0x40000000")
            A(f"v_cndmask_b32 v{dst}, v{t1}, v{dst}, vcc")
    A(f"s_lshl_b32 s{S_X0}, s{S_WAVE}, 10")
    A(f"s_add_u32 s{S_X1}, s{S_X0}, 4096")
    A(f"s_cmp_eq_u32 s{S_WAVE}, 3")
    A(f"s_cselect_b32 s{S_X1}, {DUMMY}, s{S_X1}")
    A(f"s_cselect_b32 s{S_XM}, 0, -1")
    A(f"s_mov_b32 s{S_X+2}, {XBYTES}"); A(f"s_mov_b32 s{S_X+3}, 0x20000")
    A(f"s_mov_b32 s{S_Wt+2}, {WBYTES}"); A(f"s_mov_b32 s{S_Wt+3}, 0x20000")
    items = [it for g in c.groups.split("|") for it in g.split(",")]
    assert items[:len(c.direct)] == [f"x{r}" for r in c.direct]
    r0, nr = c.pf_rows
    A(f"v_mov_b32 v{V_T+5}, 0x40000000")
    if nr:
        nl = -(-nr * 18 // 4)
        A(f"s_mul_i32 s{S_T0}, s{S_WAVE}, {nl}")
        A(f"v_add_u32 v{t0}, s{S_T0}, v0")
        A(f"v_mul_u32_u24 v{t1}, 3641, v{t0}")
        A(f"s_mul_i32 s{S_T0}, s{S_G}, 18")
        A(f"v_lshrrev_b32 v{t1}, 16, v{t1}")
        A(f"v_mul_u32_u24 v{t2}, 18, v{t1}")
        A(f"v_sub_u32 v{t2}, v{t0}, v{t2}")
        A(f"v_add_u32 v{t2}, s{S_T0}, v{t2}")
        A(f"s_add_u32 s{S_T0}, s{S_W0}, {W-4}")
        A(f"v_lshlrev_b32 v{t2}, 7, v{t2}")
        A(f"s_mul_i32 s{S_T0}, s{S_T0}, 192")
        A(f"s_mov_b32 s{S_T1}, {ROWB}")
        A(f"v_add_u32 v{t2}, s{S_T0}, v{t2}")
        A(f"v_subrev_u32 v{t3}, {ROWB}, v{t2}")
        A(f"v_min_u32 v{t2}, v{t2}, v{t3}")
        A(f"v_add_u32 v{t3}, {r0}, v{t1}")
        A(f"v_mul_lo_u32 v{t3}, v{t3}, s{S_T1}")
        A(f"s_mov_b32 s{S_T2}, {XBYTES}")
        A(f"v_cmp_gt_u32 vcc, {nr*18}, v{t0}")
        A(f"v_add_u32 v{t3}, s{S_XBASE}, v{t3}")
        A(f"v_subrev_u32 v{t1}, s{S_T2}, v{t3}")
        A(f"v_min_u32 v{t3}, v{t3}, v{t1}")
        A(f"v_add_u32 v{t3}, v{t3}, v{t2}")
        A(f"v_cndmask_b32 v{t3}, v{V_T+5}, v{t3}, vcc")
        A(f"v_cmp_gt_u32 vcc, {nl}, v0")
        A("s_nop 1")
        A(f"v_cndmask_b32 v{V_PFX}, v{V_T+5}, v{t3}, vcc")
    def wpf(dst, s0, s1):
        per = (s1 - s0) * 48; tot = 5 * per
        nl = -(-tot // 128)
        if s0 == 0 and s1 == 15:
            A(f"s_mul_i32 s{S_T0}, s{S_T4}, {nl}")
            A(f"v_cmp_gt_u32 vcc, {nl}, v0")
            A(f"v_add_u32 v{t0}, s{S_T0}, v0")
            A(f"v_lshlrev_b32 v{t0}, 7, v{t0}")
            A(f"v_cndmask_b32 v{dst}, v{V_T+5}, v{t0}, vcc")
            return
        A(f"s_mul_i32 s{S_T0}, s{S_T4}, {nl}")
        A(f"v_add_u32 v{t0}, s{S_T0}, v0")
        sh = next(b for b in range(12, 23) if all((n_ * (-(-(1 << b) // per))) >> b == n_ // per for n_ in range(128 * nl + 64)))
        mg = -(-(1 << sh) // per)
        A(f"s_mov_b32 s{S_T1}, {mg}")
        A(f"v_mul_lo_u32 v{t1}, v{t0}, s{S_T1}")
        A(f"v_lshrrev_b32 v{t1}, {sh}, v{t1}")
        A(f"v_mul_u32_u24 v{t2}, {per}, v{t1}")
        A(f"v_sub_u32 v{t2}, v{t0}, v{t2}")
        A(f"v_lshlrev_b32 v{t2}, 7, v{t2}")
        A(f"v_mul_u32_u24 v{t1}, {92160}, v{t1}")
        A(f"v_cmp_gt_u32 vcc, {nl}, v0")
        A(f"v_add_u32 v{t2}, v{t2}, v{t1}")
        if s0: A(f"v_add_u32 v{t2}, {s0*6144}, v{t2}")
        else: A("s_nop 0")
        A(f"v_cndmask_b32 v{dst}, v{V_T+5}, v{t2}, vcc")
    wpf(V_PF, 0, c.pfw_split)
    if c.codepf:
        A(f"s_getpc_b64 s[{S_PC}:{S_PC+1}]")
        e.raw("L_pc:")
        A(f"s_sub_u32 s{S_PC}, s{S_PC}, L_pc-standalone__fft_conv__vision_kernel")
        A(f"s_subb_u32 s{S_PC+1}, s{S_PC+1}, 0")
        A(f"s_and_b32 s{S_PC+1}, s{S_PC+1}, 0xffff")
        A(f"s_mov_b32 s{S_PC+2}, CODE_BYTES")
        A(f"s_mov_b32 s{S_PC+3}, 0x20000")
        if c.codepf_all:
            A(f"v_lshlrev_b32 v{V_CPF}, 7, v0")
            A(f"s_lshl_b32 s{S_CPO}, s{S_WAVE}, 13")
        else:
            A(f"v_cmp_gt_u32 vcc, 2, v0")
            A(f"v_lshlrev_b32 v{t0}, 7, v0")
            A(f"s_lshl_b32 s{S_CPO}, s{S_T4}, 8")
            A(f"v_cndmask_b32 v{V_CPF}, v{V_T+5}, v{t0}, vcc")
    A(f"s_add_u32 s{S_WM}, s{S_X0}, {WS}")
    A(f"s_add_u32 s{S_WM2}, s{S_WM}, 8192")
    A(f"s_cmp_ge_u32 s{S_WAVE}, 2")
    A(f"s_cselect_b32 s{S_WM2}, {DUMMY}, s{S_WM2}")
    A(f"s_cselect_b32 s{S_WMM}, 0, -1")
    A(f"v_lshrrev_b32 v{t0}, 4, v0")
    A(f"v_bfe_u32 v{t1}, v0, 2, 2")
    A(f"v_lshl_add_u32 v{t1}, v{t0}, 3, v{t1}")
    A(f"v_and_b32 v{t0}, 1, v{t0}")
    A(f"v_mul_u32_u24 v{t1}, 192, v{t1}")
    A(f"v_lshlrev_b32 v{t0}, 1, v{t0}")
    A(f"v_and_b32 v{t2}, 3, v0")
    A(f"s_lshr_b32 s{S_T0}, s{S_WAVE}, 1")
    A(f"v_xor_b32 v{t2}, v{t2}, v{t0}")
    A(f"s_mul_i32 s{S_T0}, s{S_T0}, {480*192}")
    A(f"v_lshl_add_u32 v{t1}, v{t2}, 4, v{t1}")
    A(f"s_and_b32 s{S_T1}, s{S_WAVE}, 1")
    A(f"s_mul_i32 s{S_T1}, s{S_T1}, {4*192}")
    A(f"s_add_u32 s{S_T0}, s{S_T0}, s{S_T1}")
    A(f"s_lshl_b32 s{S_T1}, s{S_G}, 6")
    A(f"s_add_u32 s{S_T0}, s{S_T0}, s{S_T1}")
    A(f"v_add_u32 v{V_WD}, s{S_T0}, v{t1}")
    late = c.late_calc
    def tail_calc():
        if c.pfw_split < 15: wpf(V_PF2, c.pfw_split, 15)
        A(f"s_mov_b32 s{S_O+2}, {XBYTES}")
        A(f"s_mov_b32 s{S_O+3}, 0x20000")
        A(f"v_and_b32 v{V_T}, 15, v0")
        A(f"v_lshrrev_b32 v{V_T+1}, 4, v0")
        A(f"s_lshr_b32 s{S_T0}, s{S_WAVE}, 1")
        A(f"s_lshl_b32 s{S_T0}, s{S_T0}, 4")
        A(f"v_add_u32 v{V_T+4}, s{S_T0}, v{V_T}")
        for kw in range(5):
            A(f"v_add_u32 v{V_T+2}, {4-kw}, v{V_T+4}")
            A(f"v_lshrrev_b32 v{V_T+3}, 1, v{V_T+2}")
            A(f"v_and_b32 v{V_T+3}, 2, v{V_T+3}")
            A(f"v_xor_b32 v{V_T+3}, v{V_T+3}, v{V_T+1}")
            A(f"v_mul_u32_u24 v{V_T+2}, 192, v{V_T+2}")
            A(f"v_lshl_add_u32 v{V_XAA+kw}, v{V_T+3}, 4, v{V_T+2}")
            A(f"v_add_u32 v{V_XAR+kw}, {X2}, v{V_XAA+kw}")
        A(f"s_and_b32 s{S_T1}, s{S_WAVE}, 1")
        A(f"v_and_b32 v{V_T+2}, 1, v{V_T+1}")
        A(f"v_xor_b32 v{V_T+2}, s{S_T1}, v{V_T+2}")
        A(f"v_lshlrev_b32 v{V_T+2}, 5, v{V_T+2}")
        A(f"v_lshrrev_b32 v{V_T+3}, 2, v0")
        A(f"v_lshl_add_u32 v{V_T+2}, v{V_T+3}, 6, v{V_T+2}")
        A(f"v_and_b32 v{V_T+3}, 3, v0")
        A(f"v_lshl_add_u32 v{V_T+2}, v{V_T+3}, 3, v{V_T+2}")
        A(f"v_add_u32 v{V_TR}, {WS}, v{V_T+2}")
        A(f"v_add_u32 v{V_T+2}, s{S_W0}, v{V_T+4}")
        A(f"v_mul_u32_u24 v{V_T+2}, 192, v{V_T+2}")
        A(f"v_lshl_add_u32 v{V_T+2}, v{V_T+1}, 3, v{V_T+2}")
        A(f"s_lshl_b32 s{S_T0}, s{S_G}, 1")
        A(f"s_add_u32 s{S_T0}, s{S_T0}, s{S_T1}")
        A(f"s_lshl_b32 s{S_T0}, s{S_T0}, 5")
        A(f"v_add_u32 v{V_OUT}, s{S_T0}, v{V_T+2}")
    if not late: tail_calc()
    A("s_waitcnt lgkmcnt(0)")
    A(f"s_mov_b32 s{S_X}, s4"); A(f"s_mov_b32 s{S_X+1}, s5")
    A(f"s_mov_b32 s{S_Wt}, s6"); A(f"s_mov_b32 s{S_Wt+1}, s7")
    e.lstamp("karg")
    for r in c.direct: emit_now(e, x_ops(e, r))
    if c.pf_rows[1]: e.vmem(f"buffer_load_dword v{V_PFD}, v{V_PFX}, s[{S_X}:{S_X+3}], 0 offen", "pf")
    e.vmem(f"buffer_load_dword v{V_PFD+1}, v{V_PF}, s[{S_Wt}:{S_Wt+3}], 0 offen", "pf")
    if c.codepf: e.vmem(f"buffer_load_dword v{V_PFD+3}, v{V_CPF}, s[{S_PC}:{S_PC+3}], s{S_CPO} offen", "pf")
    if c.outpf:
        A(f"s_mov_b32 s{S_O+2}, {XBYTES}"); A(f"s_mov_b32 s{S_O+3}, 0x20000")
        A(f"v_cmp_gt_u32 vcc, 2, v0")
        A(f"v_mul_u32_u24 v{t0}, {14*ROWB}, v0")
        A("s_nop 0")
        A(f"v_cndmask_b32 v{t0}, v{V_T+5}, v{t0}, vcc")
        e.vmem(f"buffer_load_dword v{V_PFD+2}, v{t0}, s[{S_O}:{S_O+3}], s{S_OB} offen", "pf")
    e.lstamp("pf")
    if c.warm:
        A(f"v_mul_u32_u24 v48, 0x9e37, v0")
        A(f"v_add_u32 v48, 0x3c6ef372, v48")
        for r in range(49, 80):
            A(f"v_mul_u32_u24 v{r}, 0x5bd1, v{r-1}")
            A(f"v_xor_b32 v{r}, v{r}, v{r-1}")
        for r in range(48, 80):
            A(f"v_and_b32 v{r}, 0x807f807f, v{r}")
            A(f"v_or_b32 v{r}, 0x3d003d00, v{r}")
        A("s_nop 1")
        for k in range(c.warm):
            a_ = 48 + 4 * (k % 4); b_ = 64 + 4 * ((k // 4 + k) % 4)
            A(f"v_mfma_f32_16x16x32_bf16 v[168:171], v[{a_}:{a_+3}], v[{b_}:{b_+3}], " + ("0" if k == 0 else "v[168:171]"))
    for it in items[len(c.direct):c.nprol]:
        emit_now(e, x_ops(e, int(it[1:])) if it[0] == "x" else w_ops(e, int(it[1:])))
    if c.diag:
        e.lstamp("issued")
        nv = len(e.vm)
        seen = []
        for idx_, tg in enumerate(e.vm):
            if idx_ + 1 < nv and e.vm[idx_ + 1] == tg and tg != "pf": continue
            A(f"s_waitcnt vmcnt({nv - 1 - idx_})"); e.lstamp(tg + "_back")
    if late: tail_calc()

def b_read_to(e, row, f, reg, tag):
    kw, cc = divmod(f, 3)
    kind, off = xslot(row)
    base = V_XAA if kind == "A" else V_XAR
    e.lds(f"ds_read_b128 {reg}, v{base+kw} offset:{off + cc*64}", tag)
def tr_read(e, s, kh, h):
    e.lds(f"ds_read_b64_tr_b16 {wreg(kh, s, 2*h)}, v{V_TR} offset:{(s % NWS)*WSLOT + (2*kh + h)*1024}", f"t{s}_{kh}")
def out_ops(e, a, pair, o):
    vo = V_O + 2 * pair
    pre = [lambda: e.A(f"s_add_u32 s{S_OROW}, s{S_OROW}, s{S_LAST}")] if o == e.cfg.nrows - 1 else []
    return pre + [lambda: e.A(f"v_cvt_pk_bf16_f32 v{vo}, v{a}, v{a+1}"),
            lambda: e.A(f"v_cvt_pk_bf16_f32 v{vo+1}, v{a+2}, v{a+3}"),
            lambda: e.vmem(f"buffer_store_dwordx2 v[{vo}:{vo+1}], v{V_OUT}, s[{S_O}:{S_O+3}], s{S_OROW} offen {e.cfg.store_flags}".rstrip(), f"o{o}"),
            lambda: e.A(f"s_add_u32 s{S_OROW}, s{S_OROW}, {ROWB}")]

def out_ops_abs(e, a, pair, o):
    vo = V_O + 2 * pair
    return [lambda: e.A(f"s_add_u32 s{S_T6}, s{S_OB}, {o*ROWB}" if o else f"s_mov_b32 s{S_T6}, s{S_OB}"),
            lambda: e.A(f"v_cvt_pk_bf16_f32 v{vo}, v{a}, v{a+1}"),
            lambda: e.A(f"v_cvt_pk_bf16_f32 v{vo+1}, v{a+2}, v{a+3}"),
            lambda: e.vmem(f"buffer_store_dwordx2 v[{vo}:{vo+1}], v{V_OUT}, s[{S_O}:{S_O+3}], s{S_T6} offen {e.cfg.store_flags}".rstrip(), f"o{o}")]

class Gaps:
    def __init__(self, M, cap=1):
        self.M = M; self.g = [[] for _ in range(M)]; self.cap = cap
    def put(self, p, fn):
        self.g[min(max(p, 0), self.M - 1)].append(fn)
    def seq(self, ops, start, step=1, cap=None):
        cap = self.cap if cap is None else cap
        p = start
        for op in ops:
            while p < self.M - 1 and len(self.g[p]) >= cap: p += 1
            self.put(p, op); p = min(p + step, self.M - 1) if p < self.M - 1 else p
        return p

def block_a(e):
    c = e.cfg; RA = c.RA
    def khs(i): return [kh for kh in range(5) if 0 <= i - 4 + kh < RA]
    stream = list(c.stream)
    groups = [g.split(",") for g in c.groups.split("|")]
    nextw = 1 + max(int(it[1:]) for g in groups for it in g if it[0] == "w")
    groups += [[f"w{s}"] for s in range(nextw, 15)]
    order = []; rows_av = []; s_av = []; sched = set()
    mk_items = {}
    for gi, g in enumerate(groups):
        order.append(("M", gi)); mk_items[gi] = g
        for it in g:
            (rows_av if it[0] == "x" else s_av).append(int(it[1:]))
        for s in sorted(s_av):
            for r in sorted(rows_av, key=lambda r: (-len(khs(r)), r)):
                if (r, s) not in sched: sched.add((r, s)); order.append((r, s))
    assert len(sched) == len(stream) * 15
    w_marker = {int(it[1:]): gi for gi, g in mk_items.items() for it in g if it[0] == "w"}
    row_marker = {int(it[1:]): gi for gi, g in mk_items.items() for it in g if it[0] == "x"}
    nearly = len(c.groups.split("|"))
    mf = []; first = {}; mpos = {}
    def flush_group(grp, flip):
        if not c.omajor:
            for ent in grp:
                for kh in khs(ent[0]): mf.append((ent, kh))
            return
        for s_ in sorted(set(ent[1] for ent in grp)):
            lst = [(ent, kh) for ent in grp if ent[1] == s_ for kh in khs(ent[0])]
            lst.sort(key=lambda z: (z[0][0] - 4 + z[1], z[0][0]), reverse=flip[0])
            flip[0] = not flip[0]
            mf.extend(lst)
    grp = []; flip = [False]
    for ent in order + [("M", None)]:
        if ent[0] == "M":
            flush_group(grp, flip); grp = []
            if ent[1] is not None: mpos[ent[1]] = len(mf)
        else: grp.append(ent)
    for q_, (ent, kh) in enumerate(mf): first.setdefault(ent, q_)
    M = len(mf)
    mark_at = {}; prev = 0
    for p in sorted(mpos):
        q = mpos[p]
        if p >= nearly: q = max(prev, mpos[p] - c.wearly)
        elif p >= 1: q = max(prev, mpos[p] - c.early)
        mark_at[p] = q; prev = q
    tasks = []
    pairs = [ent for ent in order if ent[0] != "M"]
    last_use = {}
    for q, (ent, kh) in enumerate(mf): last_use[ent] = q
    for ent in pairs:
        tasks.append(dict(kind="b", ent=ent, ready=mark_at[row_marker[ent[0]]], due=first[ent], done=False))
    for s in range(15):
        for kh in range(5):
            due = min(q for q, (ent, k2) in enumerate(mf) if ent[1] == s and k2 == kh)
            for h in range(2):
                tasks.append(dict(kind="t", s=s, kh=kh, h=h, ready=mark_at[w_marker[s]], due=due, done=False))
    tasks.sort(key=lambda t: (t["due"], 0 if t["kind"] == "t" else 1))
    bslots = [None] * 15; bfree_at = [-1] * 15; bassign = {}
    def issue(t, q):
        if t["kind"] == "t": tr_read(e, t["s"], t["kh"], t["h"])
        else:
            k = min(range(15), key=lambda j: bfree_at[j])
            if bfree_at[k] >= q and bslots[k] is not None: return False
            ent = t["ent"]
            bslots[k] = ent; bfree_at[k] = last_use[ent]; bassign[ent] = k
            reg = V_B + 60 + 4 * k
            b_read_to(e, ent[0], ent[1], f"v[{reg}:{reg+3}]", f"pb{ent[0]}_{ent[1]}")
        t["done"] = True
        return True
    items = [it for g in c.groups.split("|") for it in g.split(",")]
    dplan = {}
    rest = [(it[0], int(it[1:])) for it in items[c.nprol:]]
    issued_w = [int(it[1:]) for it in items if it[0] == "w"]
    dplan[0] = list(rest)
    for s in range(max(issued_w) + 1, min(4, 15)): dplan[0].append(("w", s))
    for s in range(max(max(issued_w) + 1, 4), 15):
        dplan.setdefault(w_marker[s - 3], []).append(("w", s))
    if c.pfw_split < 15: dplan.setdefault(w_marker[c.pfwb_after], []).append(("pfw", 0))
    planned = []
    for part in c.def_plan.split("|"):
        wm, rows_ = part.split(":")
        rows_ = [int(r) for r in rows_.split(",")]
        dplan.setdefault(w_marker[int(wm)], []).extend([("x", r) for r in rows_]); planned += rows_
    late_rows = [r for r in c.deferred if r not in planned] + ([r for r in (8, 9, 10, 11, 12) if r not in planned and r not in c.stream] if c.merge else [12, 13])
    def ops_of(kind, a):
        if kind == "x": return x_ops(e, a)
        if kind == "w": return w_ops(e, a)
        return [lambda: e.vmem(f"buffer_load_dword v{V_PFD+2}, v{V_PF2}, s[{S_Wt}:{S_Wt+3}], 0 offen", "pf")]
    dq = []
    marks_sorted = sorted(mark_at)
    for p in marks_sorted:
        ops = []
        for kind, a in dplan.get(p, []): ops += ops_of(kind, a)
        if not ops: continue
        lo = mark_at[p]; hi = mark_at[p+1] if p + 1 in mark_at else M - 2
        span = 0 if p < nearly - 1 else max(hi - lo - len(ops) // 2, 0)
        for k, op in enumerate(ops): dq.append((lo + (k * span) // len(ops), op))
    dq.reverse()
    last_dma = [-10, False]
    def run_dma_op(force=False):
        _, op = dq.pop()
        n0 = len(e.L); op()
        if " lds" in e.L[-1] and re.search(r"\bm0,", e.L[n0-1]): e.L.insert(n0, "  s_nop 0")
    need = {p: list(mk_items[p]) for p in marks_sorted}
    prevw = {}
    for p in marks_sorted:
        ws = [int(it[1:]) for it in mk_items[p] if it[0] == "w"]
        if ws and ws[0] >= 1: prevw[p] = ws[0] - 1
    cnt = lambda tg: 3 if tg[0] == "w" else 2
    inited = set()
    deferred = list(c.deferred)
    par = len(deferred) % 2
    def setreg(k, f):
        b = V_B + ((k + par) % 2) * 60 + 4 * f
        return f"v[{b}:{b+3}]"
    vis = {}
    k0 = 0
    if par: vis[0] = [deferred[0]]; k0 = 1
    for k_ in range(k0, len(deferred), 2): vis[k_] = deferred[k_:k_+2]
    if c.merge: vis[len(deferred)] = [RA, RA + 1]
    dpre = c.dpre if par == 0 else 0
    q_d = M - dpre if dpre else None
    d_issued = []
    pre = {}
    for p in marks_sorted:
        if p >= nearly:
            pre.setdefault(max(mark_at[p] - 2, mark_at[p-1] + 1), []).append(("vm", p))
            pre.setdefault(max(mark_at[p] - 1, mark_at[p-1] + 1), []).append(("lg", p))
    def do_vm(p):
        while not all(e.vm.count(tg) == cnt(tg) for tg in need[p]): run_dma_op()
        e.wait_vm(*need[p])
    def do_lg(p, q):
        if p not in prevw: return
        sp = prevw[p]
        for t in tasks:
            if t["kind"] == "t" and t["s"] == sp and not t["done"]: issue(t, q)
        idxs = [i_ for i_, tg in enumerate(e.lg) if tg.startswith(f"t{sp}_")]
        e.wait_lg(e.lg[max(idxs)])
    for q in range(M):
        for kind, p in pre.get(q, []):
            if mark_at[p] > q:
                (do_vm(p) if kind == "vm" else do_lg(p, q))
        for p in marks_sorted:
            if mark_at[p] == q:
                do_lg(p, q); do_vm(p)
                e.A("s_barrier")
                if p == 0:
                    for _ in range(c.burst):
                        if dq: run_dma_op()
                if p in (0, nearly - 1, w_marker[4], w_marker[9], w_marker[14]): e.lstamp(f"M{p}:" + ",".join(mk_items[p]))
        if q_d is not None and q == q_d:
            while not all(e.vm.count(f"x{r_}") == 2 for r_ in vis[0]): run_dma_op()
            e.wait_vm(*[f"x{r_}" for r_ in vis[0]]); e.A("s_barrier")
        ent, kh = mf[q]
        late = [t for t in tasks if not t["done"] and t["due"] <= q]
        if late:
            for t in late:
                assert t["ready"] <= q, (t, q)
                ok = issue(t, q); assert ok
            for t in tasks:
                if t["done"] or t["ready"] > q: continue
                if len(e.lg) - e.lg_done >= 13: break
                if t["kind"] == "b" and t["due"] - q > c.look: continue
                issue(t, q)
        n0 = len(e.L)
        e.wait_lg(f"t{ent[1]}_{kh}", f"pb{ent[0]}_{ent[1]}", age=5)
        o = ent[0] - 4 + kh; a = V_ACCA + 4 * o
        src = f"v[{a}:{a+3}]" if o in inited else "0"
        inited.add(o)
        reg = V_B + 60 + 4 * bassign[ent]
        e.mfma(f"v_mfma_f32_16x16x32_bf16 v[{a}:{a+3}], {wreg(kh, ent[1])}, v[{reg}:{reg+3}], {src}")
        budget = 2
        early_phase = q < mark_at[nearly - 1]
        if early_phase: budget = 4
        def try_lds():
            for t in tasks:
                if t["done"] or t["ready"] > q: continue
                if t["kind"] == "b" and t["due"] - q > c.look: continue
                if len(e.lg) - e.lg_done >= 14: return False
                if issue(t, q + 1): return True
            return False
        def try_dma():
            if dq and dq[-1][0] <= q: run_dma_op(); return True
            return False
        def try_d():
            if q_d is not None and q >= q_d and len(d_issued) < 15 and len(e.lg) - e.lg_done < 14:
                f = len(d_issued); d_issued.append(f)
                b_read_to(e, deferred[0], f, setreg(0, f), f"d0_{f}"); return True
            return False
        _lds = try_lds
        def try_lds(): return _lds() or try_d()
        turn = [try_lds, try_dma]
        k = 0
        while budget > 0:
            if turn[k % 2]() or turn[(k + 1) % 2](): budget -= 1; k += 1
            else: break
    while dq: run_dma_op()
    if c.codepf2: e.vmem(f"buffer_load_dword v{V_PFD+3}, v{V_CPF}, s[{S_PC}:{S_PC+3}], s{S_CPO} offen", "pf")
    e.lstamp("streamend")
    seq = deferred + [RA]
    if q_d is None:
        e.wait_vm(*[f"x{r_}" for r_ in vis[0]]); e.A("s_barrier")
    for f in range(len(d_issued), 15): b_read_to(e, seq[0], f, setreg(0, f), f"d0_{f}")
    for k, r in enumerate(deferred):
        mfs = []
        for kh in khs(r):
            o = r - 4 + kh; a = V_ACCA + 4 * o
            for f in range(15):
                src = f"v[{a}:{a+3}]" if o in inited else "0"
                inited.add(o)
                mfs.append((f, f"v_mfma_f32_16x16x32_bf16 v[{a}:{a+3}], {wreg(kh, f)}, {setreg(k, f)}, {src}"))
        Mk = len(mfs); nxt = seq[k + 1]
        G = Gaps(Mk)
        if (k + 1) in vis:
            e.wait_vm(*[f"x{r_}" for r_ in vis[k+1]]); e.A("s_barrier")
        span = max(Mk - 6, 15)
        for f in range(15): G.put(min((f * span) // 15, Mk - 1), (lambda f=f: b_read_to(e, nxt, f, setreg(k + 1, f), f"d{k+1}_{f}")))
        if c.merge and k >= 1:
            op_ = deferred[k-1]
            assert op_ <= 3
            G.seq(out_ops_abs(e, V_ACCA + 4 * op_, 1, op_), min(9, Mk - 6), step=1, cap=2)
        ntake = 2 if (k < 1 or c.merge) else 1
        pos = 2
        for _ in range(ntake):
            if late_rows and (Mk >= 30 or (c.merge and Mk >= 15 and _ == 0)):
                pos = G.seq(x_ops(e, late_rows.pop(0)), pos, step=1, cap=2)
        for p_, (f, s_) in enumerate(mfs):
            if p_ < 15: e.wait_lg(f"d{k}_{f}", age=5)
            e.mfma(s_)
            for fn in G.g[p_]: fn()
    e.late_rows = late_rows
    e.dtag = f"d{len(deferred)}"
    e.lstamp("defend")

def step(e, i, chains, last_row, extra_out=(), extra_dma=(), prev_tags=None, skip=None):
    c = e.cfg; RA = c.RA
    mf = []
    for kh in chains:
        o = i - 4 + kh; a = acc(o)
        for f in range(15):
            src = "0" if (kh == 4 and f == 0) else f"v[{a}:{a+3}]"
            mf.append((f, f"v_mfma_f32_16x16x32_bf16 v[{a}:{a+3}], {wreg(kh, f)}, {breg(i, f)}, {src}"))
    M = len(mf)
    U = M - 15 if skip else M
    G = Gaps(M)
    nxt = i + 1
    nn = i + 2
    S0 = (RA + 2) if c.merge else NA
    did_bar = nxt <= last_row and nxt >= S0
    if did_bar: e.A("s_barrier")
    if nxt <= last_row:
        span = max(U - 9, 15) if U >= 15 else U
        for f in range(15): G.put(min((f * span) // 15, U - 1), (lambda f=f: b_read_to(e, nxt, f, breg(nxt, f), f"b{nxt}_{f}")))
    r4 = i + 4
    if i >= NA and r4 <= last_row: G.seq(x_ops(e, r4, seq=True), c.dma_pos, step=2)
    pos_ = 1
    for r_ in extra_dma: pos_ = G.seq(x_ops(e, r_), pos_ if c.merge else 1, step=1, cap=(2 if M <= 30 else 1))
    tail = []
    if 0 in chains and (i - 4 >= RA or c.merge):
        o = i - 4; endp = chains.index(0) * 15 + 14
        ops = out_ops(e, acc(o), 0, o)
        if endp + 14 < M: G.seq(ops, max(endp + 9, c.out_pos if M == 75 else 0), step=1)
        else: tail = ops
    for k, (a, o) in enumerate(extra_out):
        if c.merge: G.seq(out_ops_abs(e, a, 1, o), 9, step=1)
        else: G.seq(out_ops(e, a, k % 2, o), (k * M) // max(len(extra_out), 1) + 1, step=1, cap=(2 if M <= 45 else 1))
    if nn <= last_row and nn >= S0:
        G.put(U - 3, lambda: e.wait_vm(f"x{nn}", force=(i >= NA)))
    short = U < 45
    lab = f"{i if i < NA or i >= c.nrows else 'l' + str((i - NA) % 4)}"
    for p, (f, s) in enumerate(mf):
        if skip and p == U:
            e.A(skip); e.A(f"s_cbranch_scc1 L_skip{lab}")
            mark = len(e.L)
        if prev_tags and p < 15: e.wait_lg(prev_tags(f), age=5)
        e.mfma(s)
        for fn in G.g[p]: fn()
        if p == U - 2 and nxt <= last_row and not short: e.wait_lg(f"b{nxt}_14")
    if skip:
        fill = [l for l in e.L[mark:] if "v_mfma" not in l]
        if fill:
            e.A(f"s_branch L_join{lab}")
            e.raw(f"L_skip{lab}:")
            if any("v_cvt" in l for l in fill): e.A("s_nop 7"); e.A("s_nop 1")
            e.L.extend(fill)
            e.raw(f"L_join{lab}:")
        else:
            e.raw(f"L_skip{lab}:")
    if tail:
        e.A("s_nop 7"); e.A("s_nop 1")
        for fn in tail: fn()
    if nxt <= last_row and short and (nn <= last_row and nn >= S0): e.wait_lg(f"b{nxt}_14")

def build(cfg):
    e = Em(cfg); n = cfg.nrows; RA = cfg.RA
    last_row = n + 3
    e.raw("; direct 5x5 circular convolution; weights stationary in registers; start block overlaps the weight arrival")
    e.raw(f"; @launch grid=(252,1,1) block=(256,1,1) lds={LDS_BYTES}")
    e.raw('.amdgcn_target "amdgcn-amd-amdhsa--gfx950"')
    e.raw(".text")
    e.raw(".globl standalone__fft_conv__vision_kernel")
    if cfg.align12: e.raw(".p2align 12")
    e.raw(".p2align 8")
    e.raw(".type standalone__fft_conv__vision_kernel,@function")
    e.raw("standalone__fft_conv__vision_kernel:")
    prologue(e)
    block_a(e)
    if cfg.merge:
        RA_ACC[0] = RA
        def chains_for(i): return [kh for kh in range(5) if 0 <= i - 4 + kh < n]
        flush = {RA: [cfg.deferred[-1]]}
        lr = list(e.late_rows) + [13, 14, 15]
        predma = {RA: lr[:2], RA + 1: lr[2:4], RA + 2: lr[4:6], RA + 3: lr[6:]}
    else:
        assert not e.late_rows
        def chains_for(i): return [kh for kh in range(5) if RA <= i - 4 + kh < n]
        flush = {RA + 1: [0, 1], RA + 2: [2, 3, 4], RA + 3: [5, 6, 7]}
        predma = {RA: [14], RA + 1: [15]}
    i = RA
    while i < NA:
        ex = [(V_ACCA + 4 * o, o) for o in flush.get(i, [])]
        pt = (lambda f: f"{e.dtag}_{f}") if i == RA else (lambda f, i=i: f"b{i}_{f}")
        step(e, i, chains_for(i), last_row, ex, predma.get(i, []), pt); i += 1
    if cfg.codepf3: e.vmem(f"buffer_load_dword v{V_PFD+3}, v{V_CPF}, s[{S_PC}:{S_PC+3}], s{S_CPO} offen", "pf")
    e.lstamp("rampend")
    e.A(f"s_add_u32 s{S_T0}, s{S_XBASE}, {(NA+4)*ROWB}")
    e.A(f"s_sub_u32 s{S_T1}, s{S_T0}, {XBYTES}")
    e.A(f"s_min_u32 s{S_XROW}, s{S_T0}, s{S_T1}")
    def skip_of(ii):
        if not cfg.skipdup: return None
        if ii == n - 1 or (cfg.loop and NA <= ii < n and (ii - NA) % 4 == (n - 1 - NA) % 4):
            return f"s_cmp_eq_u32 s{S_CNT}, s{S_DUP}" if cfg.loop else f"s_cmp_eq_u32 s{S_DUP}, 0"
        if n <= ii < last_row: return f"s_cmp_eq_u32 s{S_DUP}, 0"
        return None
    def last_step(ii):
        if cfg.skipdup:
            e.A(f"s_cmp_eq_u32 s{S_DUP}, 0"); e.A("s_cbranch_scc1 L_done")
        step(e, ii, chains_for(ii), last_row, prev_tags=(lambda f, ii=ii: f"b{ii}_{f}"))
        if cfg.skipdup: e.raw("L_done:")
    if not cfg.loop:
        while i <= last_row:
            if i == last_row: last_step(i)
            else: step(e, i, chains_for(i), last_row, prev_tags=(lambda f, i=i: f"b{i}_{f}"), skip=skip_of(i))
            i += 1
            if i <= last_row: e.lstamp(f"step{i}")
    else:
        steady = list(range(NA, n)); nst = len(steady)
        start = len(e.L); seg = []
        for ii in steady:
            s0 = len(e.L)
            step(e, ii, chains_for(ii), last_row, prev_tags=(lambda f, ii=ii: f"b{ii}_{f}"), skip=skip_of(ii))
            seg.append(e.L[s0:])
        e.L = e.L[:start]
        for k in range(4, nst):
            a, b = seg[k % 4], seg[k]
            assert len(a) == len(b), f"non periodic step {steady[k]}"
            for j in range(len(a)):
                if a[j] != b[j]:
                    ma = re.fullmatch(r"  s_waitcnt vmcnt\((\d+)\)", a[j]); mb = re.fullmatch(r"  s_waitcnt vmcnt\((\d+)\)", b[j])
                    assert ma and mb, (a[j], b[j])
                    a[j] = f"  s_waitcnt vmcnt({min(int(ma.group(1)), int(mb.group(1)))})"
        full, rem = divmod(nst, 4)
        assert rem != 0 and full == 1
        e.A(f"s_mov_b32 s{S_CNT}, {full}")
        e.raw(".p2align 3")
        e.raw("L_loop:")
        for k in range(4):
            if k == rem:
                e.A(f"s_cmp_eq_u32 s{S_CNT}, 0")
                e.A("s_cbranch_scc1 L_down")
                e.A(f"s_sub_u32 s{S_CNT}, s{S_CNT}, 1")
            e.L.extend(seg[k])
        e.A("s_branch L_loop")
        e.raw("L_down:")
        if cfg.wbl2:
            e.A(f"s_lshr_b32 s{S_T6}, s2, 3"); e.A(f"s_add_u32 s{S_T6}, s{S_T6}, s{S_WAVE}")
            e.A(f"s_cmp_lg_u32 s{S_T6}, 0"); e.A("s_cbranch_scc1 L_nowb")
            e.A(f"buffer_wbl2 {cfg.wbl2}")
            e.raw("L_nowb:")
        e.lstamp("loopend")
        i = n
        while i <= last_row:
            if i == last_row: last_step(i)
            else: step(e, i, chains_for(i), last_row, prev_tags=(lambda f, i=i: f"b{i}_{f}"), skip=skip_of(i))
            i += 1
    if cfg.spin:
        e.lstamp("mfmaend"); e.A("s_waitcnt vmcnt(0) lgkmcnt(0)")
        ia, ib, K = e.lnames.index(cfg.spin[0]), e.lnames.index(cfg.spin[1]), cfg.spin[2]
        e.A(f"s_sub_u32 s50, s{64+2*ib}, s{64+2*ia}")
        e.A(f"s_mul_i32 s50, s50, {K}")
        e.A("s_memtime s[52:53]"); e.A("s_waitcnt lgkmcnt(0)")
        e.raw("L_spin:")
        e.A("s_memtime s[54:55]"); e.A("s_waitcnt lgkmcnt(0)")
        e.A("s_sub_u32 s51, s54, s52"); e.A("s_cmp_lt_u32 s51, s50"); e.A("s_cbranch_scc1 L_spin")
    elif cfg.lst:
        e.lstamp("mfmaend"); e.A("s_waitcnt vmcnt(0)"); e.lstamp("drain")
        e.A("s_memrealtime s[62:63]")
        e.A("s_waitcnt lgkmcnt(0)")
        e.A(f"s_load_dwordx2 s[{S_WS}:{S_WS+1}], s[0:1], 32")
        e.A(f"v_mov_b32 v{V_ST}, 0")
        for k in range(e.nl): e.A(f"v_writelane_b32 v{V_ST}, s{64+2*k}, {k}")
        e.A(f"v_writelane_b32 v{V_ST}, s60, 62"); e.A(f"v_writelane_b32 v{V_ST}, s62, 63")
        e.A("s_waitcnt lgkmcnt(0)")
        e.A(f"s_lshl_b32 s{S_T0}, s2, 2")
        e.A(f"s_add_u32 s{S_T0}, s{S_T0}, s{S_WAVE}")
        e.A(f"s_lshl_b32 s{S_T0}, s{S_T0}, 8")
        e.A(f"s_add_u32 s{S_WS}, s{S_WS}, s{S_T0}")
        e.A(f"s_addc_u32 s{S_WS+1}, s{S_WS+1}, 0")
        e.A("v_lshlrev_b32 v1, 2, v0")
        e.A(f"global_store_dword v1, v{V_ST}, s[{S_WS}:{S_WS+1}]")
        print("lstamps:", e.nl, e.lnames)
    if cfg.endwait: e.A("s_waitcnt vmcnt(0)")
    e.raw("L_end:")
    e.A("s_endpgm")
    e.raw("L_code_end:")
    e.raw('.section .rodata,"a"')
    e.raw(".p2align 6")
    e.raw(".amdhsa_kernel standalone__fft_conv__vision_kernel")
    for l in ("next_free_vgpr 512", "next_free_sgpr " + ("100" if (cfg.lst or cfg.spin) else "64"), "accum_offset 256", "group_segment_fixed_size 0", "kernarg_size 40",
              "user_sgpr_count 2", "user_sgpr_kernarg_segment_ptr 1", "system_sgpr_workgroup_id_x 1"):
        e.raw("  .amdhsa_" + l)
    e.raw(".end_amdhsa_kernel")
    out = []
    for l in e.L:
        if " lds" in l and "buffer_load" in l and out and re.search(r"\bm0,", out[-1]): out.append("  s_nop 0")
        out.append(l)
    e.L = out
    import subprocess, tempfile, os
    size = 0x7fff
    for _ in range(2):
        txt = "\n".join(l.replace("CODE_BYTES", str(size)) for l in e.L) + "\n"
        with tempfile.TemporaryDirectory() as td:
            open(td + "/k.s", "w").write(txt)
            subprocess.run(["clang", "-x", "assembler", "-target", "amdgcn-amd-amdhsa", "-mcpu=gfx950", "-c", td + "/k.s", "-o", td + "/k.o"], check=True)
            dis = subprocess.run(["llvm-objdump", "-d", "--mcpu=gfx950", td + "/k.o"], capture_output=True, text=True).stdout
        sym = {}
        for l in dis.splitlines():
            m_ = re.match(r"([0-9a-f]{16}) <(.*)>:", l)
            if m_: sym[m_.group(2)] = int(m_.group(1), 16)
        size = sym["L_end"] + 4 - sym["standalone__fft_conv__vision_kernel"]
        assert size - 4 > sym["L_pc"] - sym["standalone__fft_conv__vision_kernel"] if "L_pc" in sym else True
    e.code_size = size
    e.L = [l.replace("CODE_BYTES", str(size)) for l in e.L]
    open(cfg.name, "w").write("\n".join(e.L) + "\n")
    return e

if __name__ == "__main__":
    ap = argparse.ArgumentParser()
    ap.add_argument("-o", default=Cfg.name)
    ap.add_argument("--lst", action="store_true")
    ap.add_argument("--noloop", action="store_true")
    ap.add_argument("--store", default="")
    ap.add_argument("--look", type=int, default=12)
    ap.add_argument("--early", type=int, default=8)
    ap.add_argument("--wearly", type=int, default=26)
    ap.add_argument("--nocodepf", action="store_true")
    ap.add_argument("--kwait0", action="store_true")
    ap.add_argument("--warm", type=int, default=0)
    ap.add_argument("--rtstamp", action="store_true")
    ap.add_argument("--outpf", action="store_true")
    ap.add_argument("--wbl2", default="")
    ap.add_argument("--burst", type=int, default=0)
    ap.add_argument("--no_merge", action="store_true")
    ap.add_argument("--no_omajor", action="store_true")
    ap.add_argument("--no_skipdup", action="store_true")
    ap.add_argument("--dpre", type=int, default=14)
    ap.add_argument("--early_calc", action="store_true")
    ap.add_argument("--endwait", action="store_true")
    ap.add_argument("--spin", default="")
    ap.add_argument("--codepf2", action="store_true")
    ap.add_argument("--codepf3", action="store_true")
    ap.add_argument("--codepf_all", action="store_true")
    ap.add_argument("--stepst", action="store_true")
    ap.add_argument("--dma_pos", type=int, default=18)
    ap.add_argument("--out_pos", type=int, default=0)
    ap.add_argument("--diag", action="store_true")
    ap.add_argument("--groups", default=Cfg.groups)
    ap.add_argument("--nprol", type=int, default=4)
    ap.add_argument("--direct", default="4,5")
    ap.add_argument("--pf_rows", default="6,2")
    ap.add_argument("--stream", default="4,5,6,7")
    ap.add_argument("--deferred", default="3,8,2,9,1,10,0,11")
    ap.add_argument("--def_plan", default=Cfg.def_plan)
    ap.add_argument("--pfw_split", type=int, default=15)
    ap.add_argument("--pfwb_after", type=int, default=3)
    a = ap.parse_args()
    cfg = Cfg()
    cfg.name = a.o; cfg.lst = a.lst; cfg.loop = not a.noloop; cfg.store_flags = a.store
    cfg.direct = [int(x) for x in a.direct.split(",")]; cfg.pf_rows = tuple(int(x) for x in a.pf_rows.split(","))
    cfg.stream = [int(x) for x in a.stream.split(",")]; cfg.deferred = [int(x) for x in a.deferred.split(",")]; cfg.def_plan = a.def_plan
    cfg.groups = a.groups; cfg.nprol = a.nprol; cfg.pfw_split = a.pfw_split; cfg.pfwb_after = a.pfwb_after; cfg.diag = a.diag; cfg.dma_pos = a.dma_pos; cfg.out_pos = a.out_pos; cfg.stepst = a.stepst; cfg.codepf2 = a.codepf2; cfg.codepf_all = a.codepf_all; cfg.codepf3 = a.codepf3; cfg.spin = (lambda p: (p[0], p[1], int(p[2])) )(a.spin.split("/")) if a.spin else None
    if cfg.spin: cfg.lst = True
    cfg.endwait = a.endwait; cfg.late_calc = not a.early_calc; cfg.dpre = a.dpre; cfg.omajor = not a.no_omajor; cfg.skipdup = not a.no_skipdup; cfg.merge = not a.no_merge; cfg.burst = a.burst; cfg.wbl2 = a.wbl2; cfg.outpf = a.outpf; cfg.rtstamp = a.rtstamp; cfg.warm = a.warm; cfg.kwait0 = a.kwait0; cfg.look = a.look; cfg.early = a.early; cfg.wearly = a.wearly; cfg.codepf = not a.nocodepf
    e = build(cfg)
    print("lines", len(e.L), "LDS", LDS_BYTES, "code", e.code_size)
```

```python
import sys, argparse, re

class Cfg:
    nrows = 19
    RA = 8
    store_flags = ""
    lst = False
    loop = True
    look = 12
    early = 8
    wearly = 26
    codepf = True
    order = ''
    last_flags = None
    xspin = None
    kwait0 = False
    warm = 0
    rtstamp = False
    outpf = False
    wbl2 = ''
    burst = 0
    merge = True
    omajor = True
    skipdup = True
    dpre = 14
    late_calc = True
    endwait = False
    spin = None
    codepf2 = False
    codepf3 = False
    codepf_all = False
    stepst = False
    dma_pos = 18
    out_pos = 0
    diag = False
    groups = "x4,x5,w0|x6,x7|w1|w2"
    direct = [4, 5]
    pf_rows = (6, 2)
    stream = [4, 5, 6, 7]
    deferred = [3, 8, 2, 9, 1, 10, 0, 11]
    nprol = 4
    pfw_split = 15
    pfwb_after = 3
    def_plan = "11:3,8|12:2,9|14:1,10"
    align12 = True
    name = "standalone__fft_conv__vision.s"

H = W = 224
ROWB = W * 192
XBYTES = H * ROWB
WBYTES = 460800
SLOTB = 7168
NA = 12
XR = NA * SLOTB
X2 = 10 * SLOTB
WS = XR + 4 * SLOTB
WSLOT = 10240
NWS = 4
DUMMY = WS + NWS * WSLOT
LDS_BYTES = DUMMY + 1024

S_X, S_Wt, S_O = 8, 12, 16
S_WS = 20
S_WAVE = 22
S_X0, S_X1, S_XM = 23, 24, 25
S_XBASE, S_XROW, S_OROW, S_CNT = 26, 27, 28, 29
S_T0, S_T1, S_T2, S_T3 = 30, 31, 32, 33
S_WM, S_G, S_W0, S_WM2, S_WMM = 34, 35, 36, 37, 38
S_T4, S_T5 = 39, 40
S_PC = 44
S_CPO = 48
S_DUP = 49
S_OB = 50
S_T6 = 51
S_LAST = 41
V_XAA = 2; V_XAR = 7
V_XD0, V_XD1 = 12, 13
V_WD, V_TR, V_OUT, V_PF = 14, 15, 16, 17
V_T = 18
V_O = 24
V_ST = 28
V_ACC = 32
V_B = 48
V_ACCA = 168
V_PFX = 200
V_PFD = 202
V_PF2 = 206
V_CPF = 207
V_WT = 212

def wreg(kh, f, lo=None):
    i = kh * 15 + f
    if i < 64: base, t = 4 * i, "a"
    else: base, t = V_WT + 4 * (i - 64), "v"
    if lo is None: return f"{t}[{base}:{base+3}]"
    return f"{t}[{base+lo}:{base+lo+1}]"
def breg(row, f):
    b = V_B + (row % 2) * 60 + 4 * f
    return f"v[{b}:{b+3}]"
RA_ACC = [0]
def acc(o): return V_ACCA + 4 * o if o < RA_ACC[0] else V_ACC + 4 * (o % 4)
def xlds(row): return row * SLOTB if row < NA else XR + ((row - NA) % 4) * SLOTB
def xslot(row):
    a = xlds(row)
    return ("A", a) if a < X2 else ("R", a - X2)

class Em:
    def __init__(self, cfg):
        self.cfg = cfg; self.L = []
        self.vm = []; self.vm_done = 0
        self.lg = []; self.lg_done = 0; self.lg_pos = []
        self.pos = 0
        self.nl = 0; self.lnames = []
    def A(self, s): self.L.append("  " + s)
    def raw(self, s): self.L.append(s)
    def mfma(self, s): self.A(s); self.pos += 1
    def vmem(self, s, tag): self.A(s); self.vm.append(tag)
    def lds(self, s, tag): self.A(s); self.lg.append(tag); self.lg_pos.append(self.pos)
    def vm_need(self, tags):
        idx = -1
        for tag in tags:
            assert tag in self.vm, (tag, self.vm)
            idx = max(idx, max(i for i, t in enumerate(self.vm) if t == tag))
        return idx
    def wait_vm(self, *tags, force=False):
        idx = self.vm_need(tags)
        if idx < self.vm_done and not force: return False
        n = min(len(self.vm) - 1 - idx, 63)
        self.A(f"s_waitcnt vmcnt({n})"); self.vm_done = max(self.vm_done, len(self.vm) - n)
        return True
    def wait_lg(self, *tags, age=None):
        idx = -1
        for tag in tags:
            assert tag in self.lg, tag
            idx = max(idx, max(i for i, t in enumerate(self.lg) if t == tag))
        if idx < self.lg_done: return False
        if age is not None:
            for i in range(idx + 1, len(self.lg)):
                if self.pos - self.lg_pos[i] >= age: idx = i
        n = min(len(self.lg) - 1 - idx, 15)
        self.A(f"s_waitcnt lgkmcnt({n})"); self.lg_done = len(self.lg) - n
        return True
    def lstamp(self, name=""):
        if not self.cfg.lst: return
        if self.cfg.stepst and not (name.startswith("step") or name in ("start", "M0:x4,w0", "M5:w4", "M10:w9", "streamend", "defend", "rampend", "mfmaend", "drain")): return
        if self.cfg.stepst and name in ("step14", "step16", "step18", "step21", "step22"): return
        k = self.nl
        if k >= 18: return
        self.A(f"{'s_memrealtime' if self.cfg.rtstamp else 's_memtime'} s[{64+2*k}:{65+2*k}]")
        self.lnames.append(name); self.nl = k + 1

def x_ops(e, row, seq=False):
    base = xlds(row); ops = []
    I = lambda s: (lambda: e.A(s))
    if not seq:
        ops += [I(f"s_add_u32 s{S_T0}, s{S_XBASE}, {row*ROWB}"), I(f"s_sub_u32 s{S_T1}, s{S_T0}, {XBYTES}"),
                I(f"s_min_u32 s{S_XROW}, s{S_T0}, s{S_T1}")]
    ops += [I(f"s_add_u32 m0, s{S_X0}, {base}"),
            lambda: e.vmem(f"buffer_load_dwordx4 v{V_XD0}, s[{S_X}:{S_X+3}], s{S_XROW} offen lds", f"x{row}")]
    if base: ops += [I(f"s_and_b32 s{S_T2}, s{S_XM}, {base}"), I(f"s_add_u32 m0, s{S_X1}, s{S_T2}")]
    else: ops += [I(f"s_mov_b32 m0, s{S_X1}")]
    ops += [lambda: e.vmem(f"buffer_load_dwordx4 v{V_XD1}, s[{S_X}:{S_X+3}], s{S_XROW} offen lds", f"x{row}")]
    if seq:
        ops += [I(f"s_add_u32 s{S_XROW}, s{S_XROW}, {ROWB}"), I(f"s_sub_u32 s{S_T1}, s{S_XROW}, {XBYTES}"),
                I(f"s_min_u32 s{S_XROW}, s{S_XROW}, s{S_T1}")]
    return ops
def w_ops(e, s):
    ops = []
    I = lambda t: (lambda: e.A(t))
    for m in range(3):
        off = (s % NWS) * WSLOT
        ops.append(I(f"s_mov_b32 s{S_T3}, {(32*s + 960*m)*192}"))
        if m < 2: ops.append(I(f"s_add_u32 m0, s{S_WM}, {off + 4*m*1024}"))
        elif off: ops += [I(f"s_and_b32 s{S_T4}, s{S_WMM}, {off}"), I(f"s_add_u32 m0, s{S_WM2}, s{S_T4}")]
        else: ops.append(I(f"s_mov_b32 m0, s{S_WM2}"))
        ops.append(lambda m=m: e.vmem(f"buffer_load_dwordx4 v{V_WD}, s[{S_Wt}:{S_Wt+3}], s{S_T3} offen lds", f"w{s}"))
    return ops
def emit_now(e, ops):
    for op in ops:
        n0 = len(e.L)
        prev = e.L[-1]
        tmp = len(e.L); op()
        if " lds" in e.L[-1] and re.search(r"\bm0,", e.L[tmp-1]):
            e.L.insert(tmp, "  s_nop 0")

def prologue(e):
    c = e.cfg; A = e.A
    t0, t1, t2, t3 = V_T, V_T+1, V_T+2, V_T+3
    A("s_load_dwordx4 s[4:7], s[0:1], 0")
    A(f"s_load_dwordx2 s[{S_O}:{S_O+1}], s[0:1], 16")
    A("s_cmp_ge_u32 s2, 252")
    A("s_cbranch_scc1 L_end")
    e.lstamp("start")
    if c.lst: A("s_memrealtime s[60:61]")
    if c.kwait0:
        A("s_waitcnt lgkmcnt(0)"); e.lstamp("k0")
    A("v_lshrrev_b32 v1, 6, v0")
    A("v_and_b32 v0, 63, v0")
    A(f"v_readfirstlane_b32 s{S_WAVE}, v1")
    A(f"s_lshr_b32 s{S_T0}, s2, 3")
    A(f"s_and_b32 s{S_T1}, s2, 7")
    A(f"s_mul_i32 s{S_T2}, s{S_T0}, 86")
    A(f"s_lshl_b32 s{S_T4}, s{S_T0}, 2")
    A(f"s_lshr_b32 s{S_T2}, s{S_T2}, 8")
    A(f"s_mul_i32 s{S_T1}, s{S_T1}, 10")
    A(f"s_mul_i32 s{S_T3}, s{S_T2}, 3")
    A(f"s_add_u32 s{S_T1}, s{S_T1}, s{S_T2}")
    A(f"s_sub_u32 s{S_G}, s{S_T0}, s{S_T3}")
    A("s_cmp_lt_u32 s2, 240")
    A("s_cbranch_scc1 L_map_done")
    A(f"s_sub_u32 s{S_T0}, s2, 240")
    A(f"s_mul_i32 s{S_T2}, s{S_T0}, 86")
    A(f"s_lshr_b32 s{S_T2}, s{S_T2}, 8")
    A(f"s_mul_i32 s{S_T3}, s{S_T2}, 3")
    A(f"s_sub_u32 s{S_G}, s{S_T0}, s{S_T3}")
    A(f"s_add_u32 s{S_T1}, s{S_T2}, 80")
    e.raw("L_map_done:")
    A(f"s_add_u32 s{S_T4}, s{S_T4}, s{S_WAVE}")
    A(f"s_mul_i32 s{S_T2}, s{S_T1}, 9363")
    A(f"s_lshl_b32 s{S_T5}, s{S_WAVE}, 6")
    A(f"s_lshr_b32 s{S_T2}, s{S_T2}, 16")
    A(f"v_add_u32 v{t0}, s{S_T5}, v0")
    A(f"s_mul_i32 s{S_T3}, s{S_T2}, 7")
    A(f"s_sub_u32 s{S_T3}, s{S_T1}, s{S_T3}")
    A(f"s_mul_i32 s{S_T0}, s{S_T3}, 86")
    A(f"s_lshl_b32 s{S_W0}, s{S_T3}, 5")
    A(f"s_lshr_b32 s{S_T0}, s{S_T0}, 8")
    A(f"s_mul_i32 s{S_T0}, s{S_T0}, 3")
    A(f"s_sub_u32 s{S_T0}, s{S_T3}, s{S_T0}")
    A(f"s_add_u32 s{S_T1}, s{S_T2}, s{S_T0}")
    A(f"s_add_u32 s{S_T3}, s{S_T1}, 2")
    A(f"s_mul_i32 s{S_T3}, s{S_T3}, 86")
    A(f"s_lshr_b32 s{S_T3}, s{S_T3}, 8")
    A(f"s_cmp_ge_u32 s{S_T0}, 1")
    A(f"s_cselect_b32 s{S_T0}, 1, 0")
    A(f"s_sub_u32 s{S_T3}, s{S_T3}, s{S_T0}")
    A(f"s_mul_i32 s{S_T0}, s{S_T2}, 19")
    A(f"s_sub_u32 s{S_T0}, s{S_T0}, s{S_T3}")
    A(f"s_mul_i32 s{S_OROW}, s{S_T0}, {ROWB}")
    A(f"s_add_u32 s{S_XBASE}, s{S_OROW}, {(H-4)*ROWB}")
    if c.merge:
        A(f"s_mov_b32 s{S_OB}, s{S_OROW}")
        A(f"s_add_u32 s{S_OROW}, s{S_OROW}, {4*ROWB}")
    A(f"s_mul_i32 s{S_LAST}, s{S_T1}, 86")
    A(f"s_lshr_b32 s{S_LAST}, s{S_LAST}, 8")
    A(f"s_mul_i32 s{S_LAST}, s{S_LAST}, 3")
    A(f"s_cmp_eq_u32 s{S_LAST}, s{S_T1}")
    A(f"s_cselect_b32 s{S_DUP}, 0, -1")
    A(f"s_cselect_b32 s{S_LAST}, 0x40000000, 0")
    A(f"s_add_u32 s{S_T0}, s{S_W0}, {W-4}")
    for pi in range(2):
        dst = V_XD0 if pi == 0 else V_XD1
        if pi: A(f"v_add_u32 v{t0}, 256, v{t0}")
        A(f"v_mul_u32_u24 v{t1}, 5462, v{t0}")
        A(f"v_lshrrev_b32 v{t1}, 16, v{t1}")
        A(f"v_mul_u32_u24 v{t2}, 12, v{t1}")
        A(f"v_lshrrev_b32 v{t3}, 1, v{t1}")
        A(f"v_sub_u32 v{t2}, v{t0}, v{t2}")
        A(f"v_and_b32 v{t3}, 2, v{t3}")
        A(f"v_add_u32 v{t1}, s{S_T0}, v{t1}")
        A(f"v_xor_b32 v{t2}, v{t2}, v{t3}")
        A(f"v_subrev_u32 v{t3}, {W}, v{t1}")
        A(f"v_min_u32 v{t1}, v{t1}, v{t3}")
        if pi: A(f"v_cmp_gt_u32 vcc, 432, v{t0}")
        A(f"v_mul_u32_u24 v{t1}, 192, v{t1}")
        A(f"v_lshl_add_u32 v{dst}, v{t2}, 4, v{t1}")
        if pi:
            A(f"v_mov_b32 v{t1}, 0x40000000")
            A(f"v_cndmask_b32 v{dst}, v{t1}, v{dst}, vcc")
    A(f"s_lshl_b32 s{S_X0}, s{S_WAVE}, 10")
    A(f"s_add_u32 s{S_X1}, s{S_X0}, 4096")
    A(f"s_cmp_eq_u32 s{S_WAVE}, 3")
    A(f"s_cselect_b32 s{S_X1}, {DUMMY}, s{S_X1}")
    A(f"s_cselect_b32 s{S_XM}, 0, -1")
    A(f"s_mov_b32 s{S_X+2}, {XBYTES}"); A(f"s_mov_b32 s{S_X+3}, 0x20000")
    A(f"s_mov_b32 s{S_Wt+2}, {WBYTES}"); A(f"s_mov_b32 s{S_Wt+3}, 0x20000")
    items = [it for g in c.groups.split("|") for it in g.split(",")]
    assert items[:len(c.direct)] == [f"x{r}" for r in c.direct]
    r0, nr = c.pf_rows
    A(f"v_mov_b32 v{V_T+5}, 0x40000000")
    if nr:
        nl = -(-nr * 18 // 4)
        A(f"s_mul_i32 s{S_T0}, s{S_WAVE}, {nl}")
        A(f"v_add_u32 v{t0}, s{S_T0}, v0")
        A(f"v_mul_u32_u24 v{t1}, 3641, v{t0}")
        A(f"s_mul_i32 s{S_T0}, s{S_G}, 18")
        A(f"v_lshrrev_b32 v{t1}, 16, v{t1}")
        A(f"v_mul_u32_u24 v{t2}, 18, v{t1}")
        A(f"v_sub_u32 v{t2}, v{t0}, v{t2}")
        A(f"v_add_u32 v{t2}, s{S_T0}, v{t2}")
        A(f"s_add_u32 s{S_T0}, s{S_W0}, {W-4}")
        A(f"v_lshlrev_b32 v{t2}, 7, v{t2}")
        A(f"s_mul_i32 s{S_T0}, s{S_T0}, 192")
        A(f"s_mov_b32 s{S_T1}, {ROWB}")
        A(f"v_add_u32 v{t2}, s{S_T0}, v{t2}")
        A(f"v_subrev_u32 v{t3}, {ROWB}, v{t2}")
        A(f"v_min_u32 v{t2}, v{t2}, v{t3}")
        A(f"v_add_u32 v{t3}, {r0}, v{t1}")
        A(f"v_mul_lo_u32 v{t3}, v{t3}, s{S_T1}")
        A(f"s_mov_b32 s{S_T2}, {XBYTES}")
        A(f"v_cmp_gt_u32 vcc, {nr*18}, v{t0}")
        A(f"v_add_u32 v{t3}, s{S_XBASE}, v{t3}")
        A(f"v_subrev_u32 v{t1}, s{S_T2}, v{t3}")
        A(f"v_min_u32 v{t3}, v{t3}, v{t1}")
        A(f"v_add_u32 v{t3}, v{t3}, v{t2}")
        A(f"v_cndmask_b32 v{t3}, v{V_T+5}, v{t3}, vcc")
        A(f"v_cmp_gt_u32 vcc, {nl}, v0")
        A("s_nop 1")
        A(f"v_cndmask_b32 v{V_PFX}, v{V_T+5}, v{t3}, vcc")
    def wpf(dst, s0, s1):
        per = (s1 - s0) * 48; tot = 5 * per
        nl = -(-tot // 128)
        if s0 == 0 and s1 == 15:
            A(f"s_mul_i32 s{S_T0}, s{S_T4}, {nl}")
            A(f"v_cmp_gt_u32 vcc, {nl}, v0")
            A(f"v_add_u32 v{t0}, s{S_T0}, v0")
            A(f"v_lshlrev_b32 v{t0}, 7, v{t0}")
            A(f"v_cndmask_b32 v{dst}, v{V_T+5}, v{t0}, vcc")
            return
        A(f"s_mul_i32 s{S_T0}, s{S_T4}, {nl}")
        A(f"v_add_u32 v{t0}, s{S_T0}, v0")
        sh = next(b for b in range(12, 23) if all((n_ * (-(-(1 << b) // per))) >> b == n_ // per for n_ in range(128 * nl + 64)))
        mg = -(-(1 << sh) // per)
        A(f"s_mov_b32 s{S_T1}, {mg}")
        A(f"v_mul_lo_u32 v{t1}, v{t0}, s{S_T1}")
        A(f"v_lshrrev_b32 v{t1}, {sh}, v{t1}")
        A(f"v_mul_u32_u24 v{t2}, {per}, v{t1}")
        A(f"v_sub_u32 v{t2}, v{t0}, v{t2}")
        A(f"v_lshlrev_b32 v{t2}, 7, v{t2}")
        A(f"v_mul_u32_u24 v{t1}, {92160}, v{t1}")
        A(f"v_cmp_gt_u32 vcc, {nl}, v0")
        A(f"v_add_u32 v{t2}, v{t2}, v{t1}")
        if s0: A(f"v_add_u32 v{t2}, {s0*6144}, v{t2}")
        else: A("s_nop 0")
        A(f"v_cndmask_b32 v{dst}, v{V_T+5}, v{t2}, vcc")
    wpf(V_PF, 0, c.pfw_split)
    if c.codepf:
        A(f"s_getpc_b64 s[{S_PC}:{S_PC+1}]")
        e.raw("L_pc:")
        A(f"s_sub_u32 s{S_PC}, s{S_PC}, L_pc-standalone__fft_conv__vision_kernel")
        A(f"s_subb_u32 s{S_PC+1}, s{S_PC+1}, 0")
        A(f"s_and_b32 s{S_PC+1}, s{S_PC+1}, 0xffff")
        A(f"s_mov_b32 s{S_PC+2}, CODE_BYTES")
        A(f"s_mov_b32 s{S_PC+3}, 0x20000")
        if c.codepf_all:
            A(f"v_lshlrev_b32 v{V_CPF}, 7, v0")
            A(f"s_lshl_b32 s{S_CPO}, s{S_WAVE}, 13")
        else:
            A(f"v_cmp_gt_u32 vcc, 2, v0")
            A(f"v_lshlrev_b32 v{t0}, 7, v0")
            A(f"s_lshl_b32 s{S_CPO}, s{S_T4}, 8")
            A(f"v_cndmask_b32 v{V_CPF}, v{V_T+5}, v{t0}, vcc")
    A(f"s_add_u32 s{S_WM}, s{S_X0}, {WS}")
    A(f"s_add_u32 s{S_WM2}, s{S_WM}, 8192")
    A(f"s_cmp_ge_u32 s{S_WAVE}, 2")
    A(f"s_cselect_b32 s{S_WM2}, {DUMMY}, s{S_WM2}")
    A(f"s_cselect_b32 s{S_WMM}, 0, -1")
    A(f"v_lshrrev_b32 v{t0}, 4, v0")
    A(f"v_bfe_u32 v{t1}, v0, 2, 2")
    A(f"v_lshl_add_u32 v{t1}, v{t0}, 3, v{t1}")
    A(f"v_and_b32 v{t0}, 1, v{t0}")
    A(f"v_mul_u32_u24 v{t1}, 192, v{t1}")
    A(f"v_lshlrev_b32 v{t0}, 1, v{t0}")
    A(f"v_and_b32 v{t2}, 3, v0")
    A(f"s_lshr_b32 s{S_T0}, s{S_WAVE}, 1")
    A(f"v_xor_b32 v{t2}, v{t2}, v{t0}")
    A(f"s_mul_i32 s{S_T0}, s{S_T0}, {480*192}")
    A(f"v_lshl_add_u32 v{t1}, v{t2}, 4, v{t1}")
    A(f"s_and_b32 s{S_T1}, s{S_WAVE}, 1")
    A(f"s_mul_i32 s{S_T1}, s{S_T1}, {4*192}")
    A(f"s_add_u32 s{S_T0}, s{S_T0}, s{S_T1}")
    A(f"s_lshl_b32 s{S_T1}, s{S_G}, 6")
    A(f"s_add_u32 s{S_T0}, s{S_T0}, s{S_T1}")
    A(f"v_add_u32 v{V_WD}, s{S_T0}, v{t1}")
    late = c.late_calc
    if c.order and c.pfw_split < 15: wpf(V_PF2, c.pfw_split, 15)
    def tail_calc():
        if c.pfw_split < 15 and not c.order: wpf(V_PF2, c.pfw_split, 15)
        A(f"s_mov_b32 s{S_O+2}, {XBYTES}")
        A(f"s_mov_b32 s{S_O+3}, 0x20000")
        A(f"v_and_b32 v{V_T}, 15, v0")
        A(f"v_lshrrev_b32 v{V_T+1}, 4, v0")
        A(f"s_lshr_b32 s{S_T0}, s{S_WAVE}, 1")
        A(f"s_lshl_b32 s{S_T0}, s{S_T0}, 4")
        A(f"v_add_u32 v{V_T+4}, s{S_T0}, v{V_T}")
        for kw in range(5):
            A(f"v_add_u32 v{V_T+2}, {4-kw}, v{V_T+4}")
            A(f"v_lshrrev_b32 v{V_T+3}, 1, v{V_T+2}")
            A(f"v_and_b32 v{V_T+3}, 2, v{V_T+3}")
            A(f"v_xor_b32 v{V_T+3}, v{V_T+3}, v{V_T+1}")
            A(f"v_mul_u32_u24 v{V_T+2}, 192, v{V_T+2}")
            A(f"v_lshl_add_u32 v{V_XAA+kw}, v{V_T+3}, 4, v{V_T+2}")
            A(f"v_add_u32 v{V_XAR+kw}, {X2}, v{V_XAA+kw}")
        A(f"s_and_b32 s{S_T1}, s{S_WAVE}, 1")
        A(f"v_and_b32 v{V_T+2}, 1, v{V_T+1}")
        A(f"v_xor_b32 v{V_T+2}, s{S_T1}, v{V_T+2}")
        A(f"v_lshlrev_b32 v{V_T+2}, 5, v{V_T+2}")
        A(f"v_lshrrev_b32 v{V_T+3}, 2, v0")
        A(f"v_lshl_add_u32 v{V_T+2}, v{V_T+3}, 6, v{V_T+2}")
        A(f"v_and_b32 v{V_T+3}, 3, v0")
        A(f"v_lshl_add_u32 v{V_T+2}, v{V_T+3}, 3, v{V_T+2}")
        A(f"v_add_u32 v{V_TR}, {WS}, v{V_T+2}")
        A(f"v_add_u32 v{V_T+2}, s{S_W0}, v{V_T+4}")
        A(f"v_mul_u32_u24 v{V_T+2}, 192, v{V_T+2}")
        A(f"v_lshl_add_u32 v{V_T+2}, v{V_T+1}, 3, v{V_T+2}")
        A(f"s_lshl_b32 s{S_T0}, s{S_G}, 1")
        A(f"s_add_u32 s{S_T0}, s{S_T0}, s{S_T1}")
        A(f"s_lshl_b32 s{S_T0}, s{S_T0}, 5")
        A(f"v_add_u32 v{V_OUT}, s{S_T0}, v{V_T+2}")
    if not late: tail_calc()
    A("s_waitcnt lgkmcnt(0)")
    A(f"s_mov_b32 s{S_X}, s4"); A(f"s_mov_b32 s{S_X+1}, s5")
    A(f"s_mov_b32 s{S_Wt}, s6"); A(f"s_mov_b32 s{S_Wt+1}, s7")
    e.lstamp("karg")
    if c.order:
        done_items = []
        for it in c.order.split(","):
            if it == "px": e.vmem(f"buffer_load_dword v{V_PFD}, v{V_PFX}, s[{S_X}:{S_X+3}], 0 offen", "pf")
            elif it == "pwa": e.vmem(f"buffer_load_dword v{V_PFD+1}, v{V_PF}, s[{S_Wt}:{S_Wt+3}], 0 offen", "pf")
            elif it == "pwb": e.vmem(f"buffer_load_dword v{V_PFD+2}, v{V_PF2}, s[{S_Wt}:{S_Wt+3}], 0 offen", "pf")
            elif it == "pc": e.vmem(f"buffer_load_dword v{V_PFD+3}, v{V_CPF}, s[{S_PC}:{S_PC+3}], s{S_CPO} offen", "pf")
            else:
                emit_now(e, x_ops(e, int(it[1:])) if it[0] == "x" else w_ops(e, int(it[1:]))); done_items.append(it)
        assert done_items == items[:c.nprol], (done_items, items[:c.nprol])
    else:
        for r in c.direct: emit_now(e, x_ops(e, r))
        if c.pf_rows[1]: e.vmem(f"buffer_load_dword v{V_PFD}, v{V_PFX}, s[{S_X}:{S_X+3}], 0 offen", "pf")
        e.vmem(f"buffer_load_dword v{V_PFD+1}, v{V_PF}, s[{S_Wt}:{S_Wt+3}], 0 offen", "pf")
        if c.codepf: e.vmem(f"buffer_load_dword v{V_PFD+3}, v{V_CPF}, s[{S_PC}:{S_PC+3}], s{S_CPO} offen", "pf")
    if c.outpf:
        A(f"s_mov_b32 s{S_O+2}, {XBYTES}"); A(f"s_mov_b32 s{S_O+3}, 0x20000")
        A(f"v_cmp_gt_u32 vcc, 2, v0")
        A(f"v_mul_u32_u24 v{t0}, {14*ROWB}, v0")
        A("s_nop 0")
        A(f"v_cndmask_b32 v{t0}, v{V_T+5}, v{t0}, vcc")
        e.vmem(f"buffer_load_dword v{V_PFD+2}, v{t0}, s[{S_O}:{S_O+3}], s{S_OB} offen", "pf")
    e.lstamp("pf")
    if c.warm:
        A(f"v_mul_u32_u24 v48, 0x9e37, v0")
        A(f"v_add_u32 v48, 0x3c6ef372, v48")
        for r in range(49, 80):
            A(f"v_mul_u32_u24 v{r}, 0x5bd1, v{r-1}")
            A(f"v_xor_b32 v{r}, v{r}, v{r-1}")
        for r in range(48, 80):
            A(f"v_and_b32 v{r}, 0x807f807f, v{r}")
            A(f"v_or_b32 v{r}, 0x3d003d00, v{r}")
        A("s_nop 1")
        for k in range(c.warm):
            a_ = 48 + 4 * (k % 4); b_ = 64 + 4 * ((k // 4 + k) % 4)
            A(f"v_mfma_f32_16x16x32_bf16 v[168:171], v[{a_}:{a_+3}], v[{b_}:{b_+3}], " + ("0" if k == 0 else "v[168:171]"))
    for it in ([] if c.order else items[len(c.direct):c.nprol]):
        emit_now(e, x_ops(e, int(it[1:])) if it[0] == "x" else w_ops(e, int(it[1:])))
    if c.diag:
        e.lstamp("issued")
        nv = len(e.vm)
        seen = []
        for idx_, tg in enumerate(e.vm):
            if idx_ + 1 < nv and e.vm[idx_ + 1] == tg and tg != "pf": continue
            A(f"s_waitcnt vmcnt({nv - 1 - idx_})"); e.lstamp(tg + "_back")
    if late: tail_calc()

def b_read_to(e, row, f, reg, tag):
    kw, cc = divmod(f, 3)
    kind, off = xslot(row)
    base = V_XAA if kind == "A" else V_XAR
    e.lds(f"ds_read_b128 {reg}, v{base+kw} offset:{off + cc*64}", tag)
def tr_read(e, s, kh, h):
    e.lds(f"ds_read_b64_tr_b16 {wreg(kh, s, 2*h)}, v{V_TR} offset:{(s % NWS)*WSLOT + (2*kh + h)*1024}", f"t{s}_{kh}")
def out_ops(e, a, pair, o):
    vo = V_O + 2 * pair
    pre = [lambda: e.A(f"s_add_u32 s{S_OROW}, s{S_OROW}, s{S_LAST}")] if o == e.cfg.nrows - 1 else []
    return pre + [lambda: e.A(f"v_cvt_pk_bf16_f32 v{vo}, v{a}, v{a+1}"),
            lambda: e.A(f"v_cvt_pk_bf16_f32 v{vo+1}, v{a+2}, v{a+3}"),
            lambda: e.vmem(f"buffer_store_dwordx2 v[{vo}:{vo+1}], v{V_OUT}, s[{S_O}:{S_O+3}], s{S_OROW} offen {(e.cfg.last_flags[1] if e.cfg.last_flags and o >= e.cfg.last_flags[0] else e.cfg.store_flags)}".rstrip(), f"o{o}"),
            lambda: e.A(f"s_add_u32 s{S_OROW}, s{S_OROW}, {ROWB}")]

def out_ops_abs(e, a, pair, o):
    vo = V_O + 2 * pair
    return [lambda: e.A(f"s_add_u32 s{S_T6}, s{S_OB}, {o*ROWB}" if o else f"s_mov_b32 s{S_T6}, s{S_OB}"),
            lambda: e.A(f"v_cvt_pk_bf16_f32 v{vo}, v{a}, v{a+1}"),
            lambda: e.A(f"v_cvt_pk_bf16_f32 v{vo+1}, v{a+2}, v{a+3}"),
            lambda: e.vmem(f"buffer_store_dwordx2 v[{vo}:{vo+1}], v{V_OUT}, s[{S_O}:{S_O+3}], s{S_T6} offen {e.cfg.store_flags}".rstrip(), f"o{o}")]

class Gaps:
    def __init__(self, M, cap=1):
        self.M = M; self.g = [[] for _ in range(M)]; self.cap = cap
    def put(self, p, fn):
        self.g[min(max(p, 0), self.M - 1)].append(fn)
    def seq(self, ops, start, step=1, cap=None):
        cap = self.cap if cap is None else cap
        p = start
        for op in ops:
            while p < self.M - 1 and len(self.g[p]) >= cap: p += 1
            self.put(p, op); p = min(p + step, self.M - 1) if p < self.M - 1 else p
        return p

def block_a(e):
    c = e.cfg; RA = c.RA
    def khs(i): return [kh for kh in range(5) if 0 <= i - 4 + kh < RA]
    stream = list(c.stream)
    groups = [g.split(",") for g in c.groups.split("|")]
    nextw = 1 + max(int(it[1:]) for g in groups for it in g if it[0] == "w")
    groups += [[f"w{s}"] for s in range(nextw, 15)]
    order = []; rows_av = []; s_av = []; sched = set()
    mk_items = {}
    for gi, g in enumerate(groups):
        order.append(("M", gi)); mk_items[gi] = g
        for it in g:
            (rows_av if it[0] == "x" else s_av).append(int(it[1:]))
        for s in sorted(s_av):
            for r in sorted(rows_av, key=lambda r: (-len(khs(r)), r)):
                if (r, s) not in sched: sched.add((r, s)); order.append((r, s))
    assert len(sched) == len(stream) * 15
    w_marker = {int(it[1:]): gi for gi, g in mk_items.items() for it in g if it[0] == "w"}
    row_marker = {int(it[1:]): gi for gi, g in mk_items.items() for it in g if it[0] == "x"}
    nearly = len(c.groups.split("|"))
    mf = []; first = {}; mpos = {}
    def flush_group(grp, flip):
        if not c.omajor:
            for ent in grp:
                for kh in khs(ent[0]): mf.append((ent, kh))
            return
        for s_ in sorted(set(ent[1] for ent in grp)):
            lst = [(ent, kh) for ent in grp if ent[1] == s_ for kh in khs(ent[0])]
            lst.sort(key=lambda z: (z[0][0] - 4 + z[1], z[0][0]), reverse=flip[0])
            flip[0] = not flip[0]
            mf.extend(lst)
    grp = []; flip = [False]
    for ent in order + [("M", None)]:
        if ent[0] == "M":
            flush_group(grp, flip); grp = []
            if ent[1] is not None: mpos[ent[1]] = len(mf)
        else: grp.append(ent)
    for q_, (ent, kh) in enumerate(mf): first.setdefault(ent, q_)
    M = len(mf)
    mark_at = {}; prev = 0
    for p in sorted(mpos):
        q = mpos[p]
        if p >= nearly: q = max(prev, mpos[p] - c.wearly)
        elif p >= 1: q = max(prev, mpos[p] - c.early)
        mark_at[p] = q; prev = q
    tasks = []
    pairs = [ent for ent in order if ent[0] != "M"]
    last_use = {}
    for q, (ent, kh) in enumerate(mf): last_use[ent] = q
    for ent in pairs:
        tasks.append(dict(kind="b", ent=ent, ready=mark_at[row_marker[ent[0]]], due=first[ent], done=False))
    for s in range(15):
        for kh in range(5):
            due = min(q for q, (ent, k2) in enumerate(mf) if ent[1] == s and k2 == kh)
            for h in range(2):
                tasks.append(dict(kind="t", s=s, kh=kh, h=h, ready=mark_at[w_marker[s]], due=due, done=False))
    tasks.sort(key=lambda t: (t["due"], 0 if t["kind"] == "t" else 1))
    bslots = [None] * 15; bfree_at = [-1] * 15; bassign = {}
    def issue(t, q):
        if t["kind"] == "t": tr_read(e, t["s"], t["kh"], t["h"])
        else:
            k = min(range(15), key=lambda j: bfree_at[j])
            if bfree_at[k] >= q and bslots[k] is not None: return False
            ent = t["ent"]
            bslots[k] = ent; bfree_at[k] = last_use[ent]; bassign[ent] = k
            reg = V_B + 60 + 4 * k
            b_read_to(e, ent[0], ent[1], f"v[{reg}:{reg+3}]", f"pb{ent[0]}_{ent[1]}")
        t["done"] = True
        return True
    items = [it for g in c.groups.split("|") for it in g.split(",")]
    dplan = {}
    rest = [(it[0], int(it[1:])) for it in items[c.nprol:]]
    issued_w = [int(it[1:]) for it in items if it[0] == "w"]
    dplan[0] = list(rest)
    for s in range(max(issued_w) + 1, min(4, 15)): dplan[0].append(("w", s))
    for s in range(max(max(issued_w) + 1, 4), 15):
        dplan.setdefault(w_marker[s - 3], []).append(("w", s))
    if c.pfw_split < 15 and not c.order: dplan.setdefault(w_marker[c.pfwb_after], []).append(("pfw", 0))
    planned = []
    for part in c.def_plan.split("|"):
        wm, rows_ = part.split(":")
        rows_ = [int(r) for r in rows_.split(",")]
        dplan.setdefault(w_marker[int(wm)], []).extend([("x", r) for r in rows_]); planned += rows_
    late_rows = [r for r in c.deferred if r not in planned] + ([r for r in (8, 9, 10, 11, 12) if r not in planned and r not in c.stream] if c.merge else [12, 13])
    def ops_of(kind, a):
        if kind == "x": return x_ops(e, a)
        if kind == "w": return w_ops(e, a)
        return [lambda: e.vmem(f"buffer_load_dword v{V_PFD+2}, v{V_PF2}, s[{S_Wt}:{S_Wt+3}], 0 offen", "pf")]
    dq = []
    marks_sorted = sorted(mark_at)
    for p in marks_sorted:
        ops = []
        for kind, a in dplan.get(p, []): ops += ops_of(kind, a)
        if not ops: continue
        lo = mark_at[p]; hi = mark_at[p+1] if p + 1 in mark_at else M - 2
        span = 0 if p < nearly - 1 else max(hi - lo - len(ops) // 2, 0)
        for k, op in enumerate(ops): dq.append((lo + (k * span) // len(ops), op))
    dq.reverse()
    last_dma = [-10, False]
    def run_dma_op(force=False):
        _, op = dq.pop()
        n0 = len(e.L); op()
        if " lds" in e.L[-1] and re.search(r"\bm0,", e.L[n0-1]): e.L.insert(n0, "  s_nop 0")
    need = {p: list(mk_items[p]) for p in marks_sorted}
    prevw = {}
    for p in marks_sorted:
        ws = [int(it[1:]) for it in mk_items[p] if it[0] == "w"]
        if ws and ws[0] >= 1: prevw[p] = ws[0] - 1
    cnt = lambda tg: 3 if tg[0] == "w" else 2
    inited = set()
    deferred = list(c.deferred)
    par = len(deferred) % 2
    def setreg(k, f):
        b = V_B + ((k + par) % 2) * 60 + 4 * f
        return f"v[{b}:{b+3}]"
    vis = {}
    k0 = 0
    if par: vis[0] = [deferred[0]]; k0 = 1
    for k_ in range(k0, len(deferred), 2): vis[k_] = deferred[k_:k_+2]
    if c.merge: vis[len(deferred)] = [RA, RA + 1]
    dpre = c.dpre if par == 0 else 0
    q_d = M - dpre if dpre else None
    d_issued = []
    pre = {}
    for p in marks_sorted:
        if p >= nearly:
            pre.setdefault(max(mark_at[p] - 2, mark_at[p-1] + 1), []).append(("vm", p))
            pre.setdefault(max(mark_at[p] - 1, mark_at[p-1] + 1), []).append(("lg", p))
    def do_vm(p):
        while not all(e.vm.count(tg) == cnt(tg) for tg in need[p]): run_dma_op()
        e.wait_vm(*need[p])
    def do_lg(p, q):
        if p not in prevw: return
        sp = prevw[p]
        for t in tasks:
            if t["kind"] == "t" and t["s"] == sp and not t["done"]: issue(t, q)
        idxs = [i_ for i_, tg in enumerate(e.lg) if tg.startswith(f"t{sp}_")]
        e.wait_lg(e.lg[max(idxs)])
    for q in range(M):
        for kind, p in pre.get(q, []):
            if mark_at[p] > q:
                (do_vm(p) if kind == "vm" else do_lg(p, q))
        for p in marks_sorted:
            if mark_at[p] == q:
                do_lg(p, q); do_vm(p)
                e.A("s_barrier")
                if p == 0:
                    for _ in range(c.burst):
                        if dq: run_dma_op()
                if p in (0, nearly - 1, w_marker[4], w_marker[9], w_marker[14]): e.lstamp(f"M{p}:" + ",".join(mk_items[p]))
        if q_d is not None and q == q_d:
            while not all(e.vm.count(f"x{r_}") == 2 for r_ in vis[0]): run_dma_op()
            e.wait_vm(*[f"x{r_}" for r_ in vis[0]]); e.A("s_barrier")
        ent, kh = mf[q]
        late = [t for t in tasks if not t["done"] and t["due"] <= q]
        if late:
            for t in late:
                assert t["ready"] <= q, (t, q)
                ok = issue(t, q); assert ok
            for t in tasks:
                if t["done"] or t["ready"] > q: continue
                if len(e.lg) - e.lg_done >= 13: break
                if t["kind"] == "b" and t["due"] - q > c.look: continue
                issue(t, q)
        n0 = len(e.L)
        e.wait_lg(f"t{ent[1]}_{kh}", f"pb{ent[0]}_{ent[1]}", age=5)
        o = ent[0] - 4 + kh; a = V_ACCA + 4 * o
        src = f"v[{a}:{a+3}]" if o in inited else "0"
        inited.add(o)
        reg = V_B + 60 + 4 * bassign[ent]
        e.mfma(f"v_mfma_f32_16x16x32_bf16 v[{a}:{a+3}], {wreg(kh, ent[1])}, v[{reg}:{reg+3}], {src}")
        budget = 2
        early_phase = q < mark_at[nearly - 1]
        if early_phase: budget = 4
        def try_lds():
            for t in tasks:
                if t["done"] or t["ready"] > q: continue
                if t["kind"] == "b" and t["due"] - q > c.look: continue
                if len(e.lg) - e.lg_done >= 14: return False
                if issue(t, q + 1): return True
            return False
        def try_dma():
            if dq and dq[-1][0] <= q: run_dma_op(); return True
            return False
        def try_d():
            if q_d is not None and q >= q_d and len(d_issued) < 15 and len(e.lg) - e.lg_done < 14:
                f = len(d_issued); d_issued.append(f)
                b_read_to(e, deferred[0], f, setreg(0, f), f"d0_{f}"); return True
            return False
        _lds = try_lds
        def try_lds(): return _lds() or try_d()
        turn = [try_lds, try_dma]
        k = 0
        while budget > 0:
            if turn[k % 2]() or turn[(k + 1) % 2](): budget -= 1; k += 1
            else: break
    while dq: run_dma_op()
    if c.codepf2: e.vmem(f"buffer_load_dword v{V_PFD+3}, v{V_CPF}, s[{S_PC}:{S_PC+3}], s{S_CPO} offen", "pf")
    e.lstamp("streamend")
    seq = deferred + [RA]
    if q_d is None:
        e.wait_vm(*[f"x{r_}" for r_ in vis[0]]); e.A("s_barrier")
    for f in range(len(d_issued), 15): b_read_to(e, seq[0], f, setreg(0, f), f"d0_{f}")
    for k, r in enumerate(deferred):
        mfs = []
        for kh in khs(r):
            o = r - 4 + kh; a = V_ACCA + 4 * o
            for f in range(15):
                src = f"v[{a}:{a+3}]" if o in inited else "0"
                inited.add(o)
                mfs.append((f, f"v_mfma_f32_16x16x32_bf16 v[{a}:{a+3}], {wreg(kh, f)}, {setreg(k, f)}, {src}"))
        Mk = len(mfs); nxt = seq[k + 1]
        G = Gaps(Mk)
        if (k + 1) in vis:
            e.wait_vm(*[f"x{r_}" for r_ in vis[k+1]]); e.A("s_barrier")
        span = max(Mk - 6, 15)
        for f in range(15): G.put(min((f * span) // 15, Mk - 1), (lambda f=f: b_read_to(e, nxt, f, setreg(k + 1, f), f"d{k+1}_{f}")))
        if c.merge and k >= 1:
            op_ = deferred[k-1]
            assert op_ <= 3
            G.seq(out_ops_abs(e, V_ACCA + 4 * op_, 1, op_), min(9, Mk - 6), step=1, cap=2)
        ntake = 2 if (k < 1 or c.merge) else 1
        pos = 2
        for _ in range(ntake):
            if late_rows and (Mk >= 30 or (c.merge and Mk >= 15 and _ == 0)):
                pos = G.seq(x_ops(e, late_rows.pop(0)), pos, step=1, cap=2)
        for p_, (f, s_) in enumerate(mfs):
            if p_ < 15: e.wait_lg(f"d{k}_{f}", age=5)
            e.mfma(s_)
            for fn in G.g[p_]: fn()
    e.late_rows = late_rows
    e.dtag = f"d{len(deferred)}"
    e.lstamp("defend")

def step(e, i, chains, last_row, extra_out=(), extra_dma=(), prev_tags=None, skip=None):
    c = e.cfg; RA = c.RA
    mf = []
    for kh in chains:
        o = i - 4 + kh; a = acc(o)
        for f in range(15):
            src = "0" if (kh == 4 and f == 0) else f"v[{a}:{a+3}]"
            mf.append((f, f"v_mfma_f32_16x16x32_bf16 v[{a}:{a+3}], {wreg(kh, f)}, {breg(i, f)}, {src}"))
    M = len(mf)
    U = M - 15 if skip else M
    G = Gaps(M)
    nxt = i + 1
    nn = i + 2
    S0 = (RA + 2) if c.merge else NA
    did_bar = nxt <= last_row and nxt >= S0
    if did_bar: e.A("s_barrier")
    if nxt <= last_row:
        span = max(U - 9, 15) if U >= 15 else U
        for f in range(15): G.put(min((f * span) // 15, U - 1), (lambda f=f: b_read_to(e, nxt, f, breg(nxt, f), f"b{nxt}_{f}")))
    r4 = i + 4
    if i >= NA and r4 <= last_row: G.seq(x_ops(e, r4, seq=True), c.dma_pos, step=2)
    pos_ = 1
    for r_ in extra_dma: pos_ = G.seq(x_ops(e, r_), pos_ if c.merge else 1, step=1, cap=(2 if M <= 30 else 1))
    tail = []
    if 0 in chains and (i - 4 >= RA or c.merge):
        o = i - 4; endp = chains.index(0) * 15 + 14
        ops = out_ops(e, acc(o), 0, o)
        if endp + 14 < M: G.seq(ops, max(endp + 9, c.out_pos if M == 75 else 0), step=1)
        else: tail = ops
    for k, (a, o) in enumerate(extra_out):
        if c.merge: G.seq(out_ops_abs(e, a, 1, o), 9, step=1)
        else: G.seq(out_ops(e, a, k % 2, o), (k * M) // max(len(extra_out), 1) + 1, step=1, cap=(2 if M <= 45 else 1))
    if nn <= last_row and nn >= S0:
        G.put(U - 3, lambda: e.wait_vm(f"x{nn}", force=(i >= NA)))
    short = U < 45
    lab = f"{i if i < NA or i >= c.nrows else 'l' + str((i - NA) % 4)}"
    for p, (f, s) in enumerate(mf):
        if skip and p == U:
            e.A(skip); e.A(f"s_cbranch_scc1 L_skip{lab}")
            mark = len(e.L)
        if prev_tags and p < 15: e.wait_lg(prev_tags(f), age=5)
        e.mfma(s)
        for fn in G.g[p]: fn()
        if p == U - 2 and nxt <= last_row and not short: e.wait_lg(f"b{nxt}_14")
    if skip:
        fill = [l for l in e.L[mark:] if "v_mfma" not in l]
        if fill:
            e.A(f"s_branch L_join{lab}")
            e.raw(f"L_skip{lab}:")
            if any("v_cvt" in l for l in fill): e.A("s_nop 7"); e.A("s_nop 1")
            e.L.extend(fill)
            e.raw(f"L_join{lab}:")
        else:
            e.raw(f"L_skip{lab}:")
    if tail:
        e.A("s_nop 7"); e.A("s_nop 1")
        for fn in tail: fn()
    if nxt <= last_row and short and (nn <= last_row and nn >= S0): e.wait_lg(f"b{nxt}_14")

def build(cfg):
    e = Em(cfg); n = cfg.nrows; RA = cfg.RA
    last_row = n + 3
    e.raw("; direct 5x5 circular convolution; weights stationary in registers; start block overlaps the weight arrival")
    e.raw(f"; @launch grid=(252,1,1) block=(256,1,1) lds={LDS_BYTES}")
    e.raw('.amdgcn_target "amdgcn-amd-amdhsa--gfx950"')
    e.raw(".text")
    e.raw(".globl standalone__fft_conv__vision_kernel")
    if cfg.align12: e.raw(".p2align 12")
    e.raw(".p2align 8")
    e.raw(".type standalone__fft_conv__vision_kernel,@function")
    e.raw("standalone__fft_conv__vision_kernel:")
    prologue(e)
    block_a(e)
    if cfg.merge:
        RA_ACC[0] = RA
        def chains_for(i): return [kh for kh in range(5) if 0 <= i - 4 + kh < n]
        flush = {RA: [cfg.deferred[-1]]}
        lr = list(e.late_rows) + [13, 14, 15]
        predma = {RA: lr[:2], RA + 1: lr[2:4], RA + 2: lr[4:6], RA + 3: lr[6:]}
    else:
        assert not e.late_rows
        def chains_for(i): return [kh for kh in range(5) if RA <= i - 4 + kh < n]
        flush = {RA + 1: [0, 1], RA + 2: [2, 3, 4], RA + 3: [5, 6, 7]}
        predma = {RA: [14], RA + 1: [15]}
    i = RA
    while i < NA:
        ex = [(V_ACCA + 4 * o, o) for o in flush.get(i, [])]
        pt = (lambda f: f"{e.dtag}_{f}") if i == RA else (lambda f, i=i: f"b{i}_{f}")
        step(e, i, chains_for(i), last_row, ex, predma.get(i, []), pt); i += 1
    if cfg.codepf3: e.vmem(f"buffer_load_dword v{V_PFD+3}, v{V_CPF}, s[{S_PC}:{S_PC+3}], s{S_CPO} offen", "pf")
    e.lstamp("rampend")
    e.A(f"s_add_u32 s{S_T0}, s{S_XBASE}, {(NA+4)*ROWB}")
    e.A(f"s_sub_u32 s{S_T1}, s{S_T0}, {XBYTES}")
    e.A(f"s_min_u32 s{S_XROW}, s{S_T0}, s{S_T1}")
    def skip_of(ii):
        if not cfg.skipdup: return None
        if ii == n - 1 or (cfg.loop and NA <= ii < n and (ii - NA) % 4 == (n - 1 - NA) % 4):
            return f"s_cmp_eq_u32 s{S_CNT}, s{S_DUP}" if cfg.loop else f"s_cmp_eq_u32 s{S_DUP}, 0"
        if n <= ii < last_row: return f"s_cmp_eq_u32 s{S_DUP}, 0"
        return None
    def last_step(ii):
        if cfg.skipdup:
            e.A(f"s_cmp_eq_u32 s{S_DUP}, 0"); e.A("s_cbranch_scc1 L_done")
        step(e, ii, chains_for(ii), last_row, prev_tags=(lambda f, ii=ii: f"b{ii}_{f}"))
        if cfg.skipdup: e.raw("L_done:")
    if not cfg.loop:
        while i <= last_row:
            if i == last_row: last_step(i)
            else: step(e, i, chains_for(i), last_row, prev_tags=(lambda f, i=i: f"b{i}_{f}"), skip=skip_of(i))
            i += 1
            if i <= last_row: e.lstamp(f"step{i}")
    else:
        steady = list(range(NA, n)); nst = len(steady)
        start = len(e.L); seg = []
        for ii in steady:
            s0 = len(e.L)
            step(e, ii, chains_for(ii), last_row, prev_tags=(lambda f, ii=ii: f"b{ii}_{f}"), skip=skip_of(ii))
            seg.append(e.L[s0:])
        e.L = e.L[:start]
        for k in range(4, nst):
            a, b = seg[k % 4], seg[k]
            assert len(a) == len(b), f"non periodic step {steady[k]}"
            for j in range(len(a)):
                if a[j] != b[j]:
                    ma = re.fullmatch(r"  s_waitcnt vmcnt\((\d+)\)", a[j]); mb = re.fullmatch(r"  s_waitcnt vmcnt\((\d+)\)", b[j])
                    assert ma and mb, (a[j], b[j])
                    a[j] = f"  s_waitcnt vmcnt({min(int(ma.group(1)), int(mb.group(1)))})"
        full, rem = divmod(nst, 4)
        assert rem != 0 and full == 1
        e.A(f"s_mov_b32 s{S_CNT}, {full}")
        e.raw(".p2align 3")
        e.raw("L_loop:")
        for k in range(4):
            if k == rem:
                e.A(f"s_cmp_eq_u32 s{S_CNT}, 0")
                e.A("s_cbranch_scc1 L_down")
                e.A(f"s_sub_u32 s{S_CNT}, s{S_CNT}, 1")
            e.L.extend(seg[k])
        e.A("s_branch L_loop")
        e.raw("L_down:")
        if cfg.wbl2:
            e.A(f"s_lshr_b32 s{S_T6}, s2, 3"); e.A(f"s_add_u32 s{S_T6}, s{S_T6}, s{S_WAVE}")
            e.A(f"s_cmp_lg_u32 s{S_T6}, 0"); e.A("s_cbranch_scc1 L_nowb")
            e.A(f"buffer_wbl2 {cfg.wbl2}")
            e.raw("L_nowb:")
        e.lstamp("loopend")
        i = n
        while i <= last_row:
            if i == last_row: last_step(i)
            else: step(e, i, chains_for(i), last_row, prev_tags=(lambda f, i=i: f"b{i}_{f}"), skip=skip_of(i))
            i += 1
    if cfg.spin:
        e.lstamp("mfmaend"); e.A("s_waitcnt vmcnt(0) lgkmcnt(0)")
        ia, ib, K = e.lnames.index(cfg.spin[0]), e.lnames.index(cfg.spin[1]), cfg.spin[2]
        e.A(f"s_sub_u32 s50, s{64+2*ib}, s{64+2*ia}")
        e.A(f"s_mul_i32 s50, s50, {K}")
        e.A("s_memtime s[52:53]"); e.A("s_waitcnt lgkmcnt(0)")
        e.raw("L_spin:")
        e.A("s_memtime s[54:55]"); e.A("s_waitcnt lgkmcnt(0)")
        e.A("s_sub_u32 s51, s54, s52"); e.A("s_cmp_lt_u32 s51, s50"); e.A("s_cbranch_scc1 L_spin")
    elif cfg.lst:
        e.lstamp("mfmaend"); e.A("s_waitcnt vmcnt(0)"); e.lstamp("drain")
        e.A("s_memrealtime s[62:63]")
        e.A("s_waitcnt lgkmcnt(0)")
        e.A(f"s_load_dwordx2 s[{S_WS}:{S_WS+1}], s[0:1], 32")
        e.A(f"v_mov_b32 v{V_ST}, 0")
        for k in range(e.nl): e.A(f"v_writelane_b32 v{V_ST}, s{64+2*k}, {k}")
        e.A(f"v_writelane_b32 v{V_ST}, s60, 62"); e.A(f"v_writelane_b32 v{V_ST}, s62, 63")
        e.A("s_waitcnt lgkmcnt(0)")
        e.A(f"s_lshl_b32 s{S_T0}, s2, 2")
        e.A(f"s_add_u32 s{S_T0}, s{S_T0}, s{S_WAVE}")
        e.A(f"s_lshl_b32 s{S_T0}, s{S_T0}, 8")
        e.A(f"s_add_u32 s{S_WS}, s{S_WS}, s{S_T0}")
        e.A(f"s_addc_u32 s{S_WS+1}, s{S_WS+1}, 0")
        e.A("v_lshlrev_b32 v1, 2, v0")
        e.A(f"global_store_dword v1, v{V_ST}, s[{S_WS}:{S_WS+1}]")
        print("lstamps:", e.nl, e.lnames)
    if cfg.xspin is not None:
        e.A("s_waitcnt vmcnt(0) lgkmcnt(0)")
        mask = sum(1 << k for k in cfg.xspin)
        e.A("s_and_b32 s52, s2, 7"); e.A(f"s_lshr_b32 s52, {mask}, s52"); e.A("s_and_b32 s52, s52, 1")
        e.A("s_cmp_eq_u32 s52, 0"); e.A("s_cbranch_scc1 L_nospin")
        e.A("s_memrealtime s[54:55]"); e.A("s_waitcnt lgkmcnt(0)")
        e.raw("L_xs:")
        e.A("s_memrealtime s[56:57]"); e.A("s_waitcnt lgkmcnt(0)")
        e.A("s_sub_u32 s53, s56, s54"); e.A("s_cmp_lt_u32 s53, 1000"); e.A("s_cbranch_scc1 L_xs")
        e.raw("L_nospin:")
    if cfg.endwait: e.A("s_waitcnt vmcnt(0)")
    e.raw("L_end:")
    e.A("s_endpgm")
    e.raw("L_code_end:")
    e.raw('.section .rodata,"a"')
    e.raw(".p2align 6")
    e.raw(".amdhsa_kernel standalone__fft_conv__vision_kernel")
    for l in ("next_free_vgpr 512", "next_free_sgpr " + ("100" if (cfg.lst or cfg.spin) else "64"), "accum_offset 256", "group_segment_fixed_size 0", "kernarg_size 40",
              "user_sgpr_count 2", "user_sgpr_kernarg_segment_ptr 1", "system_sgpr_workgroup_id_x 1"):
        e.raw("  .amdhsa_" + l)
    e.raw(".end_amdhsa_kernel")
    out = []
    for l in e.L:
        if " lds" in l and "buffer_load" in l and out and re.search(r"\bm0,", out[-1]): out.append("  s_nop 0")
        out.append(l)
    e.L = out
    import subprocess, tempfile, os
    size = 0x7fff
    for _ in range(2):
        txt = "\n".join(l.replace("CODE_BYTES", str(size)) for l in e.L) + "\n"
        with tempfile.TemporaryDirectory() as td:
            open(td + "/k.s", "w").write(txt)
            subprocess.run(["clang", "-x", "assembler", "-target", "amdgcn-amd-amdhsa", "-mcpu=gfx950", "-c", td + "/k.s", "-o", td + "/k.o"], check=True)
            dis = subprocess.run(["llvm-objdump", "-d", "--mcpu=gfx950", td + "/k.o"], capture_output=True, text=True).stdout
        sym = {}
        for l in dis.splitlines():
            m_ = re.match(r"([0-9a-f]{16}) <(.*)>:", l)
            if m_: sym[m_.group(2)] = int(m_.group(1), 16)
        size = sym["L_end"] + 4 - sym["standalone__fft_conv__vision_kernel"]
        assert size - 4 > sym["L_pc"] - sym["standalone__fft_conv__vision_kernel"] if "L_pc" in sym else True
    e.code_size = size
    e.L = [l.replace("CODE_BYTES", str(size)) for l in e.L]
    open(cfg.name, "w").write("\n".join(e.L) + "\n")
    return e

if __name__ == "__main__":
    ap = argparse.ArgumentParser()
    ap.add_argument("-o", default=Cfg.name)
    ap.add_argument("--lst", action="store_true")
    ap.add_argument("--noloop", action="store_true")
    ap.add_argument("--store", default="")
    ap.add_argument("--look", type=int, default=12)
    ap.add_argument("--early", type=int, default=8)
    ap.add_argument("--wearly", type=int, default=26)
    ap.add_argument("--nocodepf", action="store_true")
    ap.add_argument("--order", default="")
    ap.add_argument("--last_flags", default="")
    ap.add_argument("--xspin", default="")
    ap.add_argument("--kwait0", action="store_true")
    ap.add_argument("--warm", type=int, default=0)
    ap.add_argument("--rtstamp", action="store_true")
    ap.add_argument("--outpf", action="store_true")
    ap.add_argument("--wbl2", default="")
    ap.add_argument("--burst", type=int, default=0)
    ap.add_argument("--no_merge", action="store_true")
    ap.add_argument("--no_omajor", action="store_true")
    ap.add_argument("--no_skipdup", action="store_true")
    ap.add_argument("--dpre", type=int, default=14)
    ap.add_argument("--early_calc", action="store_true")
    ap.add_argument("--endwait", action="store_true")
    ap.add_argument("--spin", default="")
    ap.add_argument("--codepf2", action="store_true")
    ap.add_argument("--codepf3", action="store_true")
    ap.add_argument("--codepf_all", action="store_true")
    ap.add_argument("--stepst", action="store_true")
    ap.add_argument("--dma_pos", type=int, default=18)
    ap.add_argument("--out_pos", type=int, default=0)
    ap.add_argument("--diag", action="store_true")
    ap.add_argument("--groups", default=Cfg.groups)
    ap.add_argument("--nprol", type=int, default=4)
    ap.add_argument("--direct", default="4,5")
    ap.add_argument("--pf_rows", default="6,2")
    ap.add_argument("--stream", default="4,5,6,7")
    ap.add_argument("--deferred", default="3,8,2,9,1,10,0,11")
    ap.add_argument("--def_plan", default=Cfg.def_plan)
    ap.add_argument("--pfw_split", type=int, default=15)
    ap.add_argument("--pfwb_after", type=int, default=3)
    a = ap.parse_args()
    cfg = Cfg()
    cfg.name = a.o; cfg.lst = a.lst; cfg.loop = not a.noloop; cfg.store_flags = a.store
    cfg.direct = [int(x) for x in a.direct.split(",")]; cfg.pf_rows = tuple(int(x) for x in a.pf_rows.split(","))
    cfg.stream = [int(x) for x in a.stream.split(",")]; cfg.deferred = [int(x) for x in a.deferred.split(",")]; cfg.def_plan = a.def_plan
    cfg.groups = a.groups; cfg.nprol = a.nprol; cfg.pfw_split = a.pfw_split; cfg.pfwb_after = a.pfwb_after; cfg.diag = a.diag; cfg.dma_pos = a.dma_pos; cfg.out_pos = a.out_pos; cfg.stepst = a.stepst; cfg.codepf2 = a.codepf2; cfg.codepf_all = a.codepf_all; cfg.codepf3 = a.codepf3; cfg.spin = (lambda p: (p[0], p[1], int(p[2])) )(a.spin.split("/")) if a.spin else None
    if cfg.spin: cfg.lst = True
    cfg.endwait = a.endwait; cfg.late_calc = not a.early_calc; cfg.dpre = a.dpre; cfg.omajor = not a.no_omajor; cfg.skipdup = not a.no_skipdup; cfg.merge = not a.no_merge; cfg.burst = a.burst; cfg.wbl2 = a.wbl2; cfg.outpf = a.outpf; cfg.rtstamp = a.rtstamp; cfg.warm = a.warm; cfg.kwait0 = a.kwait0; cfg.xspin = [int(x) for x in a.xspin.split(',')] if a.xspin else None; cfg.last_flags = (int(a.last_flags.split(':')[0]), a.last_flags.split(':')[1]) if a.last_flags else None; cfg.order = a.order; cfg.look = a.look; cfg.early = a.early; cfg.wearly = a.wearly; cfg.codepf = not a.nocodepf
    e = build(cfg)
    print("lines", len(e.L), "LDS", LDS_BYTES, "code", e.code_size)
```

```python
import sys, argparse, re

HEADER = """
;
; y[h,w,o] = sum_{kh,kw,i} x[(h-kh) mod 224, (w-kw) mod 224, i] * w[kh,kw,i,o]
;
; the first 8 output rows are accumulated output-stationary so that the matrix pipe already works.
"""

class Cfg:
    nrows = 19
    RA = 8
    store_flags = ""
    lst = False
    loop = True
    look = 12
    early = 8
    wearly = 26
    codepf = True
    pf_first = False
    order = ''
    last_flags = None
    xspin = None
    kwait0 = False
    warm = 0
    rtstamp = False
    outpf = False
    wbl2 = ''
    burst = 0
    merge = True
    omajor = True
    skipdup = True
    dpre = 14
    late_calc = True
    endwait = False
    spin = None
    codepf2 = False
    codepf3 = False
    codepf_all = False
    stepst = False
    dma_pos = 18
    out_pos = 0
    diag = False
    groups = "x4,x5,w0|x6,x7|w1|w2"
    direct = [4, 5]
    pf_rows = (6, 2)
    stream = [4, 5, 6, 7]
    deferred = [3, 8, 2, 9, 1, 10, 0, 11]
    nprol = 4
    pfw_split = 15
    pfwb_after = 3
    def_plan = "11:3,8|12:2,9|14:1,10"
    align12 = True
    name = "standalone__fft_conv__vision.s"

H = W = 224
ROWB = W * 192
XBYTES = H * ROWB
WBYTES = 460800
SLOTB = 7168
NA = 12
XR = NA * SLOTB
X2 = 10 * SLOTB
WS = XR + 4 * SLOTB
WSLOT = 10240
NWS = 4
DUMMY = WS + NWS * WSLOT
LDS_BYTES = DUMMY + 1024

S_X, S_Wt, S_O = 8, 12, 16
S_WS = 20
S_WAVE = 22
S_X0, S_X1, S_XM = 23, 24, 25
S_XBASE, S_XROW, S_OROW, S_CNT = 26, 27, 28, 29
S_T0, S_T1, S_T2, S_T3 = 30, 31, 32, 33
S_WM, S_G, S_W0, S_WM2, S_WMM = 34, 35, 36, 37, 38
S_T4, S_T5 = 39, 40
S_PC = 44
S_CPO = 48
S_DUP = 49
S_OB = 50
S_T6 = 51
S_LAST = 41
V_XAA = 2; V_XAR = 7
V_XD0, V_XD1 = 12, 13
V_WD, V_TR, V_OUT, V_PF = 14, 15, 16, 17
V_T = 18
V_O = 24
V_ST = 28
V_ACC = 32
V_B = 48
V_ACCA = 168
V_PFX = 200
V_PFD = 202
V_PF2 = 206
V_CPF = 207
V_WT = 212

def wreg(kh, f, lo=None):
    i = kh * 15 + f
    if i < 64: base, t = 4 * i, "a"
    else: base, t = V_WT + 4 * (i - 64), "v"
    if lo is None: return f"{t}[{base}:{base+3}]"
    return f"{t}[{base+lo}:{base+lo+1}]"
def breg(row, f):
    b = V_B + (row % 2) * 60 + 4 * f
    return f"v[{b}:{b+3}]"
RA_ACC = [0]
def acc(o): return V_ACCA + 4 * o if o < RA_ACC[0] else V_ACC + 4 * (o % 4)
def xlds(row): return row * SLOTB if row < NA else XR + ((row - NA) % 4) * SLOTB
def xslot(row):
    a = xlds(row)
    return ("A", a) if a < X2 else ("R", a - X2)

class Em:
    def __init__(self, cfg):
        self.cfg = cfg; self.L = []
        self.vm = []; self.vm_done = 0
        self.lg = []; self.lg_done = 0; self.lg_pos = []
        self.pos = 0
        self.nl = 0; self.lnames = []
    def A(self, s): self.L.append("  " + s)
    def raw(self, s): self.L.append(s)
    def mfma(self, s): self.A(s); self.pos += 1
    def vmem(self, s, tag): self.A(s); self.vm.append(tag)
    def lds(self, s, tag): self.A(s); self.lg.append(tag); self.lg_pos.append(self.pos)
    def vm_need(self, tags):
        idx = -1
        for tag in tags:
            assert tag in self.vm, (tag, self.vm)
            idx = max(idx, max(i for i, t in enumerate(self.vm) if t == tag))
        return idx
    def wait_vm(self, *tags, force=False):
        idx = self.vm_need(tags)
        if idx < self.vm_done and not force: return False
        n = min(len(self.vm) - 1 - idx, 63)
        self.A(f"s_waitcnt vmcnt({n})"); self.vm_done = max(self.vm_done, len(self.vm) - n)
        return True
    def wait_lg(self, *tags, age=None):
        idx = -1
        for tag in tags:
            assert tag in self.lg, tag
            idx = max(idx, max(i for i, t in enumerate(self.lg) if t == tag))
        if idx < self.lg_done: return False
        if age is not None:
            for i in range(idx + 1, len(self.lg)):
                if self.pos - self.lg_pos[i] >= age: idx = i
        n = min(len(self.lg) - 1 - idx, 15)
        self.A(f"s_waitcnt lgkmcnt({n})"); self.lg_done = len(self.lg) - n
        return True
    def lstamp(self, name=""):
        if not self.cfg.lst: return
        if self.cfg.stepst and not (name.startswith("step") or name in ("start", "M0:x4,w0", "M5:w4", "M10:w9", "streamend", "defend", "rampend", "mfmaend", "drain")): return
        if self.cfg.stepst and name in ("step14", "step16", "step18", "step21", "step22"): return
        k = self.nl
        if k >= 18: return
        self.A(f"{'s_memrealtime' if self.cfg.rtstamp else 's_memtime'} s[{64+2*k}:{65+2*k}]")
        self.lnames.append(name); self.nl = k + 1

def x_ops(e, row, seq=False):
    base = xlds(row); ops = []
    I = lambda s: (lambda: e.A(s))
    if not seq:
        ops += [I(f"s_add_u32 s{S_T0}, s{S_XBASE}, {row*ROWB}"), I(f"s_sub_u32 s{S_T1}, s{S_T0}, {XBYTES}"),
                I(f"s_min_u32 s{S_XROW}, s{S_T0}, s{S_T1}")]
    ops += [I(f"s_add_u32 m0, s{S_X0}, {base}"),
            lambda: e.vmem(f"buffer_load_dwordx4 v{V_XD0}, s[{S_X}:{S_X+3}], s{S_XROW} offen lds", f"x{row}")]
    if base: ops += [I(f"s_and_b32 s{S_T2}, s{S_XM}, {base}"), I(f"s_add_u32 m0, s{S_X1}, s{S_T2}")]
    else: ops += [I(f"s_mov_b32 m0, s{S_X1}")]
    ops += [lambda: e.vmem(f"buffer_load_dwordx4 v{V_XD1}, s[{S_X}:{S_X+3}], s{S_XROW} offen lds", f"x{row}")]
    if seq:
        ops += [I(f"s_add_u32 s{S_XROW}, s{S_XROW}, {ROWB}"), I(f"s_sub_u32 s{S_T1}, s{S_XROW}, {XBYTES}"),
                I(f"s_min_u32 s{S_XROW}, s{S_XROW}, s{S_T1}")]
    return ops
def w_ops(e, s):
    ops = []
    I = lambda t: (lambda: e.A(t))
    for m in range(3):
        off = (s % NWS) * WSLOT
        ops.append(I(f"s_mov_b32 s{S_T3}, {(32*s + 960*m)*192}"))
        if m < 2: ops.append(I(f"s_add_u32 m0, s{S_WM}, {off + 4*m*1024}"))
        elif off: ops += [I(f"s_and_b32 s{S_T4}, s{S_WMM}, {off}"), I(f"s_add_u32 m0, s{S_WM2}, s{S_T4}")]
        else: ops.append(I(f"s_mov_b32 m0, s{S_WM2}"))
        ops.append(lambda m=m: e.vmem(f"buffer_load_dwordx4 v{V_WD}, s[{S_Wt}:{S_Wt+3}], s{S_T3} offen lds", f"w{s}"))
    return ops
def emit_now(e, ops):
    for op in ops:
        n0 = len(e.L)
        prev = e.L[-1]
        tmp = len(e.L); op()
        if " lds" in e.L[-1] and re.search(r"\bm0,", e.L[tmp-1]):
            e.L.insert(tmp, "  s_nop 0")

def prologue(e):
    c = e.cfg; A = e.A
    t0, t1, t2, t3 = V_T, V_T+1, V_T+2, V_T+3
    A("s_load_dwordx4 s[4:7], s[0:1], 0")
    A(f"s_load_dwordx2 s[{S_O}:{S_O+1}], s[0:1], 16")
    A("s_cmp_ge_u32 s2, 252")
    A("s_cbranch_scc1 L_end")
    e.lstamp("start")
    if c.lst: A("s_memrealtime s[60:61]")
    if c.kwait0:
        A("s_waitcnt lgkmcnt(0)"); e.lstamp("k0")
    A("v_lshrrev_b32 v1, 6, v0")
    A("v_and_b32 v0, 63, v0")
    A(f"v_readfirstlane_b32 s{S_WAVE}, v1")
    A(f"s_lshr_b32 s{S_T0}, s2, 3")
    A(f"s_and_b32 s{S_T1}, s2, 7")
    A(f"s_mul_i32 s{S_T2}, s{S_T0}, 86")
    A(f"s_lshl_b32 s{S_T4}, s{S_T0}, 2")
    A(f"s_lshr_b32 s{S_T2}, s{S_T2}, 8")
    A(f"s_mul_i32 s{S_T1}, s{S_T1}, 10")
    A(f"s_mul_i32 s{S_T3}, s{S_T2}, 3")
    A(f"s_add_u32 s{S_T1}, s{S_T1}, s{S_T2}")
    A(f"s_sub_u32 s{S_G}, s{S_T0}, s{S_T3}")
    A("s_cmp_lt_u32 s2, 240")
    A("s_cbranch_scc1 L_map_done")
    A(f"s_sub_u32 s{S_T0}, s2, 240")
    A(f"s_mul_i32 s{S_T2}, s{S_T0}, 86")
    A(f"s_lshr_b32 s{S_T2}, s{S_T2}, 8")
    A(f"s_mul_i32 s{S_T3}, s{S_T2}, 3")
    A(f"s_sub_u32 s{S_G}, s{S_T0}, s{S_T3}")
    A(f"s_add_u32 s{S_T1}, s{S_T2}, 80")
    e.raw("L_map_done:")
    A(f"s_add_u32 s{S_T4}, s{S_T4}, s{S_WAVE}")
    A(f"s_mul_i32 s{S_T2}, s{S_T1}, 9363")
    A(f"s_lshr_b32 s{S_T2}, s{S_T2}, 16")
    A(f"s_mul_i32 s{S_T3}, s{S_T2}, 7")
    A(f"s_sub_u32 s{S_T3}, s{S_T1}, s{S_T3}")
    A(f"s_mul_i32 s{S_T0}, s{S_T3}, 86")
    A(f"s_lshl_b32 s{S_W0}, s{S_T3}, 5")
    A(f"s_lshr_b32 s{S_T0}, s{S_T0}, 8")
    A(f"s_mul_i32 s{S_T0}, s{S_T0}, 3")
    A(f"s_sub_u32 s{S_T0}, s{S_T3}, s{S_T0}")
    A(f"s_add_u32 s{S_T1}, s{S_T2}, s{S_T0}")
    A(f"s_add_u32 s{S_T3}, s{S_T1}, 2")
    A(f"s_mul_i32 s{S_T3}, s{S_T3}, 86")
    A(f"s_lshr_b32 s{S_T3}, s{S_T3}, 8")
    A(f"s_cmp_ge_u32 s{S_T0}, 1")
    A(f"s_cselect_b32 s{S_T0}, 1, 0")
    A(f"s_sub_u32 s{S_T3}, s{S_T3}, s{S_T0}")
    A(f"s_mul_i32 s{S_T0}, s{S_T2}, 19")
    A(f"s_sub_u32 s{S_T0}, s{S_T0}, s{S_T3}")
    A(f"s_mul_i32 s{S_OROW}, s{S_T0}, {ROWB}")
    A(f"s_add_u32 s{S_XBASE}, s{S_OROW}, {(H-4)*ROWB}")
    if c.merge:
        A(f"s_mov_b32 s{S_OB}, s{S_OROW}")
        A(f"s_add_u32 s{S_OROW}, s{S_OROW}, {4*ROWB}")
    A(f"s_mul_i32 s{S_LAST}, s{S_T1}, 86")
    A(f"s_lshr_b32 s{S_LAST}, s{S_LAST}, 8")
    A(f"s_mul_i32 s{S_LAST}, s{S_LAST}, 3")
    A(f"s_cmp_eq_u32 s{S_LAST}, s{S_T1}")
    A(f"s_cselect_b32 s{S_DUP}, 0, -1")
    A(f"s_cselect_b32 s{S_LAST}, 0x40000000, 0")
    def calc_xd():
        A(f"s_lshl_b32 s{S_T5}, s{S_WAVE}, 6")
        A(f"v_add_u32 v{t0}, s{S_T5}, v0")
        A(f"s_add_u32 s{S_T0}, s{S_W0}, {W-4}")
        for pi in range(2):
            dst = V_XD0 if pi == 0 else V_XD1
            if pi: A(f"v_add_u32 v{t0}, 256, v{t0}")
            A(f"v_mul_u32_u24 v{t1}, 5462, v{t0}")
            A(f"v_lshrrev_b32 v{t1}, 16, v{t1}")
            A(f"v_mul_u32_u24 v{t2}, 12, v{t1}")
            A(f"v_lshrrev_b32 v{t3}, 1, v{t1}")
            A(f"v_sub_u32 v{t2}, v{t0}, v{t2}")
            A(f"v_and_b32 v{t3}, 2, v{t3}")
            A(f"v_add_u32 v{t1}, s{S_T0}, v{t1}")
            A(f"v_xor_b32 v{t2}, v{t2}, v{t3}")
            A(f"v_subrev_u32 v{t3}, {W}, v{t1}")
            A(f"v_min_u32 v{t1}, v{t1}, v{t3}")
            if pi: A(f"v_cmp_gt_u32 vcc, 432, v{t0}")
            A(f"v_mul_u32_u24 v{t1}, 192, v{t1}")
            A(f"v_lshl_add_u32 v{dst}, v{t2}, 4, v{t1}")
            if pi:
                A(f"v_mov_b32 v{t1}, 0x40000000")
                A(f"v_cndmask_b32 v{dst}, v{t1}, v{dst}, vcc")
        A(f"s_lshl_b32 s{S_X0}, s{S_WAVE}, 10")
        A(f"s_add_u32 s{S_X1}, s{S_X0}, 4096")
        A(f"s_cmp_eq_u32 s{S_WAVE}, 3")
        A(f"s_cselect_b32 s{S_X1}, {DUMMY}, s{S_X1}")
        A(f"s_cselect_b32 s{S_XM}, 0, -1")
    if not c.pf_first: calc_xd()
    A(f"s_mov_b32 s{S_X+2}, {XBYTES}"); A(f"s_mov_b32 s{S_X+3}, 0x20000")
    A(f"s_mov_b32 s{S_Wt+2}, {WBYTES}"); A(f"s_mov_b32 s{S_Wt+3}, 0x20000")
    items = [it for g in c.groups.split("|") for it in g.split(",")]
    assert items[:len(c.direct)] == [f"x{r}" for r in c.direct]
    r0, nr = c.pf_rows
    A(f"v_mov_b32 v{V_T+5}, 0x40000000")
    if nr:
        nl = -(-nr * 18 // 4)
        A(f"s_mul_i32 s{S_T0}, s{S_WAVE}, {nl}")
        A(f"v_add_u32 v{t0}, s{S_T0}, v0")
        A(f"v_mul_u32_u24 v{t1}, 3641, v{t0}")
        A(f"s_mul_i32 s{S_T0}, s{S_G}, 18")
        A(f"v_lshrrev_b32 v{t1}, 16, v{t1}")
        A(f"v_mul_u32_u24 v{t2}, 18, v{t1}")
        A(f"v_sub_u32 v{t2}, v{t0}, v{t2}")
        A(f"v_add_u32 v{t2}, s{S_T0}, v{t2}")
        A(f"s_add_u32 s{S_T0}, s{S_W0}, {W-4}")
        A(f"v_lshlrev_b32 v{t2}, 7, v{t2}")
        A(f"s_mul_i32 s{S_T0}, s{S_T0}, 192")
        A(f"s_mov_b32 s{S_T1}, {ROWB}")
        A(f"v_add_u32 v{t2}, s{S_T0}, v{t2}")
        A(f"v_subrev_u32 v{t3}, {ROWB}, v{t2}")
        A(f"v_min_u32 v{t2}, v{t2}, v{t3}")
        A(f"v_add_u32 v{t3}, {r0}, v{t1}")
        A(f"v_mul_lo_u32 v{t3}, v{t3}, s{S_T1}")
        A(f"s_mov_b32 s{S_T2}, {XBYTES}")
        A(f"v_cmp_gt_u32 vcc, {nr*18}, v{t0}")
        A(f"v_add_u32 v{t3}, s{S_XBASE}, v{t3}")
        A(f"v_subrev_u32 v{t1}, s{S_T2}, v{t3}")
        A(f"v_min_u32 v{t3}, v{t3}, v{t1}")
        A(f"v_add_u32 v{t3}, v{t3}, v{t2}")
        A(f"v_cndmask_b32 v{t3}, v{V_T+5}, v{t3}, vcc")
        A(f"v_cmp_gt_u32 vcc, {nl}, v0")
        A("s_nop 1")
        A(f"v_cndmask_b32 v{V_PFX}, v{V_T+5}, v{t3}, vcc")
    def wpf(dst, s0, s1):
        per = (s1 - s0) * 48; tot = 5 * per
        nl = -(-tot // 128)
        if s0 == 0 and s1 == 15:
            A(f"s_mul_i32 s{S_T0}, s{S_T4}, {nl}")
            A(f"v_cmp_gt_u32 vcc, {nl}, v0")
            A(f"v_add_u32 v{t0}, s{S_T0}, v0")
            A(f"v_lshlrev_b32 v{t0}, 7, v{t0}")
            A(f"v_cndmask_b32 v{dst}, v{V_T+5}, v{t0}, vcc")
            return
        A(f"s_mul_i32 s{S_T0}, s{S_T4}, {nl}")
        A(f"v_add_u32 v{t0}, s{S_T0}, v0")
        sh = next(b for b in range(12, 23) if all((n_ * (-(-(1 << b) // per))) >> b == n_ // per for n_ in range(128 * nl + 64)))
        mg = -(-(1 << sh) // per)
        A(f"s_mov_b32 s{S_T1}, {mg}")
        A(f"v_mul_lo_u32 v{t1}, v{t0}, s{S_T1}")
        A(f"v_lshrrev_b32 v{t1}, {sh}, v{t1}")
        A(f"v_mul_u32_u24 v{t2}, {per}, v{t1}")
        A(f"v_sub_u32 v{t2}, v{t0}, v{t2}")
        A(f"v_lshlrev_b32 v{t2}, 7, v{t2}")
        A(f"v_mul_u32_u24 v{t1}, {92160}, v{t1}")
        A(f"v_cmp_gt_u32 vcc, {nl}, v0")
        A(f"v_add_u32 v{t2}, v{t2}, v{t1}")
        if s0: A(f"v_add_u32 v{t2}, {s0*6144}, v{t2}")
        else: A("s_nop 0")
        A(f"v_cndmask_b32 v{dst}, v{V_T+5}, v{t2}, vcc")
    wpf(V_PF, 0, c.pfw_split)
    if c.codepf:
        A(f"s_getpc_b64 s[{S_PC}:{S_PC+1}]")
        e.raw("L_pc:")
        A(f"s_sub_u32 s{S_PC}, s{S_PC}, L_pc-standalone__fft_conv__vision_kernel")
        A(f"s_subb_u32 s{S_PC+1}, s{S_PC+1}, 0")
        A(f"s_and_b32 s{S_PC+1}, s{S_PC+1}, 0xffff")
        A(f"s_mov_b32 s{S_PC+2}, CODE_BYTES")
        A(f"s_mov_b32 s{S_PC+3}, 0x20000")
        if c.codepf_all:
            A(f"v_lshlrev_b32 v{V_CPF}, 7, v0")
            A(f"s_lshl_b32 s{S_CPO}, s{S_WAVE}, 13")
        else:
            A(f"v_cmp_gt_u32 vcc, 2, v0")
            A(f"v_lshlrev_b32 v{t0}, 7, v0")
            A(f"s_lshl_b32 s{S_CPO}, s{S_T4}, 8")
            A(f"v_cndmask_b32 v{V_CPF}, v{V_T+5}, v{t0}, vcc")
    def calc_wd():
        A(f"s_add_u32 s{S_WM}, s{S_X0}, {WS}")
        A(f"s_add_u32 s{S_WM2}, s{S_WM}, 8192")
        A(f"s_cmp_ge_u32 s{S_WAVE}, 2")
        A(f"s_cselect_b32 s{S_WM2}, {DUMMY}, s{S_WM2}")
        A(f"s_cselect_b32 s{S_WMM}, 0, -1")
        A(f"v_lshrrev_b32 v{t0}, 4, v0")
        A(f"v_bfe_u32 v{t1}, v0, 2, 2")
        A(f"v_lshl_add_u32 v{t1}, v{t0}, 3, v{t1}")
        A(f"v_and_b32 v{t0}, 1, v{t0}")
        A(f"v_mul_u32_u24 v{t1}, 192, v{t1}")
        A(f"v_lshlrev_b32 v{t0}, 1, v{t0}")
        A(f"v_and_b32 v{t2}, 3, v0")
        A(f"s_lshr_b32 s{S_T0}, s{S_WAVE}, 1")
        A(f"v_xor_b32 v{t2}, v{t2}, v{t0}")
        A(f"s_mul_i32 s{S_T0}, s{S_T0}, {480*192}")
        A(f"v_lshl_add_u32 v{t1}, v{t2}, 4, v{t1}")
        A(f"s_and_b32 s{S_T1}, s{S_WAVE}, 1")
        A(f"s_mul_i32 s{S_T1}, s{S_T1}, {4*192}")
        A(f"s_add_u32 s{S_T0}, s{S_T0}, s{S_T1}")
        A(f"s_lshl_b32 s{S_T1}, s{S_G}, 6")
        A(f"s_add_u32 s{S_T0}, s{S_T0}, s{S_T1}")
        A(f"v_add_u32 v{V_WD}, s{S_T0}, v{t1}")
    if not c.pf_first: calc_wd()
    late = c.late_calc
    if c.order and c.pfw_split < 15: wpf(V_PF2, c.pfw_split, 15)
    def tail_calc():
        if c.pfw_split < 15 and not c.order: wpf(V_PF2, c.pfw_split, 15)
        A(f"s_mov_b32 s{S_O+2}, {XBYTES}")
        A(f"s_mov_b32 s{S_O+3}, 0x20000")
        A(f"v_and_b32 v{V_T}, 15, v0")
        A(f"v_lshrrev_b32 v{V_T+1}, 4, v0")
        A(f"s_lshr_b32 s{S_T0}, s{S_WAVE}, 1")
        A(f"s_lshl_b32 s{S_T0}, s{S_T0}, 4")
        A(f"v_add_u32 v{V_T+4}, s{S_T0}, v{V_T}")
        for kw in range(5):
            A(f"v_add_u32 v{V_T+2}, {4-kw}, v{V_T+4}")
            A(f"v_lshrrev_b32 v{V_T+3}, 1, v{V_T+2}")
            A(f"v_and_b32 v{V_T+3}, 2, v{V_T+3}")
            A(f"v_xor_b32 v{V_T+3}, v{V_T+3}, v{V_T+1}")
            A(f"v_mul_u32_u24 v{V_T+2}, 192, v{V_T+2}")
            A(f"v_lshl_add_u32 v{V_XAA+kw}, v{V_T+3}, 4, v{V_T+2}")
            A(f"v_add_u32 v{V_XAR+kw}, {X2}, v{V_XAA+kw}")
        A(f"s_and_b32 s{S_T1}, s{S_WAVE}, 1")
        A(f"v_and_b32 v{V_T+2}, 1, v{V_T+1}")
        A(f"v_xor_b32 v{V_T+2}, s{S_T1}, v{V_T+2}")
        A(f"v_lshlrev_b32 v{V_T+2}, 5, v{V_T+2}")
        A(f"v_lshrrev_b32 v{V_T+3}, 2, v0")
        A(f"v_lshl_add_u32 v{V_T+2}, v{V_T+3}, 6, v{V_T+2}")
        A(f"v_and_b32 v{V_T+3}, 3, v0")
        A(f"v_lshl_add_u32 v{V_T+2}, v{V_T+3}, 3, v{V_T+2}")
        A(f"v_add_u32 v{V_TR}, {WS}, v{V_T+2}")
        A(f"v_add_u32 v{V_T+2}, s{S_W0}, v{V_T+4}")
        A(f"v_mul_u32_u24 v{V_T+2}, 192, v{V_T+2}")
        A(f"v_lshl_add_u32 v{V_T+2}, v{V_T+1}, 3, v{V_T+2}")
        A(f"s_lshl_b32 s{S_T0}, s{S_G}, 1")
        A(f"s_add_u32 s{S_T0}, s{S_T0}, s{S_T1}")
        A(f"s_lshl_b32 s{S_T0}, s{S_T0}, 5")
        A(f"v_add_u32 v{V_OUT}, s{S_T0}, v{V_T+2}")
    if not late: tail_calc()
    A("s_waitcnt lgkmcnt(0)")
    A(f"s_mov_b32 s{S_X}, s4"); A(f"s_mov_b32 s{S_X+1}, s5")
    A(f"s_mov_b32 s{S_Wt}, s6"); A(f"s_mov_b32 s{S_Wt+1}, s7")
    e.lstamp("karg")
    if c.order:
        done_items = []
        for it in c.order.split(","):
            if it == "px": e.vmem(f"buffer_load_dword v{V_PFD}, v{V_PFX}, s[{S_X}:{S_X+3}], 0 offen", "pf")
            elif it == "pwa": e.vmem(f"buffer_load_dword v{V_PFD+1}, v{V_PF}, s[{S_Wt}:{S_Wt+3}], 0 offen", "pf")
            elif it == "pwb": e.vmem(f"buffer_load_dword v{V_PFD+2}, v{V_PF2}, s[{S_Wt}:{S_Wt+3}], 0 offen", "pf")
            elif it == "pc": e.vmem(f"buffer_load_dword v{V_PFD+3}, v{V_CPF}, s[{S_PC}:{S_PC+3}], s{S_CPO} offen", "pf")
            else:
                if c.pf_first and not done_items: calc_xd(); calc_wd()
                emit_now(e, x_ops(e, int(it[1:])) if it[0] == "x" else w_ops(e, int(it[1:]))); done_items.append(it)
        assert done_items == items[:c.nprol], (done_items, items[:c.nprol])
    else:
        for r in c.direct: emit_now(e, x_ops(e, r))
        if c.pf_rows[1]: e.vmem(f"buffer_load_dword v{V_PFD}, v{V_PFX}, s[{S_X}:{S_X+3}], 0 offen", "pf")
        e.vmem(f"buffer_load_dword v{V_PFD+1}, v{V_PF}, s[{S_Wt}:{S_Wt+3}], 0 offen", "pf")
        if c.codepf: e.vmem(f"buffer_load_dword v{V_PFD+3}, v{V_CPF}, s[{S_PC}:{S_PC+3}], s{S_CPO} offen", "pf")
    if c.outpf:
        A(f"s_mov_b32 s{S_O+2}, {XBYTES}"); A(f"s_mov_b32 s{S_O+3}, 0x20000")
        A(f"v_cmp_gt_u32 vcc, 2, v0")
        A(f"v_mul_u32_u24 v{t0}, {14*ROWB}, v0")
        A("s_nop 0")
        A(f"v_cndmask_b32 v{t0}, v{V_T+5}, v{t0}, vcc")
        e.vmem(f"buffer_load_dword v{V_PFD+2}, v{t0}, s[{S_O}:{S_O+3}], s{S_OB} offen", "pf")
    e.lstamp("pf")
    if c.warm:
        A(f"v_mul_u32_u24 v48, 0x9e37, v0")
        A(f"v_add_u32 v48, 0x3c6ef372, v48")
        for r in range(49, 80):
            A(f"v_mul_u32_u24 v{r}, 0x5bd1, v{r-1}")
            A(f"v_xor_b32 v{r}, v{r}, v{r-1}")
        for r in range(48, 80):
            A(f"v_and_b32 v{r}, 0x807f807f, v{r}")
            A(f"v_or_b32 v{r}, 0x3d003d00, v{r}")
        A("s_nop 1")
        for k in range(c.warm):
            a_ = 48 + 4 * (k % 4); b_ = 64 + 4 * ((k // 4 + k) % 4)
            A(f"v_mfma_f32_16x16x32_bf16 v[168:171], v[{a_}:{a_+3}], v[{b_}:{b_+3}], " + ("0" if k == 0 else "v[168:171]"))
    for it in ([] if c.order else items[len(c.direct):c.nprol]):
        emit_now(e, x_ops(e, int(it[1:])) if it[0] == "x" else w_ops(e, int(it[1:])))
    if c.diag:
        e.lstamp("issued")
        nv = len(e.vm)
        seen = []
        for idx_, tg in enumerate(e.vm):
            if idx_ + 1 < nv and e.vm[idx_ + 1] == tg and tg != "pf": continue
            A(f"s_waitcnt vmcnt({nv - 1 - idx_})"); e.lstamp(tg + "_back")
    if late: tail_calc()

def b_read_to(e, row, f, reg, tag):
    kw, cc = divmod(f, 3)
    kind, off = xslot(row)
    base = V_XAA if kind == "A" else V_XAR
    e.lds(f"ds_read_b128 {reg}, v{base+kw} offset:{off + cc*64}", tag)
def tr_read(e, s, kh, h):
    e.lds(f"ds_read_b64_tr_b16 {wreg(kh, s, 2*h)}, v{V_TR} offset:{(s % NWS)*WSLOT + (2*kh + h)*1024}", f"t{s}_{kh}")
def out_ops(e, a, pair, o):
    vo = V_O + 2 * pair
    pre = [lambda: e.A(f"s_add_u32 s{S_OROW}, s{S_OROW}, s{S_LAST}")] if o == e.cfg.nrows - 1 else []
    return pre + [lambda: e.A(f"v_cvt_pk_bf16_f32 v{vo}, v{a}, v{a+1}"),
            lambda: e.A(f"v_cvt_pk_bf16_f32 v{vo+1}, v{a+2}, v{a+3}"),
            lambda: e.vmem(f"buffer_store_dwordx2 v[{vo}:{vo+1}], v{V_OUT}, s[{S_O}:{S_O+3}], s{S_OROW} offen {(e.cfg.last_flags[1] if e.cfg.last_flags and o >= e.cfg.last_flags[0] else e.cfg.store_flags)}".rstrip(), f"o{o}"),
            lambda: e.A(f"s_add_u32 s{S_OROW}, s{S_OROW}, {ROWB}")]

def out_ops_abs(e, a, pair, o):
    vo = V_O + 2 * pair
    return [lambda: e.A(f"s_add_u32 s{S_T6}, s{S_OB}, {o*ROWB}" if o else f"s_mov_b32 s{S_T6}, s{S_OB}"),
            lambda: e.A(f"v_cvt_pk_bf16_f32 v{vo}, v{a}, v{a+1}"),
            lambda: e.A(f"v_cvt_pk_bf16_f32 v{vo+1}, v{a+2}, v{a+3}"),
            lambda: e.vmem(f"buffer_store_dwordx2 v[{vo}:{vo+1}], v{V_OUT}, s[{S_O}:{S_O+3}], s{S_T6} offen {e.cfg.store_flags}".rstrip(), f"o{o}")]

class Gaps:
    def __init__(self, M, cap=1):
        self.M = M; self.g = [[] for _ in range(M)]; self.cap = cap
    def put(self, p, fn):
        self.g[min(max(p, 0), self.M - 1)].append(fn)
    def seq(self, ops, start, step=1, cap=None):
        cap = self.cap if cap is None else cap
        p = start
        for op in ops:
            while p < self.M - 1 and len(self.g[p]) >= cap: p += 1
            self.put(p, op); p = min(p + step, self.M - 1) if p < self.M - 1 else p
        return p

def block_a(e):
    c = e.cfg; RA = c.RA
    def khs(i): return [kh for kh in range(5) if 0 <= i - 4 + kh < RA]
    stream = list(c.stream)
    groups = [g.split(",") for g in c.groups.split("|")]
    nextw = 1 + max(int(it[1:]) for g in groups for it in g if it[0] == "w")
    groups += [[f"w{s}"] for s in range(nextw, 15)]
    order = []; rows_av = []; s_av = []; sched = set()
    mk_items = {}
    for gi, g in enumerate(groups):
        order.append(("M", gi)); mk_items[gi] = g
        for it in g:
            (rows_av if it[0] == "x" else s_av).append(int(it[1:]))
        for s in sorted(s_av):
            for r in sorted(rows_av, key=lambda r: (-len(khs(r)), r)):
                if (r, s) not in sched: sched.add((r, s)); order.append((r, s))
    assert len(sched) == len(stream) * 15
    w_marker = {int(it[1:]): gi for gi, g in mk_items.items() for it in g if it[0] == "w"}
    row_marker = {int(it[1:]): gi for gi, g in mk_items.items() for it in g if it[0] == "x"}
    nearly = len(c.groups.split("|"))
    mf = []; first = {}; mpos = {}
    def flush_group(grp, flip):
        if not c.omajor:
            for ent in grp:
                for kh in khs(ent[0]): mf.append((ent, kh))
            return
        for s_ in sorted(set(ent[1] for ent in grp)):
            lst = [(ent, kh) for ent in grp if ent[1] == s_ for kh in khs(ent[0])]
            lst.sort(key=lambda z: (z[0][0] - 4 + z[1], z[0][0]), reverse=flip[0])
            flip[0] = not flip[0]
            mf.extend(lst)
    grp = []; flip = [False]
    for ent in order + [("M", None)]:
        if ent[0] == "M":
            flush_group(grp, flip); grp = []
            if ent[1] is not None: mpos[ent[1]] = len(mf)
        else: grp.append(ent)
    for q_, (ent, kh) in enumerate(mf): first.setdefault(ent, q_)
    M = len(mf)
    mark_at = {}; prev = 0
    for p in sorted(mpos):
        q = mpos[p]
        if p >= nearly: q = max(prev, mpos[p] - c.wearly)
        elif p >= 1: q = max(prev, mpos[p] - c.early)
        mark_at[p] = q; prev = q
    tasks = []
    pairs = [ent for ent in order if ent[0] != "M"]
    last_use = {}
    for q, (ent, kh) in enumerate(mf): last_use[ent] = q
    for ent in pairs:
        tasks.append(dict(kind="b", ent=ent, ready=mark_at[row_marker[ent[0]]], due=first[ent], done=False))
    for s in range(15):
        for kh in range(5):
            due = min(q for q, (ent, k2) in enumerate(mf) if ent[1] == s and k2 == kh)
            for h in range(2):
                tasks.append(dict(kind="t", s=s, kh=kh, h=h, ready=mark_at[w_marker[s]], due=due, done=False))
    tasks.sort(key=lambda t: (t["due"], 0 if t["kind"] == "t" else 1))
    bslots = [None] * 15; bfree_at = [-1] * 15; bassign = {}
    def issue(t, q):
        if t["kind"] == "t": tr_read(e, t["s"], t["kh"], t["h"])
        else:
            k = min(range(15), key=lambda j: bfree_at[j])
            if bfree_at[k] >= q and bslots[k] is not None: return False
            ent = t["ent"]
            bslots[k] = ent; bfree_at[k] = last_use[ent]; bassign[ent] = k
            reg = V_B + 60 + 4 * k
            b_read_to(e, ent[0], ent[1], f"v[{reg}:{reg+3}]", f"pb{ent[0]}_{ent[1]}")
        t["done"] = True
        return True
    items = [it for g in c.groups.split("|") for it in g.split(",")]
    dplan = {}
    rest = [(it[0], int(it[1:])) for it in items[c.nprol:]]
    issued_w = [int(it[1:]) for it in items if it[0] == "w"]
    dplan[0] = list(rest)
    for s in range(max(issued_w) + 1, min(4, 15)): dplan[0].append(("w", s))
    for s in range(max(max(issued_w) + 1, 4), 15):
        dplan.setdefault(w_marker[s - 3], []).append(("w", s))
    if c.pfw_split < 15 and not c.order: dplan.setdefault(w_marker[c.pfwb_after], []).append(("pfw", 0))
    planned = []
    for part in c.def_plan.split("|"):
        wm, rows_ = part.split(":")
        rows_ = [int(r) for r in rows_.split(",")]
        dplan.setdefault(w_marker[int(wm)], []).extend([("x", r) for r in rows_]); planned += rows_
    late_rows = [r for r in c.deferred if r not in planned] + ([r for r in (8, 9, 10, 11, 12) if r not in planned and r not in c.stream] if c.merge else [12, 13])
    def ops_of(kind, a):
        if kind == "x": return x_ops(e, a)
        if kind == "w": return w_ops(e, a)
        return [lambda: e.vmem(f"buffer_load_dword v{V_PFD+2}, v{V_PF2}, s[{S_Wt}:{S_Wt+3}], 0 offen", "pf")]
    dq = []
    marks_sorted = sorted(mark_at)
    for p in marks_sorted:
        ops = []
        for kind, a in dplan.get(p, []): ops += ops_of(kind, a)
        if not ops: continue
        lo = mark_at[p]; hi = mark_at[p+1] if p + 1 in mark_at else M - 2
        span = 0 if p < nearly - 1 else max(hi - lo - len(ops) // 2, 0)
        for k, op in enumerate(ops): dq.append((lo + (k * span) // len(ops), op))
    dq.reverse()
    last_dma = [-10, False]
    def run_dma_op(force=False):
        _, op = dq.pop()
        n0 = len(e.L); op()
        if " lds" in e.L[-1] and re.search(r"\bm0,", e.L[n0-1]): e.L.insert(n0, "  s_nop 0")
    need = {p: list(mk_items[p]) for p in marks_sorted}
    prevw = {}
    for p in marks_sorted:
        ws = [int(it[1:]) for it in mk_items[p] if it[0] == "w"]
        if ws and ws[0] >= 1: prevw[p] = ws[0] - 1
    cnt = lambda tg: 3 if tg[0] == "w" else 2
    inited = set()
    deferred = list(c.deferred)
    par = len(deferred) % 2
    def setreg(k, f):
        b = V_B + ((k + par) % 2) * 60 + 4 * f
        return f"v[{b}:{b+3}]"
    vis = {}
    k0 = 0
    if par: vis[0] = [deferred[0]]; k0 = 1
    for k_ in range(k0, len(deferred), 2): vis[k_] = deferred[k_:k_+2]
    if c.merge: vis[len(deferred)] = [RA, RA + 1]
    dpre = c.dpre if par == 0 else 0
    q_d = M - dpre if dpre else None
    d_issued = []
    pre = {}
    for p in marks_sorted:
        if p >= nearly:
            pre.setdefault(max(mark_at[p] - 2, mark_at[p-1] + 1), []).append(("vm", p))
            pre.setdefault(max(mark_at[p] - 1, mark_at[p-1] + 1), []).append(("lg", p))
    def do_vm(p):
        while not all(e.vm.count(tg) == cnt(tg) for tg in need[p]): run_dma_op()
        e.wait_vm(*need[p])
    def do_lg(p, q):
        if p not in prevw: return
        sp = prevw[p]
        for t in tasks:
            if t["kind"] == "t" and t["s"] == sp and not t["done"]: issue(t, q)
        idxs = [i_ for i_, tg in enumerate(e.lg) if tg.startswith(f"t{sp}_")]
        e.wait_lg(e.lg[max(idxs)])
    for q in range(M):
        for kind, p in pre.get(q, []):
            if mark_at[p] > q:
                (do_vm(p) if kind == "vm" else do_lg(p, q))
        for p in marks_sorted:
            if mark_at[p] == q:
                do_lg(p, q); do_vm(p)
                e.A("s_barrier")
                if p == 0:
                    for _ in range(c.burst):
                        if dq: run_dma_op()
                if p in (0, nearly - 1, w_marker[4], w_marker[9], w_marker[14]): e.lstamp(f"M{p}:" + ",".join(mk_items[p]))
        if q_d is not None and q == q_d:
            while not all(e.vm.count(f"x{r_}") == 2 for r_ in vis[0]): run_dma_op()
            e.wait_vm(*[f"x{r_}" for r_ in vis[0]]); e.A("s_barrier")
        ent, kh = mf[q]
        late = [t for t in tasks if not t["done"] and t["due"] <= q]
        if late:
            for t in late:
                assert t["ready"] <= q, (t, q)
                ok = issue(t, q); assert ok
            for t in tasks:
                if t["done"] or t["ready"] > q: continue
                if len(e.lg) - e.lg_done >= 13: break
                if t["kind"] == "b" and t["due"] - q > c.look: continue
                issue(t, q)
        n0 = len(e.L)
        e.wait_lg(f"t{ent[1]}_{kh}", f"pb{ent[0]}_{ent[1]}", age=5)
        o = ent[0] - 4 + kh; a = V_ACCA + 4 * o
        src = f"v[{a}:{a+3}]" if o in inited else "0"
        inited.add(o)
        reg = V_B + 60 + 4 * bassign[ent]
        e.mfma(f"v_mfma_f32_16x16x32_bf16 v[{a}:{a+3}], {wreg(kh, ent[1])}, v[{reg}:{reg+3}], {src}")
        budget = 2
        early_phase = q < mark_at[nearly - 1]
        if early_phase: budget = 4
        def try_lds():
            for t in tasks:
                if t["done"] or t["ready"] > q: continue
                if t["kind"] == "b" and t["due"] - q > c.look: continue
                if len(e.lg) - e.lg_done >= 14: return False
                if issue(t, q + 1): return True
            return False
        def try_dma():
            if dq and dq[-1][0] <= q: run_dma_op(); return True
            return False
        def try_d():
            if q_d is not None and q >= q_d and len(d_issued) < 15 and len(e.lg) - e.lg_done < 14:
                f = len(d_issued); d_issued.append(f)
                b_read_to(e, deferred[0], f, setreg(0, f), f"d0_{f}"); return True
            return False
        _lds = try_lds
        def try_lds(): return _lds() or try_d()
        turn = [try_lds, try_dma]
        k = 0
        while budget > 0:
            if turn[k % 2]() or turn[(k + 1) % 2](): budget -= 1; k += 1
            else: break
    while dq: run_dma_op()
    if c.codepf2: e.vmem(f"buffer_load_dword v{V_PFD+3}, v{V_CPF}, s[{S_PC}:{S_PC+3}], s{S_CPO} offen", "pf")
    e.lstamp("streamend")
    seq = deferred + [RA]
    if q_d is None:
        e.wait_vm(*[f"x{r_}" for r_ in vis[0]]); e.A("s_barrier")
    for f in range(len(d_issued), 15): b_read_to(e, seq[0], f, setreg(0, f), f"d0_{f}")
    for k, r in enumerate(deferred):
        mfs = []
        for kh in khs(r):
            o = r - 4 + kh; a = V_ACCA + 4 * o
            for f in range(15):
                src = f"v[{a}:{a+3}]" if o in inited else "0"
                inited.add(o)
                mfs.append((f, f"v_mfma_f32_16x16x32_bf16 v[{a}:{a+3}], {wreg(kh, f)}, {setreg(k, f)}, {src}"))
        Mk = len(mfs); nxt = seq[k + 1]
        G = Gaps(Mk)
        if (k + 1) in vis:
            e.wait_vm(*[f"x{r_}" for r_ in vis[k+1]]); e.A("s_barrier")
        span = max(Mk - 6, 15)
        for f in range(15): G.put(min((f * span) // 15, Mk - 1), (lambda f=f: b_read_to(e, nxt, f, setreg(k + 1, f), f"d{k+1}_{f}")))
        if c.merge and k >= 1:
            op_ = deferred[k-1]
            assert op_ <= 3
            G.seq(out_ops_abs(e, V_ACCA + 4 * op_, 1, op_), min(9, Mk - 6), step=1, cap=2)
        ntake = 2 if (k < 1 or c.merge) else 1
        pos = 2
        for _ in range(ntake):
            if late_rows and (Mk >= 30 or (c.merge and Mk >= 15 and _ == 0)):
                pos = G.seq(x_ops(e, late_rows.pop(0)), pos, step=1, cap=2)
        for p_, (f, s_) in enumerate(mfs):
            if p_ < 15: e.wait_lg(f"d{k}_{f}", age=5)
            e.mfma(s_)
            for fn in G.g[p_]: fn()
    e.late_rows = late_rows
    e.dtag = f"d{len(deferred)}"
    e.lstamp("defend")

def step(e, i, chains, last_row, extra_out=(), extra_dma=(), prev_tags=None, skip=None):
    c = e.cfg; RA = c.RA
    mf = []
    for kh in chains:
        o = i - 4 + kh; a = acc(o)
        for f in range(15):
            src = "0" if (kh == 4 and f == 0) else f"v[{a}:{a+3}]"
            mf.append((f, f"v_mfma_f32_16x16x32_bf16 v[{a}:{a+3}], {wreg(kh, f)}, {breg(i, f)}, {src}"))
    M = len(mf)
    U = M - 15 if skip else M
    G = Gaps(M)
    nxt = i + 1
    nn = i + 2
    S0 = (RA + 2) if c.merge else NA
    did_bar = nxt <= last_row and nxt >= S0
    if did_bar: e.A("s_barrier")
    if nxt <= last_row:
        span = max(U - 9, 15) if U >= 15 else U
        for f in range(15): G.put(min((f * span) // 15, U - 1), (lambda f=f: b_read_to(e, nxt, f, breg(nxt, f), f"b{nxt}_{f}")))
    r4 = i + 4
    if i >= NA and r4 <= last_row: G.seq(x_ops(e, r4, seq=True), c.dma_pos, step=2)
    pos_ = 1
    for r_ in extra_dma: pos_ = G.seq(x_ops(e, r_), pos_ if c.merge else 1, step=1, cap=(2 if M <= 30 else 1))
    tail = []
    if 0 in chains and (i - 4 >= RA or c.merge):
        o = i - 4; endp = chains.index(0) * 15 + 14
        ops = out_ops(e, acc(o), 0, o)
        if endp + 14 < M: G.seq(ops, max(endp + 9, c.out_pos if M == 75 else 0), step=1)
        else: tail = ops
    for k, (a, o) in enumerate(extra_out):
        if c.merge: G.seq(out_ops_abs(e, a, 1, o), 9, step=1)
        else: G.seq(out_ops(e, a, k % 2, o), (k * M) // max(len(extra_out), 1) + 1, step=1, cap=(2 if M <= 45 else 1))
    if nn <= last_row and nn >= S0:
        G.put(U - 3, lambda: e.wait_vm(f"x{nn}", force=(i >= NA)))
    short = U < 45
    lab = f"{i if i < NA or i >= c.nrows else 'l' + str((i - NA) % 4)}"
    for p, (f, s) in enumerate(mf):
        if skip and p == U:
            e.A(skip); e.A(f"s_cbranch_scc1 L_skip{lab}")
            mark = len(e.L)
        if prev_tags and p < 15: e.wait_lg(prev_tags(f), age=5)
        e.mfma(s)
        for fn in G.g[p]: fn()
        if p == U - 2 and nxt <= last_row and not short: e.wait_lg(f"b{nxt}_14")
    if skip:
        fill = [l for l in e.L[mark:] if "v_mfma" not in l]
        if fill:
            e.A(f"s_branch L_join{lab}")
            e.raw(f"L_skip{lab}:")
            if any("v_cvt" in l for l in fill): e.A("s_nop 7"); e.A("s_nop 1")
            e.L.extend(fill)
            e.raw(f"L_join{lab}:")
        else:
            e.raw(f"L_skip{lab}:")
    if tail:
        e.A("s_nop 7"); e.A("s_nop 1")
        for fn in tail: fn()
    if nxt <= last_row and short and (nn <= last_row and nn >= S0): e.wait_lg(f"b{nxt}_14")

def build(cfg):
    e = Em(cfg); n = cfg.nrows; RA = cfg.RA
    last_row = n + 3
    for l in HEADER.strip("\n").split("\n"): e.raw(l)
    e.raw(f"; @launch grid=(252,1,1) block=(256,1,1) lds={LDS_BYTES}")
    e.raw('.amdgcn_target "amdgcn-amd-amdhsa--gfx950"')
    e.raw(".text")
    e.raw(".globl standalone__fft_conv__vision_kernel")
    if cfg.align12: e.raw(".p2align 12")
    e.raw(".p2align 8")
    e.raw(".type standalone__fft_conv__vision_kernel,@function")
    e.raw("standalone__fft_conv__vision_kernel:")
    prologue(e)
    block_a(e)
    if cfg.merge:
        RA_ACC[0] = RA
        def chains_for(i): return [kh for kh in range(5) if 0 <= i - 4 + kh < n]
        flush = {RA: [cfg.deferred[-1]]}
        lr = list(e.late_rows) + [13, 14, 15]
        predma = {RA: lr[:2], RA + 1: lr[2:4], RA + 2: lr[4:6], RA + 3: lr[6:]}
    else:
        assert not e.late_rows
        def chains_for(i): return [kh for kh in range(5) if RA <= i - 4 + kh < n]
        flush = {RA + 1: [0, 1], RA + 2: [2, 3, 4], RA + 3: [5, 6, 7]}
        predma = {RA: [14], RA + 1: [15]}
    i = RA
    while i < NA:
        ex = [(V_ACCA + 4 * o, o) for o in flush.get(i, [])]
        pt = (lambda f: f"{e.dtag}_{f}") if i == RA else (lambda f, i=i: f"b{i}_{f}")
        step(e, i, chains_for(i), last_row, ex, predma.get(i, []), pt); i += 1
    if cfg.codepf3: e.vmem(f"buffer_load_dword v{V_PFD+3}, v{V_CPF}, s[{S_PC}:{S_PC+3}], s{S_CPO} offen", "pf")
    e.lstamp("rampend")
    e.A(f"s_add_u32 s{S_T0}, s{S_XBASE}, {(NA+4)*ROWB}")
    e.A(f"s_sub_u32 s{S_T1}, s{S_T0}, {XBYTES}")
    e.A(f"s_min_u32 s{S_XROW}, s{S_T0}, s{S_T1}")
    def skip_of(ii):
        if not cfg.skipdup: return None
        if ii == n - 1 or (cfg.loop and NA <= ii < n and (ii - NA) % 4 == (n - 1 - NA) % 4):
            return f"s_cmp_eq_u32 s{S_CNT}, s{S_DUP}" if cfg.loop else f"s_cmp_eq_u32 s{S_DUP}, 0"
        if n <= ii < last_row: return f"s_cmp_eq_u32 s{S_DUP}, 0"
        return None
    def last_step(ii):
        if cfg.skipdup:
            e.A(f"s_cmp_eq_u32 s{S_DUP}, 0"); e.A("s_cbranch_scc1 L_done")
        step(e, ii, chains_for(ii), last_row, prev_tags=(lambda f, ii=ii: f"b{ii}_{f}"))
        if cfg.skipdup: e.raw("L_done:")
    if not cfg.loop:
        while i <= last_row:
            if i == last_row: last_step(i)
            else: step(e, i, chains_for(i), last_row, prev_tags=(lambda f, i=i: f"b{i}_{f}"), skip=skip_of(i))
            i += 1
            if i <= last_row: e.lstamp(f"step{i}")
    else:
        steady = list(range(NA, n)); nst = len(steady)
        start = len(e.L); seg = []
        for ii in steady:
            s0 = len(e.L)
            step(e, ii, chains_for(ii), last_row, prev_tags=(lambda f, ii=ii: f"b{ii}_{f}"), skip=skip_of(ii))
            seg.append(e.L[s0:])
        e.L = e.L[:start]
        for k in range(4, nst):
            a, b = seg[k % 4], seg[k]
            assert len(a) == len(b), f"non periodic step {steady[k]}"
            for j in range(len(a)):
                if a[j] != b[j]:
                    ma = re.fullmatch(r"  s_waitcnt vmcnt\((\d+)\)", a[j]); mb = re.fullmatch(r"  s_waitcnt vmcnt\((\d+)\)", b[j])
                    assert ma and mb, (a[j], b[j])
                    a[j] = f"  s_waitcnt vmcnt({min(int(ma.group(1)), int(mb.group(1)))})"
        full, rem = divmod(nst, 4)
        assert rem != 0 and full == 1
        e.A(f"s_mov_b32 s{S_CNT}, {full}")
        e.raw(".p2align 3")
        e.raw("L_loop:")
        for k in range(4):
            if k == rem:
                e.A(f"s_cmp_eq_u32 s{S_CNT}, 0")
                e.A("s_cbranch_scc1 L_down")
                e.A(f"s_sub_u32 s{S_CNT}, s{S_CNT}, 1")
            e.L.extend(seg[k])
        e.A("s_branch L_loop")
        e.raw("L_down:")
        if cfg.wbl2:
            e.A(f"s_lshr_b32 s{S_T6}, s2, 3"); e.A(f"s_add_u32 s{S_T6}, s{S_T6}, s{S_WAVE}")
            e.A(f"s_cmp_lg_u32 s{S_T6}, 0"); e.A("s_cbranch_scc1 L_nowb")
            e.A(f"buffer_wbl2 {cfg.wbl2}")
            e.raw("L_nowb:")
        e.lstamp("loopend")
        i = n
        while i <= last_row:
            if i == last_row: last_step(i)
            else: step(e, i, chains_for(i), last_row, prev_tags=(lambda f, i=i: f"b{i}_{f}"), skip=skip_of(i))
            i += 1
    if cfg.spin:
        e.lstamp("mfmaend"); e.A("s_waitcnt vmcnt(0) lgkmcnt(0)")
        ia, ib, K = e.lnames.index(cfg.spin[0]), e.lnames.index(cfg.spin[1]), cfg.spin[2]
        e.A(f"s_sub_u32 s50, s{64+2*ib}, s{64+2*ia}")
        e.A(f"s_mul_i32 s50, s50, {K}")
        e.A("s_memtime s[52:53]"); e.A("s_waitcnt lgkmcnt(0)")
        e.raw("L_spin:")
        e.A("s_memtime s[54:55]"); e.A("s_waitcnt lgkmcnt(0)")
        e.A("s_sub_u32 s51, s54, s52"); e.A("s_cmp_lt_u32 s51, s50"); e.A("s_cbranch_scc1 L_spin")
    elif cfg.lst:
        e.lstamp("mfmaend"); e.A("s_waitcnt vmcnt(0)"); e.lstamp("drain")
        e.A("s_memrealtime s[62:63]")
        e.A("s_waitcnt lgkmcnt(0)")
        e.A(f"s_load_dwordx2 s[{S_WS}:{S_WS+1}], s[0:1], 32")
        e.A(f"v_mov_b32 v{V_ST}, 0")
        for k in range(e.nl): e.A(f"v_writelane_b32 v{V_ST}, s{64+2*k}, {k}")
        e.A(f"v_writelane_b32 v{V_ST}, s60, 62"); e.A(f"v_writelane_b32 v{V_ST}, s62, 63")
        e.A("s_waitcnt lgkmcnt(0)")
        e.A(f"s_lshl_b32 s{S_T0}, s2, 2")
        e.A(f"s_add_u32 s{S_T0}, s{S_T0}, s{S_WAVE}")
        e.A(f"s_lshl_b32 s{S_T0}, s{S_T0}, 8")
        e.A(f"s_add_u32 s{S_WS}, s{S_WS}, s{S_T0}")
        e.A(f"s_addc_u32 s{S_WS+1}, s{S_WS+1}, 0")
        e.A("v_lshlrev_b32 v1, 2, v0")
        e.A(f"global_store_dword v1, v{V_ST}, s[{S_WS}:{S_WS+1}]")
        print("lstamps:", e.nl, e.lnames)
    if cfg.xspin is not None:
        e.A("s_waitcnt vmcnt(0) lgkmcnt(0)")
        mask = sum(1 << k for k in cfg.xspin)
        e.A("s_and_b32 s52, s2, 7"); e.A(f"s_lshr_b32 s52, {mask}, s52"); e.A("s_and_b32 s52, s52, 1")
        e.A("s_cmp_eq_u32 s52, 0"); e.A("s_cbranch_scc1 L_nospin")
        e.A("s_memrealtime s[54:55]"); e.A("s_waitcnt lgkmcnt(0)")
        e.raw("L_xs:")
        e.A("s_memrealtime s[56:57]"); e.A("s_waitcnt lgkmcnt(0)")
        e.A("s_sub_u32 s53, s56, s54"); e.A("s_cmp_lt_u32 s53, 1000"); e.A("s_cbranch_scc1 L_xs")
        e.raw("L_nospin:")
    if cfg.endwait: e.A("s_waitcnt vmcnt(0)")
    e.raw("L_end:")
    e.A("s_endpgm")
    e.raw("L_code_end:")
    e.raw('.section .rodata,"a"')
    e.raw(".p2align 6")
    e.raw(".amdhsa_kernel standalone__fft_conv__vision_kernel")
    for l in ("next_free_vgpr 512", "next_free_sgpr " + ("100" if (cfg.lst or cfg.spin) else "64"), "accum_offset 256", "group_segment_fixed_size 0", "kernarg_size 40",
              "user_sgpr_count 2", "user_sgpr_kernarg_segment_ptr 1", "system_sgpr_workgroup_id_x 1"):
        e.raw("  .amdhsa_" + l)
    e.raw(".end_amdhsa_kernel")
    out = []
    for l in e.L:
        if " lds" in l and "buffer_load" in l and out and re.search(r"\bm0,", out[-1]): out.append("  s_nop 0")
        out.append(l)
    e.L = out
    import subprocess, tempfile, os
    size = 0x7fff
    for _ in range(2):
        txt = "\n".join(l.replace("CODE_BYTES", str(size)) for l in e.L) + "\n"
        with tempfile.TemporaryDirectory() as td:
            open(td + "/k.s", "w").write(txt)
            subprocess.run(["clang", "-x", "assembler", "-target", "amdgcn-amd-amdhsa", "-mcpu=gfx950", "-c", td + "/k.s", "-o", td + "/k.o"], check=True)
            dis = subprocess.run(["llvm-objdump", "-d", "--mcpu=gfx950", td + "/k.o"], capture_output=True, text=True).stdout
        sym = {}
        for l in dis.splitlines():
            m_ = re.match(r"([0-9a-f]{16}) <(.*)>:", l)
            if m_: sym[m_.group(2)] = int(m_.group(1), 16)
        size = sym["L_end"] + 4 - sym["standalone__fft_conv__vision_kernel"]
        assert size - 4 > sym["L_pc"] - sym["standalone__fft_conv__vision_kernel"] if "L_pc" in sym else True
    e.code_size = size
    e.L = [l.replace("CODE_BYTES", str(size)) for l in e.L]
    open(cfg.name, "w").write("\n".join(e.L) + "\n")
    return e

if __name__ == "__main__":
    ap = argparse.ArgumentParser()
    ap.add_argument("-o", default=Cfg.name)
    ap.add_argument("--lst", action="store_true")
    ap.add_argument("--noloop", action="store_true")
    ap.add_argument("--store", default="")
    ap.add_argument("--look", type=int, default=12)
    ap.add_argument("--early", type=int, default=8)
    ap.add_argument("--wearly", type=int, default=26)
    ap.add_argument("--nocodepf", action="store_true")
    ap.add_argument("--pf_first", action="store_true")
    ap.add_argument("--order", default="")
    ap.add_argument("--last_flags", default="")
    ap.add_argument("--xspin", default="")
    ap.add_argument("--kwait0", action="store_true")
    ap.add_argument("--warm", type=int, default=0)
    ap.add_argument("--rtstamp", action="store_true")
    ap.add_argument("--outpf", action="store_true")
    ap.add_argument("--wbl2", default="")
    ap.add_argument("--burst", type=int, default=0)
    ap.add_argument("--no_merge", action="store_true")
    ap.add_argument("--no_omajor", action="store_true")
    ap.add_argument("--no_skipdup", action="store_true")
    ap.add_argument("--dpre", type=int, default=14)
    ap.add_argument("--early_calc", action="store_true")
    ap.add_argument("--endwait", action="store_true")
    ap.add_argument("--spin", default="")
    ap.add_argument("--codepf2", action="store_true")
    ap.add_argument("--codepf3", action="store_true")
    ap.add_argument("--codepf_all", action="store_true")
    ap.add_argument("--stepst", action="store_true")
    ap.add_argument("--dma_pos", type=int, default=18)
    ap.add_argument("--out_pos", type=int, default=0)
    ap.add_argument("--diag", action="store_true")
    ap.add_argument("--groups", default=Cfg.groups)
    ap.add_argument("--nprol", type=int, default=4)
    ap.add_argument("--direct", default="4,5")
    ap.add_argument("--pf_rows", default="6,2")
    ap.add_argument("--stream", default="4,5,6,7")
    ap.add_argument("--deferred", default="3,8,2,9,1,10,0,11")
    ap.add_argument("--def_plan", default=Cfg.def_plan)
    ap.add_argument("--pfw_split", type=int, default=15)
    ap.add_argument("--pfwb_after", type=int, default=3)
    a = ap.parse_args()
    cfg = Cfg()
    cfg.name = a.o; cfg.lst = a.lst; cfg.loop = not a.noloop; cfg.store_flags = a.store
    cfg.direct = [int(x) for x in a.direct.split(",")]; cfg.pf_rows = tuple(int(x) for x in a.pf_rows.split(","))
    cfg.stream = [int(x) for x in a.stream.split(",")]; cfg.deferred = [int(x) for x in a.deferred.split(",")]; cfg.def_plan = a.def_plan
    cfg.groups = a.groups; cfg.nprol = a.nprol; cfg.pfw_split = a.pfw_split; cfg.pfwb_after = a.pfwb_after; cfg.diag = a.diag; cfg.dma_pos = a.dma_pos; cfg.out_pos = a.out_pos; cfg.stepst = a.stepst; cfg.codepf2 = a.codepf2; cfg.codepf_all = a.codepf_all; cfg.codepf3 = a.codepf3; cfg.spin = (lambda p: (p[0], p[1], int(p[2])) )(a.spin.split("/")) if a.spin else None
    if cfg.spin: cfg.lst = True
    cfg.endwait = a.endwait; cfg.late_calc = not a.early_calc; cfg.dpre = a.dpre; cfg.omajor = not a.no_omajor; cfg.skipdup = not a.no_skipdup; cfg.merge = not a.no_merge; cfg.burst = a.burst; cfg.wbl2 = a.wbl2; cfg.outpf = a.outpf; cfg.rtstamp = a.rtstamp; cfg.warm = a.warm; cfg.kwait0 = a.kwait0; cfg.xspin = [int(x) for x in a.xspin.split(',')] if a.xspin else None; cfg.last_flags = (int(a.last_flags.split(':')[0]), a.last_flags.split(':')[1]) if a.last_flags else None; cfg.order = a.order; cfg.pf_first = a.pf_first; cfg.look = a.look; cfg.early = a.early; cfg.wearly = a.wearly; cfg.codepf = not a.nocodepf
    e = build(cfg)
    print("lines", len(e.L), "LDS", LDS_BYTES, "code", e.code_size)
```
